```python
import torch

def _softmax(x, axis=-1):
    return torch.softmax(x, dim=axis)
def _gelu(x):
    return torch.nn.functional.gelu(x, approximate="tanh")
def _silu(x):
    return torch.nn.functional.silu(x)
def _sigmoid(x):
    return torch.sigmoid(x)
def _layernorm(x, axis=-1, eps=1e-5):
    m = x.mean(dim=axis, keepdim=True)
    v = x.var(dim=axis, keepdim=True, unbiased=False)
    return (x - m) / torch.sqrt(v + eps)
def _scatter_add(tgt, idx, src, axis=0):
    return tgt.clone().index_add_(axis, idx, src)
def _segment_sum(src, seg, n):
    out = torch.zeros((n,) + src.shape[1:], dtype=src.dtype)
    return out.index_add_(0, seg, src)
def _pad(x, pw):
    flat = tuple(v for pair in reversed(pw) for v in pair)
    return torch.nn.functional.pad(x, flat)

kernel_name = 'concat_heads__sliding_block__ssm_conv_h3__prompt'

def setup_inputs():

    _w = (lambda a: (lambda t: t.to(torch.bfloat16) if t.is_floating_point() else t)(torch.as_tensor(a)))
    def _A_setup():
        B, S, D = 1, 2048, 512
        return {
            "x": _w((lambda *s: torch.randn(*s, dtype=torch.bfloat16) * 0.4)(B, S, D)),
            "wqkv": _w((lambda *s: torch.randn(*s, dtype=torch.bfloat16) * 0.4)(D, 3 * D)),
            "wo": _w((lambda *s: torch.randn(*s, dtype=torch.bfloat16) * 0.05)(D, D)),
        }
    _A_in = _A_setup()

    def _B_setup():
        B, S, D = 1, 2048, 512
        ks = 4
        return {
            "q": _w((lambda *s: torch.randn(*s, dtype=torch.bfloat16) * 0.05)(B, S, D)),
            "k": _w((lambda *s: torch.randn(*s, dtype=torch.bfloat16) * 1.6)(B, S, D)),
            "v": _w((lambda *s: torch.randn(*s, dtype=torch.bfloat16) * 1.6)(B, S, D)),
            "shift_k": _w((lambda *s: torch.randn(*s, dtype=torch.bfloat16) * 1.6)(D, ks) * 0.5),
            "ssm_k": _w((lambda *s: torch.randn(*s, dtype=torch.bfloat16) * 3.2)(D, S) * (1.0 / S ** 0.5)),
            "ssm_D": _w((lambda *s: torch.randn(*s, dtype=torch.bfloat16) * 1.6)(D)),
        }
    _B_in = _B_setup()

    return {
        "A_x": _A_in["x"],
        "A_wqkv": _A_in["wqkv"],
        "A_wo": _A_in["wo"],
        "B_q": _B_in["q"],
        "B_k": _B_in["k"],
        "B_v": _B_in["v"],
        "B_shift_k": _B_in["shift_k"],
        "B_ssm_k": _B_in["ssm_k"],
        "B_ssm_D": _B_in["ssm_D"],
    }

def reference(A_x, A_wqkv, A_wo, B_q, B_k, B_v, B_shift_k, B_ssm_k, B_ssm_D):
    def _A_ref(x, wqkv, wo):
        B, S, D = x.shape
        H = 32; Dh = D // H; W = 256
        qkv = (lambda x, *d: x.permute(*d))((x @ wqkv).reshape(B, S, 3, H, Dh), 2, 0, 3, 1, 4)
        q, k, v = qkv[0], qkv[1], qkv[2]
        scores = torch.einsum("bhqd,bhkd->bhqk", q, k) * (Dh ** -0.5)
        idx = torch.arange(S)
        mask = (idx[:, None] - idx[None, :] >= 0) & (idx[:, None] - idx[None, :] < W)
        scores = torch.where(mask[None, None], scores, -1e9)
        p = _softmax(scores, axis=-1)
        o = torch.einsum("bhqk,bhkd->bhqd", p, v)
        return (lambda x, *d: x.permute(*d))(o, 0, 2, 1, 3).reshape(B, S, D) @ wo

    def _B_ref(q, k, v, shift_k, ssm_k, ssm_D):
        B, S, D = q.shape
        ks = shift_k.shape[-1]
        k_pad = _pad(k, ((0, 0), (ks - 1, 0), (0, 0)))
        k_shift = torch.zeros_like(k)
        for t in range(ks):
            k_shift = k_shift + k_pad[:, t:t + S, :] * shift_k[:, ks - 1 - t][None, None, :]
        kv = k_shift * v
        L = 2 * S
        kv_pad = _pad(kv, ((0, 0), (0, S), (0, 0)))
        kf_pad = _pad(ssm_k, ((0, 0), (0, S)))
        kv_f = (lambda x, axes=(-2,-1): torch.fft.rfft2(x.float(), dim=axes))(kv_pad[:, None, :, :], axes=(1, 2))
        kf_f = (lambda x, axes=(-2,-1): torch.fft.rfft2(x.float(), dim=axes))(kf_pad[:, None, :], axes=(1, 2))
        kf_f = (lambda x, *d: x.permute(*d))(kf_f, 1, 2, 0)
        y_f = kv_f * kf_f[None, :, :, :]
        y = (lambda x, s, axes=(-2,-1): torch.fft.irfft2(x, s=s, dim=axes).to(torch.bfloat16))(y_f, (1, L), axes=(1, 2))[:, 0, :S, :]
        y = y + kv * ssm_D[None, None, :]
        return q * y

    a = _A_ref(A_x, A_wqkv, A_wo)
    b = _B_ref(B_q, B_k, B_v, B_shift_k, B_ssm_k, B_ssm_D)
    return torch.concatenate([a, b], axis=-1)
```

```python
import re

def v(n, c=1):
    return f"v{n}" if c == 1 else f"v[{n}:{n+c-1}]"
def s(n, c=1):
    return f"s{n}" if c == 1 else f"s[{n}:{n+c-1}]"

_REG = re.compile(r"^(v|s|a)(\d+)$|^(v|s|a)\[(\d+):(\d+)\]$")
def regs_of(op):
    op = op.strip()
    neg = op.lstrip("-")
    if neg.startswith("abs("): neg = neg[4:-1]
    neg = neg.strip("|")
    m = _REG.match(neg)
    if m:
        if m.group(1):
            return {(m.group(1), int(m.group(2)))}
        return {(m.group(3), i) for i in range(int(m.group(4)), int(m.group(5)) + 1)}
    if neg == "vcc": return {("s", "vcc")}
    if neg in ("vcc_lo", "vcc_hi"): return {("s", "vcc")}
    if neg == "exec": return {("s", "exec")}
    if neg == "m0": return {("s", "m0")}
    return set()

TRANS = ("v_exp_", "v_log_", "v_rcp_", "v_rsq_", "v_sqrt_", "v_sin_", "v_cos_")

class Ins:
    __slots__ = ("text", "mn", "kind", "wr", "rd", "passes", "a", "b", "c", "mods", "ws", "ops")
    def __init__(self, text):
        self.text = text
        t = text.split(";")[0].strip()
        parts = t.split(None, 1)
        self.mn = mn = parts[0]
        rest = parts[1] if len(parts) > 1 else ""
        ops, depth, cur = [], 0, ""
        for ch in rest:
            if ch in "[(": depth += 1
            if ch in "])": depth -= 1
            if ch == "," and depth == 0:
                ops.append(cur.strip()); cur = ""
            else: cur += ch
        if cur.strip(): ops.append(cur.strip())
        mods = ""
        if ops:
            sp = ops[-1].split(None, 1)
            if len(sp) > 1 and not ops[-1].startswith("hwreg") and not mn.startswith("s_waitcnt"):
                ops[-1] = sp[0]; mods = sp[1]
        self.ops = ops; self.mods = mods
        self.wr, self.rd = set(), set()
        self.passes = 0; self.a = self.b = self.c = set()
        self.ws = 1
        R = regs_of
        if mn == "s_nop":
            self.kind = "nop"; self.ws = int(ops[0], 0) + 1
        elif mn.startswith("v_mfma"):
            self.kind = "mfma"
            self.passes = 8 if "32x32x16" in mn else 4 if "16x16x32" in mn else None
            assert self.passes, mn
            self.wr = R(ops[0]); self.a = R(ops[1]); self.b = R(ops[2]); self.c = R(ops[3])
            self.rd = self.a | self.b | self.c
        elif mn.startswith("v_"):
            self.kind = "valu"
            if mn.startswith("v_cmp"):
                self.wr = R(ops[0]);
                for o in ops[1:]: self.rd |= R(o)
                if mn.startswith("v_cmpx"): self.wr |= {("s", "exec")}
            elif mn.startswith("v_permlane") and "swap" in mn:
                self.wr = R(ops[0]) | R(ops[1]); self.rd = set(self.wr)
            elif mn.startswith(("v_add_co", "v_sub_co", "v_addc_co", "v_subb_co", "v_subrev_co")):
                self.wr = R(ops[0]) | R(ops[1])
                for o in ops[2:]: self.rd |= R(o)
            else:
                self.wr = R(ops[0])
                for o in ops[1:]: self.rd |= R(o)
                if mn.startswith(("v_fmac", "v_mac", "v_pk_fmac", "v_dot2c")): self.rd |= self.wr
                if mn.startswith("v_writelane"): self.rd |= self.wr
            if mn.startswith("v_cndmask") and len(ops) == 3: self.rd |= {("s", "vcc")}
        elif mn.startswith("ds_"):
            self.kind = "ds"
            if mn.startswith(("ds_read", "ds_bpermute", "ds_permute", "ds_swizzle")):
                self.wr = R(ops[0])
                for o in ops[1:]: self.rd |= R(o)
            else:
                for o in ops: self.rd |= R(o)
        elif mn.startswith(("global_", "buffer_", "flat_")):
            self.kind = "vmem"
            lds = (" lds" in " " + mods) or "load_lds" in mn
            if "_load" in mn and not lds:
                self.wr = R(ops[0])
                for o in ops[1:]: self.rd |= R(o)
            elif "atomic" in mn and "sc0" in mods:
                self.wr = R(ops[0])
                for o in ops[1:]: self.rd |= R(o)
            else:
                for o in ops: self.rd |= R(o)
            if lds: self.rd |= {("s", "m0")}
        elif mn.startswith("s_"):
            self.kind = "salu"
            nodst = ("s_cmp", "s_cbranch", "s_branch", "s_waitcnt", "s_barrier", "s_endpgm", "s_setprio", "s_sleep", "s_bitcmp", "s_setpc", "s_sethalt")
            if mn.startswith(nodst):
                for o in ops: self.rd |= R(o)
            else:
                if ops: self.wr = R(ops[0])
                for o in ops[1:]: self.rd |= R(o)
                if "saveexec" in mn: self.wr |= {("s", "exec")}; self.rd |= {("s", "exec")}
        else:
            raise ValueError("unknown instruction: " + text)

def needed(prod, cons):
    need = 0
    pk, ck = prod.kind, cons.kind
    pv = {r for r in prod.wr if r[0] in "va"}
    ps = {r for r in prod.wr if r[0] == "s"}
    if pk == "valu":
        if ck == "mfma" and pv & cons.rd: need = max(need, 2)
        if ck == "valu":
            if cons.mn.startswith(("v_readfirstlane", "v_readlane")) and pv & cons.rd: need = max(need, 1)
            if cons.mn.startswith("v_permlane") and pv & cons.rd: need = max(need, 2)
            if ("dpp" in cons.mods or "row_" in cons.mods or "wave_" in cons.mods or "quad_perm" in cons.mods) and pv & cons.rd: need = max(need, 2)
            if prod.mn.startswith(TRANS) and not cons.mn.startswith(TRANS) and pv & cons.rd: need = max(need, 1)
            if ps & cons.rd:
                need = max(need, 2)
                if cons.mn.startswith(("v_readlane", "v_writelane")): need = max(need, 4)
        if ck in ("vmem",) and ps & cons.rd: need = max(need, 5)
        if ck == "ds" and ps & cons.rd: need = max(need, 5)
        if ck == "mfma" and ("s", "exec") in ps: need = max(need, 4)
        if ck == "salu" and ps & cons.rd: need = max(need, 4)
        if prod.mn.startswith(TRANS) and ck in ("ds", "vmem", "mfma") and pv & cons.rd: need = max(need, 2 if ck == "mfma" else 1)
    if pk == "mfma":
        P = prod.passes
        raw = {4: 8, 8: 12}[P]
        if ck == "mfma":
            if prod.wr & (cons.a | cons.b): need = max(need, raw)
            if prod.wr & cons.c:
                if prod.wr == cons.c and cons.passes == P: pass
                else: need = max(need, {4: 6, 8: 10}[P])
            if (prod.wr & cons.wr) and not (prod.wr & cons.c): need = max(need, {4: 6, 8: 10}[P])
        elif ck in ("valu", "ds", "vmem"):
            if prod.wr & (cons.rd | cons.wr): need = max(need, raw)
        if ck == "valu" and prod.c & cons.wr: need = max(need, {4: 3, 8: 7}[P])
        if ck in ("ds", "vmem") and prod.c & cons.wr: need = max(need, {4: 3, 8: 7}[P])
    if pk == "vmem" and ("store" in prod.mn) and ("x4" in prod.mn or "x3" in prod.mn):
        data = prod.rd
        if ck == "valu" and {r for r in data if r[0] == "v"} & cons.wr: need = max(need, 2)
    if pk == "ds" and prod.mn.startswith(("ds_write_b128", "ds_write_b96")):
        if ck == "valu" and {r for r in prod.rd if r[0] == "v"} & cons.wr: need = max(need, 1)
    if pk == "salu":
        if ("s", "m0") in ps and ck == "vmem" and ("s", "m0") in cons.rd: need = max(need, 1)
    return need

class Asm:
    def __init__(self):
        self.items = []
    def __call__(self, text):
        for line in text.split("\n"):
            line = line.strip()
            if not line: continue
            if line.startswith(";") or line.startswith("."):
                self.items.append(("r", line))
            elif line.endswith(":"):
                self.items.append(("l", line[:-1]))
            else:
                self.items.append(("i", Ins(line)))
    def label(self, name): self.items.append(("l", name))
    def raw(self, text): self.items.append(("r", text))
    def fix_hazards(self, window=24, verbose=False):
        out = []
        hist = []
        pos = 0
        ninserted = 0
        for kind, it in self.items:
            if kind != "i":
                out.append((kind, it)); continue
            need_pad = 0
            for (p, ppos) in reversed(hist[-window:]):
                dist = pos - ppos
                if dist > 20: break
                n = needed(p, it)
                if n > dist: need_pad = max(need_pad, n - dist)
            if need_pad:
                ninserted += 1
                if verbose: print("pad", need_pad, "before", it.text)
                k = need_pad
                while k > 0:
                    m = min(k, 16)
                    nop = Ins(f"s_nop {m-1}")
                    out.append(("i", nop)); pos += m; hist.append((nop, pos)); k -= m
            out.append((kind, it))
            pos += it.ws
            hist.append((it, pos))
        self.items = out
        return ninserted
    def text(self):
        L = []
        for kind, it in self.items:
            if kind == "i": L.append("  " + it.text)
            elif kind == "l": L.append(it + ":")
            else: L.append(it)
        return "\n".join(L) + "\n"
    def count(self):
        return sum(1 for k, _ in self.items if k == "i")
```

```python
import sys
from asmlib import Asm, v, s

NAME = "concat_heads__sliding_block__ssm_conv_h3__prompt"
KN = NAME + "_kernel"

FLG = 0x0
F_B1, F_A1, F_B2, F_A2 = 0, 32768, 65536, 98304
EP  = 0x20000
KW  = 0x100000
VW  = 0x300000
OW  = 0x500000
UR  = 0x700000
YT  = 0x900000
WS_BYTES = 0xB00000

STG = 28672
T0  = 86016
B2R = 114688
CB  = 12864
E_OFF, O_OFF, U_OFF = 0, 4164, 8288
LK, LV, LQ = 0, 24576, 49536
KHS, VHS, VTS = 12288, 12480, 1040
LR  = 57728
LO  = 0
LWO = 81920
LS0, LS1 = 65536, 147456
LDS_BYTES = 163840

S_X, S_WQKV, S_WO, S_BQ, S_BK, S_BV, S_SK, S_SSMK = 16, 18, 20, 22, 24, 26, 28, 30
S_SD, S_OUT, S_DBG, S_WS = 32, 34, 36, 38
R_X, R_W, R_BK, R_WS, R_WO = 40, 44, 48, 52, 56
S_NONCE, S_WV, S_J, S_XCD, S_RB, S_HP = 60, 61, 62, 63, 64, 65
S_T0, S_T1, S_T2, S_T3, S_T4, S_T5 = 66, 67, 68, 69, 70, 71
S_LI = 72
S_J0 = 73
S_SPIN = 74
S_EX = 76
S_CMP = 80
S_BASE = 96
S_BASE2 = 98

SPIN = 200000
NEGBIG = 0xF149F2CA
QSCALE = 0x3EB8AA3B
ONES = 0x3F803F80

def build(stop=None, dbg=False):
    a = Asm()
    A = a
    def srd(dst, base, nbytes):
        A(f"s_mov_b32 {s(dst)}, {s(base)}")
        A(f"s_and_b32 {s(dst+1)}, {s(base+1)}, 0xffff")
        A(f"s_mov_b32 {s(dst+2)}, {nbytes}")
        A(f"s_mov_b32 {s(dst+3)}, 0x00020000")

    def poll(vaddr, vtmp, label, nlanes=64):
        if nlanes < 64:
            A(f"v_cmp_gt_u32 vcc, {nlanes}, v1")
            A(f"s_and_saveexec_b64 {s(S_EX,2)}, vcc")
        A(f"s_mov_b32 {s(S_SPIN)}, {SPIN}")
        A(f"{label}:")
        A(f"global_load_dword {v(vtmp)}, {v(vaddr)}, {s(S_WS,2)} sc0 sc1")
        A("s_waitcnt vmcnt(0)")
        A(f"v_cmp_ne_u32 vcc, {s(S_NONCE)}, {v(vtmp)}")
        A(f"s_cbranch_vccz {label}_done")
        A(f"s_sub_u32 {s(S_SPIN)}, {s(S_SPIN)}, 1")
        A(f"s_cmp_lg_u32 {s(S_SPIN)}, 0")
        A(f"s_cbranch_scc1 {label}")
        A(f"{label}_done:")
        if nlanes < 64:
            A(f"s_mov_b64 exec, {s(S_EX,2)}")

    def publish(kind, vt0, vt1):
        A(f"s_lshl_b32 {s(S_T0)}, s2, 7")
        A(f"s_lshl_b32 {s(S_T1)}, {s(S_WV)}, 2")
        A(f"s_add_u32 {s(S_T0)}, {s(S_T0)}, {s(S_T1)}")
        A(f"s_add_u32 {s(S_T0)}, {s(S_T0)}, {FLG + kind}")
        A(f"v_mov_b32 {v(vt0)}, {s(S_T0)}")
        A(f"v_mov_b32 {v(vt1)}, {s(S_NONCE)}")
        A(f"s_mov_b64 {s(S_EX,2)}, exec")
        A(f"s_mov_b64 exec, 1")
        A(f"global_store_dword {v(vt0)}, {v(vt1)}, {s(S_WS,2)} sc0 sc1")
        A(f"s_mov_b64 exec, {s(S_EX,2)}")

    A("s_load_dwordx16 s[16:31], s[0:1], 0")
    A("s_load_dwordx8 s[32:39], s[0:1], 64")
    A("s_cmp_ge_u32 s2, 256")
    A("s_cbranch_scc1 L_end")
    A("v_and_b32 v1, 63, v0")
    A("v_lshrrev_b32 v2, 6, v0")
    A(f"s_and_b32 {s(S_XCD)}, s2, 7")
    A(f"s_lshr_b32 {s(S_J)}, s2, 3")
    A(f"v_readfirstlane_b32 {s(S_WV)}, v2")
    A(f"s_lshr_b32 {s(S_T0)}, {s(S_XCD)}, 1")
    A(f"s_lshl_b32 {s(S_T0)}, {s(S_T0)}, 2")
    A(f"s_and_b32 {s(S_T1)}, {s(S_J)}, 3")
    A(f"s_add_u32 {s(S_RB)}, {s(S_T0)}, {s(S_T1)}")
    A(f"s_and_b32 {s(S_T0)}, {s(S_XCD)}, 1")
    A(f"s_lshl_b32 {s(S_T0)}, {s(S_T0)}, 3")
    A(f"s_lshr_b32 {s(S_T1)}, {s(S_J)}, 2")
    A(f"s_add_u32 {s(S_HP)}, {s(S_T0)}, {s(S_T1)}")
    A(f"s_and_b32 {s(S_LI)}, {s(S_WV)}, 3")
    A("v_and_b32 v3, 31, v1")
    A("v_lshrrev_b32 v4, 5, v1")
    A(f"s_lshl_b32 {s(S_T0)}, {s(S_WV)}, 1")
    A(f"v_add_u32 v5, {s(S_T0)}, v4")
    A(f"s_lshl_b32 {s(S_T0)}, {s(S_J)}, 6")
    A("v_lshlrev_b32 v6, 2, v5")
    A(f"v_add_u32 v6, {s(S_T0)}, v6")
    A("v_lshlrev_b32 v7, 10, v6")
    A(f"s_lshl_b32 {s(S_T0)}, {s(S_XCD)}, 7")
    A("v_lshlrev_b32 v8, 2, v3")
    A(f"v_add3_u32 v7, v7, v8, {s(S_T0)}")
    A("v_add_u32 v8, 0xfffff400, v7")
    A("v_add_u32 v9, 0xfffff800, v7")
    A("v_add_u32 v10, 0xfffffc00, v7")
    A(f"s_lshl_b32 {s(S_T0)}, {s(S_XCD)}, 9")
    A("v_lshlrev_b32 v11, 4, v3")
    A(f"v_add_u32 v11, {s(S_T0)}, v11")
    A(f"v_mov_b32 v12, {EP}")
    A("s_waitcnt lgkmcnt(0)")
    A(f"global_load_dword v13, v12, {s(S_WS,2)} sc0 sc1")
    srd(R_BK, S_BK, 2048*1024)
    A(f"s_cmp_ge_u32 {s(S_WV)}, 4")
    A("s_cbranch_scc1 L_pro_l")
    def b1_loads():
        A(f"buffer_load_dword v16, v8, {s(R_BK,4)}, 0 offen")
        A(f"buffer_load_dword v17, v9, {s(R_BK,4)}, 0 offen")
        A(f"buffer_load_dword v18, v10, {s(R_BK,4)}, 0 offen")
        for r in range(4):
            A(f"buffer_load_dword {v(19+r)}, v7, {s(R_BK,4)}, 0 offen offset:{1024*r}")
        for r in range(4):
            A(f"global_load_dword {v(23+r)}, v7, {s(S_BV,2)} offset:{1024*r}")
        A(f"global_load_dwordx4 v[28:31], v11, {s(S_SK,2)}")
    b1_loads()
    A("s_waitcnt vmcnt(0)")
    A("s_branch L_b1")
    A("L_pro_l:")
    A(f"s_lshl_b32 {s(S_T0)}, {s(S_XCD)}, 6")
    A(f"s_lshl_b32 {s(S_T1)}, {s(S_J)}, 1")
    A(f"s_add_u32 {s(S_T0)}, {s(S_T0)}, {s(S_T1)}")
    A(f"s_lshr_b32 {s(S_T1)}, {s(S_LI)}, 1")
    A(f"s_add_u32 {s(S_T0)}, {s(S_T0)}, {s(S_T1)}")
    A(f"s_and_b32 {s(S_T2)}, {s(S_LI)}, 1")
    A(f"s_lshl_b32 {s(S_T1)}, {s(S_T0)}, 12")
    A(f"s_lshl_b32 {s(S_T3)}, {s(S_T2)}, 11")
    A(f"s_add_u32 {s(S_T1)}, {s(S_T1)}, {s(S_T3)}")
    A("v_lshlrev_b32 v200, 4, v1")
    A(f"v_add_u32 v200, {s(S_T1)}, v200")
    srd(R_WO, S_SSMK, 512*4096)
    A(f"buffer_load_dwordx4 v[204:207], v200, {s(R_WO,4)}, 0 offen")
    A(f"buffer_load_dword v208, v200, {s(R_WO,4)}, 0 offen offset:16")
    A(f"buffer_load_dwordx4 v[212:215], v200, {s(R_WO,4)}, 0 offen offset:1024")
    A(f"buffer_load_dword v216, v200, {s(R_WO,4)}, 0 offen offset:1040")
    A(f"s_lshl_b32 {s(S_T1)}, {s(S_T0)}, 1")
    A(f"s_and_b32 {s(S_T1)}, {s(S_T1)}, 0xfffffffc")
    A(f"v_mov_b32 v201, {s(S_T1)}")
    A(f"global_load_dword v217, v201, {s(S_SD,2)}")
    b1_loads()
    srd(R_X, S_X, 2048*1024)
    srd(R_W, S_WQKV, 512*3072)
    A("v_lshrrev_b32 v220, 3, v1")
    A(f"s_lshl_b32 {s(S_T0)}, {s(S_RB)}, 7")
    A(f"s_lshl_b32 {s(S_T1)}, {s(S_LI)}, 5")
    A(f"s_add_u32 {s(S_T0)}, {s(S_T0)}, {s(S_T1)}")
    A(f"v_add_u32 v220, {s(S_T0)}, v220")
    A("v_lshlrev_b32 v220, 10, v220")
    A("v_and_b32 v221, 7, v1")
    A("v_lshrrev_b32 v222, 4, v1")
    A("v_xor_b32 v223, v221, v222")
    A("v_lshl_add_u32 v224, v223, 4, v220")
    A("v_xor_b32 v223, 4, v223")
    A("v_lshl_add_u32 v225, v223, 4, v220")
    A("v_lshrrev_b32 v220, 2, v1")
    A(f"s_lshl_b32 {s(S_T0)}, {s(S_LI)}, 4")
    A(f"v_add_u32 v220, {s(S_T0)}, v220")
    A(f"s_mov_b32 {s(S_T1)}, 3072")
    A(f"v_mul_lo_u32 v220, v220, {s(S_T1)}")
    A("v_and_b32 v221, 3, v1")
    A("v_lshlrev_b32 v221, 4, v221")
    A(f"s_lshl_b32 {s(S_T0)}, {s(S_HP)}, 6")
    A(f"v_add3_u32 v226, v220, v221, {s(S_T0)}")
    S_LX, S_LW = S_T4, S_T5
    A(f"s_lshl_b32 {s(S_LX)}, {s(S_LI)}, 12")
    A(f"s_lshl_b32 {s(S_LW)}, {s(S_LI)}, 10")
    def dma_chunk(c):
        st = (c & 3) * STG
        for n in range(4):
            A(f"s_add_u32 m0, {s(S_LX)}, {st + n*1024}")
            A(f"s_mov_b32 {s(S_T0)}, {n*8192 + c*128}")
            A(f"buffer_load_dwordx4 {v(224 + (n & 1))}, {s(R_X,4)}, {s(S_T0)} offen lds")
        for p in range(3):
            A(f"s_add_u32 m0, {s(S_LW)}, {st + 16384 + p*4096}")
            A(f"s_mov_b32 {s(S_T0)}, {c*64*3072 + p*1024}")
            A(f"buffer_load_dwordx4 v226, {s(R_W,4)}, {s(S_T0)} offen lds")
    for c in range(3): dma_chunk(c)
    A("s_waitcnt vmcnt(21)")
    A("L_b1:")
    A(f"v_readfirstlane_b32 {s(S_NONCE)}, v13")
    for r in range(7):
        A(f"v_lshlrev_b32 {v(32+2*r)}, 16, {v(16+r)}")
        A(f"v_and_b32 {v(33+2*r)}, 0xffff0000, {v(16+r)}")
    A(f"s_add_u32 {s(S_NONCE)}, {s(S_NONCE)}, 1")
    for r in range(4):
        A(f"v_lshlrev_b32 {v(46+2*r)}, 16, {v(23+r)}")
        A(f"v_and_b32 {v(47+2*r)}, 0xffff0000, {v(23+r)}")
    A("v_lshlrev_b32 v54, 16, v28"); A("v_lshlrev_b32 v55, 16, v30")
    A("v_and_b32 v56, 0xffff0000, v28"); A("v_and_b32 v57, 0xffff0000, v30")
    A("v_lshlrev_b32 v58, 16, v29"); A("v_lshlrev_b32 v59, 16, v31")
    A("v_and_b32 v60, 0xffff0000, v29"); A("v_and_b32 v61, 0xffff0000, v31")
    for tau in range(4):
        d = 62 + 2*tau
        A(f"v_pk_mul_f32 {v(d,2)}, {v(32+2*(tau+3),2)}, {v(54,2)}")
    for jj in range(1, 4):
        for tau in range(4):
            d = 62 + 2*tau
            A(f"v_pk_fma_f32 {v(d,2)}, {v(32+2*(tau+3-jj),2)}, {v(54+2*jj,2)}, {v(d,2)}")
    for tau in range(4):
        d = 62 + 2*tau
        A(f"v_pk_mul_f32 {v(d,2)}, {v(d,2)}, {v(46+2*tau,2)}")
    A("v_cvt_pk_bf16_f32 v70, v68, v66"); A("v_cvt_pk_bf16_f32 v71, v64, v62")
    A("v_cvt_pk_bf16_f32 v72, v69, v67"); A("v_cvt_pk_bf16_f32 v73, v65, v63")
    A("v_sub_u32 v74, 15, v5")
    A("v_lshrrev_b32 v75, 1, v74")
    A("v_and_b32 v76, 7, v3")
    A("v_xor_b32 v75, v75, v76")
    A("v_lshlrev_b32 v75, 4, v75")
    A("v_and_b32 v74, 1, v74")
    A("v_lshl_add_u32 v75, v74, 3, v75")
    A("v_lshl_add_u32 v75, v3, 8, v75")
    A(f"ds_write_b64 v75, v[70:71] offset:{T0 & 0xffff if T0 < 65536 else 0}" if False else "v_add_u32 v75, %d, v75" % T0)
    A("ds_write_b64 v75, v[70:71]")
    A("ds_write_b64 v75, v[72:73] offset:128")
    A(f"s_cmp_ge_u32 {s(S_WV)}, 4")
    A("s_cbranch_scc1 L_l_pre")
    A("s_waitcnt lgkmcnt(0)")
    A("s_barrier")
    A("v_lshrrev_b32 v16, 3, v1")
    A(f"s_lshl_b32 {s(S_T0)}, {s(S_LI)}, 4")
    A(f"v_add_u32 v16, {s(S_T0)}, v16")
    A("v_and_b32 v17, 7, v1")
    A("v_lshrrev_b32 v18, 1, v16")
    A("v_and_b32 v18, 7, v18")
    A("v_xor_b32 v18, v18, v17")
    A("v_lshlrev_b32 v19, 7, v16")
    A("v_lshl_add_u32 v20, v18, 4, v19")
    A("v_xor_b32 v18, 4, v18")
    A("v_lshl_add_u32 v21, v18, 4, v19")
    A(f"v_add_u32 v20, {T0}, v20")
    A(f"v_add_u32 v21, {T0 + 1024}, v21")
    A("ds_read_b128 v[24:27], v20")
    A("ds_read_b128 v[28:31], v21")
    A(f"s_lshl_b32 {s(S_T0)}, {s(S_XCD)}, 18")
    A(f"s_lshl_b32 {s(S_T1)}, {s(S_J)}, 7")
    A(f"s_sub_u32 {s(S_T0)}, {s(S_T0)}, {s(S_T1)}")
    A(f"s_add_u32 {s(S_T0)}, {s(S_T0)}, {UR + 1984*2}")
    A("v_lshlrev_b32 v22, 12, v16")
    A("v_lshl_add_u32 v22, v17, 4, v22")
    A(f"v_add_u32 v22, {s(S_T0)}, v22")
    A("v_add_u32 v23, 0x8000, v22")
    A("s_waitcnt lgkmcnt(1)")
    A(f"global_store_dwordx4 v22, v[24:27], {s(S_WS,2)} sc0 sc1")
    A("s_waitcnt lgkmcnt(0)")
    A(f"global_store_dwordx4 v23, v[28:31], {s(S_WS,2)} sc0 sc1")
    XA, XB, WA, WB = 144, 148, 152, 153
    A(f"s_lshl_b32 {s(S_T0)}, {s(S_LI)}, 5")
    A(f"v_add_u32 v16, {s(S_T0)}, v3")
    A("v_lshrrev_b32 v17, 1, v16")
    A("v_and_b32 v17, 7, v17")
    A("v_xor_b32 v17, v17, v4")
    A("v_lshlrev_b32 v17, 4, v17")
    A("v_lshl_add_u32 v17, v16, 7, v17")
    for st in range(4):
        A(f"v_xor_b32 {v(XA+st)}, {st*32}, v17")
        A(f"v_add_u32 {v(XB+st)}, {2*STG}, {v(XA+st)}")
    A("v_and_b32 v16, 15, v1")
    A("v_lshrrev_b32 v16, 2, v16")
    A("v_lshl_add_u32 v16, v4, 3, v16")
    A("v_lshlrev_b32 v16, 6, v16")
    A("v_bfe_u32 v17, v1, 4, 1")
    A("v_lshl_add_u32 v16, v17, 5, v16")
    A("v_and_b32 v17, 3, v1")
    A("v_lshl_add_u32 v16, v17, 3, v16")
    A(f"v_add_u32 {v(WA)}, 16384, v16")
    A(f"v_add_u32 {v(WB)}, {2*STG}, {v(WA)}")
    ACC = 64
    FR = [112, 128]
    def reads(n):
        c, st = n >> 2, n & 3
        stage = c & 3
        xa = (XA if stage < 2 else XB) + st
        wa = WA if stage < 2 else WB
        so = (stage & 1) * STG
        f = FR[n & 1]
        A(f"ds_read_b128 {v(f,4)}, {v(xa)} offset:{so}")
        for p in range(3):
            A(f"ds_read_b64_tr_b16 {v(f+4+4*p,2)}, {v(wa)} offset:{so + p*4096 + st*1024}")
            A(f"ds_read_b64_tr_b16 {v(f+6+4*p,2)}, {v(wa)} offset:{so + p*4096 + st*1024 + 256}")
    def mfmas(n):
        f = FR[n & 1]
        for p in range(3):
            acc = v(ACC + 16*p, 16)
            cin = "0" if n == 0 else acc
            if p < 2: A(f"v_mfma_f32_32x32x16_bf16 {acc}, {v(f+4+4*p,4)}, {v(f,4)}, {cin}")
            else:     A(f"v_mfma_f32_32x32x16_bf16 {acc}, {v(f,4)}, {v(f+4+4*p,4)}, {cin}")
    A("s_barrier")
    reads(0)
    for n in range(32):
        if n + 1 < 32:
            if (n & 3) == 3:
                A("s_waitcnt lgkmcnt(0)")
                if n == 7:
                    A("s_waitcnt vmcnt(0)")
                    publish(F_B1, 16, 17)
                A("s_barrier")
                reads(n + 1)
            else:
                reads(n + 1)
                A("s_waitcnt lgkmcnt(7)")
        else:
            A("s_waitcnt lgkmcnt(0)")
        mfmas(n)
    A("; A1 epilogue")
    A(f"s_mov_b32 {s(S_T0)}, {QSCALE}")
    for r in range(16):
        A(f"v_mul_f32 {v(ACC+r)}, {s(S_T0)}, {v(ACC+r)}")
    PK = 112
    for i in range(8):
        A(f"v_cvt_pk_bf16_f32 {v(PK+i)}, {v(ACC+2*i)}, {v(ACC+2*i+1)}")
    for i in range(8):
        A(f"v_cvt_pk_bf16_f32 {v(PK+8+i)}, {v(ACC+16+2*i)}, {v(ACC+17+2*i)}")
    for i in range(8):
        A(f"v_cvt_pk_bf16_f32 {v(PK+16+i)}, {v(ACC+32+2*i)}, {v(ACC+33+2*i)}")
    A("v_lshlrev_b32 v16, 4, v1")
    A(f"s_lshl_b32 {s(S_T0)}, {s(S_LI)}, 10")
    A(f"v_add_u32 v17, {s(S_T0)}, v16")
    A(f"ds_write_b128 v17, {v(PK,4)} offset:{LQ}")
    A(f"ds_write_b128 v17, {v(PK+4,4)} offset:{LQ+4096}")
    A(f"ds_write_b128 v17, {v(PK+8,4)} offset:{LK + 8*1024}")
    A(f"ds_write_b128 v17, {v(PK+12,4)} offset:{LK + KHS + 8*1024}")
    A("v_and_b32 v18, 15, v1")
    A("v_lshlrev_b32 v18, 4, v18")
    A("v_lshl_add_u32 v18, v4, 8, v18")
    A("v_bfe_u32 v19, v1, 4, 1")
    A(f"s_mul_i32 {s(S_T0)}, {s(S_LI)}, {VTS}")
    A(f"v_mov_b32 v20, {VHS}")
    A("v_mul_u32_u24 v20, v20, v19")
    A(f"v_add3_u32 v20, v20, v18, {s(S_T0)}")
    A(f"ds_write_b128 v20, {v(PK+16,4)} offset:{LV + 8*VTS}")
    A(f"ds_write_b128 v20, {v(PK+20,4)} offset:{LV + 8*VTS + 512}")
    A(f"s_lshl_b32 {s(S_T0)}, {s(S_HP)}, 7")
    A(f"s_lshl_b32 {s(S_T1)}, {s(S_RB)}, 2")
    A(f"s_add_u32 {s(S_T0)}, {s(S_T0)}, {s(S_T1)}")
    A(f"s_add_u32 {s(S_T0)}, {s(S_T0)}, {s(S_LI)}")
    A(f"s_lshl_b32 {s(S_T0)}, {s(S_T0)}, 10")
    A(f"s_add_u32 {s(S_T1)}, {s(S_T0)}, {KW}")
    A(f"v_add_u32 v21, {s(S_T1)}, v16")
    A("v_add_u32 v22, 0x10000, v21")
    A(f"global_store_dwordx4 v21, {v(PK+8,4)}, {s(S_WS,2)} sc0 sc1")
    A(f"global_store_dwordx4 v22, {v(PK+12,4)}, {s(S_WS,2)} sc0 sc1")
    A(f"s_add_u32 {s(S_T1)}, {s(S_T0)}, {VW}")
    A("v_lshlrev_b32 v23, 16, v19")
    A(f"v_add3_u32 v23, v23, v18, {s(S_T1)}")
    A(f"global_store_dwordx4 v23, {v(PK+16,4)}, {s(S_WS,2)} sc0 sc1")
    A(f"global_store_dwordx4 v23, {v(PK+20,4)}, {s(S_WS,2)} offset:512 sc0 sc1")
    A(f"s_cmp_lg_u32 {s(S_LI)}, 0")
    A("s_cbranch_scc1 L_c_nopad")
    A(f"v_mov_b32 v24, {ONES}"); A("v_mov_b32 v25, v24"); A("v_mov_b32 v26, v24"); A("v_mov_b32 v27, v24")
    A(f"v_mul_u32_u24 v28, {VTS}, v1")
    A("v_cmp_gt_u32 vcc, 24, v1")
    A(f"s_and_saveexec_b64 {s(S_EX,2)}, vcc")
    A(f"ds_write_b128 v28, v[24:27] offset:{LV + 1024}")
    A(f"s_mov_b64 exec, {s(S_EX,2)}")
    A("L_c_nopad:")
    def masks():
        M0, M8, MK = 224, 240, 216
        return
    MM0, MM8, MMK = 208, 224, 240
    def gen_masks():
        A("v_and_b32 v248, 31, v1")
        A("v_lshrrev_b32 v249, 5, v1")
        A("v_lshlrev_b32 v249, 2, v249")
        A("v_sub_u32 v248, v248, v249")
        A(f"v_mov_b32 v249, {NEGBIG}")
        A("v_mov_b32 v250, 0")
        A("v_mov_b32 v251, 0xffff")
        A("v_mov_b32 v252, 0xffff0000")
        for grp in range(2):
            for q in range(8):
                r = grp*8 + q
                cst = (r & 3) + 8*(r >> 2)
                A(f"v_cmp_le_i32 {s(S_CMP+2*q,2)}, {cst}, v248")
            for q in range(8):
                r = grp*8 + q
                A(f"v_cndmask_b32 {v(MM8+r)}, v249, v250, {s(S_CMP+2*q,2)}")
                A(f"v_cndmask_b32 {v(MM0+r)}, v250, v249, {s(S_CMP+2*q,2)}")
            for q in range(0, 8, 2):
                i = (grp*8 + q) >> 1
                A(f"v_cndmask_b32 v253, v251, v250, {s(S_CMP+2*q,2)}")
                A(f"v_cndmask_b32 v254, v252, v250, {s(S_CMP+2*q+2,2)}")
                A(f"v_or_b32 {v(MMK+i)}, v253, v254")
    gen_masks()
    A("s_waitcnt vmcnt(0)")
    publish(F_A1, 16, 17)
    srd(R_WS, S_WS, WS_BYTES)
    A(f"s_cmp_eq_u32 {s(S_RB)}, 0")
    A("s_cbranch_scc1 L_c_halo_done")
    def wgid(dst, rbreg, t1, t2):
        A(f"s_and_b32 {s(t1)}, {s(rbreg)}, 3")
        A(f"s_and_b32 {s(t2)}, {s(S_HP)}, 7")
        A(f"s_lshl_b32 {s(t2)}, {s(t2)}, 2")
        A(f"s_add_u32 {s(t1)}, {s(t1)}, {s(t2)}")
        A(f"s_lshl_b32 {s(t1)}, {s(t1)}, 3")
        A(f"s_lshr_b32 {s(t2)}, {s(rbreg)}, 2")
        A(f"s_lshl_b32 {s(t2)}, {s(t2)}, 1")
        A(f"s_add_u32 {s(t1)}, {s(t1)}, {s(t2)}")
        A(f"s_lshr_b32 {s(t2)}, {s(S_HP)}, 3")
        A(f"s_add_u32 {s(dst)}, {s(t1)}, {s(t2)}")
    def halo(delta, lab):
        toff = 0 if delta == 2 else 4
        A(f"s_sub_u32 {s(S_T2)}, {s(S_RB)}, {delta}")
        wgid(S_T3, S_T2, S_T0, S_T1)
        A(f"s_lshl_b32 {s(S_T3)}, {s(S_T3)}, 7")
        A(f"s_lshl_b32 {s(S_T0)}, {s(S_LI)}, 2")
        A(f"s_add_u32 {s(S_T3)}, {s(S_T3)}, {s(S_T0)}")
        A(f"s_add_u32 {s(S_T3)}, {s(S_T3)}, {FLG + F_A1}")
        A(f"v_mov_b32 v16, {s(S_T3)}")
        poll(16, 17, lab, nlanes=1)
        A(f"s_lshl_b32 {s(S_T0)}, {s(S_HP)}, 7")
        A(f"s_lshl_b32 {s(S_T1)}, {s(S_T2)}, 2")
        A(f"s_add_u32 {s(S_T0)}, {s(S_T0)}, {s(S_T1)}")
        A(f"s_add_u32 {s(S_T0)}, {s(S_T0)}, {s(S_LI)}")
        A(f"s_lshl_b32 {s(S_T0)}, {s(S_T0)}, 10")
        A("v_lshlrev_b32 v18, 4, v1")
        A(f"s_lshl_b32 {s(S_T4)}, {s(S_LI)}, 10")
        A(f"s_mul_i32 {s(S_T5)}, {s(S_LI)}, {VTS}")
        for hd in range(2):
            A(f"s_add_u32 m0, {s(S_T4)}, {LK + hd*KHS + toff*1024}")
            A(f"s_add_u32 {s(S_T1)}, {s(S_T0)}, {KW + hd*65536}")
            A(f"buffer_load_dwordx4 v18, {s(R_WS,4)}, {s(S_T1)} offen sc1 lds")
            A(f"s_add_u32 m0, {s(S_T5)}, {LV + hd*VHS + toff*VTS}")
            A(f"s_add_u32 {s(S_T1)}, {s(S_T0)}, {VW + hd*65536}")
            A(f"buffer_load_dwordx4 v18, {s(R_WS,4)}, {s(S_T1)} offen sc1 lds")
    halo(1, "L_poll_h1")
    A(f"s_cmp_eq_u32 {s(S_RB)}, 1")
    A("s_cbranch_scc1 L_c_halo_done")
    halo(2, "L_poll_h2")
    A("L_c_halo_done:")
    A("s_waitcnt vmcnt(0) lgkmcnt(0)")
    A("s_barrier")
    A("s_branch L_a2")

    A("L_l_pre:")
    S_CBASE = S_T3
    A(f"s_lshr_b32 {s(S_T0)}, {s(S_LI)}, 1")
    A(f"s_mul_i32 {s(S_CBASE)}, {s(S_T0)}, {CB}")
    A(f"s_add_u32 {s(S_CBASE)}, {s(S_CBASE)}, {B2R}")
    A(f"s_and_b32 {s(S_T2)}, {s(S_LI)}, 1")
    A(f"s_lshr_b32 {s(S_T0)}, {s(S_LI)}, 1")
    A(f"s_lshl_b32 {s(S_T0)}, {s(S_T0)}, 4")
    A(f"v_lshrrev_b32 v217, {s(S_T0)}, v217")
    A("v_lshlrev_b32 v217, 16, v217")
    A("v_lshlrev_b32 v218, 16, v204")
    A("v_add_f32 v218, v217, v218")
    A("v_cvt_pk_bf16_f32 v218, v218, v218")
    A("v_and_b32 v218, 0xffff, v218")
    A("v_and_b32 v219, 0xffff0000, v204")
    A("v_or_b32 v219, v219, v218")
    A(f"v_mov_b32 v220, {s(S_T2)}")
    A("v_or_b32 v220, v220, v1")
    A("v_cmp_eq_u32 vcc, 0, v220")
    A("v_cndmask_b32 v204, v204, v219, vcc")
    for k in range(4):
        nxt = 205 + k if k < 3 else 208
        A(f"v_alignbit_b32 {v(228+k)}, {v(nxt)}, {v(204+k)}, 16")
    for k in range(4):
        nxt = 213 + k if k < 3 else 216
        A(f"v_alignbit_b32 {v(232+k)}, {v(nxt)}, {v(212+k)}, 16")
    A(f"s_lshl_b32 {s(S_T0)}, {s(S_T2)}, 11")
    A(f"s_add_u32 {s(S_T0)}, {s(S_T0)}, {s(S_CBASE)}")
    A("v_lshlrev_b32 v221, 4, v1")
    A(f"v_add_u32 v221, {s(S_T0)}, v221")
    A(f"ds_write_b128 v221, v[228:231] offset:{E_OFF + 32}")
    A(f"ds_write_b128 v221, v[232:235] offset:{E_OFF + 32 + 1024}")
    A(f"ds_write_b128 v221, v[204:207] offset:{O_OFF + 28}")
    A(f"ds_write_b128 v221, v[212:215] offset:{O_OFF + 28 + 1024}")
    A(f"s_cmp_lg_u32 {s(S_T2)}, 0")
    A("s_cbranch_scc1 L_l_nopad")
    A("v_mov_b32 v222, 0")
    A("v_readfirstlane_b32 %s, v218" % s(S_T0))
    A(f"s_lshl_b32 {s(S_T0)}, {s(S_T0)}, 16")
    A("v_lshlrev_b32 v223, 2, v1")
    A(f"v_add_u32 v223, {s(S_CBASE)}, v223")
    A(f"v_mov_b32 v236, {s(S_T0)}")
    A("v_cmp_eq_u32 vcc, 7, v1")
    A("v_cndmask_b32 v236, v222, v236, vcc")
    A("v_cmp_gt_u32 vcc, 8, v1")
    A(f"s_and_saveexec_b64 {s(S_EX,2)}, vcc")
    A(f"ds_write_b32 v223, v236 offset:{E_OFF}")
    A(f"s_mov_b64 exec, {s(S_EX,2)}")
    A("v_cmp_gt_u32 vcc, 7, v1")
    A(f"s_and_saveexec_b64 {s(S_EX,2)}, vcc")
    A(f"ds_write_b32 v223, v222 offset:{O_OFF}")
    A(f"s_mov_b64 exec, {s(S_EX,2)}")
    A("v_mov_b32 v237, 0")
    A("v_lshlrev_b32 v223, 3, v1")
    A(f"v_add_u32 v223, {s(S_CBASE)}, v223")
    A("v_mov_b32 v236, 0")
    A("v_cmp_gt_u32 vcc, 60, v1")
    A(f"s_and_saveexec_b64 {s(S_EX,2)}, vcc")
    A(f"ds_write_b64 v223, v[236:237] offset:{U_OFF + 4096}")
    A(f"s_mov_b64 exec, {s(S_EX,2)}")
    A("L_l_nopad:")
    A("s_waitcnt lgkmcnt(0)")
    A("s_barrier")
    S_LX, S_LW = S_T4, S_T5
    for c in range(8):
        n = 14 if c <= 5 else (7 if c == 6 else 0)
        A(f"s_waitcnt vmcnt({n})")
        A("s_barrier")
        if c + 3 <= 7: dma_chunk(c + 3)
    gen_masks()
    srd(R_WS, S_WS, WS_BYTES)
    A("v_lshlrev_b32 v16, 10, v1")
    A(f"s_lshl_b32 {s(S_T0)}, {s(S_XCD)}, 7")
    A(f"s_lshr_b32 {s(S_T1)}, {s(S_J)}, 3")
    A(f"s_lshl_b32 {s(S_T1)}, {s(S_T1)}, 2")
    A(f"s_add_u32 {s(S_T0)}, {s(S_T0)}, {s(S_T1)}")
    A(f"s_add_u32 {s(S_T0)}, {s(S_T0)}, {FLG + F_B1}")
    A(f"v_add_u32 v16, {s(S_T0)}, v16")
    poll(16, 17, "L_poll_b1", nlanes=32)
    A(f"s_lshr_b32 {s(S_T0)}, {s(S_LI)}, 1")
    A(f"s_mul_i32 {s(S_CBASE)}, {s(S_T0)}, {CB}")
    A(f"s_add_u32 {s(S_CBASE)}, {s(S_CBASE)}, {B2R}")
    A(f"s_lshl_b32 {s(S_T1)}, {s(S_XCD)}, 6")
    A(f"s_add_u32 {s(S_T0)}, {s(S_T0)}, {s(S_T1)}")
    A(f"s_lshl_b32 {s(S_T1)}, {s(S_J)}, 1")
    A(f"s_add_u32 {s(S_T0)}, {s(S_T0)}, {s(S_T1)}")
    S_CH = S_T5
    A(f"s_mov_b32 {s(S_CH)}, {s(S_T0)}")
    A(f"s_lshl_b32 {s(S_T0)}, {s(S_T0)}, 12")
    A(f"s_add_u32 {s(S_T0)}, {s(S_T0)}, {UR}")
    A("v_lshlrev_b32 v18, 4, v1")
    for n in range(4):
        A(f"s_add_u32 m0, {s(S_CBASE)}, {U_OFF + n*1024}")
        A(f"s_add_u32 {s(S_T1)}, {s(S_T0)}, {n*1024}")
        A(f"buffer_load_dwordx4 v18, {s(R_WS,4)}, {s(S_T1)} offen sc1 lds")
    AA, AB = 16, 24
    CA = [32, 64]
    CBf = [96, 128]
    CACC = 160
    A("v_and_b32 v25, 15, v1")
    A("v_lshrrev_b32 v26, 4, v1")
    A("v_lshrrev_b32 v27, 1, v25")
    A("v_lshl_add_u32 v27, v26, 2, v27")
    A("v_lshlrev_b32 v27, 2, v27")
    A("v_and_b32 v28, 1, v25")
    A(f"v_mul_u32_u24 v28, {O_OFF}, v28")
    A(f"s_and_b32 {s(S_T2)}, {s(S_LI)}, 1")
    A(f"s_lshl_b32 {s(S_T0)}, {s(S_T2)}, 8")
    A(f"s_add_u32 {s(S_T0)}, {s(S_T0)}, {s(S_CBASE)}")
    A(f"v_add3_u32 {v(AA)}, v27, v28, {s(S_T0)}")
    for jj in range(1, 8):
        A(f"v_add_u32 {v(AA+jj)}, {512*jj}, {v(AA)}")
    A("v_lshlrev_b32 v27, 4, v26")
    A("v_lshlrev_b32 v28, 5, v25")
    A("v_sub_u32 v27, v27, v28")
    A(f"s_add_u32 {s(S_T0)}, {s(S_T0)}, {U_OFF + 480}")
    A(f"v_add_u32 {v(AB)}, {s(S_T0)}, v27")
    A("s_waitcnt vmcnt(0)")
    def conv_reads(ii):
        st = ii & 1
        L = []
        for k in range(8):
            L.append(f"ds_read_b128 {v(CBf[st]+4*k,4)}, {v(AB)} offset:{512*(7-k) + 64*ii}")
            L.append(f"ds_read2_b32 {v(CA[st]+4*k,2)}, {v(AA+k)} offset0:{16*ii} offset1:{16*ii+1}")
            L.append(f"ds_read2_b32 {v(CA[st]+4*k+2,2)}, {v(AA+k)} offset0:{16*ii+2} offset1:{16*ii+3}")
        return L
    for r in conv_reads(0): A(r)
    for ii in range(4):
        A("s_waitcnt lgkmcnt(0)")
        nxt = conv_reads(ii + 1) if ii < 3 else []
        st = ii & 1
        k = 0
        m = 0
        for jj in range(8):
            for cp in range(8 - jj):
                acc = v(CACC + 4*(cp + jj), 4)
                cin = "0" if (ii == 0 and jj == 0) else acc
                A(f"v_mfma_f32_16x16x32_bf16 {acc}, {v(CA[st]+4*jj,4)}, {v(CBf[st]+4*cp,4)}, {cin}")
                m += 1
                if k < len(nxt):
                    A(nxt[k]); k += 1
        while k < len(nxt):
            A(nxt[k]); k += 1
    A("v_lshlrev_b32 v25, 4, v1")
    A(f"s_lshl_b32 {s(S_T0)}, {s(S_LI)}, 12")
    A(f"v_add_u32 v26, {s(S_T0)}, v25")
    A(f"s_xor_b32 {s(S_T0)}, {s(S_T0)}, 4096")
    A(f"v_add_u32 v27, {s(S_T0)}, v25")
    A(f"s_cmp_lg_u32 {s(S_T2)}, 0")
    A("s_cbranch_scc1 L_l_x1")
    for k in range(4):
        A(f"ds_write_b128 v26, {v(CACC+16+4*k,4)} offset:{LR + 1024*k}")
    A("s_waitcnt lgkmcnt(0)")
    A("s_barrier")
    for k in range(4):
        A(f"ds_read_b128 {v(32+4*k,4)}, v27 offset:{LR + 1024*k}")
    A("s_waitcnt lgkmcnt(0)")
    for r in range(16):
        A(f"v_add_f32 {v(48+r)}, {v(32+r)}, {v(CACC+r)}")
    A("s_branch L_l_x2")
    A("L_l_x1:")
    A("s_nop 7")
    for k in range(4):
        A(f"ds_write_b128 v26, {v(CACC+4*k,4)} offset:{LR + 1024*k}")
    A("s_waitcnt lgkmcnt(0)")
    A("s_barrier")
    for k in range(4):
        A(f"ds_read_b128 {v(32+4*k,4)}, v27 offset:{LR + 1024*k}")
    A("s_waitcnt lgkmcnt(0)")
    for r in range(16):
        A(f"v_add_f32 {v(48+r)}, {v(32+r)}, {v(CACC+16+r)}")
    A("L_l_x2:")
    for k in range(4):
        A(f"v_cvt_pk_bf16_f32 {v(32+2*k)}, {v(48+4*k)}, {v(49+4*k)}")
        A(f"v_cvt_pk_bf16_f32 {v(33+2*k)}, {v(50+4*k)}, {v(51+4*k)}")
    A("v_and_b32 v25, 15, v1")
    A("v_lshrrev_b32 v26, 4, v1")
    A("v_lshlrev_b32 v25, 5, v25")
    A("v_lshl_add_u32 v25, v26, 3, v25")
    A(f"s_lshl_b32 {s(S_T0)}, {s(S_CH)}, 12")
    A(f"s_lshl_b32 {s(S_T1)}, {s(S_T2)}, 11")
    A(f"s_add_u32 {s(S_T0)}, {s(S_T0)}, {s(S_T1)}")
    A(f"s_add_u32 {s(S_T0)}, {s(S_T0)}, {YT}")
    A(f"v_add_u32 v25, {s(S_T0)}, v25")
    for k in range(4):
        A(f"global_store_dwordx2 v25, {v(32+2*k,2)}, {s(S_WS,2)} offset:{512*k} sc0 sc1")
    A("L_a2:")
    S_HD = S_T5
    A(f"s_lshr_b32 {s(S_HD)}, {s(S_WV)}, 2")
    A(f"s_lshl_b32 {s(S_T0)}, {s(S_RB)}, 2")
    A(f"s_add_u32 {s(S_T0)}, {s(S_T0)}, {s(S_LI)}")
    A(f"s_sub_i32 {s(S_J0)}, 8, {s(S_T0)}")
    A(f"s_max_i32 {s(S_J0)}, {s(S_J0)}, 0")
    Q, KF, SA, SB, CN, PP, VF, O = 16, 20, 56, 72, 88, 104, 120, 136
    AK, AV0, AV1, TM, TM2 = 152, 153, 154, 155, 156
    A("v_lshlrev_b32 v157, 4, v1")
    A(f"s_lshl_b32 {s(S_T0)}, {s(S_HD)}, 12")
    A(f"s_lshl_b32 {s(S_T1)}, {s(S_LI)}, 10")
    A(f"s_add_u32 {s(S_T0)}, {s(S_T0)}, {s(S_T1)}")
    A(f"v_add_u32 v158, {s(S_T0)}, v157")
    A(f"ds_read_b128 {v(Q,4)}, v158 offset:{LQ}")
    A(f"s_mul_i32 {s(S_T0)}, {s(S_HD)}, {KHS}")
    A(f"s_add_u32 {s(S_T0)}, {s(S_T0)}, {s(S_T1)}")
    A(f"v_add_u32 {v(AK)}, {s(S_T0)}, v157")
    order = [8, 0, 1, 2, 3, 4, 5, 6, 7]
    for jj in order:
        A(f"ds_read_b128 {v(KF+4*jj,4)}, {v(AK)} offset:{LK + jj*1024}")
    A(f"s_mul_i32 {s(S_T0)}, {s(S_HD)}, {VHS}")
    A(f"s_mul_i32 {s(S_T1)}, {s(S_LI)}, {VTS}")
    A(f"s_add_u32 {s(S_T0)}, {s(S_T0)}, {s(S_T1)}")
    A("v_and_b32 v158, 15, v1")
    A("v_lshlrev_b32 v158, 4, v158")
    A("v_lshrrev_b32 v159, 5, v1")
    A("v_lshl_add_u32 v158, v159, 8, v158")
    A("v_bfe_u32 v159, v1, 4, 1")
    A("v_cmp_eq_u32 vcc, 1, v159")
    A("v_mov_b32 v159, 1024")
    A(f"v_cndmask_b32 {v(AV0)}, v158, v159, vcc")
    A("v_mov_b32 v159, 512")
    A(f"v_cndmask_b32 {v(AV1)}, v158, v159, vcc")
    A(f"v_add_u32 {v(AV0)}, {s(S_T0)}, {v(AV0)}")
    A(f"v_add_u32 {v(AV1)}, {s(S_T0)}, {v(AV1)}")
    MF = "v_mfma_f32_32x32x16_bf16"
    def skip_if_invalid(jj, lab, pad=16):
        A(f"s_cmp_gt_u32 {s(S_J0)}, {jj}")
        A(f"s_cbranch_scc1 {lab}")
    A("s_waitcnt lgkmcnt(7)")
    A(f"{MF} {v(MM8,16)}, {v(KF+32,4)}, {v(Q,4)}, {v(MM8,16)}")
    A(f"{MF} {v(MM0,16)}, {v(KF+0,4)}, {v(Q,4)}, {v(MM0,16)}")
    A("s_waitcnt lgkmcnt(5)")
    A(f"{MF} {v(SA,16)}, {v(KF+4,4)}, {v(Q,4)}, 0")
    A(f"{MF} {v(SB,16)}, {v(KF+8,4)}, {v(Q,4)}, 0")
    A("s_waitcnt lgkmcnt(0)")
    skip_if_invalid(0, "L_a2_nomerge")
    for r in range(16):
        A(f"v_max_f32 {v(MM8+r)}, {v(MM0+r)}, {v(MM8+r)}")
    A("L_a2_nomerge:")
    A("s_nop 7")
    A(f"v_max_f32 {v(TM)}, {v(MM8)}, {v(MM8+1)}")
    for r in range(2, 16, 2):
        A(f"v_max3_f32 {v(TM)}, {v(TM)}, {v(MM8+r)}, {v(MM8+r+1)}")
    bufs = [SA, SB]
    for jj in range(1, 8):
        b = bufs[(jj - 1) & 1]
        lab = f"L_a2_p1_{jj}"
        skip_if_invalid(jj, lab)
        for r in range(0, 16, 2):
            A(f"v_max3_f32 {v(TM)}, {v(TM)}, {v(b+r)}, {v(b+r+1)}")
        A(f"{lab}:")
        if jj + 2 <= 7:
            A("s_nop 1")
            A(f"{MF} {v(b,16)}, {v(KF+4*(jj+2),4)}, {v(Q,4)}, 0")
            if jj + 2 <= 7: A("s_nop 7")
    A(f"v_mov_b32 {v(TM2)}, {v(TM)}")
    A(f"v_permlane32_swap_b32 {v(TM)}, {v(TM2)}")
    A(f"v_max_f32 {v(TM)}, {v(TM)}, {v(TM2)}")
    A(f"v_sub_f32 {v(TM2)}, 0, {v(TM)}")
    for r in range(16):
        A(f"v_mov_b32 {v(CN+r)}, {v(TM2)}")
    A(f"{MF} {v(SA,16)}, {v(KF+4,4)}, {v(Q,4)}, {v(CN,16)}")
    A(f"{MF} {v(SB,16)}, {v(KF+8,4)}, {v(Q,4)}, {v(CN,16)}")
    A("s_waitcnt vmcnt(0)")
    A(f"s_cmp_lt_u32 {s(S_WV)}, 4")
    A("s_cbranch_scc1 L_a2_nopub")
    publish(F_B2, 157, 158)
    A("L_a2_nopub:")
    srd(R_WO, S_WO, 512*1024)
    A("v_lshrrev_b32 v157, 3, v1")
    A("v_bfe_u32 v158, v157, 1, 1")
    A("v_lshlrev_b32 v158, 2, v158")
    A("v_and_b32 v159, 7, v1")
    A("v_xor_b32 v158, v158, v159")
    A("v_lshlrev_b32 v158, 4, v158")
    A("v_lshl_add_u32 v157, v157, 10, v158")
    A(f"s_lshr_b32 {s(S_T0)}, {s(S_J)}, 2")
    A(f"s_lshl_b32 {s(S_T0)}, {s(S_T0)}, 7")
    A(f"s_lshl_b32 {s(S_T1)}, {s(S_WV)}, 16")
    A(f"s_add_u32 {s(S_T0)}, {s(S_T0)}, {s(S_T1)}")
    A(f"s_lshl_b32 {s(S_T2)}, {s(S_WV)}, 13")
    for n in range(8):
        A(f"s_add_u32 m0, {s(S_T2)}, {LWO + n*1024}")
        A(f"s_add_u32 {s(S_T1)}, {s(S_T0)}, {n*8192}")
        A(f"buffer_load_dwordx4 v157, {s(R_WO,4)}, {s(S_T1)} offen lds")
    def vread(slot, jj, sidx):
        A(f"ds_read_b128 {v(VF+4*slot,4)}, {v(AV0 if sidx == 0 else AV1)} offset:{LV + jj*VTS + sidx*512}")
    vread(0, 8, 0); vread(1, 8, 1); vread(2, 0, 0); vread(3, 0, 1)
    P0, P1 = PP, PP + 8
    for r in range(16):
        A(f"v_add_f32 {v(MM8+r)}, {v(TM2)}, {v(MM8+r)}")
    for r in range(16):
        A(f"v_exp_f32 {v(MM8+r)}, {v(MM8+r)}")
    for i in range(8):
        A(f"v_cvt_pk_bf16_f32 {v(P0+i)}, {v(MM8+2*i)}, {v(MM8+2*i+1)}")
    for i in range(8):
        A(f"v_and_b32 {v(P1+i)}, {v(MMK+i)}, {v(P0+i)}")
    for i in range(8):
        A(f"v_xor_b32 {v(P0+i)}, {v(P1+i)}, {v(P0+i)}")
    A("s_waitcnt lgkmcnt(2)")
    A(f"{MF} {v(O,16)}, {v(VF+0,4)}, {v(P0,4)}, 0")
    A(f"{MF} {v(O,16)}, {v(VF+4,4)}, {v(P0+4,4)}, {v(O,16)}")
    skip_if_invalid(0, "L_a2_nopv0")
    A("s_waitcnt lgkmcnt(0)")
    A(f"{MF} {v(O,16)}, {v(VF+8,4)}, {v(P1,4)}, {v(O,16)}")
    A(f"{MF} {v(O,16)}, {v(VF+12,4)}, {v(P1+4,4)}, {v(O,16)}")
    A("L_a2_nopv0:")
    A("s_waitcnt lgkmcnt(0)")
    for jj in range(1, 8):
        b = bufs[(jj - 1) & 1]
        pb = PP + 8*(jj & 1)
        sl = 2*(jj & 1)
        lab = f"L_a2_p2_{jj}"
        skip_if_invalid(jj, lab)
        vread(sl, jj, 0); vread(sl + 1, jj, 1)
        for r in range(16):
            A(f"v_exp_f32 {v(b+r)}, {v(b+r)}")
        for i in range(8):
            A(f"v_cvt_pk_bf16_f32 {v(pb+i)}, {v(b+2*i)}, {v(b+2*i+1)}")
        A("s_waitcnt lgkmcnt(0)")
        A(f"{MF} {v(O,16)}, {v(VF+4*sl,4)}, {v(pb,4)}, {v(O,16)}")
        A(f"{MF} {v(O,16)}, {v(VF+4*sl+4,4)}, {v(pb+4,4)}, {v(O,16)}")
        A(f"{lab}:")
        if jj + 2 <= 7:
            A("s_nop 1")
            A(f"{MF} {v(b,16)}, {v(KF+4*(jj+2),4)}, {v(Q,4)}, {v(CN,16)}")
            A("s_nop 7")
    A("s_nop 15")
    A(f"v_rcp_f32 {v(TM)}, {v(O+8)}")
    A("s_nop 0")
    for r in range(8):
        A(f"v_mul_f32 {v(O+r)}, {v(TM)}, {v(O+r)}")
    for i in range(4):
        A(f"v_cvt_pk_bf16_f32 {v(PP+i)}, {v(O+2*i)}, {v(O+2*i+1)}")
    A(f"s_lshl_b32 {s(S_T0)}, {s(S_RB)}, 2")
    A(f"s_add_u32 {s(S_T0)}, {s(S_T0)}, {s(S_LI)}")
    A(f"s_lshl_b32 {s(S_T0)}, {s(S_T0)}, 5")
    A(f"s_lshl_b32 {s(S_T1)}, {s(S_HP)}, 1")
    A(f"s_add_u32 {s(S_T0)}, {s(S_T0)}, {s(S_T1)}")
    A(f"s_add_u32 {s(S_T0)}, {s(S_T0)}, {s(S_HD)}")
    A(f"s_lshl_b32 {s(S_T0)}, {s(S_T0)}, 10")
    A(f"s_add_u32 {s(S_T0)}, {s(S_T0)}, {OW}")
    A("v_lshlrev_b32 v157, 4, v1")
    A(f"v_add_u32 v157, {s(S_T0)}, v157")
    A(f"global_store_dwordx4 v157, {v(PP,4)}, {s(S_WS,2)} sc0 sc1")
    A("v_and_b32 v3, 31, v1")
    A("v_lshrrev_b32 v4, 5, v1")
    A(f"s_lshl_b32 {s(S_T0)}, {s(S_WV)}, 1")
    A(f"v_add_u32 v5, {s(S_T0)}, v4")
    A(f"s_lshl_b32 {s(S_T0)}, {s(S_J)}, 6")
    A("v_lshlrev_b32 v6, 2, v5")
    A(f"v_add_u32 v6, {s(S_T0)}, v6")
    A("v_lshlrev_b32 v7, 10, v6")
    A(f"s_lshl_b32 {s(S_T0)}, {s(S_XCD)}, 7")
    A("v_lshlrev_b32 v8, 2, v3")
    A(f"v_add3_u32 v7, v7, v8, {s(S_T0)}")
    for r in range(4):
        A(f"global_load_dword {v(16+r)}, v7, {s(S_BQ,2)} offset:{1024*r}")
    A("s_waitcnt vmcnt(0)")
    publish(F_A2, 157, 158)
    A(f"s_or_b32 {s(S_T0)}, s2, {s(S_WV)}")
    A(f"s_cmp_lg_u32 {s(S_T0)}, 0")
    A("s_cbranch_scc1 L_noep")
    for q in range(4):
        A(f"v_lshlrev_b32 v157, 7, v1")
        A(f"v_add_u32 v157, {FLG + F_B1 + q*8192}, v157")
        poll(157, 158, f"L_poll_ep{q}")
    A(f"v_mov_b32 v157, {EP}")
    A(f"v_mov_b32 v158, {s(S_NONCE)}")
    A(f"s_mov_b64 {s(S_EX,2)}, exec")
    A("s_mov_b64 exec, 1")
    A(f"global_store_dword v157, v158, {s(S_WS,2)} sc0 sc1")
    A(f"s_mov_b64 exec, {s(S_EX,2)}")
    A("L_noep:")
    A("v_lshrrev_b32 v20, 1, v1")
    A("v_lshlrev_b32 v20, 10, v20")
    A("v_and_b32 v21, 1, v1")
    A("v_lshl_add_u32 v20, v21, 3, v20")
    A(f"s_lshr_b32 {s(S_T0)}, {s(S_J)}, 4")
    A(f"s_add_u32 {s(S_T0)}, {s(S_T0)}, 4")
    A(f"s_lshl_b32 {s(S_T0)}, {s(S_T0)}, 2")
    A(f"s_lshl_b32 {s(S_T1)}, {s(S_XCD)}, 7")
    A(f"s_add_u32 {s(S_T0)}, {s(S_T0)}, {s(S_T1)}")
    A(f"s_add_u32 {s(S_T0)}, {s(S_T0)}, {FLG + F_B2}")
    A(f"v_add_u32 v20, {s(S_T0)}, v20")
    poll(20, 21, "L_poll_b2")
    A(f"s_lshl_b32 {s(S_T0)}, {s(S_XCD)}, 18")
    A(f"s_add_u32 {s(S_T0)}, {s(S_T0)}, {YT}")
    A("v_lshlrev_b32 v20, 13, v3")
    A("v_lshl_add_u32 v20, v6, 1, v20")
    A(f"v_add_u32 v20, {s(S_T0)}, v20")
    A("v_add_u32 v21, 0x1000, v20")
    A(f"global_load_dwordx2 v[22:23], v20, {s(S_WS,2)} sc1")
    A(f"global_load_dwordx2 v[24:25], v21, {s(S_WS,2)} sc1")
    for r in range(4):
        A(f"v_lshlrev_b32 {v(32+2*r)}, 16, {v(16+r)}")
        A(f"v_and_b32 {v(33+2*r)}, 0xffff0000, {v(16+r)}")
    A("s_waitcnt vmcnt(0)")
    A("v_lshlrev_b32 v40, 16, v22"); A("v_lshlrev_b32 v41, 16, v24")
    A("v_and_b32 v42, 0xffff0000, v22"); A("v_and_b32 v43, 0xffff0000, v24")
    A("v_lshlrev_b32 v44, 16, v23"); A("v_lshlrev_b32 v45, 16, v25")
    A("v_and_b32 v46, 0xffff0000, v23"); A("v_and_b32 v47, 0xffff0000, v25")
    for r in range(4):
        A(f"v_pk_mul_f32 {v(40+2*r,2)}, {v(40+2*r,2)}, {v(32+2*r,2)}")
    for r in range(4):
        A(f"v_cvt_pk_bf16_f32 {v(48+r)}, {v(40+2*r)}, {v(41+2*r)}")
    A("v_lshlrev_b32 v20, 11, v6")
    A(f"s_lshl_b32 {s(S_T0)}, {s(S_XCD)}, 7")
    A(f"s_add_u32 {s(S_T0)}, {s(S_T0)}, 1024")
    A(f"v_add3_u32 v20, v20, v8, {s(S_T0)}")
    A("v_add_u32 v21, 0x1000, v20")
    A(f"global_store_dword v20, v48, {s(S_OUT,2)} sc0 sc1")
    A(f"global_store_dword v20, v49, {s(S_OUT,2)} offset:2048 sc0 sc1")
    A(f"global_store_dword v21, v50, {s(S_OUT,2)} sc0 sc1")
    A(f"global_store_dword v21, v51, {s(S_OUT,2)} offset:2048 sc0 sc1")
    A("s_barrier")
    S_TB64 = S_T4
    A(f"s_lshl_b32 {s(S_TB64)}, {s(S_XCD)}, 2")
    A(f"s_and_b32 {s(S_T0)}, {s(S_J)}, 3")
    A(f"s_add_u32 {s(S_TB64)}, {s(S_TB64)}, {s(S_T0)}")
    A("v_and_b32 v16, 1, v1")
    A("v_lshrrev_b32 v17, 1, v1")
    A(f"s_lshl_b32 {s(S_T0)}, {s(S_WV)}, 2")
    A(f"v_add_u32 v17, {s(S_T0)}, v17")
    A(f"s_lshl_b32 {s(S_T0)}, {s(S_TB64)}, 1")
    A(f"v_add_u32 v16, {s(S_T0)}, v16")
    A("v_lshrrev_b32 v18, 2, v16")
    A("v_lshrrev_b32 v19, 1, v17")
    A("v_and_b32 v20, 3, v18")
    A("v_and_b32 v21, 7, v19")
    A("v_lshl_add_u32 v20, v21, 2, v20")
    A("v_lshlrev_b32 v20, 3, v20")
    A("v_lshrrev_b32 v21, 2, v18")
    A("v_lshl_add_u32 v20, v21, 1, v20")
    A("v_lshrrev_b32 v21, 3, v19")
    A("v_add_u32 v20, v20, v21")
    A("v_lshlrev_b32 v20, 7, v20")
    A("v_and_b32 v21, 3, v16")
    A("v_and_b32 v22, 1, v17")
    A("v_lshl_add_u32 v21, v22, 2, v21")
    A("v_lshl_add_u32 v20, v21, 2, v20")
    A(f"v_add_u32 v20, {FLG + F_A2}, v20")
    poll(20, 21, "L_poll_a2", nlanes=8)
    A("v_lshlrev_b32 v18, 4, v1")
    A(f"s_lshl_b32 {s(S_T0)}, {s(S_TB64)}, 16")
    A(f"s_lshl_b32 {s(S_T1)}, {s(S_WV)}, 12")
    A(f"s_add_u32 {s(S_T0)}, {s(S_T0)}, {s(S_T1)}")
    for ts in range(2):
        for hh in range(4):
            A(f"s_add_u32 m0, {s(S_T1)}, {LO + ts*32768 + hh*1024}")
            A(f"s_add_u32 {s(S_T2)}, {s(S_T0)}, {OW + ts*32768 + hh*1024}")
            A(f"buffer_load_dwordx4 v18, {s(R_WS,4)}, {s(S_T2)} offen sc1 lds")
    AO, AW = 24, 25
    A(f"s_and_b32 {s(S_T0)}, {s(S_WV)}, 1")
    A(f"s_lshl_b32 {s(S_T0)}, {s(S_T0)}, 15")
    A(f"s_lshr_b32 {s(S_T1)}, {s(S_WV)}, 2")
    A(f"s_lshl_b32 {s(S_T2)}, {s(S_T1)}, 14")
    A(f"s_add_u32 {s(S_T0)}, {s(S_T0)}, {s(S_T2)}")
    A(f"v_add_u32 {v(AO)}, {s(S_T0)}, v18")
    A("v_and_b32 v16, 15, v1")
    A("v_lshrrev_b32 v16, 2, v16")
    A("v_lshrrev_b32 v17, 5, v1")
    A("v_lshl_add_u32 v17, v17, 2, v16")
    A("v_lshlrev_b32 v17, 7, v17")
    A("v_lshrrev_b32 v16, 1, v16")
    A(f"s_bfe_u32 {s(S_T0)}, {s(S_WV)}, 0x10001")
    A(f"v_xor_b32 v16, {s(S_T0)}, v16")
    A("v_lshl_add_u32 v17, v16, 6, v17")
    A("v_bfe_u32 v16, v1, 4, 1")
    A("v_lshl_add_u32 v17, v16, 5, v17")
    A("v_and_b32 v16, 3, v1")
    A("v_lshl_add_u32 v17, v16, 3, v17")
    A(f"s_lshl_b32 {s(S_T2)}, {s(S_T1)}, 15")
    A(f"s_add_u32 {s(S_T2)}, {s(S_T2)}, {LWO}")
    A(f"v_add_u32 {v(AW)}, {s(S_T2)}, v17")
    A("s_waitcnt vmcnt(0)")
    A("s_barrier")
    OA = 64
    F3 = [32, 40, 48, 56]
    def a3reads(hs):
        f = F3[hs & 3]
        A(f"ds_read_b128 {v(f,4)}, {v(AO)} offset:{hs*1024}")
        A(f"ds_read_b64_tr_b16 {v(f+4,2)}, {v(AW)} offset:{hs*2048}")
        A(f"ds_read_b64_tr_b16 {v(f+6,2)}, {v(AW)} offset:{hs*2048 + 1024}")
    for hs in range(3): a3reads(hs)
    for hs in range(16):
        if hs + 3 < 16:
            a3reads(hs + 3); A("s_waitcnt lgkmcnt(9)")
        else:
            A(f"s_waitcnt lgkmcnt({3*(15-hs)})")
        f = F3[hs & 3]
        cin = "0" if hs == 0 else v(OA,16)
        A(f"{MF} {v(OA,16)}, {v(f+4,4)}, {v(f,4)}, {cin}")
    A("v_and_b32 v16, 31, v1")
    A("v_lshrrev_b32 v17, 5, v1")
    A(f"s_bfe_u32 {s(S_T0)}, {s(S_WV)}, 0x10001")
    A(f"s_lshl_b32 {s(S_T0)}, {s(S_T0)}, 3")
    A(f"v_add_u32 v17, {s(S_T0)}, v17")
    A("v_and_b32 v18, 15, v16")
    A("v_xor_b32 v17, v17, v18")
    A("v_lshlrev_b32 v17, 4, v17")
    A(f"s_and_b32 {s(S_T0)}, {s(S_WV)}, 1")
    A(f"s_lshl_b32 {s(S_T0)}, {s(S_T0)}, 13")
    A(f"s_mul_i32 {s(S_T2)}, {s(S_T1)}, {LS1 - LS0}")
    A(f"s_add_u32 {s(S_T0)}, {s(S_T0)}, {s(S_T2)}")
    A(f"s_add_u32 {s(S_T0)}, {s(S_T0)}, {LS0}")
    A("v_lshl_add_u32 v17, v16, 8, v17")
    A(f"v_add_u32 v17, {s(S_T0)}, v17")
    for m in range(4):
        A(f"v_xor_b32 {v(20+m)}, {m*32}, v17")
    for m in range(4):
        A(f"ds_write_b128 {v(20+m)}, {v(OA+4*m,4)}")
    A("s_waitcnt lgkmcnt(0)")
    A("s_barrier")
    A("v_lshrrev_b32 v16, 3, v0")
    A("v_and_b32 v17, 7, v0")
    A("v_lshlrev_b32 v18, 1, v17")
    A("v_and_b32 v19, 15, v16")
    A("v_xor_b32 v18, v18, v19")
    A("v_lshlrev_b32 v18, 4, v18")
    A("v_lshl_add_u32 v18, v16, 8, v18")
    A("v_xor_b32 v19, 16, v18")
    A(f"v_add_u32 v20, {LS0}, v18"); A(f"v_add_u32 v21, {LS0}, v19")
    A(f"v_add_u32 v22, {LS1}, v18"); A(f"v_add_u32 v23, {LS1}, v19")
    A("ds_read_b128 v[32:35], v20"); A("ds_read_b128 v[36:39], v21")
    A("ds_read_b128 v[40:43], v22"); A("ds_read_b128 v[44:47], v23")
    A(f"s_lshl_b32 {s(S_T0)}, {s(S_TB64)}, 17")
    A(f"s_lshr_b32 {s(S_T1)}, {s(S_J)}, 2")
    A(f"s_lshl_b32 {s(S_T1)}, {s(S_T1)}, 7")
    A(f"s_add_u32 {s(S_T0)}, {s(S_T0)}, {s(S_T1)}")
    A("v_lshlrev_b32 v24, 11, v16")
    A("v_lshl_add_u32 v24, v17, 4, v24")
    A(f"v_add_u32 v24, {s(S_T0)}, v24")
    A("s_waitcnt lgkmcnt(0)")
    for r in range(8):
        A(f"v_add_f32 {v(32+r)}, {v(32+r)}, {v(40+r)}")
    for i in range(4):
        A(f"v_cvt_pk_bf16_f32 {v(48+i)}, {v(32+2*i)}, {v(33+2*i)}")
    A(f"global_store_dwordx4 v24, v[48:51], {s(S_OUT,2)}")
    A("L_end:")
    A("s_endpgm")
    n = a.fix_hazards()
    return a, n

HEAD = f"""; Fused sliding-window attention block + H3 SSM conv, one persistent launch (generated by gen/gen.py)
; @launch grid=(256,1,1) block=(512,1,1) lds={LDS_BYTES}
.amdgcn_target "amdgcn-amd-amdhsa--gfx950"
.text
.globl {KN}
.p2align 8
.type {KN},@function
{KN}:
"""
TAIL = f""".section .rodata,"a"
.p2align 6
.amdhsa_kernel {KN}
  .amdhsa_next_free_vgpr 256
  .amdhsa_next_free_sgpr 102
  .amdhsa_accum_offset 256
  .amdhsa_group_segment_fixed_size 0
  .amdhsa_kernarg_size 96
  .amdhsa_user_sgpr_count 2
  .amdhsa_user_sgpr_kernarg_segment_ptr 1
  .amdhsa_system_sgpr_workgroup_id_x 1
.end_amdhsa_kernel
"""
if __name__ == "__main__":
    out = sys.argv[1] if len(sys.argv) > 1 else f"cdna_kernels/{NAME}.s"
    a, n = build()
    open(out, "w").write(HEAD + a.text() + TAIL)
    print("instructions:", a.count(), "hazard pads:", n)
```

```python
import sys
from asmlib import Asm, v, s

NAME = "concat_heads__sliding_block__ssm_conv_h3__prompt"
KN = NAME + "_kernel"

FLG = 0x0
F_B1, F_A1, F_B2, F_A2 = 0, 32768, 65536, 98304
EP  = 0x20000
KW  = 0x100000
VW  = 0x300000
OW  = 0x500000
UR  = 0x700000
YT  = 0x900000
WS_BYTES = 0xB00000
PROF = 0xC00000

STG = 28672
B2R = 114688
CB  = 12864
T0  = B2R
KVS = 140416
E_OFF, O_OFF, U_OFF = 0, 4164, 8288
LK, LV, LQ = 0, 24576, 49536
KHS, VHS, VTS = 12288, 12480, 1040
LR  = 57728
LO  = 0
LWO = 81920
LS0, LS1 = 65536, 147456
LYT = 65536
CSW = 163808
OKW = 163832
LDS_BYTES = 163840

S_X, S_WQKV, S_WO, S_BQ, S_BK, S_BV, S_SK, S_SSMK = 16, 18, 20, 22, 24, 26, 28, 30
S_SD, S_OUT, S_DBG, S_WS = 32, 34, 36, 38
R_X, R_W, R_BK, R_WS, R_WO = 40, 44, 48, 52, 56
S_NONCE, S_WV, S_J, S_XCD, S_RB, S_HP = 60, 61, 62, 63, 64, 65
S_T0, S_T1, S_T2, S_T3, S_T4, S_T5 = 66, 67, 68, 69, 70, 71
S_LI = 72
S_J0 = 73
S_SPIN = 74
S_OK = 75
S_EX = 76
S_CBASE, S_CH = 78, 79
S_CMP = 80
S_HD, S_TB64 = 96, 97
S_ROT = 75

PAK, PAV0, PAV1, PAQ = 192, 193, 194, 195
PFB2, PFA2, PY0, PY1, PYR, PO, PWO, PAO, PAW, POUT, PL16, PQ3 = 196, 197, 198, 199, 200, 201, 202, 203, 204, 205, 206, 207
PPW = [9, 10, 11, 12]
PPR = [13, 14, 15, 2]
PB3 = 8
S_LINK = 4
S_WOB, S_WOL = 6, 7
SPIN = 200000
NEGBIG = 0xF149F2CA
QSCALE = 0x3EB8AA3B
ONES = 0x3F803F80
STAGE = [0, 1, 2, 3, 0, 1, 2, 3]
MF = "v_mfma_f32_32x32x16_bf16"
MF16 = "v_mfma_f32_16x16x32_bf16"

def build(prof=False, opt=None):
    opt = opt or {}
    NT_B = "nt" if opt.get("nt_b", 1) else ""
    NT_XW = "nt" if opt.get("nt_xw", 0) else ""
    NT_WO = "nt" if opt.get("nt_wo", 0) else ""
    SCP = {0: "sc0 sc1", 1: "sc1"}[opt.get("sc_poll", 1)]
    SCS = {0: "sc0 sc1", 1: "sc1"}[opt.get("sc_store", 1)]
    SLEEP = opt.get("sleep", 0)
    a = Asm()
    A = a
    stubs = []
    def stamp(k):
        if not prof: return
        A("s_memrealtime s[100:101]")
        A("s_memtime s[98:99]")
        A("s_waitcnt lgkmcnt(0)")
        A(f"v_writelane_b32 v255, s100, {k}")
        A(f"v_writelane_b32 v255, s98, {k+32}")
    def srd(dst, base, nbytes):
        A(f"s_mov_b32 {s(dst)}, {s(base)}")
        A(f"s_and_b32 {s(dst+1)}, {s(base+1)}, 0xffff")
        A(f"s_mov_b32 {s(dst+2)}, {nbytes}")
        A(f"s_mov_b32 {s(dst+3)}, 0x00020000")
    def flag_load(vaddr, vtmp):
        A(f"global_load_dword {v(vtmp)}, {v(vaddr)}, {s(S_WS,2)} {SCP}")
    def spin(vaddr, vtmp, label):
        A(f"s_mov_b32 {s(S_SPIN)}, {SPIN}")
        A(f"{label}:")
        flag_load(vaddr, vtmp)
        A("s_waitcnt vmcnt(0)")
        A(f"v_cmp_ne_u32 vcc, {s(S_NONCE)}, {v(vtmp)}")
        A(f"s_cbranch_vccz {label}_done")
        if SLEEP: A(f"s_sleep {SLEEP}")
        A(f"s_sub_u32 {s(S_SPIN)}, {s(S_SPIN)}, 1")
        A(f"s_cmp_lg_u32 {s(S_SPIN)}, 0")
        A(f"s_cbranch_scc1 {label}")
        A(f"{label}_done:")
    def check_or_spin(vaddr, vtmp, label):
        A(f"v_cmp_ne_u32 vcc, {s(S_NONCE)}, {v(vtmp)}")
        A(f"s_cbranch_vccz {label}_done")
        spin(vaddr, vtmp, label)
    def publish(kind, vt0, vt1):
        A(f"s_lshl_b32 {s(S_T0)}, s2, 7")
        A(f"s_lshl_b32 {s(S_T1)}, {s(S_WV)}, 2")
        A(f"s_add_u32 {s(S_T0)}, {s(S_T0)}, {s(S_T1)}")
        A(f"s_add_u32 {s(S_T0)}, {s(S_T0)}, {FLG + kind}")
        A(f"v_mov_b32 {v(vt0)}, {s(S_T0)}")
        A(f"v_mov_b32 {v(vt1)}, {s(S_NONCE)}")
        A(f"s_mov_b64 {s(S_EX,2)}, exec")
        A(f"s_mov_b64 exec, 1")
        A(f"global_store_dword {v(vt0)}, {v(vt1)}, {s(S_WS,2)} {SCS}")
        A(f"s_mov_b64 exec, {s(S_EX,2)}")

    def record(fn):
        n0 = len(a.items)
        fn()
        out = [it.text for k, it in a.items[n0:]]
        assert all(k == "i" for k, it in a.items[n0:])
        del a.items[n0:]
        return out
    MM0, MM8, MMK = 208, 224, 240
    def gen_masks():
        A("v_and_b32 v248, 31, v1")
        A("v_lshrrev_b32 v249, 5, v1")
        A("v_lshlrev_b32 v249, 2, v249")
        A("v_sub_u32 v248, v248, v249")
        A(f"v_mov_b32 v249, {NEGBIG}")
        A("v_mov_b32 v250, 0")
        A("v_mov_b32 v251, 0xffff")
        A("v_mov_b32 v252, 0xffff0000")
        for grp in range(2):
            for q in range(8):
                r = grp*8 + q
                cst = (r & 3) + 8*(r >> 2)
                A(f"v_cmp_le_i32 {s(S_CMP+2*q,2)}, {cst}, v248")
            for q in range(8):
                r = grp*8 + q
                A(f"v_cndmask_b32 {v(MM8+r)}, v249, v250, {s(S_CMP+2*q,2)}")
                A(f"v_cndmask_b32 {v(MM0+r)}, v250, v249, {s(S_CMP+2*q,2)}")
            for q in range(0, 8, 2):
                i = (grp*8 + q) >> 1
                A(f"v_cndmask_b32 v253, v251, v250, {s(S_CMP+2*q,2)}")
                A(f"v_cndmask_b32 v254, v252, v250, {s(S_CMP+2*q+2,2)}")
                A(f"v_or_b32 {v(MMK+i)}, v253, v254")

    def sub_setup():
        A("L_sub_setup:")
        gen_masks()
        A(f"s_lshr_b32 {s(S_HD)}, {s(S_WV)}, 2")
        A(f"s_lshl_b32 {s(S_T0)}, {s(S_RB)}, 2")
        A(f"s_add_u32 {s(S_T0)}, {s(S_T0)}, {s(S_LI)}")
        A(f"s_sub_i32 {s(S_J0)}, 8, {s(S_T0)}")
        A(f"s_max_i32 {s(S_J0)}, {s(S_J0)}, 0")
        A(f"v_lshlrev_b32 {v(PL16)}, 4, v1")
        A(f"s_lshl_b32 {s(S_T0)}, {s(S_HD)}, 12")
        A(f"s_lshl_b32 {s(S_T1)}, {s(S_LI)}, 10")
        A(f"s_add_u32 {s(S_T0)}, {s(S_T0)}, {s(S_T1)}")
        A(f"v_add_u32 {v(PAQ)}, {s(S_T0)}, {v(PL16)}")
        A(f"s_mul_i32 {s(S_T0)}, {s(S_HD)}, {KHS}")
        A(f"s_add_u32 {s(S_T0)}, {s(S_T0)}, {s(S_T1)}")
        A(f"v_add_u32 {v(PAK)}, {s(S_T0)}, {v(PL16)}")
        A(f"s_mul_i32 {s(S_T0)}, {s(S_HD)}, {VHS}")
        A(f"s_mul_i32 {s(S_T1)}, {s(S_LI)}, {VTS}")
        A(f"s_add_u32 {s(S_T0)}, {s(S_T0)}, {s(S_T1)}")
        A("v_and_b32 v248, 15, v1")
        A("v_lshlrev_b32 v248, 4, v248")
        A("v_lshrrev_b32 v249, 5, v1")
        A("v_lshl_add_u32 v248, v249, 8, v248")
        A("v_bfe_u32 v249, v1, 4, 1")
        A("v_cmp_eq_u32 vcc, 1, v249")
        A("v_mov_b32 v249, 1024")
        A("v_mov_b32 v250, 512")
        A(f"v_cndmask_b32 {v(PAV0)}, v248, v249, vcc")
        A(f"v_cndmask_b32 {v(PAV1)}, v248, v250, vcc")
        A(f"v_add_u32 {v(PAV0)}, {s(S_T0)}, {v(PAV0)}")
        A(f"v_add_u32 {v(PAV1)}, {s(S_T0)}, {v(PAV1)}")
        A(f"s_lshl_b32 {s(S_T0)}, {s(S_RB)}, 2")
        A(f"s_add_u32 {s(S_T0)}, {s(S_T0)}, {s(S_LI)}")
        A(f"s_lshl_b32 {s(S_T0)}, {s(S_T0)}, 5")
        A(f"s_lshl_b32 {s(S_T1)}, {s(S_HP)}, 1")
        A(f"s_add_u32 {s(S_T0)}, {s(S_T0)}, {s(S_T1)}")
        A(f"s_add_u32 {s(S_T0)}, {s(S_T0)}, {s(S_HD)}")
        A(f"s_lshl_b32 {s(S_T0)}, {s(S_T0)}, 10")
        A(f"s_add_u32 {s(S_T0)}, {s(S_T0)}, {OW}")
        A(f"v_add_u32 {v(PO)}, {s(S_T0)}, {v(PL16)}")
        A("v_lshrrev_b32 v248, 3, v1")
        A("v_bfe_u32 v249, v248, 1, 1")
        A("v_lshlrev_b32 v249, 2, v249")
        A("v_and_b32 v250, 7, v1")
        A("v_xor_b32 v249, v249, v250")
        A("v_lshlrev_b32 v249, 4, v249")
        A(f"v_lshl_add_u32 {v(PWO)}, v248, 10, v249")
        A(f"s_lshr_b32 {s(S_T0)}, {s(S_J)}, 2")
        A(f"s_lshl_b32 {s(S_T0)}, {s(S_T0)}, 7")
        A(f"s_lshl_b32 {s(S_T1)}, {s(S_WV)}, 16")
        A(f"s_add_u32 {s(S_WOB)}, {s(S_T0)}, {s(S_T1)}")
        A(f"s_lshl_b32 {s(S_WOL)}, {s(S_WV)}, 13")
        srd(R_WO, S_WO, 512*1024)
        A("v_and_b32 v248, 31, v1")
        A("v_lshrrev_b32 v249, 5, v1")
        A(f"s_lshl_b32 {s(S_T0)}, {s(S_WV)}, 1")
        A(f"v_add_u32 v249, {s(S_T0)}, v249")
        A(f"s_lshl_b32 {s(S_T0)}, {s(S_J)}, 6")
        A("v_lshlrev_b32 v250, 2, v249")
        A(f"v_add_u32 v250, {s(S_T0)}, v250")
        A(f"s_lshl_b32 {s(S_T0)}, {s(S_XCD)}, 7")
        A("v_lshlrev_b32 v251, 2, v248")
        A(f"v_add_u32 v251, {s(S_T0)}, v251")
        A(f"v_lshl_add_u32 {v(PQ3)}, v250, 10, v251")
        A(f"v_lshl_add_u32 {v(PB3)}, v250, 11, v251")
        A(f"v_add_u32 {v(PB3)}, 1024, {v(PB3)}")
        A("v_lshrrev_b32 v250, 1, v249")
        A("v_and_b32 v251, 7, v248")
        A("v_xor_b32 v250, v250, v251")
        A("v_lshlrev_b32 v250, 4, v250")
        A("v_and_b32 v251, 1, v249")
        A("v_lshl_add_u32 v250, v251, 3, v250")
        A("v_lshl_add_u32 v250, v248, 8, v250")
        A(f"v_add_u32 {v(PYR)}, {LYT}, v250")
        A("v_lshrrev_b32 v248, 3, v1")
        A("v_and_b32 v249, 7, v1")
        A("v_lshrrev_b32 v250, 1, v248")
        A("v_xor_b32 v249, v249, v250")
        A("v_lshlrev_b32 v248, 12, v248")
        A(f"v_lshl_add_u32 {v(PY0)}, v249, 4, v248")
        A("v_xor_b32 v249, 4, v249")
        A(f"v_lshl_add_u32 {v(PY1)}, v249, 4, v248")
        A(f"v_lshrrev_b32 {v(PFB2)}, 1, v1")
        A(f"v_lshlrev_b32 {v(PFB2)}, 10, {v(PFB2)}")
        A("v_and_b32 v248, 1, v1")
        A(f"v_lshl_add_u32 {v(PFB2)}, v248, 3, {v(PFB2)}")
        A(f"s_lshr_b32 {s(S_T0)}, {s(S_J)}, 4")
        A(f"s_add_u32 {s(S_T0)}, {s(S_T0)}, 4")
        A(f"s_lshl_b32 {s(S_T0)}, {s(S_T0)}, 2")
        A(f"s_lshl_b32 {s(S_T1)}, {s(S_XCD)}, 7")
        A(f"s_add_u32 {s(S_T0)}, {s(S_T0)}, {s(S_T1)}")
        A(f"s_add_u32 {s(S_T0)}, {s(S_T0)}, {FLG + F_B2}")
        A(f"v_add_u32 {v(PFB2)}, {s(S_T0)}, {v(PFB2)}")
        A(f"s_lshl_b32 {s(S_TB64)}, {s(S_XCD)}, 2")
        A(f"s_and_b32 {s(S_T0)}, {s(S_J)}, 3")
        A(f"s_add_u32 {s(S_TB64)}, {s(S_TB64)}, {s(S_T0)}")
        A("v_and_b32 v248, 1, v1")
        A("v_bfe_u32 v249, v1, 1, 2")
        A(f"s_lshl_b32 {s(S_T0)}, {s(S_WV)}, 2")
        A(f"v_add_u32 v249, {s(S_T0)}, v249")
        A(f"s_lshl_b32 {s(S_T0)}, {s(S_TB64)}, 1")
        A(f"v_add_u32 v248, {s(S_T0)}, v248")
        A("v_lshrrev_b32 v250, 2, v248")
        A("v_lshrrev_b32 v251, 1, v249")
        A("v_and_b32 v252, 3, v250")
        A("v_and_b32 v253, 7, v251")
        A("v_lshl_add_u32 v252, v253, 2, v252")
        A("v_lshlrev_b32 v252, 3, v252")
        A("v_lshrrev_b32 v253, 2, v250")
        A("v_lshl_add_u32 v252, v253, 1, v252")
        A("v_lshrrev_b32 v253, 3, v251")
        A("v_add_u32 v252, v252, v253")
        A("v_lshlrev_b32 v252, 7, v252")
        A("v_and_b32 v253, 3, v248")
        A("v_and_b32 v250, 1, v249")
        A("v_lshl_add_u32 v253, v250, 2, v253")
        A("v_lshl_add_u32 v252, v253, 2, v252")
        A(f"v_add_u32 {v(PFA2)}, {FLG + F_A2}, v252")
        A(f"s_and_b32 {s(S_T0)}, {s(S_WV)}, 1")
        A(f"s_lshl_b32 {s(S_T0)}, {s(S_T0)}, 15")
        A(f"s_lshl_b32 {s(S_T2)}, {s(S_HD)}, 14")
        A(f"s_add_u32 {s(S_T0)}, {s(S_T0)}, {s(S_T2)}")
        A(f"v_add_u32 {v(PAO)}, {s(S_T0)}, {v(PL16)}")
        A("v_and_b32 v248, 15, v1")
        A("v_lshrrev_b32 v248, 2, v248")
        A("v_lshrrev_b32 v249, 5, v1")
        A("v_lshl_add_u32 v249, v249, 2, v248")
        A("v_lshlrev_b32 v249, 7, v249")
        A("v_lshrrev_b32 v248, 1, v248")
        A(f"s_bfe_u32 {s(S_T0)}, {s(S_WV)}, 0x10001")
        A(f"v_xor_b32 v248, {s(S_T0)}, v248")
        A("v_lshl_add_u32 v249, v248, 6, v249")
        A("v_bfe_u32 v248, v1, 4, 1")
        A("v_lshl_add_u32 v249, v248, 5, v249")
        A("v_and_b32 v248, 3, v1")
        A("v_lshl_add_u32 v249, v248, 3, v249")
        A(f"s_lshl_b32 {s(S_T2)}, {s(S_HD)}, 15")
        A(f"s_add_u32 {s(S_T2)}, {s(S_T2)}, {LWO}")
        A(f"v_add_u32 {v(PAW)}, {s(S_T2)}, v249")
        A("v_and_b32 v248, 31, v1")
        A("v_lshrrev_b32 v249, 5, v1")
        A(f"s_lshl_b32 {s(S_T0)}, {s(S_T0)}, 3")
        A(f"v_add_u32 v249, {s(S_T0)}, v249")
        A("v_and_b32 v250, 15, v248")
        A("v_xor_b32 v249, v249, v250")
        A("v_lshlrev_b32 v249, 4, v249")
        A(f"s_and_b32 {s(S_T0)}, {s(S_WV)}, 1")
        A(f"s_lshl_b32 {s(S_T0)}, {s(S_T0)}, 13")
        A(f"s_mul_i32 {s(S_T2)}, {s(S_HD)}, {LS1 - LS0}")
        A(f"s_add_u32 {s(S_T0)}, {s(S_T0)}, {s(S_T2)}")
        A(f"s_add_u32 {s(S_T0)}, {s(S_T0)}, {LS0}")
        A("v_lshl_add_u32 v249, v248, 8, v249")
        A(f"v_add_u32 v249, {s(S_T0)}, v249")
        for m in range(4):
            A(f"v_xor_b32 {v(PPW[m])}, {m*32}, v249")
        A("v_lshrrev_b32 v248, 3, v0")
        A("v_and_b32 v249, 7, v0")
        A("v_lshlrev_b32 v250, 1, v249")
        A("v_and_b32 v251, 15, v248")
        A("v_xor_b32 v250, v250, v251")
        A("v_lshlrev_b32 v250, 4, v250")
        A("v_lshl_add_u32 v250, v248, 8, v250")
        A("v_xor_b32 v251, 16, v250")
        A(f"v_add_u32 {v(PPR[0])}, {LS0}, v250"); A(f"v_add_u32 {v(PPR[1])}, {LS0}, v251")
        A(f"v_add_u32 {v(PPR[2])}, {LS1}, v250"); A(f"v_add_u32 {v(PPR[3])}, {LS1}, v251")
        A(f"s_lshl_b32 {s(S_T0)}, {s(S_TB64)}, 17")
        A(f"s_lshr_b32 {s(S_T1)}, {s(S_J)}, 2")
        A(f"s_lshl_b32 {s(S_T1)}, {s(S_T1)}, 7")
        A(f"s_add_u32 {s(S_T0)}, {s(S_T0)}, {s(S_T1)}")
        A("v_lshlrev_b32 v250, 11, v248")
        A("v_lshl_add_u32 v250, v249, 4, v250")
        A(f"v_add_u32 {v(POUT)}, {s(S_T0)}, v250")
        A(f"s_setpc_b64 {s(S_LINK,2)}")
    def wo_dma(n):
        A(f"s_add_u32 m0, {s(S_WOL)}, {LWO + n*1024}")
        A(f"s_add_u32 {s(S_T1)}, {s(S_WOB)}, {n*8192}")
        A(f"buffer_load_dwordx4 {v(PWO)}, {s(R_WO,4)}, {s(S_T1)} offen {NT_WO} lds")

    stamp(0)
    A("s_load_dwordx16 s[16:31], s[0:1], 0")
    A("s_load_dwordx8 s[32:39], s[0:1], 64")
    A("s_cmp_ge_u32 s2, 256")
    A("s_cbranch_scc1 L_end")
    A("v_and_b32 v1, 63, v0")
    A("v_lshrrev_b32 v2, 6, v0")
    A(f"s_and_b32 {s(S_XCD)}, s2, 7")
    A(f"s_lshr_b32 {s(S_J)}, s2, 3")
    A(f"v_readfirstlane_b32 {s(S_WV)}, v2")
    A(f"s_lshr_b32 {s(S_T0)}, {s(S_XCD)}, 1")
    A(f"s_lshl_b32 {s(S_T0)}, {s(S_T0)}, 2")
    A(f"s_and_b32 {s(S_T1)}, {s(S_J)}, 3")
    A(f"s_add_u32 {s(S_RB)}, {s(S_T0)}, {s(S_T1)}")
    A(f"s_and_b32 {s(S_T0)}, {s(S_XCD)}, 1")
    A(f"s_lshl_b32 {s(S_T0)}, {s(S_T0)}, 3")
    A(f"s_lshr_b32 {s(S_T1)}, {s(S_J)}, 2")
    A(f"s_add_u32 {s(S_HP)}, {s(S_T0)}, {s(S_T1)}")
    A(f"s_and_b32 {s(S_LI)}, {s(S_WV)}, 3")
    A("v_and_b32 v3, 31, v1")
    A("v_lshrrev_b32 v4, 5, v1")
    A(f"s_cmp_ge_u32 {s(S_WV)}, 4")
    A("s_cbranch_scc1 L_lwave")
    A("v_lshrrev_b32 v5, 3, v1")
    A("v_and_b32 v6, 7, v1")
    A("v_lshlrev_b32 v6, 4, v6")
    A(f"s_lshl_b32 {s(S_T0)}, {s(S_J)}, 6")
    A(f"s_lshl_b32 {s(S_T1)}, {s(S_WV)}, 4")
    A(f"s_add_u32 {s(S_T0)}, {s(S_T0)}, {s(S_T1)}")
    A(f"v_add_u32 v5, {s(S_T0)}, v5")
    A("v_lshlrev_b32 v5, 10, v5")
    A(f"s_lshl_b32 {s(S_T1)}, {s(S_XCD)}, 7")
    A(f"v_add3_u32 v7, v5, v6, {s(S_T1)}")
    A("v_add_u32 v8, 0xffffe000, v7")
    A("v_add_u32 v9, 0x2000, v7")
    A(f"s_mul_i32 {s(S_T4)}, {s(S_WV)}, 5120")
    A(f"s_add_u32 {s(S_T4)}, {s(S_T4)}, {KVS}")
    A(f"s_lshl_b32 {s(S_T0)}, {s(S_XCD)}, 9")
    A("v_lshlrev_b32 v11, 4, v3")
    A(f"v_add_u32 v11, {s(S_T0)}, v11")
    A("s_waitcnt lgkmcnt(0)")
    stamp(1)
    srd(R_BK, S_BK, 2048*1024)
    srd(R_X, S_BV, 2048*1024)
    A(f"s_load_dword {s(S_NONCE)}, {s(S_WS,2)}, {EP}")
    for n, vr in enumerate((8, 7, 9)):
        A(f"s_add_u32 m0, {s(S_T4)}, {n*1024}")
        A(f"buffer_load_dwordx4 {v(vr)}, {s(R_BK,4)}, 0 offen {NT_B} lds")
    for n, vr in enumerate((7, 9)):
        A(f"s_add_u32 m0, {s(S_T4)}, {3072 + n*1024}")
        A(f"buffer_load_dwordx4 {v(vr)}, {s(R_X,4)}, 0 offen {NT_B} lds")
    A(f"global_load_dwordx4 v[36:39], v11, {s(S_SK,2)}")
    XA, XB, WA, WB, WC = 144, 148, 152, 153, 154
    A(f"s_lshl_b32 {s(S_T0)}, {s(S_LI)}, 5")
    A(f"v_add_u32 v110, {s(S_T0)}, v3")
    A("v_lshrrev_b32 v111, 1, v110")
    A("v_and_b32 v111, 7, v111")
    A("v_xor_b32 v111, v111, v4")
    A("v_lshlrev_b32 v111, 4, v111")
    A("v_lshl_add_u32 v111, v110, 7, v111")
    for st in range(4):
        A(f"v_xor_b32 {v(XA+st)}, {st*32}, v111")
        A(f"v_add_u32 {v(XB+st)}, {2*STG}, {v(XA+st)}")
    A("v_and_b32 v110, 15, v1")
    A("v_lshrrev_b32 v110, 2, v110")
    A("v_lshl_add_u32 v110, v4, 3, v110")
    A("v_lshlrev_b32 v110, 6, v110")
    A("v_bfe_u32 v111, v1, 4, 1")
    A("v_lshl_add_u32 v110, v111, 5, v110")
    A("v_and_b32 v111, 3, v1")
    A("v_lshl_add_u32 v110, v111, 3, v110")
    A(f"v_add_u32 {v(WA)}, 16384, v110")
    A(f"v_add_u32 {v(WB)}, {2*STG}, {v(WA)}")
    A(f"v_add_u32 {v(WC)}, {4*STG}, {v(WA)}")
    ACC = 64
    FR = [160, 176, 128]
    def reads(n):
        c, st = n >> 2, n & 3
        stage = STAGE[c]
        xa = (XA if stage < 2 else XB) + st
        wa = WA if stage < 2 else WB if stage < 4 else WC
        so = (stage & 1) * STG
        xo = so if stage < 4 else 2*STG
        f = FR[n % 3]
        L = [f"ds_read_b128 {v(f,4)}, {v(xa)} offset:{xo}"]
        for p in range(3):
            L.append(f"ds_read_b64_tr_b16 {v(f+4+4*p,2)}, {v(wa)} offset:{so + p*4096 + st*1024}")
            L.append(f"ds_read_b64_tr_b16 {v(f+6+4*p,2)}, {v(wa)} offset:{so + p*4096 + st*1024 + 256}")
        return L
    def mfma(n, p):
        f = FR[n % 3]
        acc = v(ACC + 16*p, 16)
        cin = "0" if n == 0 else acc
        if p < 2: return f"{MF} {acc}, {v(f+4+4*p,4)}, {v(f,4)}, {cin}"
        else:     return f"{MF} {acc}, {v(f,4)}, {v(f+4+4*p,4)}, {cin}"
    def epi_addr():
        A("v_lshlrev_b32 v192, 4, v1")
        A(f"s_lshl_b32 {s(S_T0)}, {s(S_HP)}, 7")
        A(f"s_lshl_b32 {s(S_T1)}, {s(S_RB)}, 2")
        A(f"s_add_u32 {s(S_T0)}, {s(S_T0)}, {s(S_T1)}")
        A(f"s_add_u32 {s(S_T0)}, {s(S_T0)}, {s(S_LI)}")
        A(f"s_lshl_b32 {s(S_T0)}, {s(S_T0)}, 10")
        A(f"s_add_u32 {s(S_T1)}, {s(S_T0)}, {KW}")
        A(f"v_add_u32 v197, {s(S_T1)}, v192")
        A("v_add_u32 v198, 0x10000, v197")
        A("v_and_b32 v194, 15, v1")
        A("v_lshlrev_b32 v194, 4, v194")
        A("v_lshl_add_u32 v194, v4, 8, v194")
        A("v_bfe_u32 v195, v1, 4, 1")
        A(f"s_add_u32 {s(S_T1)}, {s(S_T0)}, {VW}")
        A("v_lshlrev_b32 v199, 16, v195")
        A(f"v_add3_u32 v199, v199, v194, {s(S_T1)}")
        A(f"s_lshl_b32 {s(S_T0)}, {s(S_LI)}, 10")
        A(f"v_add_u32 v193, {s(S_T0)}, v192")
        A(f"s_mul_i32 {s(S_T0)}, {s(S_LI)}, {VTS}")
        A(f"v_mov_b32 v196, {VHS}")
        A("v_mul_u32_u24 v196, v196, v195")
        A(f"v_add3_u32 v196, v196, v194, {s(S_T0)}")
    def halo_addr():
        srd(R_WS, S_WS, WS_BYTES)
        A(f"s_sub_u32 {s(S_T2)}, {s(S_RB)}, 1")
        A(f"s_sub_u32 {s(S_T3)}, {s(S_RB)}, 2")
        A(f"s_max_i32 {s(S_T3)}, {s(S_T3)}, 0")
        A(f"s_max_i32 {s(S_T2)}, {s(S_T2)}, 0")
        A("v_and_b32 v158, 1, v1")
        A("v_cmp_eq_u32 vcc, 1, v158")
        A(f"v_mov_b32 v158, {s(S_T2)}")
        A(f"v_mov_b32 v157, {s(S_T3)}")
        A("v_cndmask_b32 v158, v158, v157, vcc")
        A(f"s_and_b32 {s(S_T0)}, {s(S_HP)}, 7")
        A(f"s_lshl_b32 {s(S_T0)}, {s(S_T0)}, 5")
        A(f"s_lshr_b32 {s(S_T1)}, {s(S_HP)}, 3")
        A(f"s_add_u32 {s(S_T0)}, {s(S_T0)}, {s(S_T1)}")
        A("v_and_b32 v157, 3, v158")
        A("v_lshlrev_b32 v157, 3, v157")
        A("v_lshrrev_b32 v158, 2, v158")
        A("v_lshl_add_u32 v157, v158, 1, v157")
        A(f"v_add_u32 v157, {s(S_T0)}, v157")
        A("v_lshlrev_b32 v157, 7, v157")
        A(f"s_lshl_b32 {s(S_T0)}, {s(S_LI)}, 2")
        A(f"s_add_u32 {s(S_T0)}, {s(S_T0)}, {FLG + F_A1}")
        A(f"v_add_u32 v157, {s(S_T0)}, v157")
    A("v_lshlrev_b32 v5, 10, v4")
    A("v_lshl_add_u32 v5, v3, 2, v5")
    A(f"v_add_u32 v5, {s(S_T4)}, v5")
    A(f"s_lshl_b32 {s(S_T0)}, {s(S_WV)}, 1")
    A(f"v_add_u32 v6, {s(S_T0)}, v4")
    A("v_sub_u32 v112, 7, v6")
    A("v_and_b32 v113, 7, v3")
    A("v_xor_b32 v112, v112, v113")
    A("v_lshlrev_b32 v112, 4, v112")
    A("v_lshl_add_u32 v112, v3, 8, v112")
    A(f"v_add_u32 v112, {T0}, v112")
    A("v_lshrrev_b32 v114, 3, v1")
    A(f"s_lshl_b32 {s(S_T0)}, {s(S_LI)}, 4")
    A(f"v_add_u32 v114, {s(S_T0)}, v114")
    A("v_and_b32 v115, 7, v1")
    A("v_lshrrev_b32 v116, 1, v114")
    A("v_and_b32 v116, 7, v116")
    A("v_xor_b32 v116, v116, v115")
    A("v_lshlrev_b32 v117, 7, v114")
    A("v_lshl_add_u32 v118, v116, 4, v117")
    A("v_xor_b32 v116, 4, v116")
    A("v_lshl_add_u32 v119, v116, 4, v117")
    A(f"v_add_u32 v118, {T0}, v118")
    A(f"v_add_u32 v119, {T0 + 1024}, v119")
    A(f"s_lshl_b32 {s(S_T0)}, {s(S_XCD)}, 18")
    A(f"s_lshl_b32 {s(S_T1)}, {s(S_J)}, 7")
    A(f"s_sub_u32 {s(S_T0)}, {s(S_T0)}, {s(S_T1)}")
    A(f"s_add_u32 {s(S_T0)}, {s(S_T0)}, {UR + 1984*2}")
    A("v_lshlrev_b32 v120, 12, v114")
    A("v_lshl_add_u32 v120, v115, 4, v120")
    A(f"v_add_u32 v120, {s(S_T0)}, v120")
    A("v_add_u32 v121, 0x8000, v120")
    epi_addr(); halo_addr()
    A("s_waitcnt vmcnt(0) lgkmcnt(0)")
    stamp(2)
    for r in range(11):
        A(f"ds_read_b32 {v(16+r)}, v5 offset:{(5+r)*128}")
    for r in range(8):
        A(f"ds_read_b32 {v(28+r)}, v5 offset:{3072 + r*128}")
    A("v_lshlrev_b32 v78, 16, v36"); A("v_lshlrev_b32 v79, 16, v38")
    A("v_and_b32 v80, 0xffff0000, v36"); A("v_and_b32 v81, 0xffff0000, v38")
    A("v_lshlrev_b32 v82, 16, v37"); A("v_lshlrev_b32 v83, 16, v39")
    A("v_and_b32 v84, 0xffff0000, v37"); A("v_and_b32 v85, 0xffff0000, v39")
    A(f"s_add_u32 {s(S_NONCE)}, {s(S_NONCE)}, 1")
    A("s_waitcnt lgkmcnt(8)")
    for r in range(11):
        A(f"v_lshlrev_b32 {v(40+2*r)}, 16, {v(16+r)}")
        A(f"v_and_b32 {v(41+2*r)}, 0xffff0000, {v(16+r)}")
    for tau in range(8):
        A(f"v_pk_mul_f32 {v(86+2*tau,2)}, {v(40+2*(tau+3),2)}, {v(78,2)}")
    for jj in range(1, 4):
        for tau in range(8):
            d = 86 + 2*tau
            A(f"v_pk_fma_f32 {v(d,2)}, {v(40+2*(tau+3-jj),2)}, {v(78+2*jj,2)}, {v(d,2)}")
    A("s_waitcnt lgkmcnt(0)")
    for r in range(8):
        A(f"v_lshlrev_b32 {v(62+2*r)}, 16, {v(28+r)}")
        A(f"v_and_b32 {v(63+2*r)}, 0xffff0000, {v(28+r)}")
    for tau in range(8):
        d = 86 + 2*tau
        A(f"v_pk_mul_f32 {v(d,2)}, {v(d,2)}, {v(62+2*tau,2)}")
    for e in range(4):
        A(f"v_cvt_pk_bf16_f32 {v(104+e)}, {v(86+2*(7-2*e))}, {v(86+2*(6-2*e))}")
        A(f"v_cvt_pk_bf16_f32 {v(108+e)}, {v(87+2*(7-2*e))}, {v(87+2*(6-2*e))}")
    A("ds_write_b128 v112, v[104:107]")
    A("ds_write_b128 v112, v[108:111] offset:128")
    A(f"s_lshl_b32 {s(S_T0)}, {s(S_LI)}, 2")
    A(f"s_add_u32 {s(S_T0)}, {s(S_T0)}, {CSW}")
    A(f"v_mov_b32 v155, {s(S_T0)}")
    A("v_mov_b32 v156, 0")
    A("ds_write_b32 v155, v156")
    A("s_waitcnt lgkmcnt(0)")
    stamp(3)
    A("s_barrier")
    stamp(4)
    A("ds_read_b128 v[24:27], v118")
    A("ds_read_b128 v[28:31], v119")
    for t in reads(0): A(t)
    A("s_waitcnt lgkmcnt(7)")
    A(f"global_store_dwordx4 v120, v[24:27], {s(S_WS,2)} {SCS}")
    A(f"global_store_dwordx4 v121, v[28:31], {s(S_WS,2)} {SCS}")
    for t in reads(1): A(t)
    for n in range(32):
        if (n & 3) == 2 and n + 2 < 32:
            A("s_waitcnt lgkmcnt(0)")
            if n == 6:
                A("s_waitcnt vmcnt(0)")
                publish(F_B1, 16, 17)
            if prof and n <= 22: A(f"s_memtime s[{4+2*(n>>2)}:{5+2*(n>>2)}]")
            A("s_barrier")
        elif n + 1 < 32:
            A("s_waitcnt lgkmcnt(7)")
        else:
            A("s_waitcnt lgkmcnt(0)")
            A(f"v_mov_b32 v156, {s(S_NONCE)}")
            A("ds_write_b32 v155, v156")
        R = reads(n + 2) if n + 2 < 32 else []
        A(mfma(n, 0))
        for t in R[0:3]: A(t)
        A(mfma(n, 1))
        for t in R[3:5]: A(t)
        A(mfma(n, 2))
        for t in R[5:7]: A(t)
    if prof:
        A("s_waitcnt lgkmcnt(0)")
        for c in range(6): A(f"v_writelane_b32 v255, s{4+2*c}, {22+c}")
    stamp(5)
    PK = 112
    for i in range(8):
        A(f"v_cvt_pk_bf16_f32 {v(PK+8+i)}, {v(ACC+16+2*i)}, {v(ACC+17+2*i)}")
    A(f"global_store_dwordx4 v197, {v(PK+8,4)}, {s(S_WS,2)} {SCS}")
    A(f"global_store_dwordx4 v198, {v(PK+12,4)}, {s(S_WS,2)} {SCS}")
    for i in range(8):
        A(f"v_cvt_pk_bf16_f32 {v(PK+16+i)}, {v(ACC+32+2*i)}, {v(ACC+33+2*i)}")
    A(f"global_store_dwordx4 v199, {v(PK+16,4)}, {s(S_WS,2)} {SCS}")
    A(f"global_store_dwordx4 v199, {v(PK+20,4)}, {s(S_WS,2)} offset:512 {SCS}")
    A(f"s_mov_b32 {s(S_T0)}, {QSCALE}")
    for r in range(16):
        A(f"v_mul_f32 {v(ACC+r)}, {s(S_T0)}, {v(ACC+r)}")
    for i in range(8):
        A(f"v_cvt_pk_bf16_f32 {v(PK+i)}, {v(ACC+2*i)}, {v(ACC+2*i+1)}")
    A(f"ds_write_b128 v193, {v(PK+8,4)} offset:{LK + 8*1024}")
    A(f"ds_write_b128 v193, {v(PK+12,4)} offset:{LK + KHS + 8*1024}")
    A(f"ds_write_b128 v196, {v(PK+16,4)} offset:{LV + 8*VTS}")
    A(f"ds_write_b128 v196, {v(PK+20,4)} offset:{LV + 8*VTS + 512}")
    A(f"ds_write_b128 v193, {v(PK,4)} offset:{LQ}")
    A(f"ds_write_b128 v193, {v(PK+4,4)} offset:{LQ+4096}")
    A(f"s_cmp_lg_u32 {s(S_LI)}, 0")
    A("s_cbranch_scc1 L_c_nopad")
    A(f"v_mov_b32 v24, {ONES}"); A("v_mov_b32 v25, v24"); A("v_mov_b32 v26, v24"); A("v_mov_b32 v27, v24")
    A(f"v_mul_u32_u24 v28, {VTS}, v1")
    A("v_cmp_gt_u32 vcc, 24, v1")
    A(f"s_and_saveexec_b64 {s(S_EX,2)}, vcc")
    A(f"ds_write_b128 v28, v[24:27] offset:{LV + 1024}")
    A(f"s_mov_b64 exec, {s(S_EX,2)}")
    A("L_c_nopad:")
    A("s_waitcnt vmcnt(0)")
    publish(F_A1, 16, 17)
    stamp(6)
    A(f"s_cmp_eq_u32 {s(S_RB)}, 0")
    A("s_cbranch_scc1 L_c_nosample")
    flag_load(157, 158)
    A("L_c_nosample:")
    A(f"v_mov_b32 v16, {CSW}")
    A(f"s_mov_b32 {s(S_SPIN)}, {SPIN*8}")
    A("L_c_sync:")
    A("ds_read_b128 v[20:23], v16")
    A("s_waitcnt lgkmcnt(0)")
    A(f"v_cmp_ne_u32 vcc, {s(S_NONCE)}, v20")
    A(f"v_cmp_ne_u32 {s(S_CMP,2)}, {s(S_NONCE)}, v21")
    A(f"v_cmp_ne_u32 {s(S_CMP+2,2)}, {s(S_NONCE)}, v22")
    A(f"v_cmp_ne_u32 {s(S_CMP+4,2)}, {s(S_NONCE)}, v23")
    A(f"s_or_b64 vcc, vcc, {s(S_CMP,2)}")
    A(f"s_or_b64 vcc, vcc, {s(S_CMP+2,2)}")
    A(f"s_or_b64 vcc, vcc, {s(S_CMP+4,2)}")
    A("s_cbranch_vccz L_c_synced")
    A(f"s_sub_u32 {s(S_SPIN)}, {s(S_SPIN)}, 1")
    A(f"s_cmp_lg_u32 {s(S_SPIN)}, 0")
    A("s_cbranch_scc1 L_c_sync")
    A("L_c_synced:")
    A(f"s_mov_b32 {s(S_T4)}, {s(S_T2)}")
    A(f"s_mov_b32 {s(S_T5)}, {s(S_T3)}")
    A(f"s_call_b64 {s(S_LINK,2)}, L_sub_setup")
    A(f"s_mov_b32 {s(S_T2)}, {s(S_T4)}")
    A(f"s_mov_b32 {s(S_T3)}, {s(S_T5)}")
    A(f"s_cmp_eq_u32 {s(S_RB)}, 0")
    A("s_cbranch_scc1 L_c_halo_done")
    A("s_waitcnt vmcnt(0)")
    check_or_spin(157, 158, "L_poll_h")
    stamp(7)
    A("v_lshlrev_b32 v18, 4, v1")
    A(f"s_lshl_b32 {s(S_T4)}, {s(S_LI)}, 10")
    A(f"s_mul_i32 {s(S_T5)}, {s(S_LI)}, {VTS}")
    def halo(rbreg, toff):
        A(f"s_lshl_b32 {s(S_T0)}, {s(S_HP)}, 7")
        A(f"s_lshl_b32 {s(S_T1)}, {s(rbreg)}, 2")
        A(f"s_add_u32 {s(S_T0)}, {s(S_T0)}, {s(S_T1)}")
        A(f"s_add_u32 {s(S_T0)}, {s(S_T0)}, {s(S_LI)}")
        A(f"s_lshl_b32 {s(S_T0)}, {s(S_T0)}, 10")
        for hd in range(2):
            A(f"s_add_u32 m0, {s(S_T4)}, {LK + hd*KHS + toff*1024}")
            A(f"s_add_u32 {s(S_T1)}, {s(S_T0)}, {KW + hd*65536}")
            A(f"buffer_load_dwordx4 v18, {s(R_WS,4)}, {s(S_T1)} offen sc1 lds")
            A(f"s_add_u32 m0, {s(S_T5)}, {LV + hd*VHS + toff*VTS}")
            A(f"s_add_u32 {s(S_T1)}, {s(S_T0)}, {VW + hd*65536}")
            A(f"buffer_load_dwordx4 v18, {s(R_WS,4)}, {s(S_T1)} offen sc1 lds")
    halo(S_T2, 4)
    A(f"s_cmp_eq_u32 {s(S_RB)}, 1")
    A("s_cbranch_scc1 L_c_halo_done")
    halo(S_T3, 0)
    A("L_c_halo_done:")
    for n in range(8): wo_dma(n)
    A("s_waitcnt vmcnt(8) lgkmcnt(0)")
    stamp(8)
    A("s_barrier")
    stamp(9)
    A("s_branch L_a2")

    A("L_lwave:")
    A("v_lshrrev_b32 v220, 3, v1")
    A(f"s_lshl_b32 {s(S_T0)}, {s(S_RB)}, 7")
    A(f"s_lshl_b32 {s(S_T1)}, {s(S_LI)}, 5")
    A(f"s_add_u32 {s(S_T0)}, {s(S_T0)}, {s(S_T1)}")
    A(f"v_add_u32 v220, {s(S_T0)}, v220")
    A("v_lshlrev_b32 v220, 10, v220")
    A("v_and_b32 v221, 7, v1")
    A("v_lshrrev_b32 v222, 4, v1")
    A("v_xor_b32 v223, v221, v222")
    A("v_lshl_add_u32 v200, v223, 4, v220")
    A("v_xor_b32 v223, 4, v223")
    A("v_lshl_add_u32 v201, v223, 4, v220")
    A("v_lshrrev_b32 v220, 2, v1")
    A(f"s_lshl_b32 {s(S_T0)}, {s(S_LI)}, 4")
    A(f"v_add_u32 v220, {s(S_T0)}, v220")
    A(f"v_mul_u32_u24 v220, 3072, v220")
    A("v_and_b32 v221, 3, v1")
    A("v_lshlrev_b32 v221, 4, v221")
    A(f"s_lshl_b32 {s(S_T0)}, {s(S_HP)}, 6")
    A(f"v_add3_u32 v202, v220, v221, {s(S_T0)}")
    S_LX, S_LW = S_T4, S_T5
    A(f"s_lshl_b32 {s(S_LX)}, {s(S_LI)}, 12")
    A(f"s_lshl_b32 {s(S_LW)}, {s(S_LI)}, 10")
    A(f"s_lshl_b32 {s(S_CH)}, {s(S_XCD)}, 6")
    A(f"s_lshl_b32 {s(S_T1)}, {s(S_J)}, 1")
    A(f"s_add_u32 {s(S_CH)}, {s(S_CH)}, {s(S_T1)}")
    A(f"s_lshr_b32 {s(S_T1)}, {s(S_LI)}, 1")
    A(f"s_add_u32 {s(S_CH)}, {s(S_CH)}, {s(S_T1)}")
    A(f"s_mul_i32 {s(S_CBASE)}, {s(S_T1)}, {CB}")
    A(f"s_add_u32 {s(S_CBASE)}, {s(S_CBASE)}, {B2R}")
    A(f"s_and_b32 {s(S_T2)}, {s(S_LI)}, 1")
    A(f"s_lshl_b32 {s(S_T1)}, {s(S_CH)}, 12")
    A(f"s_lshl_b32 {s(S_T3)}, {s(S_T2)}, 11")
    A(f"s_add_u32 {s(S_T1)}, {s(S_T1)}, {s(S_T3)}")
    A("v_lshlrev_b32 v203, 4, v1")
    A(f"v_add_u32 v203, {s(S_T1)}, v203")
    A(f"s_lshl_b32 {s(S_T1)}, {s(S_CH)}, 1")
    A(f"s_and_b32 {s(S_T1)}, {s(S_T1)}, 0xfffffffc")
    A(f"v_mov_b32 v219, {s(S_T1)}")
    A("s_waitcnt lgkmcnt(0)")
    stamp(1)
    srd(R_X, S_X, 2048*1024)
    srd(R_W, S_WQKV, 512*3072)
    A(f"s_load_dword {s(S_NONCE)}, {s(S_WS,2)}, {EP}")
    if opt.get("rot", 1):
        A(f"s_and_b32 {s(S_T0)}, {s(S_RB)}, 3")
        A(f"s_lshl_b32 {s(S_T0)}, {s(S_T0)}, 1")
        A(f"s_add_u32 {s(S_ROT)}, {s(S_HP)}, {s(S_T0)}")
    else:
        A(f"s_mov_b32 {s(S_ROT)}, 0")
    def dma_chunk(c):
        st = STAGE[c] * STG
        A(f"s_add_u32 {s(S_T1)}, {s(S_ROT)}, {c}")
        A(f"s_and_b32 {s(S_T1)}, {s(S_T1)}, 7")
        A(f"s_mul_i32 {s(S_T2)}, {s(S_T1)}, {64*3072}")
        A(f"s_lshl_b32 {s(S_T1)}, {s(S_T1)}, 7")
        for n in range(4):
            A(f"s_add_u32 m0, {s(S_LX)}, {st + n*1024}")
            A(f"s_add_u32 {s(S_T0)}, {s(S_T1)}, {n*8192}")
            A(f"buffer_load_dwordx4 {v(200 + (n & 1))}, {s(R_X,4)}, {s(S_T0)} offen {NT_XW} lds")
        for p in range(3):
            A(f"s_add_u32 m0, {s(S_LW)}, {st + 16384 + p*4096}")
            A(f"s_add_u32 {s(S_T0)}, {s(S_T2)}, {p*1024}")
            A(f"buffer_load_dwordx4 v202, {s(R_W,4)}, {s(S_T0)} offen {NT_XW} lds")
    for c in range(3): dma_chunk(c)
    def h_loads():
        srd(R_WO, S_SSMK, 512*4096)
        A(f"buffer_load_dwordx4 v[204:207], v203, {s(R_WO,4)}, 0 offen {NT_B}")
        A(f"buffer_load_dword v208, v203, {s(R_WO,4)}, 0 offen offset:16 {NT_B}")
        A(f"buffer_load_dwordx4 v[212:215], v203, {s(R_WO,4)}, 0 offen offset:1024 {NT_B}")
        A(f"buffer_load_dword v216, v203, {s(R_WO,4)}, 0 offen offset:1040 {NT_B}")
        A(f"global_load_dword v217, v219, {s(S_SD,2)}")
    stamp(2)
    AA, AB = 16, 24
    CA = [32, 64]
    CBf = [96, 128]
    CACC = 160
    def build_eo():
        A(f"s_and_b32 {s(S_T2)}, {s(S_LI)}, 1")
        A(f"s_lshr_b32 {s(S_T0)}, {s(S_LI)}, 1")
        A(f"s_lshl_b32 {s(S_T0)}, {s(S_T0)}, 4")
        A(f"v_lshrrev_b32 v217, {s(S_T0)}, v217")
        A("v_lshlrev_b32 v217, 16, v217")
        A("v_lshlrev_b32 v218, 16, v204")
        A("v_add_f32 v218, v217, v218")
        A("v_cvt_pk_bf16_f32 v218, v218, v218")
        A("v_and_b32 v218, 0xffff, v218")
        A("v_and_b32 v219, 0xffff0000, v204")
        A("v_or_b32 v219, v219, v218")
        A(f"v_mov_b32 v220, {s(S_T2)}")
        A("v_or_b32 v220, v220, v1")
        A("v_cmp_eq_u32 vcc, 0, v220")
        A("v_cndmask_b32 v204, v204, v219, vcc")
        for k in range(4):
            nxt = 205 + k if k < 3 else 208
            A(f"v_alignbit_b32 {v(228+k)}, {v(nxt)}, {v(204+k)}, 16")
        for k in range(4):
            nxt = 213 + k if k < 3 else 216
            A(f"v_alignbit_b32 {v(232+k)}, {v(nxt)}, {v(212+k)}, 16")
        A(f"s_lshl_b32 {s(S_T0)}, {s(S_T2)}, 11")
        A(f"s_add_u32 {s(S_T0)}, {s(S_T0)}, {s(S_CBASE)}")
        A("v_lshlrev_b32 v221, 4, v1")
        A(f"v_add_u32 v221, {s(S_T0)}, v221")
        A(f"ds_write_b128 v221, v[228:231] offset:{E_OFF + 32}")
        A(f"ds_write_b128 v221, v[232:235] offset:{E_OFF + 32 + 1024}")
        A(f"ds_write_b128 v221, v[204:207] offset:{O_OFF + 28}")
        A(f"ds_write_b128 v221, v[212:215] offset:{O_OFF + 28 + 1024}")
        A(f"s_cmp_lg_u32 {s(S_T2)}, 0")
        A("s_cbranch_scc1 L_l_nopad")
        A("v_mov_b32 v222, 0")
        A("v_readfirstlane_b32 %s, v218" % s(S_T0))
        A(f"s_lshl_b32 {s(S_T0)}, {s(S_T0)}, 16")
        A("v_lshlrev_b32 v223, 2, v1")
        A(f"v_add_u32 v223, {s(S_CBASE)}, v223")
        A(f"v_mov_b32 v236, {s(S_T0)}")
        A("v_cmp_eq_u32 vcc, 7, v1")
        A("v_cndmask_b32 v236, v222, v236, vcc")
        A("v_cmp_gt_u32 vcc, 8, v1")
        A(f"s_and_saveexec_b64 {s(S_EX,2)}, vcc")
        A(f"ds_write_b32 v223, v236 offset:{E_OFF}")
        A(f"s_mov_b64 exec, {s(S_EX,2)}")
        A("v_cmp_gt_u32 vcc, 7, v1")
        A(f"s_and_saveexec_b64 {s(S_EX,2)}, vcc")
        A(f"ds_write_b32 v223, v222 offset:{O_OFF}")
        A(f"s_mov_b64 exec, {s(S_EX,2)}")
        A("v_mov_b32 v237, 0")
        A("v_lshlrev_b32 v223, 3, v1")
        A(f"v_add_u32 v223, {s(S_CBASE)}, v223")
        A("v_mov_b32 v236, 0")
        A("v_cmp_gt_u32 vcc, 60, v1")
        A(f"s_and_saveexec_b64 {s(S_EX,2)}, vcc")
        A(f"ds_write_b64 v223, v[236:237] offset:{U_OFF + 4096}")
        A(f"s_mov_b64 exec, {s(S_EX,2)}")
        A("L_l_nopad:")
        A("s_waitcnt lgkmcnt(0)")
    def conv_addr():
        A("v_and_b32 v25, 15, v1")
        A("v_lshrrev_b32 v26, 4, v1")
        A("v_lshrrev_b32 v27, 1, v25")
        A("v_lshl_add_u32 v27, v26, 2, v27")
        A("v_lshlrev_b32 v27, 2, v27")
        A("v_and_b32 v28, 1, v25")
        A(f"v_mul_u32_u24 v28, {O_OFF}, v28")
        A(f"s_and_b32 {s(S_T2)}, {s(S_LI)}, 1")
        A(f"s_lshl_b32 {s(S_T0)}, {s(S_T2)}, 8")
        A(f"s_add_u32 {s(S_T0)}, {s(S_T0)}, {s(S_CBASE)}")
        A(f"v_add3_u32 {v(AA)}, v27, v28, {s(S_T0)}")
        for jj in range(1, 8):
            A(f"v_add_u32 {v(AA+jj)}, {512*jj}, {v(AA)}")
        A("v_lshlrev_b32 v27, 4, v26")
        A("v_lshlrev_b32 v28, 5, v25")
        A("v_sub_u32 v27, v27, v28")
        A(f"s_add_u32 {s(S_T0)}, {s(S_T0)}, {U_OFF + 480}")
        A(f"v_add_u32 {v(AB)}, {s(S_T0)}, v27")
    def ur_dma():
        A(f"s_lshl_b32 {s(S_T0)}, {s(S_CH)}, 12")
        A(f"s_add_u32 {s(S_T0)}, {s(S_T0)}, {UR}")
        A("v_lshlrev_b32 v29, 4, v1")
        for cs in range(2):
            for n in range(4):
                A(f"s_mov_b32 m0, {B2R + cs*CB + U_OFF + n*1024}")
                A(f"s_add_u32 {s(S_T1)}, {s(S_T0)}, {cs*4096 + n*1024}")
                A(f"buffer_load_dwordx4 v29, {s(R_WS,4)}, {s(S_T1)} offen sc1 lds")
    def lbar(c, n):
        if n is not None: A(f"s_waitcnt vmcnt({n})")
        if prof: A(f"s_memtime s[{80+2*c}:{81+2*c}]")
        A("s_barrier")
    A("s_waitcnt lgkmcnt(0)")
    A(f"v_mov_b32 v25, {OKW}")
    A("v_mov_b32 v26, 0")
    A("ds_write_b32 v25, v26")
    A("s_waitcnt lgkmcnt(0)")
    lbar(0, 14)
    dma_chunk(3)
    A(f"s_add_u32 {s(S_NONCE)}, {s(S_NONCE)}, 1")
    srd(R_WS, S_WS, WS_BYTES)
    lbar(1, 14)
    dma_chunk(4)
    h_loads()
    lbar(2, 19)
    dma_chunk(5)
    lbar(3, 19)
    dma_chunk(6)
    lbar(4, 19)
    dma_chunk(7)
    A("v_and_b32 v30, 31, v1")
    A("v_lshlrev_b32 v30, 10, v30")
    A(f"s_lshl_b32 {s(S_T0)}, {s(S_XCD)}, 7")
    A(f"s_lshr_b32 {s(S_T1)}, {s(S_J)}, 3")
    A(f"s_lshl_b32 {s(S_T1)}, {s(S_T1)}, 2")
    A(f"s_add_u32 {s(S_T0)}, {s(S_T0)}, {s(S_T1)}")
    A(f"s_add_u32 {s(S_T0)}, {s(S_T0)}, {FLG + F_B1}")
    A(f"v_add_u32 v30, {s(S_T0)}, v30")
    A(f"s_cmp_eq_u32 {s(S_LI)}, 0")
    A("s_cbranch_scc1 L_l_w4a")
    A(f"s_lshl_b32 {s(S_T0)}, s2, 7")
    A(f"s_add_u32 {s(S_T0)}, {s(S_T0)}, {FLG + F_B2}")
    A(f"v_mov_b32 v30, {s(S_T0)}")
    A("L_l_w4a:")
    flag_load(30, 31)
    lbar(5, 15)
    build_eo()
    lbar(6, 8)
    conv_addr()
    A("s_waitcnt vmcnt(0)")
    A(f"s_mov_b32 {s(S_OK)}, 0")
    A(f"s_cmp_lg_u32 {s(S_LI)}, 0")
    A("s_cbranch_scc1 L_l_late")
    A(f"v_cmp_ne_u32 vcc, {s(S_NONCE)}, v31")
    A("s_cbranch_vccnz L_l_late")
    ur_dma()
    A(f"s_mov_b32 {s(S_OK)}, 1")
    A("L_l_late:")
    if prof:
        A("s_memtime s[94:95]")
        A("s_waitcnt lgkmcnt(0)")
        for c in range(8): A(f"v_writelane_b32 v255, s{80+2*c}, {22+c}")
    A("s_barrier")
    stamp(5)
    A(f"v_mov_b32 v25, {OKW}")
    A(f"s_cmp_lg_u32 {s(S_LI)}, 0")
    A("s_cbranch_scc1 L_l_others")
    A(f"s_cmp_eq_u32 {s(S_OK)}, 1")
    A("s_cbranch_scc1 L_l_have")
    spin(30, 31, "L_poll_b1")
    ur_dma()
    A("L_l_have:")
    A("s_waitcnt vmcnt(0)")
    A(f"v_mov_b32 v26, {s(S_NONCE)}")
    A("ds_write_b32 v25, v26")
    A("s_waitcnt lgkmcnt(0)")
    A("s_branch L_l_go")
    A("L_l_others:")
    A(f"s_mov_b32 {s(S_SPIN)}, {SPIN*8}")
    A("L_l_ospin:")
    A("ds_read_b32 v26, v25")
    A("s_waitcnt lgkmcnt(0)")
    A(f"v_cmp_ne_u32 vcc, {s(S_NONCE)}, v26")
    A("s_cbranch_vccz L_l_go")
    A(f"s_sub_u32 {s(S_SPIN)}, {s(S_SPIN)}, 1")
    A(f"s_cmp_lg_u32 {s(S_SPIN)}, 0")
    A("s_cbranch_scc1 L_l_ospin")
    A("L_l_go:")
    stamp(7)
    def conv_reads(ii):
        st = ii & 1
        L = []
        for k in range(8):
            L.append(f"ds_read_b128 {v(CBf[st]+4*k,4)}, {v(AB)} offset:{512*(7-k) + 64*ii}")
            L.append(f"ds_read2_b32 {v(CA[st]+4*k,2)}, {v(AA+k)} offset0:{16*ii} offset1:{16*ii+1}")
            L.append(f"ds_read2_b32 {v(CA[st]+4*k+2,2)}, {v(AA+k)} offset0:{16*ii+2} offset1:{16*ii+3}")
        return L
    r0 = conv_reads(0)
    first = [r0[1], r0[2]] + [r0[3*k] for k in range(8)] + [x for k in range(1, 8) for x in (r0[3*k+1], r0[3*k+2])]
    for r in first: A(r)
    for ii in range(4):
        nxt = conv_reads(ii + 1) if ii < 3 else []
        st = ii & 1
        k = 0
        for jj in range(8):
            if ii == 0:
                if jj == 0: A("s_waitcnt lgkmcnt(14)")
                elif jj == 1: A("s_waitcnt lgkmcnt(0)")
            elif jj == 0:
                A("s_waitcnt lgkmcnt(0)")
            for cp in range(8 - jj):
                acc = v(CACC + 4*(cp + jj), 4)
                cin = "0" if (ii == 0 and jj == 0) else acc
                A(f"{MF16} {acc}, {v(CA[st]+4*jj,4)}, {v(CBf[st]+4*cp,4)}, {cin}")
                if k < len(nxt) and not (ii == 0 and jj == 0):
                    A(nxt[k]); k += 1
        while k < len(nxt):
            A(nxt[k]); k += 1
    stamp(8)
    A("s_nop 7")
    A(f"s_call_b64 {s(S_LINK,2)}, L_sub_setup")
    A(f"s_and_b32 {s(S_T2)}, {s(S_LI)}, 1")
    A("v_lshlrev_b32 v25, 4, v1")
    A(f"s_lshl_b32 {s(S_T0)}, {s(S_LI)}, 12")
    A(f"v_add_u32 v26, {s(S_T0)}, v25")
    A(f"s_xor_b32 {s(S_T0)}, {s(S_T0)}, 4096")
    A(f"v_add_u32 v27, {s(S_T0)}, v25")
    A(f"s_cmp_lg_u32 {s(S_T2)}, 0")
    A("s_cbranch_scc1 L_l_x1")
    for k in range(4):
        A(f"ds_write_b128 v26, {v(CACC+16+4*k,4)} offset:{LR + 1024*k}")
    A("s_waitcnt lgkmcnt(0)")
    A("s_barrier")
    for k in range(4):
        A(f"ds_read_b128 {v(32+4*k,4)}, v27 offset:{LR + 1024*k}")
    A("s_waitcnt lgkmcnt(0)")
    for r in range(16):
        A(f"v_add_f32 {v(48+r)}, {v(32+r)}, {v(CACC+r)}")
    A("s_branch L_l_x2")
    A("L_l_x1:")
    A("s_nop 7")
    for k in range(4):
        A(f"ds_write_b128 v26, {v(CACC+4*k,4)} offset:{LR + 1024*k}")
    A("s_waitcnt lgkmcnt(0)")
    A("s_barrier")
    for k in range(4):
        A(f"ds_read_b128 {v(32+4*k,4)}, v27 offset:{LR + 1024*k}")
    A("s_waitcnt lgkmcnt(0)")
    for r in range(16):
        A(f"v_add_f32 {v(48+r)}, {v(32+r)}, {v(CACC+16+r)}")
    A("L_l_x2:")
    stamp(9)
    for k in range(4):
        A(f"v_cvt_pk_bf16_f32 {v(32+2*k)}, {v(48+4*k)}, {v(49+4*k)}")
        A(f"v_cvt_pk_bf16_f32 {v(33+2*k)}, {v(50+4*k)}, {v(51+4*k)}")
    A("v_and_b32 v25, 15, v1")
    A("v_lshlrev_b32 v25, 5, v25")
    A("v_bfe_u32 v26, v1, 4, 1")
    A("v_lshl_add_u32 v25, v26, 9, v25")
    A("v_lshrrev_b32 v26, 5, v1")
    A("v_lshl_add_u32 v25, v26, 4, v25")
    A(f"s_lshl_b32 {s(S_T0)}, {s(S_CH)}, 12")
    A(f"s_lshl_b32 {s(S_T1)}, {s(S_T2)}, 11")
    A(f"s_add_u32 {s(S_T0)}, {s(S_T0)}, {s(S_T1)}")
    A(f"s_add_u32 {s(S_T0)}, {s(S_T0)}, {YT}")
    A(f"v_add_u32 v25, {s(S_T0)}, v25")
    A("v_permlane16_swap_b32 v32, v34")
    A("v_permlane16_swap_b32 v33, v35")
    A("v_permlane16_swap_b32 v36, v38")
    A("v_permlane16_swap_b32 v37, v39")
    A(f"global_store_dwordx4 v25, v[32:35], {s(S_WS,2)} {SCS}")
    A(f"global_store_dwordx4 v25, v[36:39], {s(S_WS,2)} offset:1024 {SCS}")
    for n in range(8): wo_dma(n)
    A("L_a2:")
    if opt.get("prio", 1): A("s_setprio 1")
    Q, KF, SA, SB, CN, PP, VF, O = 16, 20, 56, 72, 88, 104, 120, 136
    AK, AV0, AV1, TM, TM2 = PAK, PAV0, PAV1, 155, 156
    TM3 = 169
    VQ3, VF2A, VF2 = 160, PFB2, 165
    A(f"ds_read_b128 {v(Q,4)}, {v(PAQ)} offset:{LQ}")
    order = [8, 0, 7, 6, 5, 4, 3, 2, 1]
    for jj in order:
        A(f"ds_read_b128 {v(KF+4*jj,4)}, {v(AK)} offset:{LK + jj*1024}")
    for r in range(4):
        A(f"global_load_dword {v(VQ3+r)}, {v(PQ3)}, {s(S_BQ,2)} offset:{1024*r} {NT_B}")
    buf = lambda jj: SA if (jj & 1) else SB
    A("s_waitcnt lgkmcnt(7)")
    A(f"{MF} {v(MM8,16)}, {v(KF+32,4)}, {v(Q,4)}, {v(MM8,16)}")
    A(f"{MF} {v(MM0,16)}, {v(KF+0,4)}, {v(Q,4)}, {v(MM0,16)}")
    A("s_waitcnt lgkmcnt(5)")
    A(f"{MF} {v(SA,16)}, {v(KF+28,4)}, {v(Q,4)}, 0")
    A(f"{MF} {v(SB,16)}, {v(KF+24,4)}, {v(Q,4)}, 0")
    A(f"s_cmp_gt_u32 {s(S_J0)}, 0")
    A("s_cbranch_scc1 L_st_nomerge")
    stubs.append(["L_st_nomerge:", "s_nop 15", "s_branch L_a2_nomerge"])
    for r in range(16):
        A(f"v_max_f32 {v(MM8+r)}, {v(MM0+r)}, {v(MM8+r)}")
    A("L_a2_nomerge:")
    A(f"v_max_f32 {v(TM)}, {v(MM8)}, {v(MM8+1)}")
    A(f"v_max_f32 {v(TM3)}, {v(MM8+2)}, {v(MM8+3)}")
    for r in range(4, 16, 2):
        t = TM if (r & 2) == 0 else TM3
        A(f"v_max3_f32 {v(t)}, {v(t)}, {v(MM8+r)}, {v(MM8+r+1)}")
    A("s_waitcnt lgkmcnt(0)")
    for jj in range(7, 0, -1):
        b = buf(jj)
        A(f"s_cmp_gt_u32 {s(S_J0)}, {jj}")
        A("s_cbranch_scc1 L_a2_p1done")
        for r in range(0, 16, 2):
            t = TM if (r & 2) == 0 else TM3
            A(f"v_max3_f32 {v(t)}, {v(t)}, {v(b+r)}, {v(b+r+1)}")
        if jj - 2 >= 1:
            A(f"{MF} {v(b,16)}, {v(KF+4*(jj-2),4)}, {v(Q,4)}, 0")
    A("L_a2_p1done:")
    A(f"v_max_f32 {v(TM)}, {v(TM)}, {v(TM3)}")
    A(f"v_mov_b32 {v(TM2)}, {v(TM)}")
    A(f"v_permlane32_swap_b32 {v(TM)}, {v(TM2)}")
    A(f"v_max_f32 {v(TM)}, {v(TM)}, {v(TM2)}")
    A(f"v_sub_f32 {v(TM2)}, 0, {v(TM)}")
    for r in range(16):
        A(f"v_mov_b32 {v(CN+r)}, {v(TM2)}")
    stamp(10)
    A(f"{MF} {v(SA,16)}, {v(KF+28,4)}, {v(Q,4)}, {v(CN,16)}")
    A(f"{MF} {v(SB,16)}, {v(KF+24,4)}, {v(Q,4)}, {v(CN,16)}")
    def vread(slot, jj, sidx):
        A(f"ds_read_b128 {v(VF+4*slot,4)}, {v(AV0 if sidx == 0 else AV1)} offset:{LV + jj*VTS + sidx*512}")
    vread(0, 8, 0); vread(1, 8, 1); vread(2, 0, 0); vread(3, 0, 1)
    def pub_b2(lab, n):
        A(f"s_waitcnt vmcnt({n})")
        A(f"s_cmp_lt_u32 {s(S_WV)}, 4")
        A(f"s_cbranch_scc1 {lab}")
        publish(F_B2, 157, 158)
        A(f"{lab}:")
    if opt.get("prio", 1): A("s_setprio 0")
    P0, P1 = PP, PP + 8
    for r in range(16):
        A(f"v_add_f32 {v(MM8+r)}, {v(TM2)}, {v(MM8+r)}")
    for r in range(16):
        A(f"v_exp_f32 {v(MM8+r)}, {v(MM8+r)}")
    for i in range(8):
        A(f"v_cvt_pk_bf16_f32 {v(P0+i)}, {v(MM8+2*i)}, {v(MM8+2*i+1)}")
    for i in range(8):
        A(f"v_and_b32 {v(P1+i)}, {v(MMK+i)}, {v(P0+i)}")
    for i in range(8):
        A(f"v_xor_b32 {v(P0+i)}, {v(P1+i)}, {v(P0+i)}")
    A("s_waitcnt lgkmcnt(0)")
    A(f"{MF} {v(O,16)}, {v(VF+0,4)}, {v(P0,4)}, 0")
    A(f"s_cmp_gt_u32 {s(S_J0)}, 0")
    A("s_cbranch_scc1 L_a2_nopv0")
    A(f"{MF} {v(O,16)}, {v(VF+8,4)}, {v(P1,4)}, {v(O,16)}")
    A(f"{MF} {v(O,16)}, {v(VF+12,4)}, {v(P1+4,4)}, {v(O,16)}")
    A("L_a2_nopv0:")
    pb = lambda jj: PP + 8*(jj & 1)
    sl = lambda jj: 2*(jj & 1)
    def pend(jj):
        if jj == 7: return [f"{MF} {v(O,16)}, {v(VF+4,4)}, {v(P0+4,4)}, {v(O,16)}"]
        p = jj + 1
        return [f"{MF} {v(O,16)}, {v(VF+4*sl(p),4)}, {v(pb(p),4)}, {v(O,16)}",
                f"{MF} {v(O,16)}, {v(VF+4*sl(p)+4,4)}, {v(pb(p)+4,4)}, {v(O,16)}"]
    for jj in range(7, 0, -1):
        b = buf(jj)
        A(f"s_cmp_gt_u32 {s(S_J0)}, {jj}")
        A(f"s_cbranch_scc1 L_st_p2_{jj}")
        def stub(jj=jj):
            A(f"L_st_p2_{jj}:")
            A("s_waitcnt lgkmcnt(0)")
            A("s_nop 1")
            for m in pend(jj): A(m)
            if jj >= 5: pub_b2(f"L_st_nopub_{jj}", 0)
            if jj >= 3:
                A(f"s_cmp_lg_u32 {s(S_WV)}, 0")
                A("s_cbranch_scc1 L_a2_p2done")
                flag_load(VF2A, VF2)
            A("s_branch L_a2_p2done")
        stubs.append(stub)
        pm = pend(jj)
        if prof: A(f"s_memtime s[{80+2*(7-jj)}:{81+2*(7-jj)}]")
        if jj == 5: pub_b2("L_a2_nopub", 12)
        for r in range(16):
            A(f"v_exp_f32 {v(b+r)}, {v(b+r)}")
            if r == 1:
                A("s_waitcnt lgkmcnt(0)")
                A(pm[0])
            if r == 7 and len(pm) > 1: A(pm[1])
            if r == 9:
                vread(sl(jj), jj, 0); vread(sl(jj) + 1, jj, 1)
            if jj == 3 and r == 13:
                A(f"s_cmp_lg_u32 {s(S_WV)}, 0")
                A("s_cbranch_scc1 L_a2_nosample")
                flag_load(VF2A, VF2)
                A("L_a2_nosample:")
        for i in range(8):
            A(f"v_cvt_pk_bf16_f32 {v(pb(jj)+i)}, {v(b+2*i)}, {v(b+2*i+1)}")
        if jj - 2 >= 1:
            A(f"{MF} {v(b,16)}, {v(KF+4*(jj-2),4)}, {v(Q,4)}, {v(CN,16)}")
    A("s_waitcnt lgkmcnt(0)")
    for m in pend(0): A(m)
    A("L_a2_p2done:")
    if prof:
        A("s_memtime s[94:95]")
        A("s_waitcnt lgkmcnt(0)")
        for c in range(8): A(f"v_writelane_b32 v255, s{80+2*c}, {54+c}")
    A("s_nop 15")
    A(f"v_rcp_f32 {v(TM)}, {v(O+8)}")
    for r in range(8):
        A(f"v_mul_f32 {v(O+r)}, {v(TM)}, {v(O+r)}")
    for i in range(4):
        A(f"v_cvt_pk_bf16_f32 {v(PP+i)}, {v(O+2*i)}, {v(O+2*i+1)}")
    A(f"global_store_dwordx4 {v(PO)}, {v(PP,4)}, {s(S_WS,2)} {SCS}")
    stamp(11)
    if prof:
        stamp(19)
        A("s_waitcnt vmcnt(1)")
        stamp(20)
    A("s_waitcnt vmcnt(0)")
    publish(F_A2, 157, 158)
    stamp(12)
    flag_load(PFA2, 31)
    A(f"s_cmp_lg_u32 {s(S_WV)}, 0")
    A("s_cbranch_scc1 L_nob2poll")
    check_or_spin(VF2A, VF2, "L_poll_b2")
    A(f"s_lshl_b32 {s(S_T0)}, {s(S_XCD)}, 18")
    A(f"s_lshl_b32 {s(S_T1)}, {s(S_J)}, 7")
    A(f"s_add_u32 {s(S_T0)}, {s(S_T0)}, {s(S_T1)}")
    A(f"s_add_u32 {s(S_T0)}, {s(S_T0)}, {YT}")
    for n in range(8):
        A(f"s_mov_b32 m0, {LYT + n*1024}")
        A(f"s_add_u32 {s(S_T1)}, {s(S_T0)}, {n*8*4096}")
        A(f"buffer_load_dwordx4 {v(PY0 + (n & 1))}, {s(R_WS,4)}, {s(S_T1)} offen sc1 lds")
    A("L_nob2poll:")
    A(f"s_or_b32 {s(S_T0)}, s2, {s(S_WV)}")
    A(f"s_cmp_lg_u32 {s(S_T0)}, 0")
    A("s_cbranch_scc0 L_st_epoch")
    stubs.append("EPOCH")
    A("L_noep:")
    A("s_waitcnt vmcnt(0)")
    check_or_spin(PFA2, 31, "L_poll_a2")
    stamp(13)
    A("s_barrier")
    stamp(14)
    A(f"s_lshl_b32 {s(S_T0)}, {s(S_TB64)}, 16")
    A(f"s_lshl_b32 {s(S_T1)}, {s(S_WV)}, 12")
    A(f"s_add_u32 {s(S_T0)}, {s(S_T0)}, {s(S_T1)}")
    for hh in range(4):
        for ts in range(2):
            A(f"s_add_u32 m0, {s(S_T1)}, {LO + ts*32768 + hh*1024}")
            A(f"s_add_u32 {s(S_T2)}, {s(S_T0)}, {OW + ts*32768 + hh*1024}")
            A(f"buffer_load_dwordx4 {v(PL16)}, {s(R_WS,4)}, {s(S_T2)} offen sc1 lds")
    A(f"ds_read_b64 v[22:23], {v(PYR)}")
    A(f"ds_read_b64 v[24:25], {v(PYR)} offset:128")
    for r in range(4):
        A(f"v_lshlrev_b32 {v(34+2*r)}, 16, {v(VQ3+r)}")
        A(f"v_and_b32 {v(35+2*r)}, 0xffff0000, {v(VQ3+r)}")
    A("s_waitcnt lgkmcnt(0)")
    A("v_lshlrev_b32 v42, 16, v22"); A("v_lshlrev_b32 v43, 16, v24")
    A("v_and_b32 v44, 0xffff0000, v22"); A("v_and_b32 v45, 0xffff0000, v24")
    A("v_lshlrev_b32 v46, 16, v23"); A("v_lshlrev_b32 v47, 16, v25")
    A("v_and_b32 v48, 0xffff0000, v23"); A("v_and_b32 v49, 0xffff0000, v25")
    for r in range(4):
        A(f"v_pk_mul_f32 {v(42+2*r,2)}, {v(42+2*r,2)}, {v(34+2*r,2)}")
    for r in range(4):
        A(f"v_cvt_pk_bf16_f32 {v(50+r)}, {v(42+2*r)}, {v(43+2*r)}")
    A(f"v_add_u32 v21, 0x1000, {v(PB3)}")
    A(f"global_store_dword {v(PB3)}, v50, {s(S_OUT,2)} sc0 sc1")
    A(f"global_store_dword {v(PB3)}, v51, {s(S_OUT,2)} offset:2048 sc0 sc1")
    A(f"global_store_dword v21, v52, {s(S_OUT,2)} sc0 sc1")
    A(f"global_store_dword v21, v53, {s(S_OUT,2)} offset:2048 sc0 sc1")
    A("s_waitcnt vmcnt(4)")
    stamp(15)
    A("s_barrier")
    stamp(16)
    OA = 80
    F3 = [32 + 8*i for i in range(6)]
    def a3reads(hs):
        f = F3[hs % 6]
        A(f"ds_read_b128 {v(f,4)}, {v(PAO)} offset:{hs*1024}")
        A(f"ds_read_b64_tr_b16 {v(f+4,2)}, {v(PAW)} offset:{hs*2048}")
        A(f"ds_read_b64_tr_b16 {v(f+6,2)}, {v(PAW)} offset:{hs*2048 + 1024}")
    DEP = 4
    for hs in range(DEP): a3reads(hs)
    for hs in range(16):
        if hs + DEP < 16:
            a3reads(hs + DEP); A(f"s_waitcnt lgkmcnt({3*DEP})")
        else:
            A(f"s_waitcnt lgkmcnt({3*(15-hs)})")
        f = F3[hs % 6]
        cin = "0" if hs == 0 else v(OA,16)
        A(f"{MF} {v(OA,16)}, {v(f+4,4)}, {v(f,4)}, {cin}")
    for m in range(4):
        A(f"ds_write_b128 {v(PPW[m])}, {v(OA+4*m,4)}")
    A("s_waitcnt lgkmcnt(0)")
    A("s_barrier")
    stamp(17)
    A(f"ds_read_b128 v[32:35], {v(PPR[0])}"); A(f"ds_read_b128 v[40:43], {v(PPR[2])}")
    A(f"ds_read_b128 v[36:39], {v(PPR[1])}"); A(f"ds_read_b128 v[44:47], {v(PPR[3])}")
    A("s_waitcnt lgkmcnt(0)")
    for r in range(8):
        A(f"v_add_f32 {v(32+r)}, {v(32+r)}, {v(40+r)}")
    for i in range(4):
        A(f"v_cvt_pk_bf16_f32 {v(48+i)}, {v(32+2*i)}, {v(33+2*i)}")
    A(f"global_store_dwordx4 {v(POUT)}, v[48:51], {s(S_OUT,2)}")
    if prof:
        stamp(18)
        A(f"s_lshl_b32 {s(S_T0)}, s2, 3")
        A(f"s_add_u32 {s(S_T0)}, {s(S_T0)}, {s(S_WV)}")
        A(f"s_lshl_b32 {s(S_T0)}, {s(S_T0)}, 8")
        A(f"s_add_u32 {s(S_T0)}, {s(S_T0)}, {PROF}")
        A("v_lshlrev_b32 v16, 2, v1")
        A(f"v_add_u32 v16, {s(S_T0)}, v16")
        A(f"global_store_dword v16, v255, {s(S_WS,2)}")
    A("L_end:")
    A("s_endpgm")
    sub_setup()
    for st in stubs:
        if st == "EPOCH":
            A("L_st_epoch:")
            for q in range(4):
                A(f"v_lshlrev_b32 v157, 7, v1")
                A(f"v_add_u32 v157, {FLG + F_B1 + q*8192}, v157")
                spin(157, 158, f"L_poll_ep{q}")
            A(f"v_mov_b32 v157, {EP}")
            A(f"v_mov_b32 v158, {s(S_NONCE)}")
            A(f"s_mov_b64 {s(S_EX,2)}, exec")
            A("s_mov_b64 exec, 1")
            A(f"global_store_dword v157, v158, {s(S_WS,2)} {SCS}")
            A(f"s_mov_b64 exec, {s(S_EX,2)}")
            A("s_branch L_noep")
        elif callable(st):
            st()
        else:
            for line in st: A(line)
    n = a.fix_hazards()
    return a, n

HEAD = f"""; Fused sliding-window attention block + H3 SSM conv, one persistent launch (generated by gen/gen2.py)
; @launch grid=(256,1,1) block=(512,1,1) lds={LDS_BYTES}
.amdgcn_target "amdgcn-amd-amdhsa--gfx950"
.text
.globl {KN}
.p2align 8
.type {KN},@function
{KN}:
"""
TAIL = f""".section .rodata,"a"
.p2align 6
.amdhsa_kernel {KN}
  .amdhsa_next_free_vgpr 256
  .amdhsa_next_free_sgpr 102
  .amdhsa_accum_offset 256
  .amdhsa_group_segment_fixed_size 0
  .amdhsa_kernarg_size 96
  .amdhsa_user_sgpr_count 2
  .amdhsa_user_sgpr_kernarg_segment_ptr 1
  .amdhsa_system_sgpr_workgroup_id_x 1
.end_amdhsa_kernel
"""
if __name__ == "__main__":
    out = sys.argv[1] if len(sys.argv) > 1 else f"cdna_kernels/{NAME}.s"
    opt = {}
    for x in sys.argv[2:]:
        if "=" in x:
            k, val = x.split("="); opt[k] = int(val)
    a, n = build(prof=("prof" in sys.argv), opt=opt)
    open(out, "w").write(HEAD + a.text() + TAIL)
    print("instructions:", a.count(), "hazard pads:", n)
```

```python
import sys
from asmlib import Asm, v, s

NAME = "concat_heads__sliding_block__ssm_conv_h3__prompt"
KN = NAME + "_kernel"

FLG = 0x0
F_B1, F_A1, F_B2, F_A2 = 0, 32768, 65536, 98304
EP  = 0x20000
KW  = 0x100000
VW  = 0x300000
OW  = 0x500000
UR  = 0x700000
YT  = 0x900000
WS_BYTES = 0xB00000
PROF = 0xC00000

STG = 28672
B2R = 114688
CB  = 12864
T0  = B2R
KVS = 140416
E_OFF, O_OFF, U_OFF = 0, 4164, 8288
LK, LV, LQ = 0, 24576, 49536
KHS, VHS, VTS = 12288, 12480, 1040
LR  = 57728
LO  = 0
LWO = 81920
LS0, LS1 = 65536, 147456
LYT = 65536
CSW = 163808
OKW = 163832
LDS_BYTES = 163840

S_X, S_WQKV, S_WO, S_BQ, S_BK, S_BV, S_SK, S_SSMK = 16, 18, 20, 22, 24, 26, 28, 30
S_SD, S_OUT, S_DBG, S_WS = 32, 34, 36, 38
R_X, R_W, R_BK, R_WS, R_WO = 40, 44, 48, 52, 56
S_NONCE, S_WV, S_J, S_XCD, S_RB, S_HP = 60, 61, 62, 63, 64, 65
S_T0, S_T1, S_T2, S_T3, S_T4, S_T5 = 66, 67, 68, 69, 70, 71
S_LI = 72
S_J0 = 73
S_SPIN = 74
S_OK = 75
S_EX = 76
S_CBASE, S_CH = 78, 79
S_CMP = 80
S_HD, S_TB64 = 96, 97
S_ROT = 75

PAK, PAV0, PAV1, PAQ = 192, 193, 194, 195
PFB2, PFA2, PY0, PY1, PYR, PO, PWO, PAO, PAW, POUT, PL16, PQ3 = 196, 197, 198, 199, 200, 201, 202, 203, 204, 205, 206, 207
PPW = [9, 10, 11, 12]
PPR = [13, 14, 15, 2]
PB3 = 8
S_LINK = 4
S_WOB, S_WOL = 6, 7
SPIN = 200000
NEGBIG = 0xF149F2CA
QSCALE = 0x3EB8AA3B
ONES = 0x3F803F80
STAGE = [0, 1, 2, 3, 0, 1, 2, 3]
MF = "v_mfma_f32_32x32x16_bf16"
MF16 = "v_mfma_f32_16x16x32_bf16"

def build(prof=False, opt=None):
    opt = opt or {}
    NT_B = "nt" if opt.get("nt_b", 1) else ""
    NT_XW = "nt" if opt.get("nt_xw", 0) else ""
    NT_WO = "nt" if opt.get("nt_wo", 0) else ""
    SCP = {0: "sc0 sc1", 1: "sc1"}[opt.get("sc_poll", 1)]
    SCS = {0: "sc0 sc1", 1: "sc1"}[opt.get("sc_store", 1)]
    SLEEP = opt.get("sleep", 0)
    FST = {0: "", 1: "sc0 sc1", 2: "nt", 3: "sc1"}[opt.get("fst", 0)]
    BST = {0: "", 1: "sc0 sc1", 2: "nt", 3: "sc1"}[opt.get("bst", 1)]
    a = Asm()
    A = a
    stubs = []
    def stamp(k):
        if not prof: return
        A("s_memrealtime s[100:101]")
        A("s_memtime s[98:99]")
        A("s_waitcnt lgkmcnt(0)")
        A(f"v_writelane_b32 v255, s100, {k}")
        A(f"v_writelane_b32 v255, s98, {k+32}")
    def srd(dst, base, nbytes):
        A(f"s_mov_b32 {s(dst)}, {s(base)}")
        A(f"s_and_b32 {s(dst+1)}, {s(base+1)}, 0xffff")
        A(f"s_mov_b32 {s(dst+2)}, {nbytes}")
        A(f"s_mov_b32 {s(dst+3)}, 0x00020000")
    def flag_load(vaddr, vtmp):
        A(f"global_load_dword {v(vtmp)}, {v(vaddr)}, {s(S_WS,2)} {SCP}")
    def spin(vaddr, vtmp, label):
        A(f"s_mov_b32 {s(S_SPIN)}, {SPIN}")
        A(f"{label}:")
        flag_load(vaddr, vtmp)
        A("s_waitcnt vmcnt(0)")
        A(f"v_cmp_ne_u32 vcc, {s(S_NONCE)}, {v(vtmp)}")
        A(f"s_cbranch_vccz {label}_done")
        if SLEEP: A(f"s_sleep {SLEEP}")
        A(f"s_sub_u32 {s(S_SPIN)}, {s(S_SPIN)}, 1")
        A(f"s_cmp_lg_u32 {s(S_SPIN)}, 0")
        A(f"s_cbranch_scc1 {label}")
        A(f"{label}_done:")
    def check_or_spin(vaddr, vtmp, label):
        A(f"v_cmp_ne_u32 vcc, {s(S_NONCE)}, {v(vtmp)}")
        A(f"s_cbranch_vccz {label}_done")
        spin(vaddr, vtmp, label)
    def publish(kind, vt0, vt1):
        A(f"s_lshl_b32 {s(S_T0)}, s2, 7")
        A(f"s_lshl_b32 {s(S_T1)}, {s(S_WV)}, 2")
        A(f"s_add_u32 {s(S_T0)}, {s(S_T0)}, {s(S_T1)}")
        A(f"s_add_u32 {s(S_T0)}, {s(S_T0)}, {FLG + kind}")
        A(f"v_mov_b32 {v(vt0)}, {s(S_T0)}")
        A(f"v_mov_b32 {v(vt1)}, {s(S_NONCE)}")
        A(f"s_mov_b64 {s(S_EX,2)}, exec")
        A(f"s_mov_b64 exec, 1")
        A(f"global_store_dword {v(vt0)}, {v(vt1)}, {s(S_WS,2)} {SCS}")
        A(f"s_mov_b64 exec, {s(S_EX,2)}")

    def record(fn):
        n0 = len(a.items)
        fn()
        out = [it.text for k, it in a.items[n0:]]
        assert all(k == "i" for k, it in a.items[n0:])
        del a.items[n0:]
        return out
    MM0, MM8, MMK = 208, 224, 240
    def gen_masks():
        A("v_and_b32 v248, 31, v1")
        A("v_lshrrev_b32 v249, 5, v1")
        A("v_lshlrev_b32 v249, 2, v249")
        A("v_sub_u32 v248, v248, v249")
        A(f"v_mov_b32 v249, {NEGBIG}")
        A("v_mov_b32 v250, 0")
        A("v_mov_b32 v251, 0xffff")
        A("v_mov_b32 v252, 0xffff0000")
        for grp in range(2):
            for q in range(8):
                r = grp*8 + q
                cst = (r & 3) + 8*(r >> 2)
                A(f"v_cmp_le_i32 {s(S_CMP+2*q,2)}, {cst}, v248")
            for q in range(8):
                r = grp*8 + q
                A(f"v_cndmask_b32 {v(MM8+r)}, v249, v250, {s(S_CMP+2*q,2)}")
                A(f"v_cndmask_b32 {v(MM0+r)}, v250, v249, {s(S_CMP+2*q,2)}")
            for q in range(0, 8, 2):
                i = (grp*8 + q) >> 1
                A(f"v_cndmask_b32 v253, v251, v250, {s(S_CMP+2*q,2)}")
                A(f"v_cndmask_b32 v254, v252, v250, {s(S_CMP+2*q+2,2)}")
                A(f"v_or_b32 {v(MMK+i)}, v253, v254")

    def sub_setup():
        A("L_sub_setup:")
        gen_masks()
        A(f"s_lshr_b32 {s(S_HD)}, {s(S_WV)}, 2")
        A(f"s_lshl_b32 {s(S_T0)}, {s(S_RB)}, 2")
        A(f"s_add_u32 {s(S_T0)}, {s(S_T0)}, {s(S_LI)}")
        A(f"s_sub_i32 {s(S_J0)}, 8, {s(S_T0)}")
        A(f"s_max_i32 {s(S_J0)}, {s(S_J0)}, 0")
        A(f"v_lshlrev_b32 {v(PL16)}, 4, v1")
        A(f"s_lshl_b32 {s(S_T0)}, {s(S_HD)}, 12")
        A(f"s_lshl_b32 {s(S_T1)}, {s(S_LI)}, 10")
        A(f"s_add_u32 {s(S_T0)}, {s(S_T0)}, {s(S_T1)}")
        A(f"v_add_u32 {v(PAQ)}, {s(S_T0)}, {v(PL16)}")
        A(f"s_mul_i32 {s(S_T0)}, {s(S_HD)}, {KHS}")
        A(f"s_add_u32 {s(S_T0)}, {s(S_T0)}, {s(S_T1)}")
        A(f"v_add_u32 {v(PAK)}, {s(S_T0)}, {v(PL16)}")
        A(f"s_mul_i32 {s(S_T0)}, {s(S_HD)}, {VHS}")
        A(f"s_mul_i32 {s(S_T1)}, {s(S_LI)}, {VTS}")
        A(f"s_add_u32 {s(S_T0)}, {s(S_T0)}, {s(S_T1)}")
        A("v_and_b32 v248, 15, v1")
        A("v_lshlrev_b32 v248, 4, v248")
        A("v_lshrrev_b32 v249, 5, v1")
        A("v_lshl_add_u32 v248, v249, 8, v248")
        A("v_bfe_u32 v249, v1, 4, 1")
        A("v_cmp_eq_u32 vcc, 1, v249")
        A("v_mov_b32 v249, 1024")
        A("v_mov_b32 v250, 512")
        A(f"v_cndmask_b32 {v(PAV0)}, v248, v249, vcc")
        A(f"v_cndmask_b32 {v(PAV1)}, v248, v250, vcc")
        A(f"v_add_u32 {v(PAV0)}, {s(S_T0)}, {v(PAV0)}")
        A(f"v_add_u32 {v(PAV1)}, {s(S_T0)}, {v(PAV1)}")
        A(f"s_lshl_b32 {s(S_T0)}, {s(S_RB)}, 2")
        A(f"s_add_u32 {s(S_T0)}, {s(S_T0)}, {s(S_LI)}")
        A(f"s_lshl_b32 {s(S_T0)}, {s(S_T0)}, 5")
        A(f"s_lshl_b32 {s(S_T1)}, {s(S_HP)}, 1")
        A(f"s_add_u32 {s(S_T0)}, {s(S_T0)}, {s(S_T1)}")
        A(f"s_add_u32 {s(S_T0)}, {s(S_T0)}, {s(S_HD)}")
        A(f"s_lshl_b32 {s(S_T0)}, {s(S_T0)}, 10")
        A(f"s_add_u32 {s(S_T0)}, {s(S_T0)}, {OW}")
        A(f"v_add_u32 {v(PO)}, {s(S_T0)}, {v(PL16)}")
        A("v_lshrrev_b32 v248, 3, v1")
        A("v_bfe_u32 v249, v248, 1, 1")
        A("v_lshlrev_b32 v249, 2, v249")
        A("v_and_b32 v250, 7, v1")
        A("v_xor_b32 v249, v249, v250")
        A("v_lshlrev_b32 v249, 4, v249")
        A(f"v_lshl_add_u32 {v(PWO)}, v248, 10, v249")
        A(f"s_lshr_b32 {s(S_T0)}, {s(S_J)}, 2")
        A(f"s_lshl_b32 {s(S_T0)}, {s(S_T0)}, 7")
        A(f"s_lshl_b32 {s(S_T1)}, {s(S_WV)}, 16")
        A(f"s_add_u32 {s(S_WOB)}, {s(S_T0)}, {s(S_T1)}")
        A(f"s_lshl_b32 {s(S_WOL)}, {s(S_WV)}, 13")
        srd(R_WO, S_WO, 512*1024)
        A("v_and_b32 v248, 31, v1")
        A("v_lshrrev_b32 v249, 5, v1")
        A(f"s_lshl_b32 {s(S_T0)}, {s(S_WV)}, 1")
        A(f"v_add_u32 v249, {s(S_T0)}, v249")
        A(f"s_lshl_b32 {s(S_T0)}, {s(S_J)}, 6")
        A("v_lshlrev_b32 v250, 2, v249")
        A(f"v_add_u32 v250, {s(S_T0)}, v250")
        A(f"s_lshl_b32 {s(S_T0)}, {s(S_XCD)}, 7")
        A("v_lshlrev_b32 v251, 2, v248")
        A(f"v_add_u32 v251, {s(S_T0)}, v251")
        A(f"v_lshl_add_u32 {v(PQ3)}, v250, 10, v251")
        A(f"v_lshl_add_u32 {v(PB3)}, v250, 11, v251")
        A(f"v_add_u32 {v(PB3)}, 1024, {v(PB3)}")
        A("v_lshrrev_b32 v250, 1, v249")
        A("v_and_b32 v251, 7, v248")
        A("v_xor_b32 v250, v250, v251")
        A("v_lshlrev_b32 v250, 4, v250")
        A("v_and_b32 v251, 1, v249")
        A("v_lshl_add_u32 v250, v251, 3, v250")
        A("v_lshl_add_u32 v250, v248, 8, v250")
        A(f"v_add_u32 {v(PYR)}, {LYT}, v250")
        A("v_lshrrev_b32 v248, 3, v1")
        A("v_and_b32 v249, 7, v1")
        A("v_lshrrev_b32 v250, 1, v248")
        A("v_xor_b32 v249, v249, v250")
        A("v_lshlrev_b32 v248, 12, v248")
        A(f"v_lshl_add_u32 {v(PY0)}, v249, 4, v248")
        A("v_xor_b32 v249, 4, v249")
        A(f"v_lshl_add_u32 {v(PY1)}, v249, 4, v248")
        A(f"v_lshrrev_b32 {v(PFB2)}, 1, v1")
        A(f"v_lshlrev_b32 {v(PFB2)}, 10, {v(PFB2)}")
        A("v_and_b32 v248, 1, v1")
        A(f"v_lshl_add_u32 {v(PFB2)}, v248, 3, {v(PFB2)}")
        A(f"s_lshr_b32 {s(S_T0)}, {s(S_J)}, 4")
        A(f"s_add_u32 {s(S_T0)}, {s(S_T0)}, 4")
        A(f"s_lshl_b32 {s(S_T0)}, {s(S_T0)}, 2")
        A(f"s_lshl_b32 {s(S_T1)}, {s(S_XCD)}, 7")
        A(f"s_add_u32 {s(S_T0)}, {s(S_T0)}, {s(S_T1)}")
        A(f"s_add_u32 {s(S_T0)}, {s(S_T0)}, {FLG + F_B2}")
        A(f"v_add_u32 {v(PFB2)}, {s(S_T0)}, {v(PFB2)}")
        A(f"s_lshl_b32 {s(S_TB64)}, {s(S_XCD)}, 2")
        A(f"s_and_b32 {s(S_T0)}, {s(S_J)}, 3")
        A(f"s_add_u32 {s(S_TB64)}, {s(S_TB64)}, {s(S_T0)}")
        A("v_and_b32 v248, 1, v1")
        A("v_bfe_u32 v249, v1, 1, 2")
        A(f"s_lshl_b32 {s(S_T0)}, {s(S_WV)}, 2")
        A(f"v_add_u32 v249, {s(S_T0)}, v249")
        A(f"s_lshl_b32 {s(S_T0)}, {s(S_TB64)}, 1")
        A(f"v_add_u32 v248, {s(S_T0)}, v248")
        A("v_lshrrev_b32 v250, 2, v248")
        A("v_lshrrev_b32 v251, 1, v249")
        A("v_and_b32 v252, 3, v250")
        A("v_and_b32 v253, 7, v251")
        A("v_lshl_add_u32 v252, v253, 2, v252")
        A("v_lshlrev_b32 v252, 3, v252")
        A("v_lshrrev_b32 v253, 2, v250")
        A("v_lshl_add_u32 v252, v253, 1, v252")
        A("v_lshrrev_b32 v253, 3, v251")
        A("v_add_u32 v252, v252, v253")
        A("v_lshlrev_b32 v252, 7, v252")
        A("v_and_b32 v253, 3, v248")
        A("v_and_b32 v250, 1, v249")
        A("v_lshl_add_u32 v253, v250, 2, v253")
        A("v_lshl_add_u32 v252, v253, 2, v252")
        A(f"v_add_u32 {v(PFA2)}, {FLG + F_A2}, v252")
        A(f"s_and_b32 {s(S_T0)}, {s(S_WV)}, 1")
        A(f"s_lshl_b32 {s(S_T0)}, {s(S_T0)}, 15")
        A(f"s_lshl_b32 {s(S_T2)}, {s(S_HD)}, 14")
        A(f"s_add_u32 {s(S_T0)}, {s(S_T0)}, {s(S_T2)}")
        A(f"v_add_u32 {v(PAO)}, {s(S_T0)}, {v(PL16)}")
        A("v_and_b32 v248, 15, v1")
        A("v_lshrrev_b32 v248, 2, v248")
        A("v_lshrrev_b32 v249, 5, v1")
        A("v_lshl_add_u32 v249, v249, 2, v248")
        A("v_lshlrev_b32 v249, 7, v249")
        A("v_lshrrev_b32 v248, 1, v248")
        A(f"s_bfe_u32 {s(S_T0)}, {s(S_WV)}, 0x10001")
        A(f"v_xor_b32 v248, {s(S_T0)}, v248")
        A("v_lshl_add_u32 v249, v248, 6, v249")
        A("v_bfe_u32 v248, v1, 4, 1")
        A("v_lshl_add_u32 v249, v248, 5, v249")
        A("v_and_b32 v248, 3, v1")
        A("v_lshl_add_u32 v249, v248, 3, v249")
        A(f"s_lshl_b32 {s(S_T2)}, {s(S_HD)}, 15")
        A(f"s_add_u32 {s(S_T2)}, {s(S_T2)}, {LWO}")
        A(f"v_add_u32 {v(PAW)}, {s(S_T2)}, v249")
        A("v_and_b32 v248, 31, v1")
        A("v_lshrrev_b32 v249, 5, v1")
        A(f"s_lshl_b32 {s(S_T0)}, {s(S_T0)}, 3")
        A(f"v_add_u32 v249, {s(S_T0)}, v249")
        A("v_and_b32 v250, 15, v248")
        A("v_xor_b32 v249, v249, v250")
        A("v_lshlrev_b32 v249, 4, v249")
        A(f"s_and_b32 {s(S_T0)}, {s(S_WV)}, 1")
        A(f"s_lshl_b32 {s(S_T0)}, {s(S_T0)}, 13")
        A(f"s_mul_i32 {s(S_T2)}, {s(S_HD)}, {LS1 - LS0}")
        A(f"s_add_u32 {s(S_T0)}, {s(S_T0)}, {s(S_T2)}")
        A(f"s_add_u32 {s(S_T0)}, {s(S_T0)}, {LS0}")
        A("v_lshl_add_u32 v249, v248, 8, v249")
        A(f"v_add_u32 v249, {s(S_T0)}, v249")
        for m in range(4):
            A(f"v_xor_b32 {v(PPW[m])}, {m*32}, v249")
        A("v_lshrrev_b32 v248, 3, v0")
        A("v_and_b32 v249, 7, v0")
        A("v_lshlrev_b32 v250, 1, v249")
        A("v_and_b32 v251, 15, v248")
        A("v_xor_b32 v250, v250, v251")
        A("v_lshlrev_b32 v250, 4, v250")
        A("v_lshl_add_u32 v250, v248, 8, v250")
        A("v_xor_b32 v251, 16, v250")
        A(f"v_add_u32 {v(PPR[0])}, {LS0}, v250"); A(f"v_add_u32 {v(PPR[1])}, {LS0}, v251")
        A(f"v_add_u32 {v(PPR[2])}, {LS1}, v250"); A(f"v_add_u32 {v(PPR[3])}, {LS1}, v251")
        A(f"s_lshl_b32 {s(S_T0)}, {s(S_TB64)}, 17")
        A(f"s_lshr_b32 {s(S_T1)}, {s(S_J)}, 2")
        A(f"s_lshl_b32 {s(S_T1)}, {s(S_T1)}, 7")
        A(f"s_add_u32 {s(S_T0)}, {s(S_T0)}, {s(S_T1)}")
        A("v_lshlrev_b32 v250, 11, v248")
        A("v_lshl_add_u32 v250, v249, 4, v250")
        A(f"v_add_u32 {v(POUT)}, {s(S_T0)}, v250")
        A(f"s_setpc_b64 {s(S_LINK,2)}")
    def wo_dma(n):
        A(f"s_add_u32 m0, {s(S_WOL)}, {LWO + n*1024}")
        A(f"s_add_u32 {s(S_T1)}, {s(S_WOB)}, {n*8192}")
        A(f"buffer_load_dwordx4 {v(PWO)}, {s(R_WO,4)}, {s(S_T1)} offen {NT_WO} lds")

    stamp(0)
    A("s_load_dwordx16 s[16:31], s[0:1], 0")
    A("s_load_dwordx8 s[32:39], s[0:1], 64")
    A("s_cmp_ge_u32 s2, 256")
    A("s_cbranch_scc1 L_end")
    A("v_and_b32 v1, 63, v0")
    A("v_lshrrev_b32 v2, 6, v0")
    A(f"s_and_b32 {s(S_XCD)}, s2, 7")
    A(f"s_lshr_b32 {s(S_J)}, s2, 3")
    A(f"v_readfirstlane_b32 {s(S_WV)}, v2")
    A(f"s_lshr_b32 {s(S_T0)}, {s(S_XCD)}, 1")
    A(f"s_lshl_b32 {s(S_T0)}, {s(S_T0)}, 2")
    A(f"s_and_b32 {s(S_T1)}, {s(S_J)}, 3")
    A(f"s_add_u32 {s(S_RB)}, {s(S_T0)}, {s(S_T1)}")
    A(f"s_and_b32 {s(S_T0)}, {s(S_XCD)}, 1")
    A(f"s_lshl_b32 {s(S_T0)}, {s(S_T0)}, 3")
    A(f"s_lshr_b32 {s(S_T1)}, {s(S_J)}, 2")
    A(f"s_add_u32 {s(S_HP)}, {s(S_T0)}, {s(S_T1)}")
    A(f"s_and_b32 {s(S_LI)}, {s(S_WV)}, 3")
    A("v_and_b32 v3, 31, v1")
    A("v_lshrrev_b32 v4, 5, v1")
    A(f"s_cmp_ge_u32 {s(S_WV)}, 4")
    A("s_cbranch_scc1 L_lwave")
    A("v_lshrrev_b32 v5, 3, v1")
    A("v_and_b32 v6, 7, v1")
    A("v_lshlrev_b32 v6, 4, v6")
    A(f"s_lshl_b32 {s(S_T0)}, {s(S_J)}, 6")
    A(f"s_lshl_b32 {s(S_T1)}, {s(S_WV)}, 4")
    A(f"s_add_u32 {s(S_T0)}, {s(S_T0)}, {s(S_T1)}")
    A(f"v_add_u32 v5, {s(S_T0)}, v5")
    A("v_lshlrev_b32 v5, 10, v5")
    A(f"s_lshl_b32 {s(S_T1)}, {s(S_XCD)}, 7")
    A(f"v_add3_u32 v7, v5, v6, {s(S_T1)}")
    A("v_add_u32 v8, 0xffffe000, v7")
    A("v_add_u32 v9, 0x2000, v7")
    A(f"s_mul_i32 {s(S_T4)}, {s(S_WV)}, 5120")
    A(f"s_add_u32 {s(S_T4)}, {s(S_T4)}, {KVS}")
    A(f"s_lshl_b32 {s(S_T0)}, {s(S_XCD)}, 9")
    A("v_lshlrev_b32 v11, 4, v3")
    A(f"v_add_u32 v11, {s(S_T0)}, v11")
    A("s_waitcnt lgkmcnt(0)")
    stamp(1)
    srd(R_BK, S_BK, 2048*1024)
    srd(R_X, S_BV, 2048*1024)
    A(f"s_load_dword {s(S_NONCE)}, {s(S_WS,2)}, {EP}")
    for n, vr in enumerate((8, 7, 9)):
        A(f"s_add_u32 m0, {s(S_T4)}, {n*1024}")
        A(f"buffer_load_dwordx4 {v(vr)}, {s(R_BK,4)}, 0 offen {NT_B} lds")
    for n, vr in enumerate((7, 9)):
        A(f"s_add_u32 m0, {s(S_T4)}, {3072 + n*1024}")
        A(f"buffer_load_dwordx4 {v(vr)}, {s(R_X,4)}, 0 offen {NT_B} lds")
    A(f"global_load_dwordx4 v[36:39], v11, {s(S_SK,2)}")
    XA, XB, WA, WB, WC = 144, 148, 152, 153, 154
    A(f"s_lshl_b32 {s(S_T0)}, {s(S_LI)}, 5")
    A(f"v_add_u32 v110, {s(S_T0)}, v3")
    A("v_lshrrev_b32 v111, 1, v110")
    A("v_and_b32 v111, 7, v111")
    A("v_xor_b32 v111, v111, v4")
    A("v_lshlrev_b32 v111, 4, v111")
    A("v_lshl_add_u32 v111, v110, 7, v111")
    for st in range(4):
        A(f"v_xor_b32 {v(XA+st)}, {st*32}, v111")
        A(f"v_add_u32 {v(XB+st)}, {2*STG}, {v(XA+st)}")
    A("v_and_b32 v110, 15, v1")
    A("v_lshrrev_b32 v110, 2, v110")
    A("v_lshl_add_u32 v110, v4, 3, v110")
    A("v_lshlrev_b32 v110, 6, v110")
    A("v_bfe_u32 v111, v1, 4, 1")
    A("v_lshl_add_u32 v110, v111, 5, v110")
    A("v_and_b32 v111, 3, v1")
    A("v_lshl_add_u32 v110, v111, 3, v110")
    A(f"v_add_u32 {v(WA)}, 16384, v110")
    A(f"v_add_u32 {v(WB)}, {2*STG}, {v(WA)}")
    A(f"v_add_u32 {v(WC)}, {4*STG}, {v(WA)}")
    ACC = 64
    FR = [160, 176, 128]
    def reads(n):
        c, st = n >> 2, n & 3
        stage = STAGE[c]
        xa = (XA if stage < 2 else XB) + st
        wa = WA if stage < 2 else WB if stage < 4 else WC
        so = (stage & 1) * STG
        xo = so if stage < 4 else 2*STG
        f = FR[n % 3]
        L = [f"ds_read_b128 {v(f,4)}, {v(xa)} offset:{xo}"]
        for p in range(3):
            L.append(f"ds_read_b64_tr_b16 {v(f+4+4*p,2)}, {v(wa)} offset:{so + p*4096 + st*1024}")
            L.append(f"ds_read_b64_tr_b16 {v(f+6+4*p,2)}, {v(wa)} offset:{so + p*4096 + st*1024 + 256}")
        return L
    def mfma(n, p):
        f = FR[n % 3]
        acc = v(ACC + 16*p, 16)
        cin = "0" if n == 0 else acc
        if p < 2: return f"{MF} {acc}, {v(f+4+4*p,4)}, {v(f,4)}, {cin}"
        else:     return f"{MF} {acc}, {v(f,4)}, {v(f+4+4*p,4)}, {cin}"
    def epi_addr():
        A("v_lshlrev_b32 v192, 4, v1")
        A(f"s_lshl_b32 {s(S_T0)}, {s(S_HP)}, 7")
        A(f"s_lshl_b32 {s(S_T1)}, {s(S_RB)}, 2")
        A(f"s_add_u32 {s(S_T0)}, {s(S_T0)}, {s(S_T1)}")
        A(f"s_add_u32 {s(S_T0)}, {s(S_T0)}, {s(S_LI)}")
        A(f"s_lshl_b32 {s(S_T0)}, {s(S_T0)}, 10")
        A(f"s_add_u32 {s(S_T1)}, {s(S_T0)}, {KW}")
        A(f"v_add_u32 v197, {s(S_T1)}, v192")
        A("v_add_u32 v198, 0x10000, v197")
        A("v_and_b32 v194, 15, v1")
        A("v_lshlrev_b32 v194, 4, v194")
        A("v_lshl_add_u32 v194, v4, 8, v194")
        A("v_bfe_u32 v195, v1, 4, 1")
        A(f"s_add_u32 {s(S_T1)}, {s(S_T0)}, {VW}")
        A("v_lshlrev_b32 v199, 16, v195")
        A(f"v_add3_u32 v199, v199, v194, {s(S_T1)}")
        A(f"s_lshl_b32 {s(S_T0)}, {s(S_LI)}, 10")
        A(f"v_add_u32 v193, {s(S_T0)}, v192")
        A(f"s_mul_i32 {s(S_T0)}, {s(S_LI)}, {VTS}")
        A(f"v_mov_b32 v196, {VHS}")
        A("v_mul_u32_u24 v196, v196, v195")
        A(f"v_add3_u32 v196, v196, v194, {s(S_T0)}")
    def halo_addr():
        srd(R_WS, S_WS, WS_BYTES)
        A(f"s_sub_u32 {s(S_T2)}, {s(S_RB)}, 1")
        A(f"s_sub_u32 {s(S_T3)}, {s(S_RB)}, 2")
        A(f"s_max_i32 {s(S_T3)}, {s(S_T3)}, 0")
        A(f"s_max_i32 {s(S_T2)}, {s(S_T2)}, 0")
        A("v_and_b32 v158, 1, v1")
        A("v_cmp_eq_u32 vcc, 1, v158")
        A(f"v_mov_b32 v158, {s(S_T2)}")
        A(f"v_mov_b32 v157, {s(S_T3)}")
        A("v_cndmask_b32 v158, v158, v157, vcc")
        A(f"s_and_b32 {s(S_T0)}, {s(S_HP)}, 7")
        A(f"s_lshl_b32 {s(S_T0)}, {s(S_T0)}, 5")
        A(f"s_lshr_b32 {s(S_T1)}, {s(S_HP)}, 3")
        A(f"s_add_u32 {s(S_T0)}, {s(S_T0)}, {s(S_T1)}")
        A("v_and_b32 v157, 3, v158")
        A("v_lshlrev_b32 v157, 3, v157")
        A("v_lshrrev_b32 v158, 2, v158")
        A("v_lshl_add_u32 v157, v158, 1, v157")
        A(f"v_add_u32 v157, {s(S_T0)}, v157")
        A("v_lshlrev_b32 v157, 7, v157")
        A(f"s_lshl_b32 {s(S_T0)}, {s(S_LI)}, 2")
        A(f"s_add_u32 {s(S_T0)}, {s(S_T0)}, {FLG + F_A1}")
        A(f"v_add_u32 v157, {s(S_T0)}, v157")
    A("v_lshlrev_b32 v5, 10, v4")
    A("v_lshl_add_u32 v5, v3, 2, v5")
    A(f"v_add_u32 v5, {s(S_T4)}, v5")
    A(f"s_lshl_b32 {s(S_T0)}, {s(S_WV)}, 1")
    A(f"v_add_u32 v6, {s(S_T0)}, v4")
    A("v_sub_u32 v112, 7, v6")
    A("v_and_b32 v113, 7, v3")
    A("v_xor_b32 v112, v112, v113")
    A("v_lshlrev_b32 v112, 4, v112")
    A("v_lshl_add_u32 v112, v3, 8, v112")
    A(f"v_add_u32 v112, {T0}, v112")
    A("v_lshrrev_b32 v114, 3, v1")
    A(f"s_lshl_b32 {s(S_T0)}, {s(S_LI)}, 4")
    A(f"v_add_u32 v114, {s(S_T0)}, v114")
    A("v_and_b32 v115, 7, v1")
    A("v_lshrrev_b32 v116, 1, v114")
    A("v_and_b32 v116, 7, v116")
    A("v_xor_b32 v116, v116, v115")
    A("v_lshlrev_b32 v117, 7, v114")
    A("v_lshl_add_u32 v118, v116, 4, v117")
    A("v_xor_b32 v116, 4, v116")
    A("v_lshl_add_u32 v119, v116, 4, v117")
    A(f"v_add_u32 v118, {T0}, v118")
    A(f"v_add_u32 v119, {T0 + 1024}, v119")
    A(f"s_lshl_b32 {s(S_T0)}, {s(S_XCD)}, 18")
    A(f"s_lshl_b32 {s(S_T1)}, {s(S_J)}, 7")
    A(f"s_sub_u32 {s(S_T0)}, {s(S_T0)}, {s(S_T1)}")
    A(f"s_add_u32 {s(S_T0)}, {s(S_T0)}, {UR + 1984*2}")
    A("v_lshlrev_b32 v120, 12, v114")
    A("v_lshl_add_u32 v120, v115, 4, v120")
    A(f"v_add_u32 v120, {s(S_T0)}, v120")
    A("v_add_u32 v121, 0x8000, v120")
    epi_addr(); halo_addr()
    A("s_waitcnt vmcnt(0) lgkmcnt(0)")
    stamp(2)
    for r in range(11):
        A(f"ds_read_b32 {v(16+r)}, v5 offset:{(5+r)*128}")
    for r in range(8):
        A(f"ds_read_b32 {v(28+r)}, v5 offset:{3072 + r*128}")
    A("v_lshlrev_b32 v78, 16, v36"); A("v_lshlrev_b32 v79, 16, v38")
    A("v_and_b32 v80, 0xffff0000, v36"); A("v_and_b32 v81, 0xffff0000, v38")
    A("v_lshlrev_b32 v82, 16, v37"); A("v_lshlrev_b32 v83, 16, v39")
    A("v_and_b32 v84, 0xffff0000, v37"); A("v_and_b32 v85, 0xffff0000, v39")
    A(f"s_add_u32 {s(S_NONCE)}, {s(S_NONCE)}, 1")
    A("s_waitcnt lgkmcnt(8)")
    for r in range(11):
        A(f"v_lshlrev_b32 {v(40+2*r)}, 16, {v(16+r)}")
        A(f"v_and_b32 {v(41+2*r)}, 0xffff0000, {v(16+r)}")
    for tau in range(8):
        A(f"v_pk_mul_f32 {v(86+2*tau,2)}, {v(40+2*(tau+3),2)}, {v(78,2)}")
    for jj in range(1, 4):
        for tau in range(8):
            d = 86 + 2*tau
            A(f"v_pk_fma_f32 {v(d,2)}, {v(40+2*(tau+3-jj),2)}, {v(78+2*jj,2)}, {v(d,2)}")
    A("s_waitcnt lgkmcnt(0)")
    for r in range(8):
        A(f"v_lshlrev_b32 {v(62+2*r)}, 16, {v(28+r)}")
        A(f"v_and_b32 {v(63+2*r)}, 0xffff0000, {v(28+r)}")
    for tau in range(8):
        d = 86 + 2*tau
        A(f"v_pk_mul_f32 {v(d,2)}, {v(d,2)}, {v(62+2*tau,2)}")
    for e in range(4):
        A(f"v_cvt_pk_bf16_f32 {v(104+e)}, {v(86+2*(7-2*e))}, {v(86+2*(6-2*e))}")
        A(f"v_cvt_pk_bf16_f32 {v(108+e)}, {v(87+2*(7-2*e))}, {v(87+2*(6-2*e))}")
    A("ds_write_b128 v112, v[104:107]")
    A("ds_write_b128 v112, v[108:111] offset:128")
    A(f"s_lshl_b32 {s(S_T0)}, {s(S_LI)}, 2")
    A(f"s_add_u32 {s(S_T0)}, {s(S_T0)}, {CSW}")
    A(f"v_mov_b32 v155, {s(S_T0)}")
    A("v_mov_b32 v156, 0")
    A("ds_write_b32 v155, v156")
    A("s_waitcnt lgkmcnt(0)")
    stamp(3)
    A("s_barrier")
    stamp(4)
    A("ds_read_b128 v[24:27], v118")
    A("ds_read_b128 v[28:31], v119")
    for t in reads(0): A(t)
    A("s_waitcnt lgkmcnt(7)")
    A(f"global_store_dwordx4 v120, v[24:27], {s(S_WS,2)} {SCS}")
    A(f"global_store_dwordx4 v121, v[28:31], {s(S_WS,2)} {SCS}")
    for t in reads(1): A(t)
    for n in range(32):
        if (n & 3) == 2 and n + 2 < 32:
            A("s_waitcnt lgkmcnt(0)")
            if n == 6:
                A("s_waitcnt vmcnt(0)")
                publish(F_B1, 16, 17)
            if prof and n <= 22: A(f"s_memtime s[{4+2*(n>>2)}:{5+2*(n>>2)}]")
            A("s_barrier")
        elif n + 1 < 32:
            A("s_waitcnt lgkmcnt(7)")
        else:
            A("s_waitcnt lgkmcnt(0)")
            A(f"v_mov_b32 v156, {s(S_NONCE)}")
            A("ds_write_b32 v155, v156")
        R = reads(n + 2) if n + 2 < 32 else []
        A(mfma(n, 0))
        for t in R[0:3]: A(t)
        A(mfma(n, 1))
        for t in R[3:5]: A(t)
        A(mfma(n, 2))
        for t in R[5:7]: A(t)
    if prof:
        A("s_waitcnt lgkmcnt(0)")
        for c in range(6): A(f"v_writelane_b32 v255, s{4+2*c}, {22+c}")
    stamp(5)
    PK = 112
    for i in range(8):
        A(f"v_cvt_pk_bf16_f32 {v(PK+8+i)}, {v(ACC+16+2*i)}, {v(ACC+17+2*i)}")
    A(f"global_store_dwordx4 v197, {v(PK+8,4)}, {s(S_WS,2)} {SCS}")
    A(f"global_store_dwordx4 v198, {v(PK+12,4)}, {s(S_WS,2)} {SCS}")
    for i in range(8):
        A(f"v_cvt_pk_bf16_f32 {v(PK+16+i)}, {v(ACC+32+2*i)}, {v(ACC+33+2*i)}")
    A(f"global_store_dwordx4 v199, {v(PK+16,4)}, {s(S_WS,2)} {SCS}")
    A(f"global_store_dwordx4 v199, {v(PK+20,4)}, {s(S_WS,2)} offset:512 {SCS}")
    A(f"s_mov_b32 {s(S_T0)}, {QSCALE}")
    for r in range(16):
        A(f"v_mul_f32 {v(ACC+r)}, {s(S_T0)}, {v(ACC+r)}")
    for i in range(8):
        A(f"v_cvt_pk_bf16_f32 {v(PK+i)}, {v(ACC+2*i)}, {v(ACC+2*i+1)}")
    A(f"ds_write_b128 v193, {v(PK+8,4)} offset:{LK + 8*1024}")
    A(f"ds_write_b128 v193, {v(PK+12,4)} offset:{LK + KHS + 8*1024}")
    A(f"ds_write_b128 v196, {v(PK+16,4)} offset:{LV + 8*VTS}")
    A(f"ds_write_b128 v196, {v(PK+20,4)} offset:{LV + 8*VTS + 512}")
    A(f"ds_write_b128 v193, {v(PK,4)} offset:{LQ}")
    A(f"ds_write_b128 v193, {v(PK+4,4)} offset:{LQ+4096}")
    A(f"s_cmp_lg_u32 {s(S_LI)}, 0")
    A("s_cbranch_scc1 L_c_nopad")
    A(f"v_mov_b32 v24, {ONES}"); A("v_mov_b32 v25, v24"); A("v_mov_b32 v26, v24"); A("v_mov_b32 v27, v24")
    A(f"v_mul_u32_u24 v28, {VTS}, v1")
    A("v_cmp_gt_u32 vcc, 24, v1")
    A(f"s_and_saveexec_b64 {s(S_EX,2)}, vcc")
    A(f"ds_write_b128 v28, v[24:27] offset:{LV + 1024}")
    A(f"s_mov_b64 exec, {s(S_EX,2)}")
    A("L_c_nopad:")
    A("s_waitcnt vmcnt(0)")
    publish(F_A1, 16, 17)
    stamp(6)
    A(f"s_cmp_eq_u32 {s(S_RB)}, 0")
    A("s_cbranch_scc1 L_c_nosample")
    flag_load(157, 158)
    A("L_c_nosample:")
    A(f"v_mov_b32 v16, {CSW}")
    A(f"s_mov_b32 {s(S_SPIN)}, {SPIN*8}")
    A("L_c_sync:")
    A("ds_read_b128 v[20:23], v16")
    A("s_waitcnt lgkmcnt(0)")
    A(f"v_cmp_ne_u32 vcc, {s(S_NONCE)}, v20")
    A(f"v_cmp_ne_u32 {s(S_CMP,2)}, {s(S_NONCE)}, v21")
    A(f"v_cmp_ne_u32 {s(S_CMP+2,2)}, {s(S_NONCE)}, v22")
    A(f"v_cmp_ne_u32 {s(S_CMP+4,2)}, {s(S_NONCE)}, v23")
    A(f"s_or_b64 vcc, vcc, {s(S_CMP,2)}")
    A(f"s_or_b64 vcc, vcc, {s(S_CMP+2,2)}")
    A(f"s_or_b64 vcc, vcc, {s(S_CMP+4,2)}")
    A("s_cbranch_vccz L_c_synced")
    A(f"s_sub_u32 {s(S_SPIN)}, {s(S_SPIN)}, 1")
    A(f"s_cmp_lg_u32 {s(S_SPIN)}, 0")
    A("s_cbranch_scc1 L_c_sync")
    A("L_c_synced:")
    A(f"s_mov_b32 {s(S_T4)}, {s(S_T2)}")
    A(f"s_mov_b32 {s(S_T5)}, {s(S_T3)}")
    A(f"s_call_b64 {s(S_LINK,2)}, L_sub_setup")
    A(f"s_mov_b32 {s(S_T2)}, {s(S_T4)}")
    A(f"s_mov_b32 {s(S_T3)}, {s(S_T5)}")
    A(f"s_cmp_eq_u32 {s(S_RB)}, 0")
    A("s_cbranch_scc1 L_c_halo_done")
    A("s_waitcnt vmcnt(0)")
    check_or_spin(157, 158, "L_poll_h")
    stamp(7)
    A("v_lshlrev_b32 v18, 4, v1")
    A(f"s_lshl_b32 {s(S_T4)}, {s(S_LI)}, 10")
    A(f"s_mul_i32 {s(S_T5)}, {s(S_LI)}, {VTS}")
    def halo(rbreg, toff):
        A(f"s_lshl_b32 {s(S_T0)}, {s(S_HP)}, 7")
        A(f"s_lshl_b32 {s(S_T1)}, {s(rbreg)}, 2")
        A(f"s_add_u32 {s(S_T0)}, {s(S_T0)}, {s(S_T1)}")
        A(f"s_add_u32 {s(S_T0)}, {s(S_T0)}, {s(S_LI)}")
        A(f"s_lshl_b32 {s(S_T0)}, {s(S_T0)}, 10")
        for hd in range(2):
            A(f"s_add_u32 m0, {s(S_T4)}, {LK + hd*KHS + toff*1024}")
            A(f"s_add_u32 {s(S_T1)}, {s(S_T0)}, {KW + hd*65536}")
            A(f"buffer_load_dwordx4 v18, {s(R_WS,4)}, {s(S_T1)} offen sc1 lds")
            A(f"s_add_u32 m0, {s(S_T5)}, {LV + hd*VHS + toff*VTS}")
            A(f"s_add_u32 {s(S_T1)}, {s(S_T0)}, {VW + hd*65536}")
            A(f"buffer_load_dwordx4 v18, {s(R_WS,4)}, {s(S_T1)} offen sc1 lds")
    halo(S_T2, 4)
    A(f"s_cmp_eq_u32 {s(S_RB)}, 1")
    A("s_cbranch_scc1 L_c_halo_done")
    halo(S_T3, 0)
    A("L_c_halo_done:")
    for n in range(8): wo_dma(n)
    A("s_waitcnt vmcnt(8) lgkmcnt(0)")
    stamp(8)
    A("s_barrier")
    stamp(9)
    A("s_branch L_a2")

    A("L_lwave:")
    A("v_lshrrev_b32 v220, 3, v1")
    A(f"s_lshl_b32 {s(S_T0)}, {s(S_RB)}, 7")
    A(f"s_lshl_b32 {s(S_T1)}, {s(S_LI)}, 5")
    A(f"s_add_u32 {s(S_T0)}, {s(S_T0)}, {s(S_T1)}")
    A(f"v_add_u32 v220, {s(S_T0)}, v220")
    A("v_lshlrev_b32 v220, 10, v220")
    A("v_and_b32 v221, 7, v1")
    A("v_lshrrev_b32 v222, 4, v1")
    A("v_xor_b32 v223, v221, v222")
    A("v_lshl_add_u32 v200, v223, 4, v220")
    A("v_xor_b32 v223, 4, v223")
    A("v_lshl_add_u32 v201, v223, 4, v220")
    A("v_lshrrev_b32 v220, 2, v1")
    A(f"s_lshl_b32 {s(S_T0)}, {s(S_LI)}, 4")
    A(f"v_add_u32 v220, {s(S_T0)}, v220")
    A(f"v_mul_u32_u24 v220, 3072, v220")
    A("v_and_b32 v221, 3, v1")
    A("v_lshlrev_b32 v221, 4, v221")
    A(f"s_lshl_b32 {s(S_T0)}, {s(S_HP)}, 6")
    A(f"v_add3_u32 v202, v220, v221, {s(S_T0)}")
    S_LX, S_LW = S_T4, S_T5
    A(f"s_lshl_b32 {s(S_LX)}, {s(S_LI)}, 12")
    A(f"s_lshl_b32 {s(S_LW)}, {s(S_LI)}, 10")
    A(f"s_lshl_b32 {s(S_CH)}, {s(S_XCD)}, 6")
    A(f"s_lshl_b32 {s(S_T1)}, {s(S_J)}, 1")
    A(f"s_add_u32 {s(S_CH)}, {s(S_CH)}, {s(S_T1)}")
    A(f"s_lshr_b32 {s(S_T1)}, {s(S_LI)}, 1")
    A(f"s_add_u32 {s(S_CH)}, {s(S_CH)}, {s(S_T1)}")
    A(f"s_mul_i32 {s(S_CBASE)}, {s(S_T1)}, {CB}")
    A(f"s_add_u32 {s(S_CBASE)}, {s(S_CBASE)}, {B2R}")
    A(f"s_and_b32 {s(S_T2)}, {s(S_LI)}, 1")
    A(f"s_lshl_b32 {s(S_T1)}, {s(S_CH)}, 12")
    A(f"s_lshl_b32 {s(S_T3)}, {s(S_T2)}, 11")
    A(f"s_add_u32 {s(S_T1)}, {s(S_T1)}, {s(S_T3)}")
    A("v_lshlrev_b32 v203, 4, v1")
    A(f"v_add_u32 v203, {s(S_T1)}, v203")
    A(f"s_lshl_b32 {s(S_T1)}, {s(S_CH)}, 1")
    A(f"s_and_b32 {s(S_T1)}, {s(S_T1)}, 0xfffffffc")
    A(f"v_mov_b32 v219, {s(S_T1)}")
    A("s_waitcnt lgkmcnt(0)")
    stamp(1)
    srd(R_X, S_X, 2048*1024)
    srd(R_W, S_WQKV, 512*3072)
    A(f"s_load_dword {s(S_NONCE)}, {s(S_WS,2)}, {EP}")
    if opt.get("rot", 1):
        A(f"s_and_b32 {s(S_T0)}, {s(S_RB)}, 3")
        A(f"s_lshl_b32 {s(S_T0)}, {s(S_T0)}, 1")
        A(f"s_add_u32 {s(S_ROT)}, {s(S_HP)}, {s(S_T0)}")
    else:
        A(f"s_mov_b32 {s(S_ROT)}, 0")
    def dma_chunk(c):
        st = STAGE[c] * STG
        A(f"s_add_u32 {s(S_T1)}, {s(S_ROT)}, {c}")
        A(f"s_and_b32 {s(S_T1)}, {s(S_T1)}, 7")
        A(f"s_mul_i32 {s(S_T2)}, {s(S_T1)}, {64*3072}")
        A(f"s_lshl_b32 {s(S_T1)}, {s(S_T1)}, 7")
        for n in range(4):
            A(f"s_add_u32 m0, {s(S_LX)}, {st + n*1024}")
            A(f"s_add_u32 {s(S_T0)}, {s(S_T1)}, {n*8192}")
            A(f"buffer_load_dwordx4 {v(200 + (n & 1))}, {s(R_X,4)}, {s(S_T0)} offen {NT_XW} lds")
        for p in range(3):
            A(f"s_add_u32 m0, {s(S_LW)}, {st + 16384 + p*4096}")
            A(f"s_add_u32 {s(S_T0)}, {s(S_T2)}, {p*1024}")
            A(f"buffer_load_dwordx4 v202, {s(R_W,4)}, {s(S_T0)} offen {NT_XW} lds")
    DIST = opt.get('dist', 3)
    for c in range(DIST): dma_chunk(c)
    def h_loads():
        srd(R_WO, S_SSMK, 512*4096)
        A(f"buffer_load_dwordx4 v[204:207], v203, {s(R_WO,4)}, 0 offen {NT_B}")
        A(f"buffer_load_dword v208, v203, {s(R_WO,4)}, 0 offen offset:16 {NT_B}")
        A(f"buffer_load_dwordx4 v[212:215], v203, {s(R_WO,4)}, 0 offen offset:1024 {NT_B}")
        A(f"buffer_load_dword v216, v203, {s(R_WO,4)}, 0 offen offset:1040 {NT_B}")
        A(f"global_load_dword v217, v219, {s(S_SD,2)}")
    stamp(2)
    AA, AB = 16, 24
    CA = [32, 64]
    CBf = [96, 128]
    CACC = 160
    def build_eo():
        A(f"s_and_b32 {s(S_T2)}, {s(S_LI)}, 1")
        A(f"s_lshr_b32 {s(S_T0)}, {s(S_LI)}, 1")
        A(f"s_lshl_b32 {s(S_T0)}, {s(S_T0)}, 4")
        A(f"v_lshrrev_b32 v217, {s(S_T0)}, v217")
        A("v_lshlrev_b32 v217, 16, v217")
        A("v_lshlrev_b32 v218, 16, v204")
        A("v_add_f32 v218, v217, v218")
        A("v_cvt_pk_bf16_f32 v218, v218, v218")
        A("v_and_b32 v218, 0xffff, v218")
        A("v_and_b32 v219, 0xffff0000, v204")
        A("v_or_b32 v219, v219, v218")
        A(f"v_mov_b32 v220, {s(S_T2)}")
        A("v_or_b32 v220, v220, v1")
        A("v_cmp_eq_u32 vcc, 0, v220")
        A("v_cndmask_b32 v204, v204, v219, vcc")
        for k in range(4):
            nxt = 205 + k if k < 3 else 208
            A(f"v_alignbit_b32 {v(228+k)}, {v(nxt)}, {v(204+k)}, 16")
        for k in range(4):
            nxt = 213 + k if k < 3 else 216
            A(f"v_alignbit_b32 {v(232+k)}, {v(nxt)}, {v(212+k)}, 16")
        A(f"s_lshl_b32 {s(S_T0)}, {s(S_T2)}, 11")
        A(f"s_add_u32 {s(S_T0)}, {s(S_T0)}, {s(S_CBASE)}")
        A("v_lshlrev_b32 v221, 4, v1")
        A(f"v_add_u32 v221, {s(S_T0)}, v221")
        A(f"ds_write_b128 v221, v[228:231] offset:{E_OFF + 32}")
        A(f"ds_write_b128 v221, v[232:235] offset:{E_OFF + 32 + 1024}")
        A(f"ds_write_b128 v221, v[204:207] offset:{O_OFF + 28}")
        A(f"ds_write_b128 v221, v[212:215] offset:{O_OFF + 28 + 1024}")
        A(f"s_cmp_lg_u32 {s(S_T2)}, 0")
        A("s_cbranch_scc1 L_l_nopad")
        A("v_mov_b32 v222, 0")
        A("v_readfirstlane_b32 %s, v218" % s(S_T0))
        A(f"s_lshl_b32 {s(S_T0)}, {s(S_T0)}, 16")
        A("v_lshlrev_b32 v223, 2, v1")
        A(f"v_add_u32 v223, {s(S_CBASE)}, v223")
        A(f"v_mov_b32 v236, {s(S_T0)}")
        A("v_cmp_eq_u32 vcc, 7, v1")
        A("v_cndmask_b32 v236, v222, v236, vcc")
        A("v_cmp_gt_u32 vcc, 8, v1")
        A(f"s_and_saveexec_b64 {s(S_EX,2)}, vcc")
        A(f"ds_write_b32 v223, v236 offset:{E_OFF}")
        A(f"s_mov_b64 exec, {s(S_EX,2)}")
        A("v_cmp_gt_u32 vcc, 7, v1")
        A(f"s_and_saveexec_b64 {s(S_EX,2)}, vcc")
        A(f"ds_write_b32 v223, v222 offset:{O_OFF}")
        A(f"s_mov_b64 exec, {s(S_EX,2)}")
        A("v_mov_b32 v237, 0")
        A("v_lshlrev_b32 v223, 3, v1")
        A(f"v_add_u32 v223, {s(S_CBASE)}, v223")
        A("v_mov_b32 v236, 0")
        A("v_cmp_gt_u32 vcc, 60, v1")
        A(f"s_and_saveexec_b64 {s(S_EX,2)}, vcc")
        A(f"ds_write_b64 v223, v[236:237] offset:{U_OFF + 4096}")
        A(f"s_mov_b64 exec, {s(S_EX,2)}")
        A("L_l_nopad:")
        A("s_waitcnt lgkmcnt(0)")
    def conv_addr():
        A("v_and_b32 v25, 15, v1")
        A("v_lshrrev_b32 v26, 4, v1")
        A("v_lshrrev_b32 v27, 1, v25")
        A("v_lshl_add_u32 v27, v26, 2, v27")
        A("v_lshlrev_b32 v27, 2, v27")
        A("v_and_b32 v28, 1, v25")
        A(f"v_mul_u32_u24 v28, {O_OFF}, v28")
        A(f"s_and_b32 {s(S_T2)}, {s(S_LI)}, 1")
        A(f"s_lshl_b32 {s(S_T0)}, {s(S_T2)}, 8")
        A(f"s_add_u32 {s(S_T0)}, {s(S_T0)}, {s(S_CBASE)}")
        A(f"v_add3_u32 {v(AA)}, v27, v28, {s(S_T0)}")
        for jj in range(1, 8):
            A(f"v_add_u32 {v(AA+jj)}, {512*jj}, {v(AA)}")
        A("v_lshlrev_b32 v27, 4, v26")
        A("v_lshlrev_b32 v28, 5, v25")
        A("v_sub_u32 v27, v27, v28")
        A(f"s_add_u32 {s(S_T0)}, {s(S_T0)}, {U_OFF + 480}")
        A(f"v_add_u32 {v(AB)}, {s(S_T0)}, v27")
    def ur_dma():
        A(f"s_lshl_b32 {s(S_T0)}, {s(S_CH)}, 12")
        A(f"s_add_u32 {s(S_T0)}, {s(S_T0)}, {UR}")
        A("v_lshlrev_b32 v29, 4, v1")
        for cs in range(2):
            for n in range(4):
                A(f"s_mov_b32 m0, {B2R + cs*CB + U_OFF + n*1024}")
                A(f"s_add_u32 {s(S_T1)}, {s(S_T0)}, {cs*4096 + n*1024}")
                A(f"buffer_load_dwordx4 v29, {s(R_WS,4)}, {s(S_T1)} offen sc1 lds")
    def lbar(c, n):
        if n is not None: A(f"s_waitcnt vmcnt({n})")
        if prof: A(f"s_memtime s[{80+2*c}:{81+2*c}]")
        A("s_barrier")
    A("s_waitcnt lgkmcnt(0)")
    A(f"v_mov_b32 v25, {OKW}")
    A("v_mov_b32 v26, 0")
    A("ds_write_b32 v25, v26")
    A("s_waitcnt lgkmcnt(0)")
    def b1_flag_sample():
        A("v_and_b32 v30, 31, v1")
        A("v_lshlrev_b32 v30, 10, v30")
        A(f"s_lshl_b32 {s(S_T0)}, {s(S_XCD)}, 7")
        A(f"s_lshr_b32 {s(S_T1)}, {s(S_J)}, 3")
        A(f"s_lshl_b32 {s(S_T1)}, {s(S_T1)}, 2")
        A(f"s_add_u32 {s(S_T0)}, {s(S_T0)}, {s(S_T1)}")
        A(f"s_add_u32 {s(S_T0)}, {s(S_T0)}, {FLG + F_B1}")
        A(f"v_add_u32 v30, {s(S_T0)}, v30")
        A(f"s_cmp_eq_u32 {s(S_LI)}, 0")
        A("s_cbranch_scc1 L_l_w4a")
        A(f"s_lshl_b32 {s(S_T0)}, s2, 7")
        A(f"s_add_u32 {s(S_T0)}, {s(S_T0)}, {FLG + F_B2}")
        A(f"v_mov_b32 v30, {s(S_T0)}")
        A("L_l_w4a:")
        flag_load(30, 31)
    if DIST == 3:
        lbar(0, 14)
        dma_chunk(3)
        A(f"s_add_u32 {s(S_NONCE)}, {s(S_NONCE)}, 1")
        srd(R_WS, S_WS, WS_BYTES)
        lbar(1, 14)
        dma_chunk(4)
        h_loads()
        lbar(2, 19)
        dma_chunk(5)
        lbar(3, 19)
        dma_chunk(6)
        lbar(4, 19)
        dma_chunk(7)
        b1_flag_sample()
        lbar(5, 15)
        build_eo()
        lbar(6, 8)
        conv_addr()
    else:
        lbar(0, 7)
        dma_chunk(2)
        A(f"s_add_u32 {s(S_NONCE)}, {s(S_NONCE)}, 1")
        srd(R_WS, S_WS, WS_BYTES)
        lbar(1, 7)
        dma_chunk(3)
        h_loads()
        lbar(2, 12)
        dma_chunk(4)
        lbar(3, 12)
        dma_chunk(5)
        lbar(4, 7)
        dma_chunk(6)
        lbar(5, 7)
        dma_chunk(7)
        b1_flag_sample()
        build_eo()
        lbar(6, 8)
        conv_addr()
    A("s_waitcnt vmcnt(0)")
    A(f"s_mov_b32 {s(S_OK)}, 0")
    A(f"s_cmp_lg_u32 {s(S_LI)}, 0")
    A("s_cbranch_scc1 L_l_late")
    A(f"v_cmp_ne_u32 vcc, {s(S_NONCE)}, v31")
    A("s_cbranch_vccnz L_l_late")
    ur_dma()
    A(f"s_mov_b32 {s(S_OK)}, 1")
    A("L_l_late:")
    if prof:
        A("s_memtime s[94:95]")
        A("s_waitcnt lgkmcnt(0)")
        for c in range(8): A(f"v_writelane_b32 v255, s{80+2*c}, {22+c}")
    A("s_barrier")
    stamp(5)
    A(f"v_mov_b32 v25, {OKW}")
    A(f"s_cmp_lg_u32 {s(S_LI)}, 0")
    A("s_cbranch_scc1 L_l_others")
    A(f"s_cmp_eq_u32 {s(S_OK)}, 1")
    A("s_cbranch_scc1 L_l_have")
    spin(30, 31, "L_poll_b1")
    ur_dma()
    A("L_l_have:")
    A("s_waitcnt vmcnt(0)")
    A(f"v_mov_b32 v26, {s(S_NONCE)}")
    A("ds_write_b32 v25, v26")
    A("s_waitcnt lgkmcnt(0)")
    A("s_branch L_l_go")
    A("L_l_others:")
    A(f"s_mov_b32 {s(S_SPIN)}, {SPIN*8}")
    A("L_l_ospin:")
    A("ds_read_b32 v26, v25")
    A("s_waitcnt lgkmcnt(0)")
    A(f"v_cmp_ne_u32 vcc, {s(S_NONCE)}, v26")
    A("s_cbranch_vccz L_l_go")
    A(f"s_sub_u32 {s(S_SPIN)}, {s(S_SPIN)}, 1")
    A(f"s_cmp_lg_u32 {s(S_SPIN)}, 0")
    A("s_cbranch_scc1 L_l_ospin")
    A("L_l_go:")
    stamp(7)
    def conv_reads(ii):
        st = ii & 1
        L = []
        for k in range(8):
            L.append(f"ds_read_b128 {v(CBf[st]+4*k,4)}, {v(AB)} offset:{512*(7-k) + 64*ii}")
            L.append(f"ds_read2_b32 {v(CA[st]+4*k,2)}, {v(AA+k)} offset0:{16*ii} offset1:{16*ii+1}")
            L.append(f"ds_read2_b32 {v(CA[st]+4*k+2,2)}, {v(AA+k)} offset0:{16*ii+2} offset1:{16*ii+3}")
        return L
    r0 = conv_reads(0)
    first = [r0[1], r0[2]] + [r0[3*k] for k in range(8)] + [x for k in range(1, 8) for x in (r0[3*k+1], r0[3*k+2])]
    for r in first: A(r)
    for ii in range(4):
        nxt = conv_reads(ii + 1) if ii < 3 else []
        st = ii & 1
        k = 0
        for jj in range(8):
            if ii == 0:
                if jj == 0: A("s_waitcnt lgkmcnt(14)")
                elif jj == 1: A("s_waitcnt lgkmcnt(0)")
            elif jj == 0:
                A("s_waitcnt lgkmcnt(0)")
            for cp in range(8 - jj):
                acc = v(CACC + 4*(cp + jj), 4)
                cin = "0" if (ii == 0 and jj == 0) else acc
                A(f"{MF16} {acc}, {v(CA[st]+4*jj,4)}, {v(CBf[st]+4*cp,4)}, {cin}")
                if k < len(nxt) and not (ii == 0 and jj == 0):
                    A(nxt[k]); k += 1
        while k < len(nxt):
            A(nxt[k]); k += 1
    stamp(8)
    A("s_nop 7")
    A(f"s_call_b64 {s(S_LINK,2)}, L_sub_setup")
    A(f"s_and_b32 {s(S_T2)}, {s(S_LI)}, 1")
    A("v_lshlrev_b32 v25, 4, v1")
    A(f"s_lshl_b32 {s(S_T0)}, {s(S_LI)}, 12")
    A(f"v_add_u32 v26, {s(S_T0)}, v25")
    A(f"s_xor_b32 {s(S_T0)}, {s(S_T0)}, 4096")
    A(f"v_add_u32 v27, {s(S_T0)}, v25")
    A(f"s_cmp_lg_u32 {s(S_T2)}, 0")
    A("s_cbranch_scc1 L_l_x1")
    for k in range(4):
        A(f"ds_write_b128 v26, {v(CACC+16+4*k,4)} offset:{LR + 1024*k}")
    A("s_waitcnt lgkmcnt(0)")
    A("s_barrier")
    for k in range(4):
        A(f"ds_read_b128 {v(32+4*k,4)}, v27 offset:{LR + 1024*k}")
    A("s_waitcnt lgkmcnt(0)")
    for r in range(16):
        A(f"v_add_f32 {v(48+r)}, {v(32+r)}, {v(CACC+r)}")
    A("s_branch L_l_x2")
    A("L_l_x1:")
    A("s_nop 7")
    for k in range(4):
        A(f"ds_write_b128 v26, {v(CACC+4*k,4)} offset:{LR + 1024*k}")
    A("s_waitcnt lgkmcnt(0)")
    A("s_barrier")
    for k in range(4):
        A(f"ds_read_b128 {v(32+4*k,4)}, v27 offset:{LR + 1024*k}")
    A("s_waitcnt lgkmcnt(0)")
    for r in range(16):
        A(f"v_add_f32 {v(48+r)}, {v(32+r)}, {v(CACC+16+r)}")
    A("L_l_x2:")
    stamp(9)
    for k in range(4):
        A(f"v_cvt_pk_bf16_f32 {v(32+2*k)}, {v(48+4*k)}, {v(49+4*k)}")
        A(f"v_cvt_pk_bf16_f32 {v(33+2*k)}, {v(50+4*k)}, {v(51+4*k)}")
    A("v_and_b32 v25, 15, v1")
    A("v_lshlrev_b32 v25, 5, v25")
    A("v_bfe_u32 v26, v1, 4, 1")
    A("v_lshl_add_u32 v25, v26, 9, v25")
    A("v_lshrrev_b32 v26, 5, v1")
    A("v_lshl_add_u32 v25, v26, 4, v25")
    A(f"s_lshl_b32 {s(S_T0)}, {s(S_CH)}, 12")
    A(f"s_lshl_b32 {s(S_T1)}, {s(S_T2)}, 11")
    A(f"s_add_u32 {s(S_T0)}, {s(S_T0)}, {s(S_T1)}")
    A(f"s_add_u32 {s(S_T0)}, {s(S_T0)}, {YT}")
    A(f"v_add_u32 v25, {s(S_T0)}, v25")
    A("v_permlane16_swap_b32 v32, v34")
    A("v_permlane16_swap_b32 v33, v35")
    A("v_permlane16_swap_b32 v36, v38")
    A("v_permlane16_swap_b32 v37, v39")
    A(f"global_store_dwordx4 v25, v[32:35], {s(S_WS,2)} {SCS}")
    A(f"global_store_dwordx4 v25, v[36:39], {s(S_WS,2)} offset:1024 {SCS}")
    for n in range(8): wo_dma(n)
    A("L_a2:")
    if opt.get("prio", 1): A("s_setprio 1")
    Q, KF, SA, SB, CN, PP, VF, O = 16, 20, 56, 72, 88, 104, 120, 136
    AK, AV0, AV1, TM, TM2 = PAK, PAV0, PAV1, 155, 156
    TM3 = 169
    VQ3, VF2A, VF2 = 160, PFB2, 165
    A(f"ds_read_b128 {v(Q,4)}, {v(PAQ)} offset:{LQ}")
    order = [8, 0, 7, 6, 5, 4, 3, 2, 1]
    for jj in order:
        A(f"ds_read_b128 {v(KF+4*jj,4)}, {v(AK)} offset:{LK + jj*1024}")
    for r in range(4):
        A(f"global_load_dword {v(VQ3+r)}, {v(PQ3)}, {s(S_BQ,2)} offset:{1024*r} {NT_B}")
    buf = lambda jj: SA if (jj & 1) else SB
    A("s_waitcnt lgkmcnt(7)")
    A(f"{MF} {v(MM8,16)}, {v(KF+32,4)}, {v(Q,4)}, {v(MM8,16)}")
    A(f"{MF} {v(MM0,16)}, {v(KF+0,4)}, {v(Q,4)}, {v(MM0,16)}")
    A("s_waitcnt lgkmcnt(5)")
    A(f"{MF} {v(SA,16)}, {v(KF+28,4)}, {v(Q,4)}, 0")
    A(f"{MF} {v(SB,16)}, {v(KF+24,4)}, {v(Q,4)}, 0")
    A(f"s_cmp_gt_u32 {s(S_J0)}, 0")
    A("s_cbranch_scc1 L_st_nomerge")
    stubs.append(["L_st_nomerge:", "s_nop 15", "s_branch L_a2_nomerge"])
    for r in range(16):
        A(f"v_max_f32 {v(MM8+r)}, {v(MM0+r)}, {v(MM8+r)}")
    A("L_a2_nomerge:")
    A(f"v_max_f32 {v(TM)}, {v(MM8)}, {v(MM8+1)}")
    A(f"v_max_f32 {v(TM3)}, {v(MM8+2)}, {v(MM8+3)}")
    for r in range(4, 16, 2):
        t = TM if (r & 2) == 0 else TM3
        A(f"v_max3_f32 {v(t)}, {v(t)}, {v(MM8+r)}, {v(MM8+r+1)}")
    A("s_waitcnt lgkmcnt(0)")
    for jj in range(7, 0, -1):
        b = buf(jj)
        A(f"s_cmp_gt_u32 {s(S_J0)}, {jj}")
        A("s_cbranch_scc1 L_a2_p1done")
        for r in range(0, 16, 2):
            t = TM if (r & 2) == 0 else TM3
            A(f"v_max3_f32 {v(t)}, {v(t)}, {v(b+r)}, {v(b+r+1)}")
        if jj - 2 >= 1:
            A(f"{MF} {v(b,16)}, {v(KF+4*(jj-2),4)}, {v(Q,4)}, 0")
    A("L_a2_p1done:")
    A(f"v_max_f32 {v(TM)}, {v(TM)}, {v(TM3)}")
    A(f"v_mov_b32 {v(TM2)}, {v(TM)}")
    A(f"v_permlane32_swap_b32 {v(TM)}, {v(TM2)}")
    A(f"v_max_f32 {v(TM)}, {v(TM)}, {v(TM2)}")
    A(f"v_sub_f32 {v(TM2)}, 0, {v(TM)}")
    for r in range(16):
        A(f"v_mov_b32 {v(CN+r)}, {v(TM2)}")
    stamp(10)
    A(f"{MF} {v(SA,16)}, {v(KF+28,4)}, {v(Q,4)}, {v(CN,16)}")
    A(f"{MF} {v(SB,16)}, {v(KF+24,4)}, {v(Q,4)}, {v(CN,16)}")
    def vread(slot, jj, sidx):
        A(f"ds_read_b128 {v(VF+4*slot,4)}, {v(AV0 if sidx == 0 else AV1)} offset:{LV + jj*VTS + sidx*512}")
    vread(0, 8, 0); vread(1, 8, 1); vread(2, 0, 0); vread(3, 0, 1)
    def pub_b2(lab, n):
        A(f"s_waitcnt vmcnt({n})")
        A(f"s_cmp_lt_u32 {s(S_WV)}, 4")
        A(f"s_cbranch_scc1 {lab}")
        publish(F_B2, 157, 158)
        A(f"{lab}:")
    if opt.get("prio", 1): A("s_setprio 0")
    P0, P1 = PP, PP + 8
    for r in range(16):
        A(f"v_add_f32 {v(MM8+r)}, {v(TM2)}, {v(MM8+r)}")
    for r in range(16):
        A(f"v_exp_f32 {v(MM8+r)}, {v(MM8+r)}")
    for i in range(8):
        A(f"v_cvt_pk_bf16_f32 {v(P0+i)}, {v(MM8+2*i)}, {v(MM8+2*i+1)}")
    for i in range(8):
        A(f"v_and_b32 {v(P1+i)}, {v(MMK+i)}, {v(P0+i)}")
    for i in range(8):
        A(f"v_xor_b32 {v(P0+i)}, {v(P1+i)}, {v(P0+i)}")
    A("s_waitcnt lgkmcnt(0)")
    A(f"{MF} {v(O,16)}, {v(VF+0,4)}, {v(P0,4)}, 0")
    A(f"s_cmp_gt_u32 {s(S_J0)}, 0")
    A("s_cbranch_scc1 L_a2_nopv0")
    A(f"{MF} {v(O,16)}, {v(VF+8,4)}, {v(P1,4)}, {v(O,16)}")
    A(f"{MF} {v(O,16)}, {v(VF+12,4)}, {v(P1+4,4)}, {v(O,16)}")
    A("L_a2_nopv0:")
    pb = lambda jj: PP + 8*(jj & 1)
    sl = lambda jj: 2*(jj & 1)
    def pend(jj):
        if jj == 7: return [f"{MF} {v(O,16)}, {v(VF+4,4)}, {v(P0+4,4)}, {v(O,16)}"]
        p = jj + 1
        return [f"{MF} {v(O,16)}, {v(VF+4*sl(p),4)}, {v(pb(p),4)}, {v(O,16)}",
                f"{MF} {v(O,16)}, {v(VF+4*sl(p)+4,4)}, {v(pb(p)+4,4)}, {v(O,16)}"]
    for jj in range(7, 0, -1):
        b = buf(jj)
        A(f"s_cmp_gt_u32 {s(S_J0)}, {jj}")
        A(f"s_cbranch_scc1 L_st_p2_{jj}")
        def stub(jj=jj):
            A(f"L_st_p2_{jj}:")
            A("s_waitcnt lgkmcnt(0)")
            A("s_nop 1")
            for m in pend(jj): A(m)
            if jj >= 5: pub_b2(f"L_st_nopub_{jj}", 0)
            if jj >= 3:
                A(f"s_cmp_lg_u32 {s(S_WV)}, 0")
                A("s_cbranch_scc1 L_a2_p2done")
                flag_load(VF2A, VF2)
            A("s_branch L_a2_p2done")
        stubs.append(stub)
        pm = pend(jj)
        if prof: A(f"s_memtime s[{80+2*(7-jj)}:{81+2*(7-jj)}]")
        if jj == 5: pub_b2("L_a2_nopub", 12)
        for r in range(16):
            A(f"v_exp_f32 {v(b+r)}, {v(b+r)}")
            if r == 1:
                A("s_waitcnt lgkmcnt(0)")
                A(pm[0])
            if r == 7 and len(pm) > 1: A(pm[1])
            if r == 9:
                vread(sl(jj), jj, 0); vread(sl(jj) + 1, jj, 1)
            if jj == 3 and r == 13:
                A(f"s_cmp_lg_u32 {s(S_WV)}, 0")
                A("s_cbranch_scc1 L_a2_nosample")
                flag_load(VF2A, VF2)
                A("L_a2_nosample:")
        for i in range(8):
            A(f"v_cvt_pk_bf16_f32 {v(pb(jj)+i)}, {v(b+2*i)}, {v(b+2*i+1)}")
        if jj - 2 >= 1:
            A(f"{MF} {v(b,16)}, {v(KF+4*(jj-2),4)}, {v(Q,4)}, {v(CN,16)}")
    A("s_waitcnt lgkmcnt(0)")
    for m in pend(0): A(m)
    A("L_a2_p2done:")
    if prof:
        A("s_memtime s[94:95]")
        A("s_waitcnt lgkmcnt(0)")
        for c in range(8): A(f"v_writelane_b32 v255, s{80+2*c}, {54+c}")
    A("s_nop 15")
    A(f"v_rcp_f32 {v(TM)}, {v(O+8)}")
    for r in range(8):
        A(f"v_mul_f32 {v(O+r)}, {v(TM)}, {v(O+r)}")
    for i in range(4):
        A(f"v_cvt_pk_bf16_f32 {v(PP+i)}, {v(O+2*i)}, {v(O+2*i+1)}")
    A(f"global_store_dwordx4 {v(PO)}, {v(PP,4)}, {s(S_WS,2)} {SCS}")
    stamp(11)
    if prof:
        stamp(19)
        A("s_waitcnt vmcnt(1)")
        stamp(20)
    A("s_waitcnt vmcnt(0)")
    publish(F_A2, 157, 158)
    stamp(12)
    flag_load(PFA2, 31)
    A(f"s_cmp_lg_u32 {s(S_WV)}, 0")
    A("s_cbranch_scc1 L_nob2poll")
    check_or_spin(VF2A, VF2, "L_poll_b2")
    A(f"s_lshl_b32 {s(S_T0)}, {s(S_XCD)}, 18")
    A(f"s_lshl_b32 {s(S_T1)}, {s(S_J)}, 7")
    A(f"s_add_u32 {s(S_T0)}, {s(S_T0)}, {s(S_T1)}")
    A(f"s_add_u32 {s(S_T0)}, {s(S_T0)}, {YT}")
    for n in range(8):
        A(f"s_mov_b32 m0, {LYT + n*1024}")
        A(f"s_add_u32 {s(S_T1)}, {s(S_T0)}, {n*8*4096}")
        A(f"buffer_load_dwordx4 {v(PY0 + (n & 1))}, {s(R_WS,4)}, {s(S_T1)} offen sc1 lds")
    A("L_nob2poll:")
    A(f"s_or_b32 {s(S_T0)}, s2, {s(S_WV)}")
    A(f"s_cmp_lg_u32 {s(S_T0)}, 0")
    A("s_cbranch_scc0 L_st_epoch")
    stubs.append("EPOCH")
    A("L_noep:")
    A("s_waitcnt vmcnt(0)")
    check_or_spin(PFA2, 31, "L_poll_a2")
    stamp(13)
    A("s_barrier")
    stamp(14)
    A(f"s_lshl_b32 {s(S_T0)}, {s(S_TB64)}, 16")
    A(f"s_lshl_b32 {s(S_T1)}, {s(S_WV)}, 12")
    A(f"s_add_u32 {s(S_T0)}, {s(S_T0)}, {s(S_T1)}")
    for hh in range(4):
        for ts in range(2):
            A(f"s_add_u32 m0, {s(S_T1)}, {LO + ts*32768 + hh*1024}")
            A(f"s_add_u32 {s(S_T2)}, {s(S_T0)}, {OW + ts*32768 + hh*1024}")
            A(f"buffer_load_dwordx4 {v(PL16)}, {s(R_WS,4)}, {s(S_T2)} offen sc1 lds")
    A(f"ds_read_b64 v[22:23], {v(PYR)}")
    A(f"ds_read_b64 v[24:25], {v(PYR)} offset:128")
    for r in range(4):
        A(f"v_lshlrev_b32 {v(34+2*r)}, 16, {v(VQ3+r)}")
        A(f"v_and_b32 {v(35+2*r)}, 0xffff0000, {v(VQ3+r)}")
    A("s_waitcnt lgkmcnt(0)")
    A("v_lshlrev_b32 v42, 16, v22"); A("v_lshlrev_b32 v43, 16, v24")
    A("v_and_b32 v44, 0xffff0000, v22"); A("v_and_b32 v45, 0xffff0000, v24")
    A("v_lshlrev_b32 v46, 16, v23"); A("v_lshlrev_b32 v47, 16, v25")
    A("v_and_b32 v48, 0xffff0000, v23"); A("v_and_b32 v49, 0xffff0000, v25")
    for r in range(4):
        A(f"v_pk_mul_f32 {v(42+2*r,2)}, {v(42+2*r,2)}, {v(34+2*r,2)}")
    for r in range(4):
        A(f"v_cvt_pk_bf16_f32 {v(50+r)}, {v(42+2*r)}, {v(43+2*r)}")
    A(f"v_add_u32 v21, 0x1000, {v(PB3)}")
    A(f"global_store_dword {v(PB3)}, v50, {s(S_OUT,2)} {BST}")
    A(f"global_store_dword {v(PB3)}, v51, {s(S_OUT,2)} offset:2048 {BST}")
    A(f"global_store_dword v21, v52, {s(S_OUT,2)} {BST}")
    A(f"global_store_dword v21, v53, {s(S_OUT,2)} offset:2048 {BST}")
    A("s_waitcnt vmcnt(4)")
    stamp(15)
    A("s_barrier")
    stamp(16)
    OA = 80
    F3 = [32 + 8*i for i in range(6)]
    def a3reads(hs):
        f = F3[hs % 6]
        A(f"ds_read_b128 {v(f,4)}, {v(PAO)} offset:{hs*1024}")
        A(f"ds_read_b64_tr_b16 {v(f+4,2)}, {v(PAW)} offset:{hs*2048}")
        A(f"ds_read_b64_tr_b16 {v(f+6,2)}, {v(PAW)} offset:{hs*2048 + 1024}")
    DEP = 4
    for hs in range(DEP): a3reads(hs)
    for hs in range(16):
        if hs + DEP < 16:
            a3reads(hs + DEP); A(f"s_waitcnt lgkmcnt({3*DEP})")
        else:
            A(f"s_waitcnt lgkmcnt({3*(15-hs)})")
        f = F3[hs % 6]
        cin = "0" if hs == 0 else v(OA,16)
        A(f"{MF} {v(OA,16)}, {v(f+4,4)}, {v(f,4)}, {cin}")
    for m in range(4):
        A(f"ds_write_b128 {v(PPW[m])}, {v(OA+4*m,4)}")
    A("s_waitcnt lgkmcnt(0)")
    A("s_barrier")
    stamp(17)
    A(f"ds_read_b128 v[32:35], {v(PPR[0])}"); A(f"ds_read_b128 v[40:43], {v(PPR[2])}")
    A(f"ds_read_b128 v[36:39], {v(PPR[1])}"); A(f"ds_read_b128 v[44:47], {v(PPR[3])}")
    A("s_waitcnt lgkmcnt(0)")
    for r in range(8):
        A(f"v_add_f32 {v(32+r)}, {v(32+r)}, {v(40+r)}")
    for i in range(4):
        A(f"v_cvt_pk_bf16_f32 {v(48+i)}, {v(32+2*i)}, {v(33+2*i)}")
    A(f"global_store_dwordx4 {v(POUT)}, v[48:51], {s(S_OUT,2)} {FST}")
    if prof:
        stamp(18)
        A(f"s_lshl_b32 {s(S_T0)}, s2, 3")
        A(f"s_add_u32 {s(S_T0)}, {s(S_T0)}, {s(S_WV)}")
        A(f"s_lshl_b32 {s(S_T0)}, {s(S_T0)}, 8")
        A(f"s_add_u32 {s(S_T0)}, {s(S_T0)}, {PROF}")
        A("v_lshlrev_b32 v16, 2, v1")
        A(f"v_add_u32 v16, {s(S_T0)}, v16")
        A(f"global_store_dword v16, v255, {s(S_WS,2)}")
    A("L_end:")
    A("s_endpgm")
    sub_setup()
    for st in stubs:
        if st == "EPOCH":
            A("L_st_epoch:")
            for q in range(4):
                A(f"v_lshlrev_b32 v157, 7, v1")
                A(f"v_add_u32 v157, {FLG + F_B1 + q*8192}, v157")
                spin(157, 158, f"L_poll_ep{q}")
            A(f"v_mov_b32 v157, {EP}")
            A(f"v_mov_b32 v158, {s(S_NONCE)}")
            A(f"s_mov_b64 {s(S_EX,2)}, exec")
            A("s_mov_b64 exec, 1")
            A(f"global_store_dword v157, v158, {s(S_WS,2)} {SCS}")
            A(f"s_mov_b64 exec, {s(S_EX,2)}")
            A("s_branch L_noep")
        elif callable(st):
            st()
        else:
            for line in st: A(line)
    n = a.fix_hazards()
    return a, n

HEAD = f"""; Fused sliding-window attention block + H3 SSM conv, one persistent launch (generated by gen/gen2.py)
; @launch grid=(256,1,1) block=(512,1,1) lds={LDS_BYTES}
.amdgcn_target "amdgcn-amd-amdhsa--gfx950"
.text
.globl {KN}
.p2align 8
.type {KN},@function
{KN}:
"""
TAIL = f""".section .rodata,"a"
.p2align 6
.amdhsa_kernel {KN}
  .amdhsa_next_free_vgpr 256
  .amdhsa_next_free_sgpr 102
  .amdhsa_accum_offset 256
  .amdhsa_group_segment_fixed_size 0
  .amdhsa_kernarg_size 96
  .amdhsa_user_sgpr_count 2
  .amdhsa_user_sgpr_kernarg_segment_ptr 1
  .amdhsa_system_sgpr_workgroup_id_x 1
.end_amdhsa_kernel
"""
if __name__ == "__main__":
    out = sys.argv[1] if len(sys.argv) > 1 else f"cdna_kernels/{NAME}.s"
    opt = {}
    for x in sys.argv[2:]:
        if "=" in x:
            k, val = x.split("="); opt[k] = int(val)
    a, n = build(prof=("prof" in sys.argv), opt=opt)
    open(out, "w").write(HEAD + a.text() + TAIL)
    print("instructions:", a.count(), "hazard pads:", n)
```

```python
import sys
from asmlib import Asm, v, s

NAME = "concat_heads__sliding_block__ssm_conv_h3__prompt"
KN = NAME + "_kernel"

FLG = 0x0
F_B1, F_A1, F_B2, F_A2 = 0, 32768, 65536, 98304
EP  = 0x20000
KW  = 0x100000
VW  = 0x300000
OW  = 0x500000
UR  = 0x700000
YT  = 0x900000
WS_BYTES = 0xB00000
PROF = 0xC00000

STG = 28672
B2R = 114688
CB  = 12864
T0  = B2R
KVS = 140416
E_OFF, O_OFF, U_OFF = 0, 4164, 8288
LK, LV, LQ = 0, 24576, 49536
KHS, VHS, VTS = 12288, 12480, 1040
LR  = 57728
LO  = 0
LWO = 81920
LS0, LS1 = 65536, 147456
LYT = 65536
CSW = 163808
OKW = 163832
LDS_BYTES = 163840

S_X, S_WQKV, S_WO, S_BQ, S_BK, S_BV, S_SK, S_SSMK = 16, 18, 20, 22, 24, 26, 28, 30
S_SD, S_OUT, S_DBG, S_WS = 32, 34, 36, 38
R_X, R_W, R_BK, R_WS, R_WO = 40, 44, 48, 52, 56
S_NONCE, S_WV, S_J, S_XCD, S_RB, S_HP = 60, 61, 62, 63, 64, 65
S_T0, S_T1, S_T2, S_T3, S_T4, S_T5 = 66, 67, 68, 69, 70, 71
S_LI = 72
S_J0 = 73
S_SPIN = 74
S_OK = 75
S_EX = 76
S_CBASE, S_CH = 78, 79
S_CMP = 80
S_HD, S_TB64 = 96, 97
S_ROT = 75

PAK, PAV0, PAV1, PAQ = 192, 193, 194, 195
PFB2, PFA2, PY0, PY1, PYR, PO, PWO, PAO, PAW, POUT, PL16, PQ3 = 196, 197, 198, 199, 200, 201, 202, 203, 204, 205, 206, 207
PPW = [9, 10, 11, 12]
PPR = [13, 14, 15, 2]
PB3 = 8
S_LINK = 4
S_WOB, S_WOL = 6, 7
SPIN = 200000
NEGBIG = 0xF149F2CA
QSCALE = 0x3EB8AA3B
ONES = 0x3F803F80
STAGE = [0, 1, 2, 3, 0, 1, 2, 3]
MF = "v_mfma_f32_32x32x16_bf16"
MF16 = "v_mfma_f32_16x16x32_bf16"

def build(prof=False, opt=None):
    opt = opt or {}
    NT_B = "nt" if opt.get("nt_b", 1) else ""
    NT_XW = "nt" if opt.get("nt_xw", 0) else ""
    NT_WO = "nt" if opt.get("nt_wo", 0) else ""
    SCP = {0: "sc0 sc1", 1: "sc1"}[opt.get("sc_poll", 1)]
    SCS = {0: "sc0 sc1", 1: "sc1"}[opt.get("sc_store", 1)]
    SLEEP = opt.get("sleep", 0)
    FST = {0: "", 1: "sc0 sc1", 2: "nt", 3: "sc1"}[opt.get("fst", 0)]
    BST = {0: "", 1: "sc0 sc1", 2: "nt", 3: "sc1"}[opt.get("bst", 1)]
    a = Asm()
    A = a
    stubs = []
    def stamp(k):
        if not prof: return
        A("s_memrealtime s[100:101]")
        A("s_memtime s[98:99]")
        A("s_waitcnt lgkmcnt(0)")
        A(f"v_writelane_b32 v255, s100, {k}")
        A(f"v_writelane_b32 v255, s98, {k+32}")
    def srd(dst, base, nbytes):
        A(f"s_mov_b32 {s(dst)}, {s(base)}")
        A(f"s_and_b32 {s(dst+1)}, {s(base+1)}, 0xffff")
        A(f"s_mov_b32 {s(dst+2)}, {nbytes}")
        A(f"s_mov_b32 {s(dst+3)}, 0x00020000")
    def flag_load(vaddr, vtmp):
        A(f"global_load_dword {v(vtmp)}, {v(vaddr)}, {s(S_WS,2)} {SCP}")
    def spin(vaddr, vtmp, label):
        A(f"s_mov_b32 {s(S_SPIN)}, {SPIN}")
        A(f"{label}:")
        flag_load(vaddr, vtmp)
        A("s_waitcnt vmcnt(0)")
        A(f"v_cmp_ne_u32 vcc, {s(S_NONCE)}, {v(vtmp)}")
        A(f"s_cbranch_vccz {label}_done")
        if SLEEP: A(f"s_sleep {SLEEP}")
        A(f"s_sub_u32 {s(S_SPIN)}, {s(S_SPIN)}, 1")
        A(f"s_cmp_lg_u32 {s(S_SPIN)}, 0")
        A(f"s_cbranch_scc1 {label}")
        A(f"{label}_done:")
    def check_or_spin(vaddr, vtmp, label):
        A(f"v_cmp_ne_u32 vcc, {s(S_NONCE)}, {v(vtmp)}")
        A(f"s_cbranch_vccz {label}_done")
        spin(vaddr, vtmp, label)
    def publish(kind, vt0, vt1):
        A(f"s_lshl_b32 {s(S_T0)}, s2, 7")
        A(f"s_lshl_b32 {s(S_T1)}, {s(S_WV)}, 2")
        A(f"s_add_u32 {s(S_T0)}, {s(S_T0)}, {s(S_T1)}")
        A(f"s_add_u32 {s(S_T0)}, {s(S_T0)}, {FLG + kind}")
        A(f"v_mov_b32 {v(vt0)}, {s(S_T0)}")
        A(f"v_mov_b32 {v(vt1)}, {s(S_NONCE)}")
        A(f"s_mov_b64 {s(S_EX,2)}, exec")
        A(f"s_mov_b64 exec, 1")
        A(f"global_store_dword {v(vt0)}, {v(vt1)}, {s(S_WS,2)} {SCS}")
        A(f"s_mov_b64 exec, {s(S_EX,2)}")

    def record(fn):
        n0 = len(a.items)
        fn()
        out = [it.text for k, it in a.items[n0:]]
        assert all(k == "i" for k, it in a.items[n0:])
        del a.items[n0:]
        return out
    MM0, MM8, MMK = 208, 224, 240
    def gen_masks():
        A("v_and_b32 v248, 31, v1")
        A("v_lshrrev_b32 v249, 5, v1")
        A("v_lshlrev_b32 v249, 2, v249")
        A("v_sub_u32 v248, v248, v249")
        A(f"v_mov_b32 v249, {NEGBIG}")
        A("v_mov_b32 v250, 0")
        A("v_mov_b32 v251, 0xffff")
        A("v_mov_b32 v252, 0xffff0000")
        for grp in range(2):
            for q in range(8):
                r = grp*8 + q
                cst = (r & 3) + 8*(r >> 2)
                A(f"v_cmp_le_i32 {s(S_CMP+2*q,2)}, {cst}, v248")
            for q in range(8):
                r = grp*8 + q
                A(f"v_cndmask_b32 {v(MM8+r)}, v249, v250, {s(S_CMP+2*q,2)}")
                A(f"v_cndmask_b32 {v(MM0+r)}, v250, v249, {s(S_CMP+2*q,2)}")
            for q in range(0, 8, 2):
                i = (grp*8 + q) >> 1
                A(f"v_cndmask_b32 v253, v251, v250, {s(S_CMP+2*q,2)}")
                A(f"v_cndmask_b32 v254, v252, v250, {s(S_CMP+2*q+2,2)}")
                A(f"v_or_b32 {v(MMK+i)}, v253, v254")

    def sub_setup():
        A("L_sub_setup:")
        gen_masks()
        A(f"s_lshr_b32 {s(S_HD)}, {s(S_WV)}, 2")
        A(f"s_lshl_b32 {s(S_T0)}, {s(S_RB)}, 2")
        A(f"s_add_u32 {s(S_T0)}, {s(S_T0)}, {s(S_LI)}")
        A(f"s_sub_i32 {s(S_J0)}, 8, {s(S_T0)}")
        A(f"s_max_i32 {s(S_J0)}, {s(S_J0)}, 0")
        A(f"v_lshlrev_b32 {v(PL16)}, 4, v1")
        A(f"s_lshl_b32 {s(S_T0)}, {s(S_HD)}, 12")
        A(f"s_lshl_b32 {s(S_T1)}, {s(S_LI)}, 10")
        A(f"s_add_u32 {s(S_T0)}, {s(S_T0)}, {s(S_T1)}")
        A(f"v_add_u32 {v(PAQ)}, {s(S_T0)}, {v(PL16)}")
        A(f"s_mul_i32 {s(S_T0)}, {s(S_HD)}, {KHS}")
        A(f"s_add_u32 {s(S_T0)}, {s(S_T0)}, {s(S_T1)}")
        A(f"v_add_u32 {v(PAK)}, {s(S_T0)}, {v(PL16)}")
        A(f"s_mul_i32 {s(S_T0)}, {s(S_HD)}, {VHS}")
        A(f"s_mul_i32 {s(S_T1)}, {s(S_LI)}, {VTS}")
        A(f"s_add_u32 {s(S_T0)}, {s(S_T0)}, {s(S_T1)}")
        A("v_and_b32 v248, 15, v1")
        A("v_lshlrev_b32 v248, 4, v248")
        A("v_lshrrev_b32 v249, 5, v1")
        A("v_lshl_add_u32 v248, v249, 8, v248")
        A("v_bfe_u32 v249, v1, 4, 1")
        A("v_cmp_eq_u32 vcc, 1, v249")
        A("v_mov_b32 v249, 1024")
        A("v_mov_b32 v250, 512")
        A(f"v_cndmask_b32 {v(PAV0)}, v248, v249, vcc")
        A(f"v_cndmask_b32 {v(PAV1)}, v248, v250, vcc")
        A(f"v_add_u32 {v(PAV0)}, {s(S_T0)}, {v(PAV0)}")
        A(f"v_add_u32 {v(PAV1)}, {s(S_T0)}, {v(PAV1)}")
        A(f"s_lshl_b32 {s(S_T0)}, {s(S_RB)}, 2")
        A(f"s_add_u32 {s(S_T0)}, {s(S_T0)}, {s(S_LI)}")
        A(f"s_lshl_b32 {s(S_T0)}, {s(S_T0)}, 5")
        A(f"s_lshl_b32 {s(S_T1)}, {s(S_HP)}, 1")
        A(f"s_add_u32 {s(S_T0)}, {s(S_T0)}, {s(S_T1)}")
        A(f"s_add_u32 {s(S_T0)}, {s(S_T0)}, {s(S_HD)}")
        A(f"s_lshl_b32 {s(S_T0)}, {s(S_T0)}, 10")
        A(f"s_add_u32 {s(S_T0)}, {s(S_T0)}, {OW}")
        A(f"v_add_u32 {v(PO)}, {s(S_T0)}, {v(PL16)}")
        A("v_lshrrev_b32 v248, 3, v1")
        A("v_bfe_u32 v249, v248, 1, 1")
        A("v_lshlrev_b32 v249, 2, v249")
        A("v_and_b32 v250, 7, v1")
        A("v_xor_b32 v249, v249, v250")
        A("v_lshlrev_b32 v249, 4, v249")
        A(f"v_lshl_add_u32 {v(PWO)}, v248, 10, v249")
        A(f"s_lshr_b32 {s(S_T0)}, {s(S_J)}, 2")
        A(f"s_lshl_b32 {s(S_T0)}, {s(S_T0)}, 7")
        A(f"s_lshl_b32 {s(S_T1)}, {s(S_WV)}, 16")
        A(f"s_add_u32 {s(S_WOB)}, {s(S_T0)}, {s(S_T1)}")
        A(f"s_lshl_b32 {s(S_WOL)}, {s(S_WV)}, 13")
        srd(R_WO, S_WO, 512*1024)
        A("v_and_b32 v248, 31, v1")
        A("v_lshrrev_b32 v249, 5, v1")
        A(f"s_lshl_b32 {s(S_T0)}, {s(S_WV)}, 1")
        A(f"v_add_u32 v249, {s(S_T0)}, v249")
        A(f"s_lshl_b32 {s(S_T0)}, {s(S_J)}, 6")
        A("v_lshlrev_b32 v250, 2, v249")
        A(f"v_add_u32 v250, {s(S_T0)}, v250")
        A(f"s_lshl_b32 {s(S_T0)}, {s(S_XCD)}, 7")
        A("v_lshlrev_b32 v251, 2, v248")
        A(f"v_add_u32 v251, {s(S_T0)}, v251")
        A(f"v_lshl_add_u32 {v(PQ3)}, v250, 10, v251")
        A(f"v_lshl_add_u32 {v(PB3)}, v250, 11, v251")
        A(f"v_add_u32 {v(PB3)}, 1024, {v(PB3)}")
        A("v_lshrrev_b32 v250, 1, v249")
        A("v_and_b32 v251, 7, v248")
        A("v_xor_b32 v250, v250, v251")
        A("v_lshlrev_b32 v250, 4, v250")
        A("v_and_b32 v251, 1, v249")
        A("v_lshl_add_u32 v250, v251, 3, v250")
        A("v_lshl_add_u32 v250, v248, 8, v250")
        A(f"v_add_u32 {v(PYR)}, {LYT}, v250")
        A("v_lshrrev_b32 v248, 3, v1")
        A("v_and_b32 v249, 7, v1")
        A("v_lshrrev_b32 v250, 1, v248")
        A("v_xor_b32 v249, v249, v250")
        A("v_lshlrev_b32 v248, 12, v248")
        A(f"v_lshl_add_u32 {v(PY0)}, v249, 4, v248")
        A("v_xor_b32 v249, 4, v249")
        A(f"v_lshl_add_u32 {v(PY1)}, v249, 4, v248")
        A(f"v_lshrrev_b32 {v(PFB2)}, 1, v1")
        A(f"v_lshlrev_b32 {v(PFB2)}, 10, {v(PFB2)}")
        A("v_and_b32 v248, 1, v1")
        A(f"v_lshl_add_u32 {v(PFB2)}, v248, 3, {v(PFB2)}")
        A(f"s_lshr_b32 {s(S_T0)}, {s(S_J)}, 4")
        A(f"s_add_u32 {s(S_T0)}, {s(S_T0)}, 4")
        A(f"s_lshl_b32 {s(S_T0)}, {s(S_T0)}, 2")
        A(f"s_lshl_b32 {s(S_T1)}, {s(S_XCD)}, 7")
        A(f"s_add_u32 {s(S_T0)}, {s(S_T0)}, {s(S_T1)}")
        A(f"s_add_u32 {s(S_T0)}, {s(S_T0)}, {FLG + F_B2}")
        A(f"v_add_u32 {v(PFB2)}, {s(S_T0)}, {v(PFB2)}")
        A(f"s_lshl_b32 {s(S_TB64)}, {s(S_XCD)}, 2")
        A(f"s_and_b32 {s(S_T0)}, {s(S_J)}, 3")
        A(f"s_add_u32 {s(S_TB64)}, {s(S_TB64)}, {s(S_T0)}")
        A("v_and_b32 v248, 1, v1")
        A("v_bfe_u32 v249, v1, 1, 2")
        A(f"s_lshl_b32 {s(S_T0)}, {s(S_WV)}, 2")
        A(f"v_add_u32 v249, {s(S_T0)}, v249")
        A(f"s_lshl_b32 {s(S_T0)}, {s(S_TB64)}, 1")
        A(f"v_add_u32 v248, {s(S_T0)}, v248")
        A("v_lshrrev_b32 v250, 2, v248")
        A("v_lshrrev_b32 v251, 1, v249")
        A("v_and_b32 v252, 3, v250")
        A("v_and_b32 v253, 7, v251")
        A("v_lshl_add_u32 v252, v253, 2, v252")
        A("v_lshlrev_b32 v252, 3, v252")
        A("v_lshrrev_b32 v253, 2, v250")
        A("v_lshl_add_u32 v252, v253, 1, v252")
        A("v_lshrrev_b32 v253, 3, v251")
        A("v_add_u32 v252, v252, v253")
        A("v_lshlrev_b32 v252, 7, v252")
        A("v_and_b32 v253, 3, v248")
        A("v_and_b32 v250, 1, v249")
        A("v_lshl_add_u32 v253, v250, 2, v253")
        A("v_lshl_add_u32 v252, v253, 2, v252")
        A(f"v_add_u32 {v(PFA2)}, {FLG + F_A2}, v252")
        A(f"s_and_b32 {s(S_T0)}, {s(S_WV)}, 1")
        A(f"s_lshl_b32 {s(S_T0)}, {s(S_T0)}, 15")
        A(f"s_lshl_b32 {s(S_T2)}, {s(S_HD)}, 14")
        A(f"s_add_u32 {s(S_T0)}, {s(S_T0)}, {s(S_T2)}")
        A(f"v_add_u32 {v(PAO)}, {s(S_T0)}, {v(PL16)}")
        A("v_and_b32 v248, 15, v1")
        A("v_lshrrev_b32 v248, 2, v248")
        A("v_lshrrev_b32 v249, 5, v1")
        A("v_lshl_add_u32 v249, v249, 2, v248")
        A("v_lshlrev_b32 v249, 7, v249")
        A("v_lshrrev_b32 v248, 1, v248")
        A(f"s_bfe_u32 {s(S_T0)}, {s(S_WV)}, 0x10001")
        A(f"v_xor_b32 v248, {s(S_T0)}, v248")
        A("v_lshl_add_u32 v249, v248, 6, v249")
        A("v_bfe_u32 v248, v1, 4, 1")
        A("v_lshl_add_u32 v249, v248, 5, v249")
        A("v_and_b32 v248, 3, v1")
        A("v_lshl_add_u32 v249, v248, 3, v249")
        A(f"s_lshl_b32 {s(S_T2)}, {s(S_HD)}, 15")
        A(f"s_add_u32 {s(S_T2)}, {s(S_T2)}, {LWO}")
        A(f"v_add_u32 {v(PAW)}, {s(S_T2)}, v249")
        A("v_and_b32 v248, 31, v1")
        A("v_lshrrev_b32 v249, 5, v1")
        A(f"s_lshl_b32 {s(S_T0)}, {s(S_T0)}, 3")
        A(f"v_add_u32 v249, {s(S_T0)}, v249")
        A("v_and_b32 v250, 15, v248")
        A("v_xor_b32 v249, v249, v250")
        A("v_lshlrev_b32 v249, 4, v249")
        A(f"s_and_b32 {s(S_T0)}, {s(S_WV)}, 1")
        A(f"s_lshl_b32 {s(S_T0)}, {s(S_T0)}, 13")
        A(f"s_mul_i32 {s(S_T2)}, {s(S_HD)}, {LS1 - LS0}")
        A(f"s_add_u32 {s(S_T0)}, {s(S_T0)}, {s(S_T2)}")
        A(f"s_add_u32 {s(S_T0)}, {s(S_T0)}, {LS0}")
        A("v_lshl_add_u32 v249, v248, 8, v249")
        A(f"v_add_u32 v249, {s(S_T0)}, v249")
        for m in range(4):
            A(f"v_xor_b32 {v(PPW[m])}, {m*32}, v249")
        A("v_lshrrev_b32 v248, 3, v0")
        A("v_and_b32 v249, 7, v0")
        A("v_lshlrev_b32 v250, 1, v249")
        A("v_and_b32 v251, 15, v248")
        A("v_xor_b32 v250, v250, v251")
        A("v_lshlrev_b32 v250, 4, v250")
        A("v_lshl_add_u32 v250, v248, 8, v250")
        A("v_xor_b32 v251, 16, v250")
        A(f"v_add_u32 {v(PPR[0])}, {LS0}, v250"); A(f"v_add_u32 {v(PPR[1])}, {LS0}, v251")
        A(f"v_add_u32 {v(PPR[2])}, {LS1}, v250"); A(f"v_add_u32 {v(PPR[3])}, {LS1}, v251")
        A(f"s_lshl_b32 {s(S_T0)}, {s(S_TB64)}, 17")
        A(f"s_lshr_b32 {s(S_T1)}, {s(S_J)}, 2")
        A(f"s_lshl_b32 {s(S_T1)}, {s(S_T1)}, 7")
        A(f"s_add_u32 {s(S_T0)}, {s(S_T0)}, {s(S_T1)}")
        A("v_lshlrev_b32 v250, 11, v248")
        A("v_lshl_add_u32 v250, v249, 4, v250")
        A(f"v_add_u32 {v(POUT)}, {s(S_T0)}, v250")
        A(f"s_setpc_b64 {s(S_LINK,2)}")
    def wo_dma(n):
        A(f"s_add_u32 m0, {s(S_WOL)}, {LWO + n*1024}")
        A(f"s_add_u32 {s(S_T1)}, {s(S_WOB)}, {n*8192}")
        A(f"buffer_load_dwordx4 {v(PWO)}, {s(R_WO,4)}, {s(S_T1)} offen {NT_WO} lds")

    stamp(0)
    DBG = opt.get("dbg", 0)
    if DBG: A("s_memrealtime s[8:9]")
    A("s_load_dwordx16 s[16:31], s[0:1], 0")
    A("s_load_dwordx8 s[32:39], s[0:1], 64")
    A("s_cmp_ge_u32 s2, 256")
    A("s_cbranch_scc1 L_end")
    A("v_and_b32 v1, 63, v0")
    A("v_lshrrev_b32 v2, 6, v0")
    A(f"s_and_b32 {s(S_XCD)}, s2, 7")
    A(f"s_lshr_b32 {s(S_J)}, s2, 3")
    A(f"v_readfirstlane_b32 {s(S_WV)}, v2")
    A(f"s_lshr_b32 {s(S_T0)}, {s(S_XCD)}, 1")
    A(f"s_lshl_b32 {s(S_T0)}, {s(S_T0)}, 2")
    A(f"s_and_b32 {s(S_T1)}, {s(S_J)}, 3")
    A(f"s_add_u32 {s(S_RB)}, {s(S_T0)}, {s(S_T1)}")
    A(f"s_and_b32 {s(S_T0)}, {s(S_XCD)}, 1")
    A(f"s_lshl_b32 {s(S_T0)}, {s(S_T0)}, 3")
    A(f"s_lshr_b32 {s(S_T1)}, {s(S_J)}, 2")
    A(f"s_add_u32 {s(S_HP)}, {s(S_T0)}, {s(S_T1)}")
    A(f"s_and_b32 {s(S_LI)}, {s(S_WV)}, 3")
    A("v_and_b32 v3, 31, v1")
    A("v_lshrrev_b32 v4, 5, v1")
    A(f"s_cmp_ge_u32 {s(S_WV)}, 4")
    A("s_cbranch_scc1 L_lwave")
    A("v_lshrrev_b32 v5, 3, v1")
    A("v_and_b32 v6, 7, v1")
    A("v_lshlrev_b32 v6, 4, v6")
    A(f"s_lshl_b32 {s(S_T0)}, {s(S_J)}, 6")
    A(f"s_lshl_b32 {s(S_T1)}, {s(S_WV)}, 4")
    A(f"s_add_u32 {s(S_T0)}, {s(S_T0)}, {s(S_T1)}")
    A(f"v_add_u32 v5, {s(S_T0)}, v5")
    A("v_lshlrev_b32 v5, 10, v5")
    A(f"s_lshl_b32 {s(S_T1)}, {s(S_XCD)}, 7")
    A(f"v_add3_u32 v7, v5, v6, {s(S_T1)}")
    A("v_add_u32 v8, 0xffffe000, v7")
    A("v_add_u32 v9, 0x2000, v7")
    A(f"s_mul_i32 {s(S_T4)}, {s(S_WV)}, 5120")
    A(f"s_add_u32 {s(S_T4)}, {s(S_T4)}, {KVS}")
    A(f"s_lshl_b32 {s(S_T0)}, {s(S_XCD)}, 9")
    A("v_lshlrev_b32 v11, 4, v3")
    A(f"v_add_u32 v11, {s(S_T0)}, v11")
    A("s_waitcnt lgkmcnt(0)")
    stamp(1)
    srd(R_BK, S_BK, 2048*1024)
    srd(R_X, S_BV, 2048*1024)
    A(f"s_load_dword {s(S_NONCE)}, {s(S_WS,2)}, {EP}")
    for n, vr in enumerate((8, 7, 9)):
        A(f"s_add_u32 m0, {s(S_T4)}, {n*1024}")
        A(f"buffer_load_dwordx4 {v(vr)}, {s(R_BK,4)}, 0 offen {NT_B} lds")
    for n, vr in enumerate((7, 9)):
        A(f"s_add_u32 m0, {s(S_T4)}, {3072 + n*1024}")
        A(f"buffer_load_dwordx4 {v(vr)}, {s(R_X,4)}, 0 offen {NT_B} lds")
    A(f"global_load_dwordx4 v[36:39], v11, {s(S_SK,2)}")
    XA, XB, WA, WB, WC = 144, 148, 152, 153, 154
    A(f"s_lshl_b32 {s(S_T0)}, {s(S_LI)}, 5")
    A(f"v_add_u32 v110, {s(S_T0)}, v3")
    A("v_lshrrev_b32 v111, 1, v110")
    A("v_and_b32 v111, 7, v111")
    A("v_xor_b32 v111, v111, v4")
    A("v_lshlrev_b32 v111, 4, v111")
    A("v_lshl_add_u32 v111, v110, 7, v111")
    for st in range(4):
        A(f"v_xor_b32 {v(XA+st)}, {st*32}, v111")
        A(f"v_add_u32 {v(XB+st)}, {2*STG}, {v(XA+st)}")
    A("v_and_b32 v110, 15, v1")
    A("v_lshrrev_b32 v110, 2, v110")
    A("v_lshl_add_u32 v110, v4, 3, v110")
    A("v_lshlrev_b32 v110, 6, v110")
    A("v_bfe_u32 v111, v1, 4, 1")
    A("v_lshl_add_u32 v110, v111, 5, v110")
    A("v_and_b32 v111, 3, v1")
    A("v_lshl_add_u32 v110, v111, 3, v110")
    A(f"v_add_u32 {v(WA)}, 16384, v110")
    A(f"v_add_u32 {v(WB)}, {2*STG}, {v(WA)}")
    A(f"v_add_u32 {v(WC)}, {4*STG}, {v(WA)}")
    ACC = 64
    FR = [160, 176, 128]
    def reads(n):
        c, st = n >> 2, n & 3
        stage = STAGE[c]
        xa = (XA if stage < 2 else XB) + st
        wa = WA if stage < 2 else WB if stage < 4 else WC
        so = (stage & 1) * STG
        xo = so if stage < 4 else 2*STG
        f = FR[n % 3]
        L = [f"ds_read_b128 {v(f,4)}, {v(xa)} offset:{xo}"]
        for p in range(3):
            L.append(f"ds_read_b64_tr_b16 {v(f+4+4*p,2)}, {v(wa)} offset:{so + p*4096 + st*1024}")
            L.append(f"ds_read_b64_tr_b16 {v(f+6+4*p,2)}, {v(wa)} offset:{so + p*4096 + st*1024 + 256}")
        return L
    def mfma(n, p):
        f = FR[n % 3]
        acc = v(ACC + 16*p, 16)
        cin = "0" if n == 0 else acc
        if p < 2: return f"{MF} {acc}, {v(f+4+4*p,4)}, {v(f,4)}, {cin}"
        else:     return f"{MF} {acc}, {v(f,4)}, {v(f+4+4*p,4)}, {cin}"
    def epi_addr():
        A("v_lshlrev_b32 v192, 4, v1")
        A(f"s_lshl_b32 {s(S_T0)}, {s(S_HP)}, 7")
        A(f"s_lshl_b32 {s(S_T1)}, {s(S_RB)}, 2")
        A(f"s_add_u32 {s(S_T0)}, {s(S_T0)}, {s(S_T1)}")
        A(f"s_add_u32 {s(S_T0)}, {s(S_T0)}, {s(S_LI)}")
        A(f"s_lshl_b32 {s(S_T0)}, {s(S_T0)}, 10")
        A(f"s_add_u32 {s(S_T1)}, {s(S_T0)}, {KW}")
        A(f"v_add_u32 v197, {s(S_T1)}, v192")
        A("v_add_u32 v198, 0x10000, v197")
        A("v_and_b32 v194, 15, v1")
        A("v_lshlrev_b32 v194, 4, v194")
        A("v_lshl_add_u32 v194, v4, 8, v194")
        A("v_bfe_u32 v195, v1, 4, 1")
        A(f"s_add_u32 {s(S_T1)}, {s(S_T0)}, {VW}")
        A("v_lshlrev_b32 v199, 16, v195")
        A(f"v_add3_u32 v199, v199, v194, {s(S_T1)}")
        A(f"s_lshl_b32 {s(S_T0)}, {s(S_LI)}, 10")
        A(f"v_add_u32 v193, {s(S_T0)}, v192")
        A(f"s_mul_i32 {s(S_T0)}, {s(S_LI)}, {VTS}")
        A(f"v_mov_b32 v196, {VHS}")
        A("v_mul_u32_u24 v196, v196, v195")
        A(f"v_add3_u32 v196, v196, v194, {s(S_T0)}")
    def halo_addr():
        srd(R_WS, S_WS, WS_BYTES)
        A(f"s_sub_u32 {s(S_T2)}, {s(S_RB)}, 1")
        A(f"s_sub_u32 {s(S_T3)}, {s(S_RB)}, 2")
        A(f"s_max_i32 {s(S_T3)}, {s(S_T3)}, 0")
        A(f"s_max_i32 {s(S_T2)}, {s(S_T2)}, 0")
        A("v_and_b32 v158, 1, v1")
        A("v_cmp_eq_u32 vcc, 1, v158")
        A(f"v_mov_b32 v158, {s(S_T2)}")
        A(f"v_mov_b32 v157, {s(S_T3)}")
        A("v_cndmask_b32 v158, v158, v157, vcc")
        A(f"s_and_b32 {s(S_T0)}, {s(S_HP)}, 7")
        A(f"s_lshl_b32 {s(S_T0)}, {s(S_T0)}, 5")
        A(f"s_lshr_b32 {s(S_T1)}, {s(S_HP)}, 3")
        A(f"s_add_u32 {s(S_T0)}, {s(S_T0)}, {s(S_T1)}")
        A("v_and_b32 v157, 3, v158")
        A("v_lshlrev_b32 v157, 3, v157")
        A("v_lshrrev_b32 v158, 2, v158")
        A("v_lshl_add_u32 v157, v158, 1, v157")
        A(f"v_add_u32 v157, {s(S_T0)}, v157")
        A("v_lshlrev_b32 v157, 7, v157")
        A(f"s_lshl_b32 {s(S_T0)}, {s(S_LI)}, 2")
        A(f"s_add_u32 {s(S_T0)}, {s(S_T0)}, {FLG + F_A1}")
        A(f"v_add_u32 v157, {s(S_T0)}, v157")
    A("v_lshlrev_b32 v5, 10, v4")
    A("v_lshl_add_u32 v5, v3, 2, v5")
    A(f"v_add_u32 v5, {s(S_T4)}, v5")
    A(f"s_lshl_b32 {s(S_T0)}, {s(S_WV)}, 1")
    A(f"v_add_u32 v6, {s(S_T0)}, v4")
    A("v_sub_u32 v112, 7, v6")
    A("v_and_b32 v113, 7, v3")
    A("v_xor_b32 v112, v112, v113")
    A("v_lshlrev_b32 v112, 4, v112")
    A("v_lshl_add_u32 v112, v3, 8, v112")
    A(f"v_add_u32 v112, {T0}, v112")
    A("v_lshrrev_b32 v114, 3, v1")
    A(f"s_lshl_b32 {s(S_T0)}, {s(S_LI)}, 4")
    A(f"v_add_u32 v114, {s(S_T0)}, v114")
    A("v_and_b32 v115, 7, v1")
    A("v_lshrrev_b32 v116, 1, v114")
    A("v_and_b32 v116, 7, v116")
    A("v_xor_b32 v116, v116, v115")
    A("v_lshlrev_b32 v117, 7, v114")
    A("v_lshl_add_u32 v118, v116, 4, v117")
    A("v_xor_b32 v116, 4, v116")
    A("v_lshl_add_u32 v119, v116, 4, v117")
    A(f"v_add_u32 v118, {T0}, v118")
    A(f"v_add_u32 v119, {T0 + 1024}, v119")
    A(f"s_lshl_b32 {s(S_T0)}, {s(S_XCD)}, 18")
    A(f"s_lshl_b32 {s(S_T1)}, {s(S_J)}, 7")
    A(f"s_sub_u32 {s(S_T0)}, {s(S_T0)}, {s(S_T1)}")
    A(f"s_add_u32 {s(S_T0)}, {s(S_T0)}, {UR + 1984*2}")
    A("v_lshlrev_b32 v120, 12, v114")
    A("v_lshl_add_u32 v120, v115, 4, v120")
    A(f"v_add_u32 v120, {s(S_T0)}, v120")
    A("v_add_u32 v121, 0x8000, v120")
    epi_addr(); halo_addr()
    A("s_waitcnt vmcnt(0) lgkmcnt(0)")
    stamp(2)
    for r in range(11):
        A(f"ds_read_b32 {v(16+r)}, v5 offset:{(5+r)*128}")
    for r in range(8):
        A(f"ds_read_b32 {v(28+r)}, v5 offset:{3072 + r*128}")
    A("v_lshlrev_b32 v78, 16, v36"); A("v_lshlrev_b32 v79, 16, v38")
    A("v_and_b32 v80, 0xffff0000, v36"); A("v_and_b32 v81, 0xffff0000, v38")
    A("v_lshlrev_b32 v82, 16, v37"); A("v_lshlrev_b32 v83, 16, v39")
    A("v_and_b32 v84, 0xffff0000, v37"); A("v_and_b32 v85, 0xffff0000, v39")
    A(f"s_add_u32 {s(S_NONCE)}, {s(S_NONCE)}, 1")
    A("s_waitcnt lgkmcnt(8)")
    for r in range(11):
        A(f"v_lshlrev_b32 {v(40+2*r)}, 16, {v(16+r)}")
        A(f"v_and_b32 {v(41+2*r)}, 0xffff0000, {v(16+r)}")
    for tau in range(8):
        A(f"v_pk_mul_f32 {v(86+2*tau,2)}, {v(40+2*(tau+3),2)}, {v(78,2)}")
    for jj in range(1, 4):
        for tau in range(8):
            d = 86 + 2*tau
            A(f"v_pk_fma_f32 {v(d,2)}, {v(40+2*(tau+3-jj),2)}, {v(78+2*jj,2)}, {v(d,2)}")
    A("s_waitcnt lgkmcnt(0)")
    for r in range(8):
        A(f"v_lshlrev_b32 {v(62+2*r)}, 16, {v(28+r)}")
        A(f"v_and_b32 {v(63+2*r)}, 0xffff0000, {v(28+r)}")
    for tau in range(8):
        d = 86 + 2*tau
        A(f"v_pk_mul_f32 {v(d,2)}, {v(d,2)}, {v(62+2*tau,2)}")
    for e in range(4):
        A(f"v_cvt_pk_bf16_f32 {v(104+e)}, {v(86+2*(7-2*e))}, {v(86+2*(6-2*e))}")
        A(f"v_cvt_pk_bf16_f32 {v(108+e)}, {v(87+2*(7-2*e))}, {v(87+2*(6-2*e))}")
    A("ds_write_b128 v112, v[104:107]")
    A("ds_write_b128 v112, v[108:111] offset:128")
    A(f"s_lshl_b32 {s(S_T0)}, {s(S_LI)}, 2")
    A(f"s_add_u32 {s(S_T0)}, {s(S_T0)}, {CSW}")
    A(f"v_mov_b32 v155, {s(S_T0)}")
    A("v_mov_b32 v156, 0")
    A("ds_write_b32 v155, v156")
    A("s_waitcnt lgkmcnt(0)")
    stamp(3)
    A("s_barrier")
    stamp(4)
    A("ds_read_b128 v[24:27], v118")
    A("ds_read_b128 v[28:31], v119")
    for t in reads(0): A(t)
    A("s_waitcnt lgkmcnt(7)")
    A(f"global_store_dwordx4 v120, v[24:27], {s(S_WS,2)} {SCS}")
    A(f"global_store_dwordx4 v121, v[28:31], {s(S_WS,2)} {SCS}")
    for t in reads(1): A(t)
    for n in range(32):
        if (n & 3) == 2 and n + 2 < 32:
            A("s_waitcnt lgkmcnt(0)")
            if n == 6:
                A("s_waitcnt vmcnt(0)")
                publish(F_B1, 16, 17)
            if prof and n <= 22: A(f"s_memtime s[{4+2*(n>>2)}:{5+2*(n>>2)}]")
            A("s_barrier")
        elif n + 1 < 32:
            A("s_waitcnt lgkmcnt(7)")
        else:
            A("s_waitcnt lgkmcnt(0)")
            A(f"v_mov_b32 v156, {s(S_NONCE)}")
            A("ds_write_b32 v155, v156")
        R = reads(n + 2) if n + 2 < 32 else []
        A(mfma(n, 0))
        for t in R[0:3]: A(t)
        A(mfma(n, 1))
        for t in R[3:5]: A(t)
        A(mfma(n, 2))
        for t in R[5:7]: A(t)
    if prof:
        A("s_waitcnt lgkmcnt(0)")
        for c in range(6): A(f"v_writelane_b32 v255, s{4+2*c}, {22+c}")
    stamp(5)
    PK = 112
    for i in range(8):
        A(f"v_cvt_pk_bf16_f32 {v(PK+8+i)}, {v(ACC+16+2*i)}, {v(ACC+17+2*i)}")
    A(f"global_store_dwordx4 v197, {v(PK+8,4)}, {s(S_WS,2)} {SCS}")
    A(f"global_store_dwordx4 v198, {v(PK+12,4)}, {s(S_WS,2)} {SCS}")
    for i in range(8):
        A(f"v_cvt_pk_bf16_f32 {v(PK+16+i)}, {v(ACC+32+2*i)}, {v(ACC+33+2*i)}")
    A(f"global_store_dwordx4 v199, {v(PK+16,4)}, {s(S_WS,2)} {SCS}")
    A(f"global_store_dwordx4 v199, {v(PK+20,4)}, {s(S_WS,2)} offset:512 {SCS}")
    A(f"s_mov_b32 {s(S_T0)}, {QSCALE}")
    for r in range(16):
        A(f"v_mul_f32 {v(ACC+r)}, {s(S_T0)}, {v(ACC+r)}")
    for i in range(8):
        A(f"v_cvt_pk_bf16_f32 {v(PK+i)}, {v(ACC+2*i)}, {v(ACC+2*i+1)}")
    A(f"ds_write_b128 v193, {v(PK+8,4)} offset:{LK + 8*1024}")
    A(f"ds_write_b128 v193, {v(PK+12,4)} offset:{LK + KHS + 8*1024}")
    A(f"ds_write_b128 v196, {v(PK+16,4)} offset:{LV + 8*VTS}")
    A(f"ds_write_b128 v196, {v(PK+20,4)} offset:{LV + 8*VTS + 512}")
    A(f"ds_write_b128 v193, {v(PK,4)} offset:{LQ}")
    A(f"ds_write_b128 v193, {v(PK+4,4)} offset:{LQ+4096}")
    A(f"s_cmp_lg_u32 {s(S_LI)}, 0")
    A("s_cbranch_scc1 L_c_nopad")
    A(f"v_mov_b32 v24, {ONES}"); A("v_mov_b32 v25, v24"); A("v_mov_b32 v26, v24"); A("v_mov_b32 v27, v24")
    A(f"v_mul_u32_u24 v28, {VTS}, v1")
    A("v_cmp_gt_u32 vcc, 24, v1")
    A(f"s_and_saveexec_b64 {s(S_EX,2)}, vcc")
    A(f"ds_write_b128 v28, v[24:27] offset:{LV + 1024}")
    A(f"s_mov_b64 exec, {s(S_EX,2)}")
    A("L_c_nopad:")
    A("s_waitcnt vmcnt(0)")
    publish(F_A1, 16, 17)
    stamp(6)
    A(f"s_cmp_eq_u32 {s(S_RB)}, 0")
    A("s_cbranch_scc1 L_c_nosample")
    flag_load(157, 158)
    A("L_c_nosample:")
    A(f"v_mov_b32 v16, {CSW}")
    A(f"s_mov_b32 {s(S_SPIN)}, {SPIN*8}")
    A("L_c_sync:")
    A("ds_read_b128 v[20:23], v16")
    A("s_waitcnt lgkmcnt(0)")
    A(f"v_cmp_ne_u32 vcc, {s(S_NONCE)}, v20")
    A(f"v_cmp_ne_u32 {s(S_CMP,2)}, {s(S_NONCE)}, v21")
    A(f"v_cmp_ne_u32 {s(S_CMP+2,2)}, {s(S_NONCE)}, v22")
    A(f"v_cmp_ne_u32 {s(S_CMP+4,2)}, {s(S_NONCE)}, v23")
    A(f"s_or_b64 vcc, vcc, {s(S_CMP,2)}")
    A(f"s_or_b64 vcc, vcc, {s(S_CMP+2,2)}")
    A(f"s_or_b64 vcc, vcc, {s(S_CMP+4,2)}")
    A("s_cbranch_vccz L_c_synced")
    A(f"s_sub_u32 {s(S_SPIN)}, {s(S_SPIN)}, 1")
    A(f"s_cmp_lg_u32 {s(S_SPIN)}, 0")
    A("s_cbranch_scc1 L_c_sync")
    A("L_c_synced:")
    A(f"s_mov_b32 {s(S_T4)}, {s(S_T2)}")
    A(f"s_mov_b32 {s(S_T5)}, {s(S_T3)}")
    A(f"s_call_b64 {s(S_LINK,2)}, L_sub_setup")
    A(f"s_mov_b32 {s(S_T2)}, {s(S_T4)}")
    A(f"s_mov_b32 {s(S_T3)}, {s(S_T5)}")
    A(f"s_cmp_eq_u32 {s(S_RB)}, 0")
    A("s_cbranch_scc1 L_c_halo_done")
    A("s_waitcnt vmcnt(0)")
    check_or_spin(157, 158, "L_poll_h")
    stamp(7)
    A("v_lshlrev_b32 v18, 4, v1")
    A(f"s_lshl_b32 {s(S_T4)}, {s(S_LI)}, 10")
    A(f"s_mul_i32 {s(S_T5)}, {s(S_LI)}, {VTS}")
    def halo(rbreg, toff):
        A(f"s_lshl_b32 {s(S_T0)}, {s(S_HP)}, 7")
        A(f"s_lshl_b32 {s(S_T1)}, {s(rbreg)}, 2")
        A(f"s_add_u32 {s(S_T0)}, {s(S_T0)}, {s(S_T1)}")
        A(f"s_add_u32 {s(S_T0)}, {s(S_T0)}, {s(S_LI)}")
        A(f"s_lshl_b32 {s(S_T0)}, {s(S_T0)}, 10")
        for hd in range(2):
            A(f"s_add_u32 m0, {s(S_T4)}, {LK + hd*KHS + toff*1024}")
            A(f"s_add_u32 {s(S_T1)}, {s(S_T0)}, {KW + hd*65536}")
            A(f"buffer_load_dwordx4 v18, {s(R_WS,4)}, {s(S_T1)} offen sc1 lds")
            A(f"s_add_u32 m0, {s(S_T5)}, {LV + hd*VHS + toff*VTS}")
            A(f"s_add_u32 {s(S_T1)}, {s(S_T0)}, {VW + hd*65536}")
            A(f"buffer_load_dwordx4 v18, {s(R_WS,4)}, {s(S_T1)} offen sc1 lds")
    halo(S_T2, 4)
    A(f"s_cmp_eq_u32 {s(S_RB)}, 1")
    A("s_cbranch_scc1 L_c_halo_done")
    halo(S_T3, 0)
    A("L_c_halo_done:")
    for n in range(8): wo_dma(n)
    A("s_waitcnt vmcnt(8) lgkmcnt(0)")
    stamp(8)
    A("s_barrier")
    stamp(9)
    A("s_branch L_a2")

    A("L_lwave:")
    A("v_lshrrev_b32 v220, 3, v1")
    A(f"s_lshl_b32 {s(S_T0)}, {s(S_RB)}, 7")
    A(f"s_lshl_b32 {s(S_T1)}, {s(S_LI)}, 5")
    A(f"s_add_u32 {s(S_T0)}, {s(S_T0)}, {s(S_T1)}")
    A(f"v_add_u32 v220, {s(S_T0)}, v220")
    A("v_lshlrev_b32 v220, 10, v220")
    A("v_and_b32 v221, 7, v1")
    A("v_lshrrev_b32 v222, 4, v1")
    A("v_xor_b32 v223, v221, v222")
    A("v_lshl_add_u32 v200, v223, 4, v220")
    A("v_xor_b32 v223, 4, v223")
    A("v_lshl_add_u32 v201, v223, 4, v220")
    A("v_lshrrev_b32 v220, 2, v1")
    A(f"s_lshl_b32 {s(S_T0)}, {s(S_LI)}, 4")
    A(f"v_add_u32 v220, {s(S_T0)}, v220")
    A(f"v_mul_u32_u24 v220, 3072, v220")
    A("v_and_b32 v221, 3, v1")
    A("v_lshlrev_b32 v221, 4, v221")
    A(f"s_lshl_b32 {s(S_T0)}, {s(S_HP)}, 6")
    A(f"v_add3_u32 v202, v220, v221, {s(S_T0)}")
    S_LX, S_LW = S_T4, S_T5
    A(f"s_lshl_b32 {s(S_LX)}, {s(S_LI)}, 12")
    A(f"s_lshl_b32 {s(S_LW)}, {s(S_LI)}, 10")
    A(f"s_lshl_b32 {s(S_CH)}, {s(S_XCD)}, 6")
    A(f"s_lshl_b32 {s(S_T1)}, {s(S_J)}, 1")
    A(f"s_add_u32 {s(S_CH)}, {s(S_CH)}, {s(S_T1)}")
    A(f"s_lshr_b32 {s(S_T1)}, {s(S_LI)}, 1")
    A(f"s_add_u32 {s(S_CH)}, {s(S_CH)}, {s(S_T1)}")
    A(f"s_mul_i32 {s(S_CBASE)}, {s(S_T1)}, {CB}")
    A(f"s_add_u32 {s(S_CBASE)}, {s(S_CBASE)}, {B2R}")
    A(f"s_and_b32 {s(S_T2)}, {s(S_LI)}, 1")
    A(f"s_lshl_b32 {s(S_T1)}, {s(S_CH)}, 12")
    A(f"s_lshl_b32 {s(S_T3)}, {s(S_T2)}, 11")
    A(f"s_add_u32 {s(S_T1)}, {s(S_T1)}, {s(S_T3)}")
    A("v_lshlrev_b32 v203, 4, v1")
    A(f"v_add_u32 v203, {s(S_T1)}, v203")
    A(f"s_lshl_b32 {s(S_T1)}, {s(S_CH)}, 1")
    A(f"s_and_b32 {s(S_T1)}, {s(S_T1)}, 0xfffffffc")
    A(f"v_mov_b32 v219, {s(S_T1)}")
    A("s_waitcnt lgkmcnt(0)")
    stamp(1)
    srd(R_X, S_X, 2048*1024)
    srd(R_W, S_WQKV, 512*3072)
    A(f"s_load_dword {s(S_NONCE)}, {s(S_WS,2)}, {EP}")
    if opt.get("rot", 1):
        A(f"s_and_b32 {s(S_T0)}, {s(S_RB)}, 3")
        A(f"s_lshl_b32 {s(S_T0)}, {s(S_T0)}, 1")
        A(f"s_add_u32 {s(S_ROT)}, {s(S_HP)}, {s(S_T0)}")
    else:
        A(f"s_mov_b32 {s(S_ROT)}, 0")
    def dma_chunk(c):
        st = STAGE[c] * STG
        A(f"s_add_u32 {s(S_T1)}, {s(S_ROT)}, {c}")
        A(f"s_and_b32 {s(S_T1)}, {s(S_T1)}, 7")
        A(f"s_mul_i32 {s(S_T2)}, {s(S_T1)}, {64*3072}")
        A(f"s_lshl_b32 {s(S_T1)}, {s(S_T1)}, 7")
        for n in range(4):
            A(f"s_add_u32 m0, {s(S_LX)}, {st + n*1024}")
            A(f"s_add_u32 {s(S_T0)}, {s(S_T1)}, {n*8192}")
            A(f"buffer_load_dwordx4 {v(200 + (n & 1))}, {s(R_X,4)}, {s(S_T0)} offen {NT_XW} lds")
        for p in range(3):
            A(f"s_add_u32 m0, {s(S_LW)}, {st + 16384 + p*4096}")
            A(f"s_add_u32 {s(S_T0)}, {s(S_T2)}, {p*1024}")
            A(f"buffer_load_dwordx4 v202, {s(R_W,4)}, {s(S_T0)} offen {NT_XW} lds")
    DIST = opt.get('dist', 3)
    for c in range(DIST): dma_chunk(c)
    def h_loads():
        srd(R_WO, S_SSMK, 512*4096)
        A(f"buffer_load_dwordx4 v[204:207], v203, {s(R_WO,4)}, 0 offen {NT_B}")
        A(f"buffer_load_dword v208, v203, {s(R_WO,4)}, 0 offen offset:16 {NT_B}")
        A(f"buffer_load_dwordx4 v[212:215], v203, {s(R_WO,4)}, 0 offen offset:1024 {NT_B}")
        A(f"buffer_load_dword v216, v203, {s(R_WO,4)}, 0 offen offset:1040 {NT_B}")
        A(f"global_load_dword v217, v219, {s(S_SD,2)}")
    stamp(2)
    AA, AB = 16, 24
    CA = [32, 64]
    CBf = [96, 128]
    CACC = 160
    def build_eo():
        A(f"s_and_b32 {s(S_T2)}, {s(S_LI)}, 1")
        A(f"s_lshr_b32 {s(S_T0)}, {s(S_LI)}, 1")
        A(f"s_lshl_b32 {s(S_T0)}, {s(S_T0)}, 4")
        A(f"v_lshrrev_b32 v217, {s(S_T0)}, v217")
        A("v_lshlrev_b32 v217, 16, v217")
        A("v_lshlrev_b32 v218, 16, v204")
        A("v_add_f32 v218, v217, v218")
        A("v_cvt_pk_bf16_f32 v218, v218, v218")
        A("v_and_b32 v218, 0xffff, v218")
        A("v_and_b32 v219, 0xffff0000, v204")
        A("v_or_b32 v219, v219, v218")
        A(f"v_mov_b32 v220, {s(S_T2)}")
        A("v_or_b32 v220, v220, v1")
        A("v_cmp_eq_u32 vcc, 0, v220")
        A("v_cndmask_b32 v204, v204, v219, vcc")
        for k in range(4):
            nxt = 205 + k if k < 3 else 208
            A(f"v_alignbit_b32 {v(228+k)}, {v(nxt)}, {v(204+k)}, 16")
        for k in range(4):
            nxt = 213 + k if k < 3 else 216
            A(f"v_alignbit_b32 {v(232+k)}, {v(nxt)}, {v(212+k)}, 16")
        A(f"s_lshl_b32 {s(S_T0)}, {s(S_T2)}, 11")
        A(f"s_add_u32 {s(S_T0)}, {s(S_T0)}, {s(S_CBASE)}")
        A("v_lshlrev_b32 v221, 4, v1")
        A(f"v_add_u32 v221, {s(S_T0)}, v221")
        A(f"ds_write_b128 v221, v[228:231] offset:{E_OFF + 32}")
        A(f"ds_write_b128 v221, v[232:235] offset:{E_OFF + 32 + 1024}")
        A(f"ds_write_b128 v221, v[204:207] offset:{O_OFF + 28}")
        A(f"ds_write_b128 v221, v[212:215] offset:{O_OFF + 28 + 1024}")
        A(f"s_cmp_lg_u32 {s(S_T2)}, 0")
        A("s_cbranch_scc1 L_l_nopad")
        A("v_mov_b32 v222, 0")
        A("v_readfirstlane_b32 %s, v218" % s(S_T0))
        A(f"s_lshl_b32 {s(S_T0)}, {s(S_T0)}, 16")
        A("v_lshlrev_b32 v223, 2, v1")
        A(f"v_add_u32 v223, {s(S_CBASE)}, v223")
        A(f"v_mov_b32 v236, {s(S_T0)}")
        A("v_cmp_eq_u32 vcc, 7, v1")
        A("v_cndmask_b32 v236, v222, v236, vcc")
        A("v_cmp_gt_u32 vcc, 8, v1")
        A(f"s_and_saveexec_b64 {s(S_EX,2)}, vcc")
        A(f"ds_write_b32 v223, v236 offset:{E_OFF}")
        A(f"s_mov_b64 exec, {s(S_EX,2)}")
        A("v_cmp_gt_u32 vcc, 7, v1")
        A(f"s_and_saveexec_b64 {s(S_EX,2)}, vcc")
        A(f"ds_write_b32 v223, v222 offset:{O_OFF}")
        A(f"s_mov_b64 exec, {s(S_EX,2)}")
        A("v_mov_b32 v237, 0")
        A("v_lshlrev_b32 v223, 3, v1")
        A(f"v_add_u32 v223, {s(S_CBASE)}, v223")
        A("v_mov_b32 v236, 0")
        A("v_cmp_gt_u32 vcc, 60, v1")
        A(f"s_and_saveexec_b64 {s(S_EX,2)}, vcc")
        A(f"ds_write_b64 v223, v[236:237] offset:{U_OFF + 4096}")
        A(f"s_mov_b64 exec, {s(S_EX,2)}")
        A("L_l_nopad:")
        A("s_waitcnt lgkmcnt(0)")
    def conv_addr():
        A("v_and_b32 v25, 15, v1")
        A("v_lshrrev_b32 v26, 4, v1")
        A("v_lshrrev_b32 v27, 1, v25")
        A("v_lshl_add_u32 v27, v26, 2, v27")
        A("v_lshlrev_b32 v27, 2, v27")
        A("v_and_b32 v28, 1, v25")
        A(f"v_mul_u32_u24 v28, {O_OFF}, v28")
        A(f"s_and_b32 {s(S_T2)}, {s(S_LI)}, 1")
        A(f"s_lshl_b32 {s(S_T0)}, {s(S_T2)}, 8")
        A(f"s_add_u32 {s(S_T0)}, {s(S_T0)}, {s(S_CBASE)}")
        A(f"v_add3_u32 {v(AA)}, v27, v28, {s(S_T0)}")
        for jj in range(1, 8):
            A(f"v_add_u32 {v(AA+jj)}, {512*jj}, {v(AA)}")
        A("v_lshlrev_b32 v27, 4, v26")
        A("v_lshlrev_b32 v28, 5, v25")
        A("v_sub_u32 v27, v27, v28")
        A(f"s_add_u32 {s(S_T0)}, {s(S_T0)}, {U_OFF + 480}")
        A(f"v_add_u32 {v(AB)}, {s(S_T0)}, v27")
    def ur_dma():
        A(f"s_lshl_b32 {s(S_T0)}, {s(S_CH)}, 12")
        A(f"s_add_u32 {s(S_T0)}, {s(S_T0)}, {UR}")
        A("v_lshlrev_b32 v29, 4, v1")
        for cs in range(2):
            for n in range(4):
                A(f"s_mov_b32 m0, {B2R + cs*CB + U_OFF + n*1024}")
                A(f"s_add_u32 {s(S_T1)}, {s(S_T0)}, {cs*4096 + n*1024}")
                A(f"buffer_load_dwordx4 v29, {s(R_WS,4)}, {s(S_T1)} offen sc1 lds")
    def lbar(c, n):
        if n is not None: A(f"s_waitcnt vmcnt({n})")
        if prof: A(f"s_memtime s[{80+2*c}:{81+2*c}]")
        A("s_barrier")
    A("s_waitcnt lgkmcnt(0)")
    A(f"v_mov_b32 v25, {OKW}")
    A("v_mov_b32 v26, 0")
    A("ds_write_b32 v25, v26")
    A("s_waitcnt lgkmcnt(0)")
    def b1_flag_sample():
        A("v_and_b32 v30, 31, v1")
        A("v_lshlrev_b32 v30, 10, v30")
        A(f"s_lshl_b32 {s(S_T0)}, {s(S_XCD)}, 7")
        A(f"s_lshr_b32 {s(S_T1)}, {s(S_J)}, 3")
        A(f"s_lshl_b32 {s(S_T1)}, {s(S_T1)}, 2")
        A(f"s_add_u32 {s(S_T0)}, {s(S_T0)}, {s(S_T1)}")
        A(f"s_add_u32 {s(S_T0)}, {s(S_T0)}, {FLG + F_B1}")
        A(f"v_add_u32 v30, {s(S_T0)}, v30")
        A(f"s_cmp_eq_u32 {s(S_LI)}, 0")
        A("s_cbranch_scc1 L_l_w4a")
        A(f"s_lshl_b32 {s(S_T0)}, s2, 7")
        A(f"s_add_u32 {s(S_T0)}, {s(S_T0)}, {FLG + F_B2}")
        A(f"v_mov_b32 v30, {s(S_T0)}")
        A("L_l_w4a:")
        flag_load(30, 31)
    if DIST == 3:
        lbar(0, 14)
        dma_chunk(3)
        A(f"s_add_u32 {s(S_NONCE)}, {s(S_NONCE)}, 1")
        srd(R_WS, S_WS, WS_BYTES)
        lbar(1, 14)
        dma_chunk(4)
        h_loads()
        lbar(2, 19)
        dma_chunk(5)
        lbar(3, 19)
        dma_chunk(6)
        lbar(4, 19)
        dma_chunk(7)
        b1_flag_sample()
        lbar(5, 15)
        build_eo()
        lbar(6, 8)
        conv_addr()
    else:
        lbar(0, 7)
        dma_chunk(2)
        A(f"s_add_u32 {s(S_NONCE)}, {s(S_NONCE)}, 1")
        srd(R_WS, S_WS, WS_BYTES)
        lbar(1, 7)
        dma_chunk(3)
        h_loads()
        lbar(2, 12)
        dma_chunk(4)
        lbar(3, 12)
        dma_chunk(5)
        lbar(4, 7)
        dma_chunk(6)
        lbar(5, 7)
        dma_chunk(7)
        b1_flag_sample()
        build_eo()
        lbar(6, 8)
        conv_addr()
    A("s_waitcnt vmcnt(0)")
    A(f"s_mov_b32 {s(S_OK)}, 0")
    A(f"s_cmp_lg_u32 {s(S_LI)}, 0")
    A("s_cbranch_scc1 L_l_late")
    A(f"v_cmp_ne_u32 vcc, {s(S_NONCE)}, v31")
    A("s_cbranch_vccnz L_l_late")
    ur_dma()
    A(f"s_mov_b32 {s(S_OK)}, 1")
    A("L_l_late:")
    if prof:
        A("s_memtime s[94:95]")
        A("s_waitcnt lgkmcnt(0)")
        for c in range(8): A(f"v_writelane_b32 v255, s{80+2*c}, {22+c}")
    A("s_barrier")
    stamp(5)
    A(f"v_mov_b32 v25, {OKW}")
    A(f"s_cmp_lg_u32 {s(S_LI)}, 0")
    A("s_cbranch_scc1 L_l_others")
    A(f"s_cmp_eq_u32 {s(S_OK)}, 1")
    A("s_cbranch_scc1 L_l_have")
    spin(30, 31, "L_poll_b1")
    ur_dma()
    A("L_l_have:")
    A("s_waitcnt vmcnt(0)")
    A(f"v_mov_b32 v26, {s(S_NONCE)}")
    A("ds_write_b32 v25, v26")
    A("s_waitcnt lgkmcnt(0)")
    A("s_branch L_l_go")
    A("L_l_others:")
    A(f"s_mov_b32 {s(S_SPIN)}, {SPIN*8}")
    A("L_l_ospin:")
    A("ds_read_b32 v26, v25")
    A("s_waitcnt lgkmcnt(0)")
    A(f"v_cmp_ne_u32 vcc, {s(S_NONCE)}, v26")
    A("s_cbranch_vccz L_l_go")
    A(f"s_sub_u32 {s(S_SPIN)}, {s(S_SPIN)}, 1")
    A(f"s_cmp_lg_u32 {s(S_SPIN)}, 0")
    A("s_cbranch_scc1 L_l_ospin")
    A("L_l_go:")
    stamp(7)
    def conv_reads(ii):
        st = ii & 1
        L = []
        for k in range(8):
            L.append(f"ds_read_b128 {v(CBf[st]+4*k,4)}, {v(AB)} offset:{512*(7-k) + 64*ii}")
            L.append(f"ds_read2_b32 {v(CA[st]+4*k,2)}, {v(AA+k)} offset0:{16*ii} offset1:{16*ii+1}")
            L.append(f"ds_read2_b32 {v(CA[st]+4*k+2,2)}, {v(AA+k)} offset0:{16*ii+2} offset1:{16*ii+3}")
        return L
    r0 = conv_reads(0)
    first = [r0[1], r0[2]] + [r0[3*k] for k in range(8)] + [x for k in range(1, 8) for x in (r0[3*k+1], r0[3*k+2])]
    for r in first: A(r)
    for ii in range(4):
        nxt = conv_reads(ii + 1) if ii < 3 else []
        st = ii & 1
        k = 0
        for jj in range(8):
            if ii == 0:
                if jj == 0: A("s_waitcnt lgkmcnt(14)")
                elif jj == 1: A("s_waitcnt lgkmcnt(0)")
            elif jj == 0:
                A("s_waitcnt lgkmcnt(0)")
            for cp in range(8 - jj):
                acc = v(CACC + 4*(cp + jj), 4)
                cin = "0" if (ii == 0 and jj == 0) else acc
                A(f"{MF16} {acc}, {v(CA[st]+4*jj,4)}, {v(CBf[st]+4*cp,4)}, {cin}")
                if k < len(nxt) and not (ii == 0 and jj == 0):
                    A(nxt[k]); k += 1
        while k < len(nxt):
            A(nxt[k]); k += 1
    stamp(8)
    A("s_nop 7")
    A(f"s_call_b64 {s(S_LINK,2)}, L_sub_setup")
    A(f"s_and_b32 {s(S_T2)}, {s(S_LI)}, 1")
    A("v_lshlrev_b32 v25, 4, v1")
    A(f"s_lshl_b32 {s(S_T0)}, {s(S_LI)}, 12")
    A(f"v_add_u32 v26, {s(S_T0)}, v25")
    A(f"s_xor_b32 {s(S_T0)}, {s(S_T0)}, 4096")
    A(f"v_add_u32 v27, {s(S_T0)}, v25")
    A(f"s_cmp_lg_u32 {s(S_T2)}, 0")
    A("s_cbranch_scc1 L_l_x1")
    for k in range(4):
        A(f"ds_write_b128 v26, {v(CACC+16+4*k,4)} offset:{LR + 1024*k}")
    A("s_waitcnt lgkmcnt(0)")
    A("s_barrier")
    for k in range(4):
        A(f"ds_read_b128 {v(32+4*k,4)}, v27 offset:{LR + 1024*k}")
    A("s_waitcnt lgkmcnt(0)")
    for r in range(16):
        A(f"v_add_f32 {v(48+r)}, {v(32+r)}, {v(CACC+r)}")
    A("s_branch L_l_x2")
    A("L_l_x1:")
    A("s_nop 7")
    for k in range(4):
        A(f"ds_write_b128 v26, {v(CACC+4*k,4)} offset:{LR + 1024*k}")
    A("s_waitcnt lgkmcnt(0)")
    A("s_barrier")
    for k in range(4):
        A(f"ds_read_b128 {v(32+4*k,4)}, v27 offset:{LR + 1024*k}")
    A("s_waitcnt lgkmcnt(0)")
    for r in range(16):
        A(f"v_add_f32 {v(48+r)}, {v(32+r)}, {v(CACC+16+r)}")
    A("L_l_x2:")
    stamp(9)
    for k in range(4):
        A(f"v_cvt_pk_bf16_f32 {v(32+2*k)}, {v(48+4*k)}, {v(49+4*k)}")
        A(f"v_cvt_pk_bf16_f32 {v(33+2*k)}, {v(50+4*k)}, {v(51+4*k)}")
    A("v_and_b32 v25, 15, v1")
    A("v_lshlrev_b32 v25, 5, v25")
    A("v_bfe_u32 v26, v1, 4, 1")
    A("v_lshl_add_u32 v25, v26, 9, v25")
    A("v_lshrrev_b32 v26, 5, v1")
    A("v_lshl_add_u32 v25, v26, 4, v25")
    A(f"s_lshl_b32 {s(S_T0)}, {s(S_CH)}, 12")
    A(f"s_lshl_b32 {s(S_T1)}, {s(S_T2)}, 11")
    A(f"s_add_u32 {s(S_T0)}, {s(S_T0)}, {s(S_T1)}")
    A(f"s_add_u32 {s(S_T0)}, {s(S_T0)}, {YT}")
    A(f"v_add_u32 v25, {s(S_T0)}, v25")
    A("v_permlane16_swap_b32 v32, v34")
    A("v_permlane16_swap_b32 v33, v35")
    A("v_permlane16_swap_b32 v36, v38")
    A("v_permlane16_swap_b32 v37, v39")
    A(f"global_store_dwordx4 v25, v[32:35], {s(S_WS,2)} {SCS}")
    A(f"global_store_dwordx4 v25, v[36:39], {s(S_WS,2)} offset:1024 {SCS}")
    for n in range(8): wo_dma(n)
    A("L_a2:")
    if DBG: A("s_memrealtime s[10:11]")
    if opt.get("prio", 1): A("s_setprio 1")
    Q, KF, SA, SB, CN, PP, VF, O = 16, 20, 56, 72, 88, 104, 120, 136
    AK, AV0, AV1, TM, TM2 = PAK, PAV0, PAV1, 155, 156
    TM3 = 169
    VQ3, VF2A, VF2 = 160, PFB2, 165
    A(f"ds_read_b128 {v(Q,4)}, {v(PAQ)} offset:{LQ}")
    order = [8, 0, 7, 6, 5, 4, 3, 2, 1]
    for jj in order:
        A(f"ds_read_b128 {v(KF+4*jj,4)}, {v(AK)} offset:{LK + jj*1024}")
    for r in range(4):
        A(f"global_load_dword {v(VQ3+r)}, {v(PQ3)}, {s(S_BQ,2)} offset:{1024*r} {NT_B}")
    buf = lambda jj: SA if (jj & 1) else SB
    A("s_waitcnt lgkmcnt(7)")
    A(f"{MF} {v(MM8,16)}, {v(KF+32,4)}, {v(Q,4)}, {v(MM8,16)}")
    A(f"{MF} {v(MM0,16)}, {v(KF+0,4)}, {v(Q,4)}, {v(MM0,16)}")
    A("s_waitcnt lgkmcnt(5)")
    A(f"{MF} {v(SA,16)}, {v(KF+28,4)}, {v(Q,4)}, 0")
    A(f"{MF} {v(SB,16)}, {v(KF+24,4)}, {v(Q,4)}, 0")
    A(f"s_cmp_gt_u32 {s(S_J0)}, 0")
    A("s_cbranch_scc1 L_st_nomerge")
    stubs.append(["L_st_nomerge:", "s_nop 15", "s_branch L_a2_nomerge"])
    for r in range(16):
        A(f"v_max_f32 {v(MM8+r)}, {v(MM0+r)}, {v(MM8+r)}")
    A("L_a2_nomerge:")
    A(f"v_max_f32 {v(TM)}, {v(MM8)}, {v(MM8+1)}")
    A(f"v_max_f32 {v(TM3)}, {v(MM8+2)}, {v(MM8+3)}")
    for r in range(4, 16, 2):
        t = TM if (r & 2) == 0 else TM3
        A(f"v_max3_f32 {v(t)}, {v(t)}, {v(MM8+r)}, {v(MM8+r+1)}")
    A("s_waitcnt lgkmcnt(0)")
    for jj in range(7, 0, -1):
        b = buf(jj)
        A(f"s_cmp_gt_u32 {s(S_J0)}, {jj}")
        A("s_cbranch_scc1 L_a2_p1done")
        for r in range(0, 16, 2):
            t = TM if (r & 2) == 0 else TM3
            A(f"v_max3_f32 {v(t)}, {v(t)}, {v(b+r)}, {v(b+r+1)}")
        if jj - 2 >= 1:
            A(f"{MF} {v(b,16)}, {v(KF+4*(jj-2),4)}, {v(Q,4)}, 0")
    A("L_a2_p1done:")
    A(f"v_max_f32 {v(TM)}, {v(TM)}, {v(TM3)}")
    A(f"v_mov_b32 {v(TM2)}, {v(TM)}")
    A(f"v_permlane32_swap_b32 {v(TM)}, {v(TM2)}")
    A(f"v_max_f32 {v(TM)}, {v(TM)}, {v(TM2)}")
    A(f"v_sub_f32 {v(TM2)}, 0, {v(TM)}")
    for r in range(16):
        A(f"v_mov_b32 {v(CN+r)}, {v(TM2)}")
    stamp(10)
    A(f"{MF} {v(SA,16)}, {v(KF+28,4)}, {v(Q,4)}, {v(CN,16)}")
    A(f"{MF} {v(SB,16)}, {v(KF+24,4)}, {v(Q,4)}, {v(CN,16)}")
    def vread(slot, jj, sidx):
        A(f"ds_read_b128 {v(VF+4*slot,4)}, {v(AV0 if sidx == 0 else AV1)} offset:{LV + jj*VTS + sidx*512}")
    vread(0, 8, 0); vread(1, 8, 1); vread(2, 0, 0); vread(3, 0, 1)
    def pub_b2(lab, n):
        A(f"s_waitcnt vmcnt({n})")
        A(f"s_cmp_lt_u32 {s(S_WV)}, 4")
        A(f"s_cbranch_scc1 {lab}")
        publish(F_B2, 157, 158)
        A(f"{lab}:")
    if opt.get("prio", 1): A("s_setprio 0")
    P0, P1 = PP, PP + 8
    for r in range(16):
        A(f"v_add_f32 {v(MM8+r)}, {v(TM2)}, {v(MM8+r)}")
    for r in range(16):
        A(f"v_exp_f32 {v(MM8+r)}, {v(MM8+r)}")
    for i in range(8):
        A(f"v_cvt_pk_bf16_f32 {v(P0+i)}, {v(MM8+2*i)}, {v(MM8+2*i+1)}")
    for i in range(8):
        A(f"v_and_b32 {v(P1+i)}, {v(MMK+i)}, {v(P0+i)}")
    for i in range(8):
        A(f"v_xor_b32 {v(P0+i)}, {v(P1+i)}, {v(P0+i)}")
    A("s_waitcnt lgkmcnt(0)")
    A(f"{MF} {v(O,16)}, {v(VF+0,4)}, {v(P0,4)}, 0")
    A(f"s_cmp_gt_u32 {s(S_J0)}, 0")
    A("s_cbranch_scc1 L_a2_nopv0")
    A(f"{MF} {v(O,16)}, {v(VF+8,4)}, {v(P1,4)}, {v(O,16)}")
    A(f"{MF} {v(O,16)}, {v(VF+12,4)}, {v(P1+4,4)}, {v(O,16)}")
    A("L_a2_nopv0:")
    pb = lambda jj: PP + 8*(jj & 1)
    sl = lambda jj: 2*(jj & 1)
    def pend(jj):
        if jj == 7: return [f"{MF} {v(O,16)}, {v(VF+4,4)}, {v(P0+4,4)}, {v(O,16)}"]
        p = jj + 1
        return [f"{MF} {v(O,16)}, {v(VF+4*sl(p),4)}, {v(pb(p),4)}, {v(O,16)}",
                f"{MF} {v(O,16)}, {v(VF+4*sl(p)+4,4)}, {v(pb(p)+4,4)}, {v(O,16)}"]
    for jj in range(7, 0, -1):
        b = buf(jj)
        A(f"s_cmp_gt_u32 {s(S_J0)}, {jj}")
        A(f"s_cbranch_scc1 L_st_p2_{jj}")
        def stub(jj=jj):
            A(f"L_st_p2_{jj}:")
            A("s_waitcnt lgkmcnt(0)")
            A("s_nop 1")
            for m in pend(jj): A(m)
            if jj >= 5: pub_b2(f"L_st_nopub_{jj}", 0)
            if jj >= 3:
                A(f"s_cmp_lg_u32 {s(S_WV)}, 0")
                A("s_cbranch_scc1 L_a2_p2done")
                flag_load(VF2A, VF2)
            A("s_branch L_a2_p2done")
        stubs.append(stub)
        pm = pend(jj)
        if prof: A(f"s_memtime s[{80+2*(7-jj)}:{81+2*(7-jj)}]")
        if jj == 5: pub_b2("L_a2_nopub", 12)
        for r in range(16):
            A(f"v_exp_f32 {v(b+r)}, {v(b+r)}")
            if r == 1:
                A("s_waitcnt lgkmcnt(0)")
                A(pm[0])
            if r == 7 and len(pm) > 1: A(pm[1])
            if r == 9:
                vread(sl(jj), jj, 0); vread(sl(jj) + 1, jj, 1)
            if jj == 3 and r == 13:
                A(f"s_cmp_lg_u32 {s(S_WV)}, 0")
                A("s_cbranch_scc1 L_a2_nosample")
                flag_load(VF2A, VF2)
                A("L_a2_nosample:")
        for i in range(8):
            A(f"v_cvt_pk_bf16_f32 {v(pb(jj)+i)}, {v(b+2*i)}, {v(b+2*i+1)}")
        if jj - 2 >= 1:
            A(f"{MF} {v(b,16)}, {v(KF+4*(jj-2),4)}, {v(Q,4)}, {v(CN,16)}")
    A("s_waitcnt lgkmcnt(0)")
    for m in pend(0): A(m)
    A("L_a2_p2done:")
    if prof:
        A("s_memtime s[94:95]")
        A("s_waitcnt lgkmcnt(0)")
        for c in range(8): A(f"v_writelane_b32 v255, s{80+2*c}, {54+c}")
    A("s_nop 15")
    A(f"v_rcp_f32 {v(TM)}, {v(O+8)}")
    for r in range(8):
        A(f"v_mul_f32 {v(O+r)}, {v(TM)}, {v(O+r)}")
    for i in range(4):
        A(f"v_cvt_pk_bf16_f32 {v(PP+i)}, {v(O+2*i)}, {v(O+2*i+1)}")
    A(f"global_store_dwordx4 {v(PO)}, {v(PP,4)}, {s(S_WS,2)} {SCS}")
    stamp(11)
    if prof:
        stamp(19)
        A("s_waitcnt vmcnt(1)")
        stamp(20)
    A("s_waitcnt vmcnt(0)")
    publish(F_A2, 157, 158)
    stamp(12)
    flag_load(PFA2, 31)
    A(f"s_cmp_lg_u32 {s(S_WV)}, 0")
    A("s_cbranch_scc1 L_nob2poll")
    check_or_spin(VF2A, VF2, "L_poll_b2")
    A(f"s_lshl_b32 {s(S_T0)}, {s(S_XCD)}, 18")
    A(f"s_lshl_b32 {s(S_T1)}, {s(S_J)}, 7")
    A(f"s_add_u32 {s(S_T0)}, {s(S_T0)}, {s(S_T1)}")
    A(f"s_add_u32 {s(S_T0)}, {s(S_T0)}, {YT}")
    for n in range(8):
        A(f"s_mov_b32 m0, {LYT + n*1024}")
        A(f"s_add_u32 {s(S_T1)}, {s(S_T0)}, {n*8*4096}")
        A(f"buffer_load_dwordx4 {v(PY0 + (n & 1))}, {s(R_WS,4)}, {s(S_T1)} offen sc1 lds")
    A("L_nob2poll:")
    A(f"s_or_b32 {s(S_T0)}, s2, {s(S_WV)}")
    A(f"s_cmp_lg_u32 {s(S_T0)}, 0")
    A("s_cbranch_scc0 L_st_epoch")
    stubs.append("EPOCH")
    A("L_noep:")
    A("s_waitcnt vmcnt(0)")
    check_or_spin(PFA2, 31, "L_poll_a2")
    stamp(13)
    A("s_barrier")
    stamp(14)
    A(f"s_lshl_b32 {s(S_T0)}, {s(S_TB64)}, 16")
    A(f"s_lshl_b32 {s(S_T1)}, {s(S_WV)}, 12")
    A(f"s_add_u32 {s(S_T0)}, {s(S_T0)}, {s(S_T1)}")
    for hh in range(4):
        for ts in range(2):
            A(f"s_add_u32 m0, {s(S_T1)}, {LO + ts*32768 + hh*1024}")
            A(f"s_add_u32 {s(S_T2)}, {s(S_T0)}, {OW + ts*32768 + hh*1024}")
            A(f"buffer_load_dwordx4 {v(PL16)}, {s(R_WS,4)}, {s(S_T2)} offen sc1 lds")
    A(f"ds_read_b64 v[22:23], {v(PYR)}")
    A(f"ds_read_b64 v[24:25], {v(PYR)} offset:128")
    for r in range(4):
        A(f"v_lshlrev_b32 {v(34+2*r)}, 16, {v(VQ3+r)}")
        A(f"v_and_b32 {v(35+2*r)}, 0xffff0000, {v(VQ3+r)}")
    A("s_waitcnt lgkmcnt(0)")
    A("v_lshlrev_b32 v42, 16, v22"); A("v_lshlrev_b32 v43, 16, v24")
    A("v_and_b32 v44, 0xffff0000, v22"); A("v_and_b32 v45, 0xffff0000, v24")
    A("v_lshlrev_b32 v46, 16, v23"); A("v_lshlrev_b32 v47, 16, v25")
    A("v_and_b32 v48, 0xffff0000, v23"); A("v_and_b32 v49, 0xffff0000, v25")
    for r in range(4):
        A(f"v_pk_mul_f32 {v(42+2*r,2)}, {v(42+2*r,2)}, {v(34+2*r,2)}")
    for r in range(4):
        A(f"v_cvt_pk_bf16_f32 {v(50+r)}, {v(42+2*r)}, {v(43+2*r)}")
    A(f"v_add_u32 v21, 0x1000, {v(PB3)}")
    A(f"global_store_dword {v(PB3)}, v50, {s(S_OUT,2)} {BST}")
    A(f"global_store_dword {v(PB3)}, v51, {s(S_OUT,2)} offset:2048 {BST}")
    A(f"global_store_dword v21, v52, {s(S_OUT,2)} {BST}")
    A(f"global_store_dword v21, v53, {s(S_OUT,2)} offset:2048 {BST}")
    A("s_waitcnt vmcnt(4)")
    stamp(15)
    A("s_barrier")
    stamp(16)
    OA = 80
    F3 = [32 + 8*i for i in range(6)]
    def a3reads(hs):
        f = F3[hs % 6]
        A(f"ds_read_b128 {v(f,4)}, {v(PAO)} offset:{hs*1024}")
        A(f"ds_read_b64_tr_b16 {v(f+4,2)}, {v(PAW)} offset:{hs*2048}")
        A(f"ds_read_b64_tr_b16 {v(f+6,2)}, {v(PAW)} offset:{hs*2048 + 1024}")
    DEP = 4
    for hs in range(DEP): a3reads(hs)
    for hs in range(16):
        if hs + DEP < 16:
            a3reads(hs + DEP); A(f"s_waitcnt lgkmcnt({3*DEP})")
        else:
            A(f"s_waitcnt lgkmcnt({3*(15-hs)})")
        f = F3[hs % 6]
        cin = "0" if hs == 0 else v(OA,16)
        A(f"{MF} {v(OA,16)}, {v(f+4,4)}, {v(f,4)}, {cin}")
    for m in range(4):
        A(f"ds_write_b128 {v(PPW[m])}, {v(OA+4*m,4)}")
    A("s_waitcnt lgkmcnt(0)")
    A("s_barrier")
    stamp(17)
    A(f"ds_read_b128 v[32:35], {v(PPR[0])}"); A(f"ds_read_b128 v[40:43], {v(PPR[2])}")
    A(f"ds_read_b128 v[36:39], {v(PPR[1])}"); A(f"ds_read_b128 v[44:47], {v(PPR[3])}")
    A("s_waitcnt lgkmcnt(0)")
    for r in range(8):
        A(f"v_add_f32 {v(32+r)}, {v(32+r)}, {v(40+r)}")
    for i in range(4):
        A(f"v_cvt_pk_bf16_f32 {v(48+i)}, {v(32+2*i)}, {v(33+2*i)}")
    A(f"global_store_dwordx4 {v(POUT)}, v[48:51], {s(S_OUT,2)} {FST}")
    if prof:
        stamp(18)
        A(f"s_lshl_b32 {s(S_T0)}, s2, 3")
        A(f"s_add_u32 {s(S_T0)}, {s(S_T0)}, {s(S_WV)}")
        A(f"s_lshl_b32 {s(S_T0)}, {s(S_T0)}, 8")
        A(f"s_add_u32 {s(S_T0)}, {s(S_T0)}, {PROF}")
        A("v_lshlrev_b32 v16, 2, v1")
        A(f"v_add_u32 v16, {s(S_T0)}, v16")
        A(f"global_store_dword v16, v255, {s(S_WS,2)}")
    if DBG:
        A("s_memrealtime s[12:13]")
        A("s_waitcnt lgkmcnt(0)")
        A("v_mov_b32 v16, 0")
        A("s_mov_b64 exec, 1")
        A("v_mov_b32 v17, s12"); A(f"global_atomic_umax v16, v17, {s(S_DBG,2)}")
        A("s_not_b32 s8, s8"); A("v_mov_b32 v17, s8"); A(f"global_atomic_umax v16, v17, {s(S_DBG,2)} offset:4")
        A("v_mov_b32 v17, s10"); A(f"global_atomic_umax v16, v17, {s(S_DBG,2)} offset:8")
        A("s_not_b32 s10, s10"); A("v_mov_b32 v17, s10"); A(f"global_atomic_umax v16, v17, {s(S_DBG,2)} offset:12")
        A("s_not_b32 s12, s12"); A("v_mov_b32 v17, s12"); A(f"global_atomic_umax v16, v17, {s(S_DBG,2)} offset:16")
    A("L_end:")
    A("s_endpgm")
    sub_setup()
    for st in stubs:
        if st == "EPOCH":
            A("L_st_epoch:")
            for q in range(4):
                A(f"v_lshlrev_b32 v157, 7, v1")
                A(f"v_add_u32 v157, {FLG + F_B1 + q*8192}, v157")
                spin(157, 158, f"L_poll_ep{q}")
            A(f"v_mov_b32 v157, {EP}")
            A(f"v_mov_b32 v158, {s(S_NONCE)}")
            A(f"s_mov_b64 {s(S_EX,2)}, exec")
            A("s_mov_b64 exec, 1")
            A(f"global_store_dword v157, v158, {s(S_WS,2)} {SCS}")
            A(f"s_mov_b64 exec, {s(S_EX,2)}")
            A("s_branch L_noep")
        elif callable(st):
            st()
        else:
            for line in st: A(line)
    n = a.fix_hazards()
    return a, n

HEAD = f"""; Fused sliding-window attention block + H3 SSM conv, one persistent launch (generated by gen/gen2.py)
; @launch grid=(256,1,1) block=(512,1,1) lds={LDS_BYTES}
.amdgcn_target "amdgcn-amd-amdhsa--gfx950"
.text
.globl {KN}
.p2align 8
.type {KN},@function
{KN}:
"""
TAIL = f""".section .rodata,"a"
.p2align 6
.amdhsa_kernel {KN}
  .amdhsa_next_free_vgpr 256
  .amdhsa_next_free_sgpr 102
  .amdhsa_accum_offset 256
  .amdhsa_group_segment_fixed_size 0
  .amdhsa_kernarg_size 96
  .amdhsa_user_sgpr_count 2
  .amdhsa_user_sgpr_kernarg_segment_ptr 1
  .amdhsa_system_sgpr_workgroup_id_x 1
.end_amdhsa_kernel
"""
if __name__ == "__main__":
    out = sys.argv[1] if len(sys.argv) > 1 else f"cdna_kernels/{NAME}.s"
    opt = {}
    for x in sys.argv[2:]:
        if "=" in x:
            k, val = x.split("="); opt[k] = int(val)
    a, n = build(prof=("prof" in sys.argv), opt=opt)
    open(out, "w").write(HEAD + a.text() + TAIL)
    print("instructions:", a.count(), "hazard pads:", n)
```

```python
import sys
from asmlib import Asm, v, s

NAME = "concat_heads__sliding_block__ssm_conv_h3__prompt"
KN = NAME + "_kernel"

FLG = 0x0
F_B1, F_A1, F_B2, F_A2 = 0, 32768, 65536, 98304
EP  = 0x20000
KW  = 0x100000
VW  = 0x300000
OW  = 0x500000
UR  = 0x700000
YT  = 0x900000
WS_BYTES = 0xB00000
PROF = 0xC00000

STG = 28672
B2R = 114688
CB  = 12864
T0  = B2R
KVS = 140416
E_OFF, O_OFF, U_OFF = 0, 4164, 8288
LK, LV, LQ = 0, 24576, 49536
KHS, VHS, VTS = 12288, 12480, 1040
LR  = 57728
LO  = 0
LWO = 81920
LS0, LS1 = 65536, 147456
LYT = 65536
CSW = 163808
OK2 = 163824
OKW = 163832
LDS_BYTES = 163840

S_X, S_WQKV, S_WO, S_BQ, S_BK, S_BV, S_SK, S_SSMK = 16, 18, 20, 22, 24, 26, 28, 30
S_SD, S_OUT, S_DBG, S_WS = 32, 34, 36, 38
R_X, R_W, R_BK, R_WS, R_WO = 40, 44, 48, 52, 56
S_NONCE, S_WV, S_J, S_XCD, S_RB, S_HP = 60, 61, 62, 63, 64, 65
S_T0, S_T1, S_T2, S_T3, S_T4, S_T5 = 66, 67, 68, 69, 70, 71
S_LI = 72
S_J0 = 73
S_SPIN = 74
S_OK = 75
S_EX = 76
S_CBASE, S_CH = 78, 79
S_CMP = 80
S_HD, S_TB64 = 96, 97
S_ROT = 75

PAK, PAV0, PAV1, PAQ = 192, 193, 194, 195
PFB2, PFA2, PY0, PY1, PYR, PO, PWO, PAO, PAW, POUT, PL16, PQ3 = 196, 197, 198, 199, 200, 201, 202, 203, 204, 205, 206, 207
PPW = [9, 10, 11, 12]
PPR = [13, 14, 15, 2]
PB3 = 8
S_LINK = 4
S_WOB, S_WOL = 6, 7
SPIN = 200000
NEGBIG = 0xF149F2CA
QSCALE = 0x3EB8AA3B
ONES = 0x3F803F80
STAGE = [0, 1, 2, 3, 0, 1, 2, 3]
MF = "v_mfma_f32_32x32x16_bf16"
MF16 = "v_mfma_f32_16x16x32_bf16"

def build(prof=False, opt=None):
    opt = opt or {}
    NT_B = "nt" if opt.get("nt_b", 0) else ""
    NT_XW = "nt" if opt.get("nt_xw", 0) else ""
    NT_WO = "nt" if opt.get("nt_wo", 0) else ""
    SCP = {0: "sc0 sc1", 1: "sc1"}[opt.get("sc_poll", 1)]
    SCS = {0: "sc0 sc1", 1: "sc1"}[opt.get("sc_store", 1)]
    SLEEP = opt.get("sleep", 0)
    FST = {0: "", 1: "sc0 sc1", 2: "nt", 3: "sc1"}[opt.get("fst", 2)]
    BST = {0: "", 1: "sc0 sc1", 2: "nt", 3: "sc1"}[opt.get("bst", 2)]
    a = Asm()
    A = a
    stubs = []
    def stamp(k):
        if not prof: return
        A("s_memrealtime s[100:101]")
        A("s_memtime s[98:99]")
        A("s_waitcnt lgkmcnt(0)")
        A(f"v_writelane_b32 v255, s100, {k}")
        A(f"v_writelane_b32 v255, s98, {k+32}")
    def srd(dst, base, nbytes):
        A(f"s_mov_b32 {s(dst)}, {s(base)}")
        A(f"s_and_b32 {s(dst+1)}, {s(base+1)}, 0xffff")
        A(f"s_mov_b32 {s(dst+2)}, {nbytes}")
        A(f"s_mov_b32 {s(dst+3)}, 0x00020000")
    def flag_load(vaddr, vtmp):
        A(f"global_load_dword {v(vtmp)}, {v(vaddr)}, {s(S_WS,2)} {SCP}")
    def spin(vaddr, vtmp, label):
        A(f"s_mov_b32 {s(S_SPIN)}, {SPIN}")
        A(f"{label}:")
        flag_load(vaddr, vtmp)
        A("s_waitcnt vmcnt(0)")
        A(f"v_cmp_ne_u32 vcc, {s(S_NONCE)}, {v(vtmp)}")
        A(f"s_cbranch_vccz {label}_done")
        if SLEEP: A(f"s_sleep {SLEEP}")
        A(f"s_sub_u32 {s(S_SPIN)}, {s(S_SPIN)}, 1")
        A(f"s_cmp_lg_u32 {s(S_SPIN)}, 0")
        A(f"s_cbranch_scc1 {label}")
        A(f"{label}_done:")
    def check_or_spin(vaddr, vtmp, label):
        A(f"v_cmp_ne_u32 vcc, {s(S_NONCE)}, {v(vtmp)}")
        A(f"s_cbranch_vccz {label}_done")
        spin(vaddr, vtmp, label)
    def publish(kind, vt0, vt1):
        A(f"s_lshl_b32 {s(S_T0)}, s2, 7")
        A(f"s_lshl_b32 {s(S_T1)}, {s(S_WV)}, 2")
        A(f"s_add_u32 {s(S_T0)}, {s(S_T0)}, {s(S_T1)}")
        A(f"s_add_u32 {s(S_T0)}, {s(S_T0)}, {FLG + kind}")
        A(f"v_mov_b32 {v(vt0)}, {s(S_T0)}")
        A(f"v_mov_b32 {v(vt1)}, {s(S_NONCE)}")
        A(f"s_mov_b64 {s(S_EX,2)}, exec")
        A(f"s_mov_b64 exec, 1")
        A(f"global_store_dword {v(vt0)}, {v(vt1)}, {s(S_WS,2)} {SCS}")
        A(f"s_mov_b64 exec, {s(S_EX,2)}")

    def record(fn):
        n0 = len(a.items)
        fn()
        out = [it.text for k, it in a.items[n0:]]
        assert all(k == "i" for k, it in a.items[n0:])
        del a.items[n0:]
        return out
    MM0, MM8, MMK = 208, 224, 240
    def gen_masks():
        A("v_and_b32 v248, 31, v1")
        A("v_lshrrev_b32 v249, 5, v1")
        A("v_lshlrev_b32 v249, 2, v249")
        A("v_sub_u32 v248, v248, v249")
        A(f"v_mov_b32 v249, {NEGBIG}")
        A("v_mov_b32 v250, 0")
        A("v_mov_b32 v251, 0xffff")
        A("v_mov_b32 v252, 0xffff0000")
        for grp in range(2):
            for q in range(8):
                r = grp*8 + q
                cst = (r & 3) + 8*(r >> 2)
                A(f"v_cmp_le_i32 {s(S_CMP+2*q,2)}, {cst}, v248")
            for q in range(8):
                r = grp*8 + q
                A(f"v_cndmask_b32 {v(MM8+r)}, v249, v250, {s(S_CMP+2*q,2)}")
                A(f"v_cndmask_b32 {v(MM0+r)}, v250, v249, {s(S_CMP+2*q,2)}")
            for q in range(0, 8, 2):
                i = (grp*8 + q) >> 1
                A(f"v_cndmask_b32 v253, v251, v250, {s(S_CMP+2*q,2)}")
                A(f"v_cndmask_b32 v254, v252, v250, {s(S_CMP+2*q+2,2)}")
                A(f"v_or_b32 {v(MMK+i)}, v253, v254")

    def sub_setup():
        A("L_sub_setup:")
        gen_masks()
        A(f"s_lshr_b32 {s(S_HD)}, {s(S_WV)}, 2")
        A(f"s_lshl_b32 {s(S_T0)}, {s(S_RB)}, 2")
        A(f"s_add_u32 {s(S_T0)}, {s(S_T0)}, {s(S_LI)}")
        A(f"s_sub_i32 {s(S_J0)}, 8, {s(S_T0)}")
        A(f"s_max_i32 {s(S_J0)}, {s(S_J0)}, 0")
        A(f"v_lshlrev_b32 {v(PL16)}, 4, v1")
        A(f"s_lshl_b32 {s(S_T0)}, {s(S_HD)}, 12")
        A(f"s_lshl_b32 {s(S_T1)}, {s(S_LI)}, 10")
        A(f"s_add_u32 {s(S_T0)}, {s(S_T0)}, {s(S_T1)}")
        A(f"v_add_u32 {v(PAQ)}, {s(S_T0)}, {v(PL16)}")
        A(f"s_mul_i32 {s(S_T0)}, {s(S_HD)}, {KHS}")
        A(f"s_add_u32 {s(S_T0)}, {s(S_T0)}, {s(S_T1)}")
        A(f"v_add_u32 {v(PAK)}, {s(S_T0)}, {v(PL16)}")
        A(f"s_mul_i32 {s(S_T0)}, {s(S_HD)}, {VHS}")
        A(f"s_mul_i32 {s(S_T1)}, {s(S_LI)}, {VTS}")
        A(f"s_add_u32 {s(S_T0)}, {s(S_T0)}, {s(S_T1)}")
        A("v_and_b32 v248, 15, v1")
        A("v_lshlrev_b32 v248, 4, v248")
        A("v_lshrrev_b32 v249, 5, v1")
        A("v_lshl_add_u32 v248, v249, 8, v248")
        A("v_bfe_u32 v249, v1, 4, 1")
        A("v_cmp_eq_u32 vcc, 1, v249")
        A("v_mov_b32 v249, 1024")
        A("v_mov_b32 v250, 512")
        A(f"v_cndmask_b32 {v(PAV0)}, v248, v249, vcc")
        A(f"v_cndmask_b32 {v(PAV1)}, v248, v250, vcc")
        A(f"v_add_u32 {v(PAV0)}, {s(S_T0)}, {v(PAV0)}")
        A(f"v_add_u32 {v(PAV1)}, {s(S_T0)}, {v(PAV1)}")
        A(f"s_lshl_b32 {s(S_T0)}, {s(S_RB)}, 2")
        A(f"s_add_u32 {s(S_T0)}, {s(S_T0)}, {s(S_LI)}")
        A(f"s_lshl_b32 {s(S_T0)}, {s(S_T0)}, 5")
        A(f"s_lshl_b32 {s(S_T1)}, {s(S_HP)}, 1")
        A(f"s_add_u32 {s(S_T0)}, {s(S_T0)}, {s(S_T1)}")
        A(f"s_add_u32 {s(S_T0)}, {s(S_T0)}, {s(S_HD)}")
        A(f"s_lshl_b32 {s(S_T0)}, {s(S_T0)}, 10")
        A(f"s_add_u32 {s(S_T0)}, {s(S_T0)}, {OW}")
        A(f"v_add_u32 {v(PO)}, {s(S_T0)}, {v(PL16)}")
        A("v_lshrrev_b32 v248, 3, v1")
        A("v_bfe_u32 v249, v248, 1, 1")
        A("v_lshlrev_b32 v249, 2, v249")
        A("v_and_b32 v250, 7, v1")
        A("v_xor_b32 v249, v249, v250")
        A("v_lshlrev_b32 v249, 4, v249")
        A(f"v_lshl_add_u32 {v(PWO)}, v248, 10, v249")
        A(f"s_lshr_b32 {s(S_T0)}, {s(S_J)}, 2")
        A(f"s_lshl_b32 {s(S_T0)}, {s(S_T0)}, 7")
        A(f"s_lshl_b32 {s(S_T1)}, {s(S_WV)}, 16")
        A(f"s_add_u32 {s(S_WOB)}, {s(S_T0)}, {s(S_T1)}")
        A(f"s_lshl_b32 {s(S_WOL)}, {s(S_WV)}, 13")
        srd(R_WO, S_WO, 512*1024)
        A("v_and_b32 v248, 31, v1")
        A("v_lshrrev_b32 v249, 5, v1")
        A(f"s_lshl_b32 {s(S_T0)}, {s(S_WV)}, 1")
        A(f"v_add_u32 v249, {s(S_T0)}, v249")
        A(f"s_lshl_b32 {s(S_T0)}, {s(S_J)}, 6")
        A("v_lshlrev_b32 v250, 2, v249")
        A(f"v_add_u32 v250, {s(S_T0)}, v250")
        A(f"s_lshl_b32 {s(S_T0)}, {s(S_XCD)}, 7")
        A("v_lshlrev_b32 v251, 2, v248")
        A(f"v_add_u32 v251, {s(S_T0)}, v251")
        A(f"v_lshl_add_u32 {v(PQ3)}, v250, 10, v251")
        A(f"v_lshl_add_u32 {v(PB3)}, v250, 11, v251")
        A(f"v_add_u32 {v(PB3)}, 1024, {v(PB3)}")
        A("v_lshrrev_b32 v250, 1, v249")
        A("v_and_b32 v251, 7, v248")
        A("v_xor_b32 v250, v250, v251")
        A("v_lshlrev_b32 v250, 4, v250")
        A("v_and_b32 v251, 1, v249")
        A("v_lshl_add_u32 v250, v251, 3, v250")
        A("v_lshl_add_u32 v250, v248, 8, v250")
        A(f"v_add_u32 {v(PYR)}, {LYT}, v250")
        A("v_lshrrev_b32 v248, 3, v1")
        A("v_and_b32 v249, 7, v1")
        A("v_lshrrev_b32 v250, 1, v248")
        A("v_xor_b32 v249, v249, v250")
        A("v_lshlrev_b32 v248, 12, v248")
        A(f"v_lshl_add_u32 {v(PY0)}, v249, 4, v248")
        A("v_xor_b32 v249, 4, v249")
        A(f"v_lshl_add_u32 {v(PY1)}, v249, 4, v248")
        A(f"v_lshrrev_b32 {v(PFB2)}, 1, v1")
        A(f"v_lshlrev_b32 {v(PFB2)}, 10, {v(PFB2)}")
        A("v_and_b32 v248, 1, v1")
        A(f"v_lshl_add_u32 {v(PFB2)}, v248, 3, {v(PFB2)}")
        A(f"s_lshr_b32 {s(S_T0)}, {s(S_J)}, 4")
        A(f"s_add_u32 {s(S_T0)}, {s(S_T0)}, 4")
        A(f"s_lshl_b32 {s(S_T0)}, {s(S_T0)}, 2")
        A(f"s_lshl_b32 {s(S_T1)}, {s(S_XCD)}, 7")
        A(f"s_add_u32 {s(S_T0)}, {s(S_T0)}, {s(S_T1)}")
        A(f"s_add_u32 {s(S_T0)}, {s(S_T0)}, {FLG + F_B2}")
        A(f"v_add_u32 {v(PFB2)}, {s(S_T0)}, {v(PFB2)}")
        A(f"s_lshl_b32 {s(S_TB64)}, {s(S_XCD)}, 2")
        A(f"s_and_b32 {s(S_T0)}, {s(S_J)}, 3")
        A(f"s_add_u32 {s(S_TB64)}, {s(S_TB64)}, {s(S_T0)}")
        A("v_and_b32 v248, 1, v1")
        A("v_bfe_u32 v249, v1, 1, 2")
        A(f"s_lshl_b32 {s(S_T0)}, {s(S_WV)}, 2")
        A(f"v_add_u32 v249, {s(S_T0)}, v249")
        A(f"s_lshl_b32 {s(S_T0)}, {s(S_TB64)}, 1")
        A(f"v_add_u32 v248, {s(S_T0)}, v248")
        A("v_lshrrev_b32 v250, 2, v248")
        A("v_lshrrev_b32 v251, 1, v249")
        A("v_and_b32 v252, 3, v250")
        A("v_and_b32 v253, 7, v251")
        A("v_lshl_add_u32 v252, v253, 2, v252")
        A("v_lshlrev_b32 v252, 3, v252")
        A("v_lshrrev_b32 v253, 2, v250")
        A("v_lshl_add_u32 v252, v253, 1, v252")
        A("v_lshrrev_b32 v253, 3, v251")
        A("v_add_u32 v252, v252, v253")
        A("v_lshlrev_b32 v252, 7, v252")
        A("v_and_b32 v253, 3, v248")
        A("v_and_b32 v250, 1, v249")
        A("v_lshl_add_u32 v253, v250, 2, v253")
        A("v_lshl_add_u32 v252, v253, 2, v252")
        A(f"v_add_u32 {v(PFA2)}, {FLG + F_A2}, v252")
        A(f"s_and_b32 {s(S_T0)}, {s(S_WV)}, 1")
        A(f"s_lshl_b32 {s(S_T0)}, {s(S_T0)}, 15")
        A(f"s_lshl_b32 {s(S_T2)}, {s(S_HD)}, 14")
        A(f"s_add_u32 {s(S_T0)}, {s(S_T0)}, {s(S_T2)}")
        A(f"v_add_u32 {v(PAO)}, {s(S_T0)}, {v(PL16)}")
        A("v_and_b32 v248, 15, v1")
        A("v_lshrrev_b32 v248, 2, v248")
        A("v_lshrrev_b32 v249, 5, v1")
        A("v_lshl_add_u32 v249, v249, 2, v248")
        A("v_lshlrev_b32 v249, 7, v249")
        A("v_lshrrev_b32 v248, 1, v248")
        A(f"s_bfe_u32 {s(S_T0)}, {s(S_WV)}, 0x10001")
        A(f"v_xor_b32 v248, {s(S_T0)}, v248")
        A("v_lshl_add_u32 v249, v248, 6, v249")
        A("v_bfe_u32 v248, v1, 4, 1")
        A("v_lshl_add_u32 v249, v248, 5, v249")
        A("v_and_b32 v248, 3, v1")
        A("v_lshl_add_u32 v249, v248, 3, v249")
        A(f"s_lshl_b32 {s(S_T2)}, {s(S_HD)}, 15")
        A(f"s_add_u32 {s(S_T2)}, {s(S_T2)}, {LWO}")
        A(f"v_add_u32 {v(PAW)}, {s(S_T2)}, v249")
        A("v_and_b32 v248, 31, v1")
        A("v_lshrrev_b32 v249, 5, v1")
        A(f"s_lshl_b32 {s(S_T0)}, {s(S_T0)}, 3")
        A(f"v_add_u32 v249, {s(S_T0)}, v249")
        A("v_and_b32 v250, 15, v248")
        A("v_xor_b32 v249, v249, v250")
        A("v_lshlrev_b32 v249, 4, v249")
        A(f"s_and_b32 {s(S_T0)}, {s(S_WV)}, 1")
        A(f"s_lshl_b32 {s(S_T0)}, {s(S_T0)}, 13")
        A(f"s_mul_i32 {s(S_T2)}, {s(S_HD)}, {LS1 - LS0}")
        A(f"s_add_u32 {s(S_T0)}, {s(S_T0)}, {s(S_T2)}")
        A(f"s_add_u32 {s(S_T0)}, {s(S_T0)}, {LS0}")
        A("v_lshl_add_u32 v249, v248, 8, v249")
        A(f"v_add_u32 v249, {s(S_T0)}, v249")
        for m in range(4):
            A(f"v_xor_b32 {v(PPW[m])}, {m*32}, v249")
        A("v_lshrrev_b32 v248, 3, v0")
        A("v_and_b32 v249, 7, v0")
        A("v_lshlrev_b32 v250, 1, v249")
        A("v_and_b32 v251, 15, v248")
        A("v_xor_b32 v250, v250, v251")
        A("v_lshlrev_b32 v250, 4, v250")
        A("v_lshl_add_u32 v250, v248, 8, v250")
        A("v_xor_b32 v251, 16, v250")
        A(f"v_add_u32 {v(PPR[0])}, {LS0}, v250"); A(f"v_add_u32 {v(PPR[1])}, {LS0}, v251")
        A(f"v_add_u32 {v(PPR[2])}, {LS1}, v250"); A(f"v_add_u32 {v(PPR[3])}, {LS1}, v251")
        A(f"s_lshl_b32 {s(S_T0)}, {s(S_TB64)}, 17")
        A(f"s_lshr_b32 {s(S_T1)}, {s(S_J)}, 2")
        A(f"s_lshl_b32 {s(S_T1)}, {s(S_T1)}, 7")
        A(f"s_add_u32 {s(S_T0)}, {s(S_T0)}, {s(S_T1)}")
        A("v_lshlrev_b32 v250, 11, v248")
        A("v_lshl_add_u32 v250, v249, 4, v250")
        A(f"v_add_u32 {v(POUT)}, {s(S_T0)}, v250")
        A(f"s_setpc_b64 {s(S_LINK,2)}")
    def wo_dma(n):
        A(f"s_add_u32 m0, {s(S_WOL)}, {LWO + n*1024}")
        A(f"s_add_u32 {s(S_T1)}, {s(S_WOB)}, {n*8192}")
        A(f"buffer_load_dwordx4 {v(PWO)}, {s(R_WO,4)}, {s(S_T1)} offen {NT_WO} lds")

    stamp(0)
    DBG = opt.get("dbg", 0)
    if DBG: A("s_memrealtime s[8:9]")
    A("s_load_dwordx16 s[16:31], s[0:1], 0")
    A("s_load_dwordx8 s[32:39], s[0:1], 64")
    A("s_cmp_ge_u32 s2, 256")
    A("s_cbranch_scc1 L_end")
    A("v_and_b32 v1, 63, v0")
    A("v_lshrrev_b32 v2, 6, v0")
    A(f"s_and_b32 {s(S_XCD)}, s2, 7")
    A(f"s_lshr_b32 {s(S_J)}, s2, 3")
    A(f"v_readfirstlane_b32 {s(S_WV)}, v2")
    A(f"s_lshr_b32 {s(S_T0)}, {s(S_XCD)}, 1")
    A(f"s_lshl_b32 {s(S_T0)}, {s(S_T0)}, 2")
    A(f"s_and_b32 {s(S_T1)}, {s(S_J)}, 3")
    A(f"s_add_u32 {s(S_RB)}, {s(S_T0)}, {s(S_T1)}")
    A(f"s_and_b32 {s(S_T0)}, {s(S_XCD)}, 1")
    A(f"s_lshl_b32 {s(S_T0)}, {s(S_T0)}, 3")
    A(f"s_lshr_b32 {s(S_T1)}, {s(S_J)}, 2")
    A(f"s_add_u32 {s(S_HP)}, {s(S_T0)}, {s(S_T1)}")
    A(f"s_and_b32 {s(S_LI)}, {s(S_WV)}, 3")
    A("v_and_b32 v3, 31, v1")
    A("v_lshrrev_b32 v4, 5, v1")
    A(f"s_cmp_ge_u32 {s(S_WV)}, 4")
    A("s_cbranch_scc1 L_lwave")
    A("v_lshrrev_b32 v5, 3, v1")
    A("v_and_b32 v6, 7, v1")
    A("v_lshlrev_b32 v6, 4, v6")
    A(f"s_lshl_b32 {s(S_T0)}, {s(S_J)}, 6")
    A(f"s_lshl_b32 {s(S_T1)}, {s(S_WV)}, 4")
    A(f"s_add_u32 {s(S_T0)}, {s(S_T0)}, {s(S_T1)}")
    A(f"v_add_u32 v5, {s(S_T0)}, v5")
    A("v_lshlrev_b32 v5, 10, v5")
    A(f"s_lshl_b32 {s(S_T1)}, {s(S_XCD)}, 7")
    A(f"v_add3_u32 v7, v5, v6, {s(S_T1)}")
    A("v_add_u32 v8, 0xffffe000, v7")
    A("v_add_u32 v9, 0x2000, v7")
    A(f"s_mul_i32 {s(S_T4)}, {s(S_WV)}, 5120")
    A(f"s_add_u32 {s(S_T4)}, {s(S_T4)}, {KVS}")
    A(f"s_lshl_b32 {s(S_T0)}, {s(S_XCD)}, 9")
    A("v_lshlrev_b32 v11, 4, v3")
    A(f"v_add_u32 v11, {s(S_T0)}, v11")
    A("s_waitcnt lgkmcnt(0)")
    stamp(1)
    srd(R_BK, S_BK, 2048*1024)
    srd(R_X, S_BV, 2048*1024)
    A(f"s_load_dword {s(S_NONCE)}, {s(S_WS,2)}, {EP}")
    for n, vr in enumerate((8, 7, 9)):
        A(f"s_add_u32 m0, {s(S_T4)}, {n*1024}")
        A(f"buffer_load_dwordx4 {v(vr)}, {s(R_BK,4)}, 0 offen {NT_B} lds")
    for n, vr in enumerate((7, 9)):
        A(f"s_add_u32 m0, {s(S_T4)}, {3072 + n*1024}")
        A(f"buffer_load_dwordx4 {v(vr)}, {s(R_X,4)}, 0 offen {NT_B} lds")
    A(f"global_load_dwordx4 v[36:39], v11, {s(S_SK,2)}")
    XA, XB, WA, WB, WC = 144, 148, 152, 153, 154
    A(f"s_lshl_b32 {s(S_T0)}, {s(S_LI)}, 5")
    A(f"v_add_u32 v110, {s(S_T0)}, v3")
    A("v_lshrrev_b32 v111, 1, v110")
    A("v_and_b32 v111, 7, v111")
    A("v_xor_b32 v111, v111, v4")
    A("v_lshlrev_b32 v111, 4, v111")
    A("v_lshl_add_u32 v111, v110, 7, v111")
    for st in range(4):
        A(f"v_xor_b32 {v(XA+st)}, {st*32}, v111")
        A(f"v_add_u32 {v(XB+st)}, {2*STG}, {v(XA+st)}")
    A("v_and_b32 v110, 15, v1")
    A("v_lshrrev_b32 v110, 2, v110")
    A("v_lshl_add_u32 v110, v4, 3, v110")
    A("v_lshlrev_b32 v110, 6, v110")
    A("v_bfe_u32 v111, v1, 4, 1")
    A("v_lshl_add_u32 v110, v111, 5, v110")
    A("v_and_b32 v111, 3, v1")
    A("v_lshl_add_u32 v110, v111, 3, v110")
    A(f"v_add_u32 {v(WA)}, 16384, v110")
    A(f"v_add_u32 {v(WB)}, {2*STG}, {v(WA)}")
    A(f"v_add_u32 {v(WC)}, {4*STG}, {v(WA)}")
    ACC = 64
    FR = [160, 176, 128]
    def reads(n):
        c, st = n >> 2, n & 3
        stage = STAGE[c]
        xa = (XA if stage < 2 else XB) + st
        wa = WA if stage < 2 else WB if stage < 4 else WC
        so = (stage & 1) * STG
        xo = so if stage < 4 else 2*STG
        f = FR[n % 3]
        L = [f"ds_read_b128 {v(f,4)}, {v(xa)} offset:{xo}"]
        for p in range(3):
            L.append(f"ds_read_b64_tr_b16 {v(f+4+4*p,2)}, {v(wa)} offset:{so + p*4096 + st*1024}")
            L.append(f"ds_read_b64_tr_b16 {v(f+6+4*p,2)}, {v(wa)} offset:{so + p*4096 + st*1024 + 256}")
        return L
    def mfma(n, p):
        f = FR[n % 3]
        acc = v(ACC + 16*p, 16)
        cin = "0" if n == 0 else acc
        if p < 2: return f"{MF} {acc}, {v(f+4+4*p,4)}, {v(f,4)}, {cin}"
        else:     return f"{MF} {acc}, {v(f,4)}, {v(f+4+4*p,4)}, {cin}"
    def epi_addr():
        A("v_lshlrev_b32 v192, 4, v1")
        A(f"s_lshl_b32 {s(S_T0)}, {s(S_HP)}, 7")
        A(f"s_lshl_b32 {s(S_T1)}, {s(S_RB)}, 2")
        A(f"s_add_u32 {s(S_T0)}, {s(S_T0)}, {s(S_T1)}")
        A(f"s_add_u32 {s(S_T0)}, {s(S_T0)}, {s(S_LI)}")
        A(f"s_lshl_b32 {s(S_T0)}, {s(S_T0)}, 10")
        A(f"s_add_u32 {s(S_T1)}, {s(S_T0)}, {KW}")
        A(f"v_add_u32 v197, {s(S_T1)}, v192")
        A("v_add_u32 v198, 0x10000, v197")
        A("v_and_b32 v194, 15, v1")
        A("v_lshlrev_b32 v194, 4, v194")
        A("v_lshl_add_u32 v194, v4, 8, v194")
        A("v_bfe_u32 v195, v1, 4, 1")
        A(f"s_add_u32 {s(S_T1)}, {s(S_T0)}, {VW}")
        A("v_lshlrev_b32 v199, 16, v195")
        A(f"v_add3_u32 v199, v199, v194, {s(S_T1)}")
        A(f"s_lshl_b32 {s(S_T0)}, {s(S_LI)}, 10")
        A(f"v_add_u32 v193, {s(S_T0)}, v192")
        A(f"s_mul_i32 {s(S_T0)}, {s(S_LI)}, {VTS}")
        A(f"v_mov_b32 v196, {VHS}")
        A("v_mul_u32_u24 v196, v196, v195")
        A(f"v_add3_u32 v196, v196, v194, {s(S_T0)}")
    def halo_addr():
        srd(R_WS, S_WS, WS_BYTES)
        A(f"s_sub_u32 {s(S_T2)}, {s(S_RB)}, 1")
        A(f"s_sub_u32 {s(S_T3)}, {s(S_RB)}, 2")
        A(f"s_max_i32 {s(S_T3)}, {s(S_T3)}, 0")
        A(f"s_max_i32 {s(S_T2)}, {s(S_T2)}, 0")
        A("v_and_b32 v158, 1, v1")
        A("v_cmp_eq_u32 vcc, 1, v158")
        A(f"v_mov_b32 v158, {s(S_T2)}")
        A(f"v_mov_b32 v157, {s(S_T3)}")
        A("v_cndmask_b32 v158, v158, v157, vcc")
        A(f"s_and_b32 {s(S_T0)}, {s(S_HP)}, 7")
        A(f"s_lshl_b32 {s(S_T0)}, {s(S_T0)}, 5")
        A(f"s_lshr_b32 {s(S_T1)}, {s(S_HP)}, 3")
        A(f"s_add_u32 {s(S_T0)}, {s(S_T0)}, {s(S_T1)}")
        A("v_and_b32 v157, 3, v158")
        A("v_lshlrev_b32 v157, 3, v157")
        A("v_lshrrev_b32 v158, 2, v158")
        A("v_lshl_add_u32 v157, v158, 1, v157")
        A(f"v_add_u32 v157, {s(S_T0)}, v157")
        A("v_lshlrev_b32 v157, 7, v157")
        A(f"s_lshl_b32 {s(S_T0)}, {s(S_LI)}, 2")
        A(f"s_add_u32 {s(S_T0)}, {s(S_T0)}, {FLG + F_A1}")
        A(f"v_add_u32 v157, {s(S_T0)}, v157")
    A("v_lshlrev_b32 v5, 10, v4")
    A("v_lshl_add_u32 v5, v3, 2, v5")
    A(f"v_add_u32 v5, {s(S_T4)}, v5")
    A(f"s_lshl_b32 {s(S_T0)}, {s(S_WV)}, 1")
    A(f"v_add_u32 v6, {s(S_T0)}, v4")
    A("v_sub_u32 v112, 7, v6")
    A("v_and_b32 v113, 7, v3")
    A("v_xor_b32 v112, v112, v113")
    A("v_lshlrev_b32 v112, 4, v112")
    A("v_lshl_add_u32 v112, v3, 8, v112")
    A(f"v_add_u32 v112, {T0}, v112")
    A("v_lshrrev_b32 v114, 3, v1")
    A(f"s_lshl_b32 {s(S_T0)}, {s(S_LI)}, 4")
    A(f"v_add_u32 v114, {s(S_T0)}, v114")
    A("v_and_b32 v115, 7, v1")
    A("v_lshrrev_b32 v116, 1, v114")
    A("v_and_b32 v116, 7, v116")
    A("v_xor_b32 v116, v116, v115")
    A("v_lshlrev_b32 v117, 7, v114")
    A("v_lshl_add_u32 v118, v116, 4, v117")
    A("v_xor_b32 v116, 4, v116")
    A("v_lshl_add_u32 v119, v116, 4, v117")
    A(f"v_add_u32 v118, {T0}, v118")
    A(f"v_add_u32 v119, {T0 + 1024}, v119")
    A(f"s_lshl_b32 {s(S_T0)}, {s(S_XCD)}, 18")
    A(f"s_lshl_b32 {s(S_T1)}, {s(S_J)}, 7")
    A(f"s_sub_u32 {s(S_T0)}, {s(S_T0)}, {s(S_T1)}")
    A(f"s_add_u32 {s(S_T0)}, {s(S_T0)}, {UR + 1984*2}")
    A("v_lshlrev_b32 v120, 12, v114")
    A("v_lshl_add_u32 v120, v115, 4, v120")
    A(f"v_add_u32 v120, {s(S_T0)}, v120")
    A("v_add_u32 v121, 0x8000, v120")
    epi_addr(); halo_addr()
    A("s_waitcnt vmcnt(0) lgkmcnt(0)")
    stamp(2)
    for r in range(11):
        A(f"ds_read_b32 {v(16+r)}, v5 offset:{(5+r)*128}")
    for r in range(8):
        A(f"ds_read_b32 {v(28+r)}, v5 offset:{3072 + r*128}")
    A("v_lshlrev_b32 v78, 16, v36"); A("v_lshlrev_b32 v79, 16, v38")
    A("v_and_b32 v80, 0xffff0000, v36"); A("v_and_b32 v81, 0xffff0000, v38")
    A("v_lshlrev_b32 v82, 16, v37"); A("v_lshlrev_b32 v83, 16, v39")
    A("v_and_b32 v84, 0xffff0000, v37"); A("v_and_b32 v85, 0xffff0000, v39")
    A(f"s_add_u32 {s(S_NONCE)}, {s(S_NONCE)}, 1")
    A("s_waitcnt lgkmcnt(8)")
    for r in range(11):
        A(f"v_lshlrev_b32 {v(40+2*r)}, 16, {v(16+r)}")
        A(f"v_and_b32 {v(41+2*r)}, 0xffff0000, {v(16+r)}")
    for tau in range(8):
        A(f"v_pk_mul_f32 {v(86+2*tau,2)}, {v(40+2*(tau+3),2)}, {v(78,2)}")
    for jj in range(1, 4):
        for tau in range(8):
            d = 86 + 2*tau
            A(f"v_pk_fma_f32 {v(d,2)}, {v(40+2*(tau+3-jj),2)}, {v(78+2*jj,2)}, {v(d,2)}")
    A("s_waitcnt lgkmcnt(0)")
    for r in range(8):
        A(f"v_lshlrev_b32 {v(62+2*r)}, 16, {v(28+r)}")
        A(f"v_and_b32 {v(63+2*r)}, 0xffff0000, {v(28+r)}")
    for tau in range(8):
        d = 86 + 2*tau
        A(f"v_pk_mul_f32 {v(d,2)}, {v(d,2)}, {v(62+2*tau,2)}")
    for e in range(4):
        A(f"v_cvt_pk_bf16_f32 {v(104+e)}, {v(86+2*(7-2*e))}, {v(86+2*(6-2*e))}")
        A(f"v_cvt_pk_bf16_f32 {v(108+e)}, {v(87+2*(7-2*e))}, {v(87+2*(6-2*e))}")
    A("ds_write_b128 v112, v[104:107]")
    A("ds_write_b128 v112, v[108:111] offset:128")
    A(f"s_lshl_b32 {s(S_T0)}, {s(S_LI)}, 2")
    A(f"s_add_u32 {s(S_T0)}, {s(S_T0)}, {CSW}")
    A(f"v_mov_b32 v155, {s(S_T0)}")
    A("v_mov_b32 v156, 0")
    A("ds_write_b32 v155, v156")
    A(f"v_mov_b32 v16, {OK2}")
    A("ds_write_b32 v16, v156")
    A("s_waitcnt lgkmcnt(0)")
    stamp(3)
    A("s_barrier")
    stamp(4)
    A("ds_read_b128 v[24:27], v118")
    A("ds_read_b128 v[28:31], v119")
    for t in reads(0): A(t)
    A("s_waitcnt lgkmcnt(7)")
    A(f"global_store_dwordx4 v120, v[24:27], {s(S_WS,2)} {SCS}")
    A(f"global_store_dwordx4 v121, v[28:31], {s(S_WS,2)} {SCS}")
    for t in reads(1): A(t)
    for n in range(32):
        if (n & 3) == 2 and n + 2 < 32:
            A("s_waitcnt lgkmcnt(0)")
            if n == 6:
                A("s_waitcnt vmcnt(0)")
                publish(F_B1, 16, 17)
            if prof and n <= 22: A(f"s_memtime s[{4+2*(n>>2)}:{5+2*(n>>2)}]")
            A("s_barrier")
        elif n + 1 < 32:
            A("s_waitcnt lgkmcnt(7)")
        else:
            A("s_waitcnt lgkmcnt(0)")
            A(f"v_mov_b32 v156, {s(S_NONCE)}")
            A("ds_write_b32 v155, v156")
        R = reads(n + 2) if n + 2 < 32 else []
        A(mfma(n, 0))
        for t in R[0:3]: A(t)
        A(mfma(n, 1))
        for t in R[3:5]: A(t)
        A(mfma(n, 2))
        for t in R[5:7]: A(t)
    if prof:
        A("s_waitcnt lgkmcnt(0)")
        for c in range(6): A(f"v_writelane_b32 v255, s{4+2*c}, {22+c}")
    stamp(5)
    PK = 112
    for i in range(8):
        A(f"v_cvt_pk_bf16_f32 {v(PK+8+i)}, {v(ACC+16+2*i)}, {v(ACC+17+2*i)}")
    A(f"global_store_dwordx4 v197, {v(PK+8,4)}, {s(S_WS,2)} {SCS}")
    A(f"global_store_dwordx4 v198, {v(PK+12,4)}, {s(S_WS,2)} {SCS}")
    for i in range(8):
        A(f"v_cvt_pk_bf16_f32 {v(PK+16+i)}, {v(ACC+32+2*i)}, {v(ACC+33+2*i)}")
    A(f"global_store_dwordx4 v199, {v(PK+16,4)}, {s(S_WS,2)} {SCS}")
    A(f"global_store_dwordx4 v199, {v(PK+20,4)}, {s(S_WS,2)} offset:512 {SCS}")
    A(f"s_mov_b32 {s(S_T0)}, {QSCALE}")
    for r in range(16):
        A(f"v_mul_f32 {v(ACC+r)}, {s(S_T0)}, {v(ACC+r)}")
    for i in range(8):
        A(f"v_cvt_pk_bf16_f32 {v(PK+i)}, {v(ACC+2*i)}, {v(ACC+2*i+1)}")
    A(f"ds_write_b128 v193, {v(PK+8,4)} offset:{LK + 8*1024}")
    A(f"ds_write_b128 v193, {v(PK+12,4)} offset:{LK + KHS + 8*1024}")
    A(f"ds_write_b128 v196, {v(PK+16,4)} offset:{LV + 8*VTS}")
    A(f"ds_write_b128 v196, {v(PK+20,4)} offset:{LV + 8*VTS + 512}")
    A(f"ds_write_b128 v193, {v(PK,4)} offset:{LQ}")
    A(f"ds_write_b128 v193, {v(PK+4,4)} offset:{LQ+4096}")
    A(f"s_cmp_lg_u32 {s(S_LI)}, 0")
    A("s_cbranch_scc1 L_c_nopad")
    A(f"v_mov_b32 v24, {ONES}"); A("v_mov_b32 v25, v24"); A("v_mov_b32 v26, v24"); A("v_mov_b32 v27, v24")
    A(f"v_mul_u32_u24 v28, {VTS}, v1")
    A("v_cmp_gt_u32 vcc, 24, v1")
    A(f"s_and_saveexec_b64 {s(S_EX,2)}, vcc")
    A(f"ds_write_b128 v28, v[24:27] offset:{LV + 1024}")
    A(f"s_mov_b64 exec, {s(S_EX,2)}")
    A("L_c_nopad:")
    A("s_waitcnt vmcnt(0)")
    publish(F_A1, 16, 17)
    stamp(6)
    A(f"s_cmp_eq_u32 {s(S_RB)}, 0")
    A("s_cbranch_scc1 L_c_nosample")
    flag_load(157, 158)
    A("L_c_nosample:")
    A(f"v_mov_b32 v16, {CSW}")
    A(f"s_mov_b32 {s(S_SPIN)}, {SPIN*8}")
    A("L_c_sync:")
    A("ds_read_b128 v[20:23], v16")
    A("s_waitcnt lgkmcnt(0)")
    A(f"v_cmp_ne_u32 vcc, {s(S_NONCE)}, v20")
    A(f"v_cmp_ne_u32 {s(S_CMP,2)}, {s(S_NONCE)}, v21")
    A(f"v_cmp_ne_u32 {s(S_CMP+2,2)}, {s(S_NONCE)}, v22")
    A(f"v_cmp_ne_u32 {s(S_CMP+4,2)}, {s(S_NONCE)}, v23")
    A(f"s_or_b64 vcc, vcc, {s(S_CMP,2)}")
    A(f"s_or_b64 vcc, vcc, {s(S_CMP+2,2)}")
    A(f"s_or_b64 vcc, vcc, {s(S_CMP+4,2)}")
    A("s_cbranch_vccz L_c_synced")
    A(f"s_sub_u32 {s(S_SPIN)}, {s(S_SPIN)}, 1")
    A(f"s_cmp_lg_u32 {s(S_SPIN)}, 0")
    A("s_cbranch_scc1 L_c_sync")
    A("L_c_synced:")
    A(f"s_mov_b32 {s(S_T4)}, {s(S_T2)}")
    A(f"s_mov_b32 {s(S_T5)}, {s(S_T3)}")
    A(f"s_call_b64 {s(S_LINK,2)}, L_sub_setup")
    A(f"s_mov_b32 {s(S_T2)}, {s(S_T4)}")
    A(f"s_mov_b32 {s(S_T3)}, {s(S_T5)}")
    A(f"s_cmp_eq_u32 {s(S_RB)}, 0")
    A("s_cbranch_scc1 L_c_halo_done")
    A("s_waitcnt vmcnt(0)")
    check_or_spin(157, 158, "L_poll_h")
    stamp(7)
    A("v_lshlrev_b32 v18, 4, v1")
    A(f"s_lshl_b32 {s(S_T4)}, {s(S_LI)}, 10")
    A(f"s_mul_i32 {s(S_T5)}, {s(S_LI)}, {VTS}")
    def halo(rbreg, toff):
        A(f"s_lshl_b32 {s(S_T0)}, {s(S_HP)}, 7")
        A(f"s_lshl_b32 {s(S_T1)}, {s(rbreg)}, 2")
        A(f"s_add_u32 {s(S_T0)}, {s(S_T0)}, {s(S_T1)}")
        A(f"s_add_u32 {s(S_T0)}, {s(S_T0)}, {s(S_LI)}")
        A(f"s_lshl_b32 {s(S_T0)}, {s(S_T0)}, 10")
        for hd in range(2):
            A(f"s_add_u32 m0, {s(S_T4)}, {LK + hd*KHS + toff*1024}")
            A(f"s_add_u32 {s(S_T1)}, {s(S_T0)}, {KW + hd*65536}")
            A(f"buffer_load_dwordx4 v18, {s(R_WS,4)}, {s(S_T1)} offen sc1 lds")
            A(f"s_add_u32 m0, {s(S_T5)}, {LV + hd*VHS + toff*VTS}")
            A(f"s_add_u32 {s(S_T1)}, {s(S_T0)}, {VW + hd*65536}")
            A(f"buffer_load_dwordx4 v18, {s(R_WS,4)}, {s(S_T1)} offen sc1 lds")
    halo(S_T2, 4)
    A(f"s_cmp_eq_u32 {s(S_RB)}, 1")
    A("s_cbranch_scc1 L_c_halo_done")
    halo(S_T3, 0)
    A("L_c_halo_done:")
    for n in range(8): wo_dma(n)
    A("s_barrier")
    A("s_waitcnt vmcnt(8) lgkmcnt(0)")
    stamp(8)
    A("s_barrier")
    stamp(9)
    A("s_branch L_a2")

    A("L_lwave:")
    A("v_lshrrev_b32 v220, 3, v1")
    A(f"s_lshl_b32 {s(S_T0)}, {s(S_RB)}, 7")
    A(f"s_lshl_b32 {s(S_T1)}, {s(S_LI)}, 5")
    A(f"s_add_u32 {s(S_T0)}, {s(S_T0)}, {s(S_T1)}")
    A(f"v_add_u32 v220, {s(S_T0)}, v220")
    A("v_lshlrev_b32 v220, 10, v220")
    A("v_and_b32 v221, 7, v1")
    A("v_lshrrev_b32 v222, 4, v1")
    A("v_xor_b32 v223, v221, v222")
    A("v_lshl_add_u32 v200, v223, 4, v220")
    A("v_xor_b32 v223, 4, v223")
    A("v_lshl_add_u32 v201, v223, 4, v220")
    A("v_lshrrev_b32 v220, 2, v1")
    A(f"s_lshl_b32 {s(S_T0)}, {s(S_LI)}, 4")
    A(f"v_add_u32 v220, {s(S_T0)}, v220")
    A(f"v_mul_u32_u24 v220, 3072, v220")
    A("v_and_b32 v221, 3, v1")
    A("v_lshlrev_b32 v221, 4, v221")
    A(f"s_lshl_b32 {s(S_T0)}, {s(S_HP)}, 6")
    A(f"v_add3_u32 v202, v220, v221, {s(S_T0)}")
    S_LX, S_LW = S_T4, S_T5
    A(f"s_lshl_b32 {s(S_LX)}, {s(S_LI)}, 12")
    A(f"s_lshl_b32 {s(S_LW)}, {s(S_LI)}, 10")
    A(f"s_lshl_b32 {s(S_CH)}, {s(S_XCD)}, 6")
    A(f"s_lshl_b32 {s(S_T1)}, {s(S_J)}, 1")
    A(f"s_add_u32 {s(S_CH)}, {s(S_CH)}, {s(S_T1)}")
    A(f"s_lshr_b32 {s(S_T1)}, {s(S_LI)}, 1")
    A(f"s_add_u32 {s(S_CH)}, {s(S_CH)}, {s(S_T1)}")
    A(f"s_mul_i32 {s(S_CBASE)}, {s(S_T1)}, {CB}")
    A(f"s_add_u32 {s(S_CBASE)}, {s(S_CBASE)}, {B2R}")
    A(f"s_and_b32 {s(S_T2)}, {s(S_LI)}, 1")
    A(f"s_lshl_b32 {s(S_T1)}, {s(S_CH)}, 12")
    A(f"s_lshl_b32 {s(S_T3)}, {s(S_T2)}, 11")
    A(f"s_add_u32 {s(S_T1)}, {s(S_T1)}, {s(S_T3)}")
    A("v_lshlrev_b32 v203, 4, v1")
    A(f"v_add_u32 v203, {s(S_T1)}, v203")
    A(f"s_lshl_b32 {s(S_T1)}, {s(S_CH)}, 1")
    A(f"s_and_b32 {s(S_T1)}, {s(S_T1)}, 0xfffffffc")
    A(f"v_mov_b32 v219, {s(S_T1)}")
    A("s_waitcnt lgkmcnt(0)")
    stamp(1)
    srd(R_X, S_X, 2048*1024)
    srd(R_W, S_WQKV, 512*3072)
    A(f"s_load_dword {s(S_NONCE)}, {s(S_WS,2)}, {EP}")
    if opt.get("rot", 1):
        A(f"s_and_b32 {s(S_T0)}, {s(S_RB)}, 3")
        A(f"s_lshl_b32 {s(S_T0)}, {s(S_T0)}, 1")
        A(f"s_add_u32 {s(S_ROT)}, {s(S_HP)}, {s(S_T0)}")
    else:
        A(f"s_mov_b32 {s(S_ROT)}, 0")
    def dma_chunk(c):
        st = STAGE[c] * STG
        A(f"s_add_u32 {s(S_T1)}, {s(S_ROT)}, {c}")
        A(f"s_and_b32 {s(S_T1)}, {s(S_T1)}, 7")
        A(f"s_mul_i32 {s(S_T2)}, {s(S_T1)}, {64*3072}")
        A(f"s_lshl_b32 {s(S_T1)}, {s(S_T1)}, 7")
        for n in range(4):
            A(f"s_add_u32 m0, {s(S_LX)}, {st + n*1024}")
            A(f"s_add_u32 {s(S_T0)}, {s(S_T1)}, {n*8192}")
            A(f"buffer_load_dwordx4 {v(200 + (n & 1))}, {s(R_X,4)}, {s(S_T0)} offen {NT_XW} lds")
        for p in range(3):
            A(f"s_add_u32 m0, {s(S_LW)}, {st + 16384 + p*4096}")
            A(f"s_add_u32 {s(S_T0)}, {s(S_T2)}, {p*1024}")
            A(f"buffer_load_dwordx4 v202, {s(R_W,4)}, {s(S_T0)} offen {NT_XW} lds")
    DIST = opt.get('dist', 3)
    for c in range(DIST): dma_chunk(c)
    def h_loads():
        srd(R_WO, S_SSMK, 512*4096)
        A(f"buffer_load_dwordx4 v[204:207], v203, {s(R_WO,4)}, 0 offen {NT_B}")
        A(f"buffer_load_dword v208, v203, {s(R_WO,4)}, 0 offen offset:16 {NT_B}")
        A(f"buffer_load_dwordx4 v[212:215], v203, {s(R_WO,4)}, 0 offen offset:1024 {NT_B}")
        A(f"buffer_load_dword v216, v203, {s(R_WO,4)}, 0 offen offset:1040 {NT_B}")
        A(f"global_load_dword v217, v219, {s(S_SD,2)}")
    stamp(2)
    AA, AB = 16, 24
    CA = [32, 64]
    CBf = [96, 128]
    CACC = 160
    def build_eo():
        A(f"s_and_b32 {s(S_T2)}, {s(S_LI)}, 1")
        A(f"s_lshr_b32 {s(S_T0)}, {s(S_LI)}, 1")
        A(f"s_lshl_b32 {s(S_T0)}, {s(S_T0)}, 4")
        A(f"v_lshrrev_b32 v217, {s(S_T0)}, v217")
        A("v_lshlrev_b32 v217, 16, v217")
        A("v_lshlrev_b32 v218, 16, v204")
        A("v_add_f32 v218, v217, v218")
        A("v_cvt_pk_bf16_f32 v218, v218, v218")
        A("v_and_b32 v218, 0xffff, v218")
        A("v_and_b32 v219, 0xffff0000, v204")
        A("v_or_b32 v219, v219, v218")
        A(f"v_mov_b32 v220, {s(S_T2)}")
        A("v_or_b32 v220, v220, v1")
        A("v_cmp_eq_u32 vcc, 0, v220")
        A("v_cndmask_b32 v204, v204, v219, vcc")
        for k in range(4):
            nxt = 205 + k if k < 3 else 208
            A(f"v_alignbit_b32 {v(228+k)}, {v(nxt)}, {v(204+k)}, 16")
        for k in range(4):
            nxt = 213 + k if k < 3 else 216
            A(f"v_alignbit_b32 {v(232+k)}, {v(nxt)}, {v(212+k)}, 16")
        A(f"s_lshl_b32 {s(S_T0)}, {s(S_T2)}, 11")
        A(f"s_add_u32 {s(S_T0)}, {s(S_T0)}, {s(S_CBASE)}")
        A("v_lshlrev_b32 v221, 4, v1")
        A(f"v_add_u32 v221, {s(S_T0)}, v221")
        A(f"ds_write_b128 v221, v[228:231] offset:{E_OFF + 32}")
        A(f"ds_write_b128 v221, v[232:235] offset:{E_OFF + 32 + 1024}")
        A(f"ds_write_b128 v221, v[204:207] offset:{O_OFF + 28}")
        A(f"ds_write_b128 v221, v[212:215] offset:{O_OFF + 28 + 1024}")
        A(f"s_cmp_lg_u32 {s(S_T2)}, 0")
        A("s_cbranch_scc1 L_l_nopad")
        A("v_mov_b32 v222, 0")
        A("v_readfirstlane_b32 %s, v218" % s(S_T0))
        A(f"s_lshl_b32 {s(S_T0)}, {s(S_T0)}, 16")
        A("v_lshlrev_b32 v223, 2, v1")
        A(f"v_add_u32 v223, {s(S_CBASE)}, v223")
        A(f"v_mov_b32 v236, {s(S_T0)}")
        A("v_cmp_eq_u32 vcc, 7, v1")
        A("v_cndmask_b32 v236, v222, v236, vcc")
        A("v_cmp_gt_u32 vcc, 8, v1")
        A(f"s_and_saveexec_b64 {s(S_EX,2)}, vcc")
        A(f"ds_write_b32 v223, v236 offset:{E_OFF}")
        A(f"s_mov_b64 exec, {s(S_EX,2)}")
        A("v_cmp_gt_u32 vcc, 7, v1")
        A(f"s_and_saveexec_b64 {s(S_EX,2)}, vcc")
        A(f"ds_write_b32 v223, v222 offset:{O_OFF}")
        A(f"s_mov_b64 exec, {s(S_EX,2)}")
        A("v_mov_b32 v237, 0")
        A("v_lshlrev_b32 v223, 3, v1")
        A(f"v_add_u32 v223, {s(S_CBASE)}, v223")
        A("v_mov_b32 v236, 0")
        A("v_cmp_gt_u32 vcc, 60, v1")
        A(f"s_and_saveexec_b64 {s(S_EX,2)}, vcc")
        A(f"ds_write_b64 v223, v[236:237] offset:{U_OFF + 4096}")
        A(f"s_mov_b64 exec, {s(S_EX,2)}")
        A("L_l_nopad:")
        A("s_waitcnt lgkmcnt(0)")
    def conv_addr():
        A("v_and_b32 v25, 15, v1")
        A("v_lshrrev_b32 v26, 4, v1")
        A("v_lshrrev_b32 v27, 1, v25")
        A("v_lshl_add_u32 v27, v26, 2, v27")
        A("v_lshlrev_b32 v27, 2, v27")
        A("v_and_b32 v28, 1, v25")
        A(f"v_mul_u32_u24 v28, {O_OFF}, v28")
        A(f"s_and_b32 {s(S_T2)}, {s(S_LI)}, 1")
        A(f"s_lshl_b32 {s(S_T0)}, {s(S_T2)}, 8")
        A(f"s_add_u32 {s(S_T0)}, {s(S_T0)}, {s(S_CBASE)}")
        A(f"v_add3_u32 {v(AA)}, v27, v28, {s(S_T0)}")
        for jj in range(1, 8):
            A(f"v_add_u32 {v(AA+jj)}, {512*jj}, {v(AA)}")
        A("v_lshlrev_b32 v27, 4, v26")
        A("v_lshlrev_b32 v28, 5, v25")
        A("v_sub_u32 v27, v27, v28")
        A(f"s_add_u32 {s(S_T0)}, {s(S_T0)}, {U_OFF + 480}")
        A(f"v_add_u32 {v(AB)}, {s(S_T0)}, v27")
    def ur_dma():
        A(f"s_lshl_b32 {s(S_T0)}, {s(S_CH)}, 12")
        A(f"s_add_u32 {s(S_T0)}, {s(S_T0)}, {UR}")
        A("v_lshlrev_b32 v29, 4, v1")
        for cs in range(2):
            for n in range(4):
                A(f"s_mov_b32 m0, {B2R + cs*CB + U_OFF + n*1024}")
                A(f"s_add_u32 {s(S_T1)}, {s(S_T0)}, {cs*4096 + n*1024}")
                A(f"buffer_load_dwordx4 v29, {s(R_WS,4)}, {s(S_T1)} offen sc1 lds")
    def lbar(c, n):
        if n is not None: A(f"s_waitcnt vmcnt({n})")
        if prof: A(f"s_memtime s[{80+2*c}:{81+2*c}]")
        A("s_barrier")
    A("s_waitcnt lgkmcnt(0)")
    A(f"v_mov_b32 v25, {OKW}")
    A("v_mov_b32 v26, 0")
    A("ds_write_b32 v25, v26")
    A("s_waitcnt lgkmcnt(0)")
    def b1_flag_sample():
        A("v_and_b32 v30, 31, v1")
        A("v_lshlrev_b32 v30, 10, v30")
        A(f"s_lshl_b32 {s(S_T0)}, {s(S_XCD)}, 7")
        A(f"s_lshr_b32 {s(S_T1)}, {s(S_J)}, 3")
        A(f"s_lshl_b32 {s(S_T1)}, {s(S_T1)}, 2")
        A(f"s_add_u32 {s(S_T0)}, {s(S_T0)}, {s(S_T1)}")
        A(f"s_add_u32 {s(S_T0)}, {s(S_T0)}, {FLG + F_B1}")
        A(f"v_add_u32 v30, {s(S_T0)}, v30")
        A(f"s_cmp_eq_u32 {s(S_LI)}, 0")
        A("s_cbranch_scc1 L_l_w4a")
        A(f"s_lshl_b32 {s(S_T0)}, s2, 7")
        A(f"s_add_u32 {s(S_T0)}, {s(S_T0)}, {FLG + F_B2}")
        A(f"v_mov_b32 v30, {s(S_T0)}")
        A("L_l_w4a:")
        flag_load(30, 31)
    if DIST == 3:
        lbar(0, 14)
        dma_chunk(3)
        A(f"s_add_u32 {s(S_NONCE)}, {s(S_NONCE)}, 1")
        srd(R_WS, S_WS, WS_BYTES)
        lbar(1, 14)
        dma_chunk(4)
        h_loads()
        lbar(2, 19)
        dma_chunk(5)
        lbar(3, 19)
        dma_chunk(6)
        lbar(4, 19)
        dma_chunk(7)
        b1_flag_sample()
        lbar(5, 15)
        build_eo()
        lbar(6, 8)
        conv_addr()
    else:
        lbar(0, 7)
        dma_chunk(2)
        A(f"s_add_u32 {s(S_NONCE)}, {s(S_NONCE)}, 1")
        srd(R_WS, S_WS, WS_BYTES)
        lbar(1, 7)
        dma_chunk(3)
        h_loads()
        lbar(2, 12)
        dma_chunk(4)
        lbar(3, 12)
        dma_chunk(5)
        lbar(4, 7)
        dma_chunk(6)
        lbar(5, 7)
        dma_chunk(7)
        b1_flag_sample()
        build_eo()
        lbar(6, 8)
        conv_addr()
    A("s_waitcnt vmcnt(0)")
    A(f"s_mov_b32 {s(S_OK)}, 0")
    A(f"s_cmp_lg_u32 {s(S_LI)}, 0")
    A("s_cbranch_scc1 L_l_late")
    A(f"v_cmp_ne_u32 vcc, {s(S_NONCE)}, v31")
    A("s_cbranch_vccnz L_l_late")
    ur_dma()
    A(f"s_mov_b32 {s(S_OK)}, 1")
    A("L_l_late:")
    if prof:
        A("s_memtime s[94:95]")
        A("s_waitcnt lgkmcnt(0)")
        for c in range(8): A(f"v_writelane_b32 v255, s{80+2*c}, {22+c}")
    A("s_barrier")
    stamp(5)
    A(f"v_mov_b32 v25, {OKW}")
    A(f"s_cmp_lg_u32 {s(S_LI)}, 0")
    A("s_cbranch_scc1 L_l_others")
    A(f"s_cmp_eq_u32 {s(S_OK)}, 1")
    A("s_cbranch_scc1 L_l_have")
    spin(30, 31, "L_poll_b1")
    ur_dma()
    A("L_l_have:")
    A("s_waitcnt vmcnt(0)")
    A(f"v_mov_b32 v26, {s(S_NONCE)}")
    A("ds_write_b32 v25, v26")
    A("s_waitcnt lgkmcnt(0)")
    A("s_branch L_l_go")
    A("L_l_others:")
    A(f"s_mov_b32 {s(S_SPIN)}, {SPIN*8}")
    A("L_l_ospin:")
    A("ds_read_b32 v26, v25")
    A("s_waitcnt lgkmcnt(0)")
    A(f"v_cmp_ne_u32 vcc, {s(S_NONCE)}, v26")
    A("s_cbranch_vccz L_l_go")
    A(f"s_sub_u32 {s(S_SPIN)}, {s(S_SPIN)}, 1")
    A(f"s_cmp_lg_u32 {s(S_SPIN)}, 0")
    A("s_cbranch_scc1 L_l_ospin")
    A("L_l_go:")
    stamp(7)
    def conv_reads(ii):
        st = ii & 1
        L = []
        for k in range(8):
            L.append(f"ds_read_b128 {v(CBf[st]+4*k,4)}, {v(AB)} offset:{512*(7-k) + 64*ii}")
            L.append(f"ds_read2_b32 {v(CA[st]+4*k,2)}, {v(AA+k)} offset0:{16*ii} offset1:{16*ii+1}")
            L.append(f"ds_read2_b32 {v(CA[st]+4*k+2,2)}, {v(AA+k)} offset0:{16*ii+2} offset1:{16*ii+3}")
        return L
    r0 = conv_reads(0)
    first = [r0[1], r0[2]] + [r0[3*k] for k in range(8)] + [x for k in range(1, 8) for x in (r0[3*k+1], r0[3*k+2])]
    for r in first: A(r)
    for ii in range(4):
        nxt = conv_reads(ii + 1) if ii < 3 else []
        st = ii & 1
        k = 0
        for jj in range(8):
            if ii == 0:
                if jj == 0: A("s_waitcnt lgkmcnt(14)")
                elif jj == 1: A("s_waitcnt lgkmcnt(0)")
            elif jj == 0:
                A("s_waitcnt lgkmcnt(0)")
            for cp in range(8 - jj):
                acc = v(CACC + 4*(cp + jj), 4)
                cin = "0" if (ii == 0 and jj == 0) else acc
                A(f"{MF16} {acc}, {v(CA[st]+4*jj,4)}, {v(CBf[st]+4*cp,4)}, {cin}")
                if k < len(nxt) and not (ii == 0 and jj == 0):
                    A(nxt[k]); k += 1
        while k < len(nxt):
            A(nxt[k]); k += 1
    stamp(8)
    A("s_nop 7")
    A(f"s_call_b64 {s(S_LINK,2)}, L_sub_setup")
    A(f"s_and_b32 {s(S_T2)}, {s(S_LI)}, 1")
    A("v_lshlrev_b32 v25, 4, v1")
    A(f"s_lshl_b32 {s(S_T0)}, {s(S_LI)}, 12")
    A(f"v_add_u32 v26, {s(S_T0)}, v25")
    A(f"s_xor_b32 {s(S_T0)}, {s(S_T0)}, 4096")
    A(f"v_add_u32 v27, {s(S_T0)}, v25")
    A(f"s_cmp_lg_u32 {s(S_T2)}, 0")
    A("s_cbranch_scc1 L_l_x1")
    for k in range(4):
        A(f"ds_write_b128 v26, {v(CACC+16+4*k,4)} offset:{LR + 1024*k}")
    A("s_waitcnt lgkmcnt(0)")
    A("s_barrier")
    for k in range(4):
        A(f"ds_read_b128 {v(32+4*k,4)}, v27 offset:{LR + 1024*k}")
    A("s_waitcnt lgkmcnt(0)")
    for r in range(16):
        A(f"v_add_f32 {v(48+r)}, {v(32+r)}, {v(CACC+r)}")
    A("s_branch L_l_x2")
    A("L_l_x1:")
    A("s_nop 7")
    for k in range(4):
        A(f"ds_write_b128 v26, {v(CACC+4*k,4)} offset:{LR + 1024*k}")
    A("s_waitcnt lgkmcnt(0)")
    A("s_barrier")
    for k in range(4):
        A(f"ds_read_b128 {v(32+4*k,4)}, v27 offset:{LR + 1024*k}")
    A("s_waitcnt lgkmcnt(0)")
    for r in range(16):
        A(f"v_add_f32 {v(48+r)}, {v(32+r)}, {v(CACC+16+r)}")
    A("L_l_x2:")
    for k in range(4):
        A(f"v_cvt_pk_bf16_f32 {v(32+2*k)}, {v(48+4*k)}, {v(49+4*k)}")
        A(f"v_cvt_pk_bf16_f32 {v(33+2*k)}, {v(50+4*k)}, {v(51+4*k)}")
    A("v_and_b32 v25, 15, v1")
    A("v_lshlrev_b32 v25, 5, v25")
    A("v_bfe_u32 v26, v1, 4, 1")
    A("v_lshl_add_u32 v25, v26, 9, v25")
    A("v_lshrrev_b32 v26, 5, v1")
    A("v_lshl_add_u32 v25, v26, 4, v25")
    A(f"s_lshl_b32 {s(S_T0)}, {s(S_CH)}, 12")
    A(f"s_lshl_b32 {s(S_T1)}, {s(S_T2)}, 11")
    A(f"s_add_u32 {s(S_T0)}, {s(S_T0)}, {s(S_T1)}")
    A(f"s_add_u32 {s(S_T0)}, {s(S_T0)}, {YT}")
    A(f"v_add_u32 v25, {s(S_T0)}, v25")
    A("v_permlane16_swap_b32 v32, v34")
    A("v_permlane16_swap_b32 v33, v35")
    A("v_permlane16_swap_b32 v36, v38")
    A("v_permlane16_swap_b32 v37, v39")
    A(f"global_store_dwordx4 v25, v[32:35], {s(S_WS,2)} {SCS}")
    A(f"global_store_dwordx4 v25, v[36:39], {s(S_WS,2)} offset:1024 {SCS}")
    for n in range(8): wo_dma(n)
    A("s_barrier")
    stamp(9)
    A("L_a2:")
    if DBG: A("s_memrealtime s[10:11]")
    if opt.get("prio", 1): A("s_setprio 1")
    Q, KF, SA, SB, CN, PP, VF, O = 16, 20, 56, 72, 88, 104, 120, 136
    AK, AV0, AV1, TM, TM2 = PAK, PAV0, PAV1, 155, 156
    TM3 = 169
    VQ3, VF2A, VF2 = 160, PFB2, 165
    A(f"ds_read_b128 {v(Q,4)}, {v(PAQ)} offset:{LQ}")
    order = [8, 0, 7, 6, 5, 4, 3, 2, 1]
    for jj in order:
        A(f"ds_read_b128 {v(KF+4*jj,4)}, {v(AK)} offset:{LK + jj*1024}")
    for r in range(4):
        A(f"global_load_dword {v(VQ3+r)}, {v(PQ3)}, {s(S_BQ,2)} offset:{1024*r} {NT_B}")
    buf = lambda jj: SA if (jj & 1) else SB
    A("s_waitcnt lgkmcnt(7)")
    A(f"{MF} {v(MM8,16)}, {v(KF+32,4)}, {v(Q,4)}, {v(MM8,16)}")
    A(f"{MF} {v(MM0,16)}, {v(KF+0,4)}, {v(Q,4)}, {v(MM0,16)}")
    A("s_waitcnt lgkmcnt(5)")
    A(f"{MF} {v(SA,16)}, {v(KF+28,4)}, {v(Q,4)}, 0")
    A(f"{MF} {v(SB,16)}, {v(KF+24,4)}, {v(Q,4)}, 0")
    A(f"s_cmp_gt_u32 {s(S_J0)}, 0")
    A("s_cbranch_scc1 L_st_nomerge")
    stubs.append(["L_st_nomerge:", "s_nop 15", "s_branch L_a2_nomerge"])
    for r in range(16):
        A(f"v_max_f32 {v(MM8+r)}, {v(MM0+r)}, {v(MM8+r)}")
    A("L_a2_nomerge:")
    A(f"v_max_f32 {v(TM)}, {v(MM8)}, {v(MM8+1)}")
    A(f"v_max_f32 {v(TM3)}, {v(MM8+2)}, {v(MM8+3)}")
    for r in range(4, 16, 2):
        t = TM if (r & 2) == 0 else TM3
        A(f"v_max3_f32 {v(t)}, {v(t)}, {v(MM8+r)}, {v(MM8+r+1)}")
    A("s_waitcnt lgkmcnt(0)")
    for jj in range(7, 0, -1):
        b = buf(jj)
        A(f"s_cmp_gt_u32 {s(S_J0)}, {jj}")
        A("s_cbranch_scc1 L_a2_p1done")
        for r in range(0, 16, 2):
            t = TM if (r & 2) == 0 else TM3
            A(f"v_max3_f32 {v(t)}, {v(t)}, {v(b+r)}, {v(b+r+1)}")
        if jj - 2 >= 1:
            A(f"{MF} {v(b,16)}, {v(KF+4*(jj-2),4)}, {v(Q,4)}, 0")
    A("L_a2_p1done:")
    A(f"v_max_f32 {v(TM)}, {v(TM)}, {v(TM3)}")
    A(f"v_mov_b32 {v(TM2)}, {v(TM)}")
    A(f"v_permlane32_swap_b32 {v(TM)}, {v(TM2)}")
    A(f"v_max_f32 {v(TM)}, {v(TM)}, {v(TM2)}")
    A(f"v_sub_f32 {v(TM2)}, 0, {v(TM)}")
    for r in range(16):
        A(f"v_mov_b32 {v(CN+r)}, {v(TM2)}")
    stamp(10)
    A(f"{MF} {v(SA,16)}, {v(KF+28,4)}, {v(Q,4)}, {v(CN,16)}")
    A(f"{MF} {v(SB,16)}, {v(KF+24,4)}, {v(Q,4)}, {v(CN,16)}")
    def vread(slot, jj, sidx):
        A(f"ds_read_b128 {v(VF+4*slot,4)}, {v(AV0 if sidx == 0 else AV1)} offset:{LV + jj*VTS + sidx*512}")
    vread(0, 8, 0); vread(1, 8, 1); vread(2, 0, 0); vread(3, 0, 1)
    def pub_b2(lab, n):
        A(f"s_waitcnt vmcnt({n})")
        A(f"s_cmp_lt_u32 {s(S_WV)}, 4")
        A(f"s_cbranch_scc1 {lab}")
        publish(F_B2, 157, 158)
        A(f"{lab}:")
    if opt.get("prio", 1): A("s_setprio 0")
    P0, P1 = PP, PP + 8
    for r in range(16):
        A(f"v_add_f32 {v(MM8+r)}, {v(TM2)}, {v(MM8+r)}")
    for r in range(16):
        A(f"v_exp_f32 {v(MM8+r)}, {v(MM8+r)}")
    for i in range(8):
        A(f"v_cvt_pk_bf16_f32 {v(P0+i)}, {v(MM8+2*i)}, {v(MM8+2*i+1)}")
    for i in range(8):
        A(f"v_and_b32 {v(P1+i)}, {v(MMK+i)}, {v(P0+i)}")
    for i in range(8):
        A(f"v_xor_b32 {v(P0+i)}, {v(P1+i)}, {v(P0+i)}")
    A("s_waitcnt lgkmcnt(0)")
    A(f"{MF} {v(O,16)}, {v(VF+0,4)}, {v(P0,4)}, 0")
    A(f"s_cmp_gt_u32 {s(S_J0)}, 0")
    A("s_cbranch_scc1 L_a2_nopv0")
    A(f"{MF} {v(O,16)}, {v(VF+8,4)}, {v(P1,4)}, {v(O,16)}")
    A(f"{MF} {v(O,16)}, {v(VF+12,4)}, {v(P1+4,4)}, {v(O,16)}")
    A("L_a2_nopv0:")
    pb = lambda jj: PP + 8*(jj & 1)
    sl = lambda jj: 2*(jj & 1)
    def pend(jj):
        if jj == 7: return [f"{MF} {v(O,16)}, {v(VF+4,4)}, {v(P0+4,4)}, {v(O,16)}"]
        p = jj + 1
        return [f"{MF} {v(O,16)}, {v(VF+4*sl(p),4)}, {v(pb(p),4)}, {v(O,16)}",
                f"{MF} {v(O,16)}, {v(VF+4*sl(p)+4,4)}, {v(pb(p)+4,4)}, {v(O,16)}"]
    for jj in range(7, 0, -1):
        b = buf(jj)
        A(f"s_cmp_gt_u32 {s(S_J0)}, {jj}")
        A(f"s_cbranch_scc1 L_st_p2_{jj}")
        def stub(jj=jj):
            A(f"L_st_p2_{jj}:")
            A("s_waitcnt lgkmcnt(0)")
            A("s_nop 1")
            for m in pend(jj): A(m)
            if jj >= 5: pub_b2(f"L_st_nopub_{jj}", 0)
            if jj >= 3:
                A(f"s_cmp_lg_u32 {s(S_WV)}, 0")
                A("s_cbranch_scc1 L_a2_p2done")
                flag_load(VF2A, VF2)
            A("s_branch L_a2_p2done")
        stubs.append(stub)
        pm = pend(jj)
        if prof: A(f"s_memtime s[{80+2*(7-jj)}:{81+2*(7-jj)}]")
        if jj == 5: pub_b2("L_a2_nopub", 12)
        for r in range(16):
            A(f"v_exp_f32 {v(b+r)}, {v(b+r)}")
            if r == 1:
                A("s_waitcnt lgkmcnt(0)")
                A(pm[0])
            if r == 7 and len(pm) > 1: A(pm[1])
            if r == 9:
                vread(sl(jj), jj, 0); vread(sl(jj) + 1, jj, 1)
            if jj == 3 and r == 13:
                A(f"s_cmp_lg_u32 {s(S_WV)}, 0")
                A("s_cbranch_scc1 L_a2_nosample")
                flag_load(VF2A, VF2)
                A("L_a2_nosample:")
        for i in range(8):
            A(f"v_cvt_pk_bf16_f32 {v(pb(jj)+i)}, {v(b+2*i)}, {v(b+2*i+1)}")
        if jj - 2 >= 1:
            A(f"{MF} {v(b,16)}, {v(KF+4*(jj-2),4)}, {v(Q,4)}, {v(CN,16)}")
    A("s_waitcnt lgkmcnt(0)")
    for m in pend(0): A(m)
    A("L_a2_p2done:")
    if prof:
        A("s_memtime s[94:95]")
        A("s_waitcnt lgkmcnt(0)")
        for c in range(8): A(f"v_writelane_b32 v255, s{80+2*c}, {54+c}")
    A("s_nop 15")
    A(f"v_rcp_f32 {v(TM)}, {v(O+8)}")
    for r in range(8):
        A(f"v_mul_f32 {v(O+r)}, {v(TM)}, {v(O+r)}")
    for i in range(4):
        A(f"v_cvt_pk_bf16_f32 {v(PP+i)}, {v(O+2*i)}, {v(O+2*i+1)}")
    A(f"global_store_dwordx4 {v(PO)}, {v(PP,4)}, {s(S_WS,2)} {SCS}")
    stamp(11)
    if prof:
        stamp(19)
        A("s_waitcnt vmcnt(1)")
        stamp(20)
    A("s_waitcnt vmcnt(0)")
    publish(F_A2, 157, 158)
    stamp(12)
    flag_load(PFA2, 31)
    A(f"s_cmp_lg_u32 {s(S_WV)}, 0")
    A("s_cbranch_scc1 L_nob2poll")
    check_or_spin(VF2A, VF2, "L_poll_b2")
    A(f"s_lshl_b32 {s(S_T0)}, {s(S_XCD)}, 18")
    A(f"s_lshl_b32 {s(S_T1)}, {s(S_J)}, 7")
    A(f"s_add_u32 {s(S_T0)}, {s(S_T0)}, {s(S_T1)}")
    A(f"s_add_u32 {s(S_T0)}, {s(S_T0)}, {YT}")
    for n in range(8):
        A(f"s_mov_b32 m0, {LYT + n*1024}")
        A(f"s_add_u32 {s(S_T1)}, {s(S_T0)}, {n*8*4096}")
        A(f"buffer_load_dwordx4 {v(PY0 + (n & 1))}, {s(R_WS,4)}, {s(S_T1)} offen sc1 lds")
    A("L_nob2poll:")
    A(f"s_or_b32 {s(S_T0)}, s2, {s(S_WV)}")
    A(f"s_cmp_lg_u32 {s(S_T0)}, 0")
    A("s_cbranch_scc0 L_st_epoch")
    stubs.append("EPOCH")
    A("L_noep:")
    A("s_barrier")
    stamp(13)
    A("s_waitcnt vmcnt(0)")
    A(f"v_mov_b32 v20, {OK2}")
    A(f"s_cmp_lg_u32 {s(S_WV)}, 0")
    A("s_cbranch_scc1 L_nosig")
    A(f"v_mov_b32 v21, {s(S_NONCE)}")
    A("ds_write_b32 v20, v21")
    A("L_nosig:")
    check_or_spin(PFA2, 31, "L_poll_a2")
    stamp(14)
    A(f"s_lshl_b32 {s(S_T0)}, {s(S_TB64)}, 16")
    A(f"s_lshl_b32 {s(S_T1)}, {s(S_WV)}, 12")
    A(f"s_add_u32 {s(S_T0)}, {s(S_T0)}, {s(S_T1)}")
    for hh in range(4):
        for ts in range(2):
            A(f"s_add_u32 m0, {s(S_T1)}, {LO + ts*32768 + hh*1024}")
            A(f"s_add_u32 {s(S_T2)}, {s(S_T0)}, {OW + ts*32768 + hh*1024}")
            A(f"buffer_load_dwordx4 {v(PL16)}, {s(R_WS,4)}, {s(S_T2)} offen sc1 lds")
    A(f"s_mov_b32 {s(S_SPIN)}, {SPIN*8}")
    A("L_y_spin:")
    A("ds_read_b32 v21, v20")
    A("s_waitcnt lgkmcnt(0)")
    A(f"v_cmp_ne_u32 vcc, {s(S_NONCE)}, v21")
    A("s_cbranch_vccz L_y_ok")
    A(f"s_sub_u32 {s(S_SPIN)}, {s(S_SPIN)}, 1")
    A(f"s_cmp_lg_u32 {s(S_SPIN)}, 0")
    A("s_cbranch_scc1 L_y_spin")
    A("L_y_ok:")
    A(f"ds_read_b64 v[22:23], {v(PYR)}")
    A(f"ds_read_b64 v[24:25], {v(PYR)} offset:128")
    for r in range(4):
        A(f"v_lshlrev_b32 {v(34+2*r)}, 16, {v(VQ3+r)}")
        A(f"v_and_b32 {v(35+2*r)}, 0xffff0000, {v(VQ3+r)}")
    A("s_waitcnt lgkmcnt(0)")
    A("v_lshlrev_b32 v42, 16, v22"); A("v_lshlrev_b32 v43, 16, v24")
    A("v_and_b32 v44, 0xffff0000, v22"); A("v_and_b32 v45, 0xffff0000, v24")
    A("v_lshlrev_b32 v46, 16, v23"); A("v_lshlrev_b32 v47, 16, v25")
    A("v_and_b32 v48, 0xffff0000, v23"); A("v_and_b32 v49, 0xffff0000, v25")
    for r in range(4):
        A(f"v_pk_mul_f32 {v(42+2*r,2)}, {v(42+2*r,2)}, {v(34+2*r,2)}")
    for r in range(4):
        A(f"v_cvt_pk_bf16_f32 {v(50+r)}, {v(42+2*r)}, {v(43+2*r)}")
    A(f"v_add_u32 v21, 0x1000, {v(PB3)}")
    A(f"global_store_dword {v(PB3)}, v50, {s(S_OUT,2)} {BST}")
    A(f"global_store_dword {v(PB3)}, v51, {s(S_OUT,2)} offset:2048 {BST}")
    A(f"global_store_dword v21, v52, {s(S_OUT,2)} {BST}")
    A(f"global_store_dword v21, v53, {s(S_OUT,2)} offset:2048 {BST}")
    A("s_waitcnt vmcnt(4)")
    stamp(15)
    A("s_barrier")
    stamp(16)
    OA = 80
    F3 = [32 + 8*i for i in range(6)]
    def a3reads(hs):
        f = F3[hs % 6]
        A(f"ds_read_b128 {v(f,4)}, {v(PAO)} offset:{hs*1024}")
        A(f"ds_read_b64_tr_b16 {v(f+4,2)}, {v(PAW)} offset:{hs*2048}")
        A(f"ds_read_b64_tr_b16 {v(f+6,2)}, {v(PAW)} offset:{hs*2048 + 1024}")
    DEP = 4
    for hs in range(DEP): a3reads(hs)
    for hs in range(16):
        if hs + DEP < 16:
            a3reads(hs + DEP); A(f"s_waitcnt lgkmcnt({3*DEP})")
        else:
            A(f"s_waitcnt lgkmcnt({3*(15-hs)})")
        f = F3[hs % 6]
        cin = "0" if hs == 0 else v(OA,16)
        A(f"{MF} {v(OA,16)}, {v(f+4,4)}, {v(f,4)}, {cin}")
    for m in range(4):
        A(f"ds_write_b128 {v(PPW[m])}, {v(OA+4*m,4)}")
    A("s_waitcnt lgkmcnt(0)")
    A("s_barrier")
    stamp(17)
    A(f"ds_read_b128 v[32:35], {v(PPR[0])}"); A(f"ds_read_b128 v[40:43], {v(PPR[2])}")
    A(f"ds_read_b128 v[36:39], {v(PPR[1])}"); A(f"ds_read_b128 v[44:47], {v(PPR[3])}")
    A("s_waitcnt lgkmcnt(0)")
    for r in range(8):
        A(f"v_add_f32 {v(32+r)}, {v(32+r)}, {v(40+r)}")
    for i in range(4):
        A(f"v_cvt_pk_bf16_f32 {v(48+i)}, {v(32+2*i)}, {v(33+2*i)}")
    A(f"global_store_dwordx4 {v(POUT)}, v[48:51], {s(S_OUT,2)} {FST}")
    if prof:
        stamp(18)
        A(f"s_lshl_b32 {s(S_T0)}, s2, 3")
        A(f"s_add_u32 {s(S_T0)}, {s(S_T0)}, {s(S_WV)}")
        A(f"s_lshl_b32 {s(S_T0)}, {s(S_T0)}, 8")
        A(f"s_add_u32 {s(S_T0)}, {s(S_T0)}, {PROF}")
        A("v_lshlrev_b32 v16, 2, v1")
        A(f"v_add_u32 v16, {s(S_T0)}, v16")
        A(f"global_store_dword v16, v255, {s(S_WS,2)}")
    if DBG:
        A("s_memrealtime s[12:13]")
        A("s_waitcnt lgkmcnt(0)")
        A("v_mov_b32 v16, 0")
        A("s_mov_b64 exec, 1")
        A("v_mov_b32 v17, s12"); A(f"global_atomic_umax v16, v17, {s(S_DBG,2)}")
        A("s_not_b32 s8, s8"); A("v_mov_b32 v17, s8"); A(f"global_atomic_umax v16, v17, {s(S_DBG,2)} offset:4")
        A("v_mov_b32 v17, s10"); A(f"global_atomic_umax v16, v17, {s(S_DBG,2)} offset:8")
        A("s_not_b32 s10, s10"); A("v_mov_b32 v17, s10"); A(f"global_atomic_umax v16, v17, {s(S_DBG,2)} offset:12")
        A("s_not_b32 s12, s12"); A("v_mov_b32 v17, s12"); A(f"global_atomic_umax v16, v17, {s(S_DBG,2)} offset:16")
    A("L_end:")
    A("s_endpgm")
    sub_setup()
    for st in stubs:
        if st == "EPOCH":
            A("L_st_epoch:")
            for q in range(4):
                A(f"v_lshlrev_b32 v157, 7, v1")
                A(f"v_add_u32 v157, {FLG + F_B1 + q*8192}, v157")
                spin(157, 158, f"L_poll_ep{q}")
            A(f"v_mov_b32 v157, {EP}")
            A(f"v_mov_b32 v158, {s(S_NONCE)}")
            A(f"s_mov_b64 {s(S_EX,2)}, exec")
            A("s_mov_b64 exec, 1")
            A(f"global_store_dword v157, v158, {s(S_WS,2)} {SCS}")
            A(f"s_mov_b64 exec, {s(S_EX,2)}")
            A("s_branch L_noep")
        elif callable(st):
            st()
        else:
            for line in st: A(line)
    n = a.fix_hazards()
    return a, n

HEAD = f"""; Fused sliding-window attention block + H3 SSM conv, one persistent launch (generated by gen/gen2.py)
; @launch grid=(256,1,1) block=(512,1,1) lds={LDS_BYTES}
.amdgcn_target "amdgcn-amd-amdhsa--gfx950"
.text
.globl {KN}
.p2align 8
.type {KN},@function
{KN}:
"""
TAIL = f""".section .rodata,"a"
.p2align 6
.amdhsa_kernel {KN}
  .amdhsa_next_free_vgpr 256
  .amdhsa_next_free_sgpr 102
  .amdhsa_accum_offset 256
  .amdhsa_group_segment_fixed_size 0
  .amdhsa_kernarg_size 96
  .amdhsa_user_sgpr_count 2
  .amdhsa_user_sgpr_kernarg_segment_ptr 1
  .amdhsa_system_sgpr_workgroup_id_x 1
.end_amdhsa_kernel
"""
if __name__ == "__main__":
    out = sys.argv[1] if len(sys.argv) > 1 else f"cdna_kernels/{NAME}.s"
    opt = {}
    for x in sys.argv[2:]:
        if "=" in x:
            k, val = x.split("="); opt[k] = int(val)
    a, n = build(prof=("prof" in sys.argv), opt=opt)
    open(out, "w").write(HEAD + a.text() + TAIL)
    print("instructions:", a.count(), "hazard pads:", n)
```

```python
import sys
from asmlib import Asm, v, s

NAME = "concat_heads__sliding_block__ssm_conv_h3__prompt"
KN = NAME + "_kernel"

FLG = 0x0
F_B1, F_A1, F_B2, F_A2 = 0, 32768, 65536, 98304
EP  = 0x20000
KW  = 0x100000
VW  = 0x300000
OW  = 0x500000
UR  = 0x700000
YT  = 0x900000
WS_BYTES = 0xB00000
PROF = 0xC00000

STG = 28672
B2R = 114688
CB  = 12864
T0  = B2R
KVS = 140416
E_OFF, O_OFF, U_OFF = 0, 4164, 8288
LK, LV, LQ = 0, 24576, 49536
KHS, VHS, VTS = 12288, 12480, 1040
LR  = 57728
LO  = 0
LWO = 81920
LS0, LS1 = 65536, 147456
LYT = 65536
CSW = 163808
OK2 = 163824
OKW = 163792
OKW_OLD = 163832
LDS_BYTES = 163840

S_X, S_WQKV, S_WO, S_BQ, S_BK, S_BV, S_SK, S_SSMK = 16, 18, 20, 22, 24, 26, 28, 30
S_SD, S_OUT, S_DBG, S_WS = 32, 34, 36, 38
R_X, R_W, R_BK, R_WS, R_WO = 40, 44, 48, 52, 56
S_NONCE, S_WV, S_J, S_XCD, S_RB, S_HP = 60, 61, 62, 63, 64, 65
S_T0, S_T1, S_T2, S_T3, S_T4, S_T5 = 66, 67, 68, 69, 70, 71
S_LI = 72
S_J0 = 73
S_SPIN = 74
S_OK = 75
S_EX = 76
S_CBASE, S_CH = 78, 79
S_CMP = 80
S_HD, S_TB64 = 96, 97
S_ROT = 75

PAK, PAV0, PAV1, PAQ = 192, 193, 194, 195
PFB2, PFA2, PY0, PY1, PYR, PO, PWO, PAO, PAW, POUT, PL16, PQ3 = 196, 197, 198, 199, 200, 201, 202, 203, 204, 205, 206, 207
PPW = [9, 10, 11, 12]
PPR = [13, 14, 15, 2]
PB3 = 8
S_LINK = 4
S_WOB, S_WOL = 6, 7
SPIN = 200000
NEGBIG = 0xF149F2CA
QSCALE = 0x3EB8AA3B
ONES = 0x3F803F80
STAGE = [0, 1, 2, 3, 0, 1, 2, 3]
MF = "v_mfma_f32_32x32x16_bf16"
MF16 = "v_mfma_f32_16x16x32_bf16"

def build(prof=False, opt=None):
    opt = opt or {}
    NT_B = "nt" if opt.get("nt_b", 0) else ""
    NT_XW = "nt" if opt.get("nt_xw", 0) else ""
    NT_WO = "nt" if opt.get("nt_wo", 0) else ""
    SCP = {0: "sc0 sc1", 1: "sc1"}[opt.get("sc_poll", 1)]
    SCS = {0: "sc0 sc1", 1: "sc1"}[opt.get("sc_store", 1)]
    SLEEP = opt.get("sleep", 0)
    FST = {0: "", 1: "sc0 sc1", 2: "nt", 3: "sc1"}[opt.get("fst", 2)]
    BST = {0: "", 1: "sc0 sc1", 2: "nt", 3: "sc1"}[opt.get("bst", 2)]
    a = Asm()
    A = a
    stubs = []
    def stamp(k):
        if not prof: return
        A("s_memrealtime s[100:101]")
        A("s_memtime s[98:99]")
        A("s_waitcnt lgkmcnt(0)")
        A(f"v_writelane_b32 v255, s100, {k}")
        A(f"v_writelane_b32 v255, s98, {k+32}")
    def srd(dst, base, nbytes):
        A(f"s_mov_b32 {s(dst)}, {s(base)}")
        A(f"s_and_b32 {s(dst+1)}, {s(base+1)}, 0xffff")
        A(f"s_mov_b32 {s(dst+2)}, {nbytes}")
        A(f"s_mov_b32 {s(dst+3)}, 0x00020000")
    def flag_load(vaddr, vtmp):
        A(f"global_load_dword {v(vtmp)}, {v(vaddr)}, {s(S_WS,2)} {SCP}")
    def spin(vaddr, vtmp, label):
        A(f"s_mov_b32 {s(S_SPIN)}, {SPIN}")
        A(f"{label}:")
        flag_load(vaddr, vtmp)
        A("s_waitcnt vmcnt(0)")
        A(f"v_cmp_ne_u32 vcc, {s(S_NONCE)}, {v(vtmp)}")
        A(f"s_cbranch_vccz {label}_done")
        if SLEEP: A(f"s_sleep {SLEEP}")
        A(f"s_sub_u32 {s(S_SPIN)}, {s(S_SPIN)}, 1")
        A(f"s_cmp_lg_u32 {s(S_SPIN)}, 0")
        A(f"s_cbranch_scc1 {label}")
        A(f"{label}_done:")
    def check_or_spin(vaddr, vtmp, label):
        A(f"v_cmp_ne_u32 vcc, {s(S_NONCE)}, {v(vtmp)}")
        A(f"s_cbranch_vccz {label}_done")
        spin(vaddr, vtmp, label)
    def publish(kind, vt0, vt1):
        A(f"s_lshl_b32 {s(S_T0)}, s2, 7")
        A(f"s_lshl_b32 {s(S_T1)}, {s(S_WV)}, 2")
        A(f"s_add_u32 {s(S_T0)}, {s(S_T0)}, {s(S_T1)}")
        A(f"s_add_u32 {s(S_T0)}, {s(S_T0)}, {FLG + kind}")
        A(f"v_mov_b32 {v(vt0)}, {s(S_T0)}")
        A(f"v_mov_b32 {v(vt1)}, {s(S_NONCE)}")
        A(f"s_mov_b64 {s(S_EX,2)}, exec")
        A(f"s_mov_b64 exec, 1")
        A(f"global_store_dword {v(vt0)}, {v(vt1)}, {s(S_WS,2)} {SCS}")
        A(f"s_mov_b64 exec, {s(S_EX,2)}")

    def record(fn):
        n0 = len(a.items)
        fn()
        out = [it.text for k, it in a.items[n0:]]
        assert all(k == "i" for k, it in a.items[n0:])
        del a.items[n0:]
        return out
    MM0, MM8, MMK = 208, 224, 240
    def gen_masks():
        A("v_and_b32 v248, 31, v1")
        A("v_lshrrev_b32 v249, 5, v1")
        A("v_lshlrev_b32 v249, 2, v249")
        A("v_sub_u32 v248, v248, v249")
        A(f"v_mov_b32 v249, {NEGBIG}")
        A("v_mov_b32 v250, 0xffff")
        for r in range(16):
            cst = (r & 3) + 8*(r >> 2)
            A(f"v_subrev_u32 {v(MM0+r)}, {cst}, v248")
        for r in range(16):
            A(f"v_ashrrev_i32 {v(MM0+r)}, 31, {v(MM0+r)}")
        for i in range(8):
            A(f"v_bfi_b32 {v(MMK+i)}, v250, {v(MM0+2*i)}, {v(MM0+2*i+1)}")
        for r in range(16):
            A(f"v_and_b32 {v(MM8+r)}, v249, {v(MM0+r)}")
        for r in range(16):
            A(f"v_xor_b32 {v(MM0+r)}, v249, {v(MM8+r)}")

    def sub_setup():
        A("L_sub_a:")
        gen_masks()
        A(f"s_lshr_b32 {s(S_HD)}, {s(S_WV)}, 2")
        A(f"s_lshl_b32 {s(S_T0)}, {s(S_RB)}, 2")
        A(f"s_add_u32 {s(S_T0)}, {s(S_T0)}, {s(S_LI)}")
        A(f"s_sub_i32 {s(S_J0)}, 8, {s(S_T0)}")
        A(f"s_max_i32 {s(S_J0)}, {s(S_J0)}, 0")
        A(f"v_lshlrev_b32 {v(PL16)}, 4, v1")
        A(f"s_lshl_b32 {s(S_T0)}, {s(S_HD)}, 12")
        A(f"s_lshl_b32 {s(S_T1)}, {s(S_LI)}, 10")
        A(f"s_add_u32 {s(S_T0)}, {s(S_T0)}, {s(S_T1)}")
        A(f"v_add_u32 {v(PAQ)}, {s(S_T0)}, {v(PL16)}")
        A(f"s_mul_i32 {s(S_T0)}, {s(S_HD)}, {KHS}")
        A(f"s_add_u32 {s(S_T0)}, {s(S_T0)}, {s(S_T1)}")
        A(f"v_add_u32 {v(PAK)}, {s(S_T0)}, {v(PL16)}")
        A(f"s_mul_i32 {s(S_T0)}, {s(S_HD)}, {VHS}")
        A(f"s_mul_i32 {s(S_T1)}, {s(S_LI)}, {VTS}")
        A(f"s_add_u32 {s(S_T0)}, {s(S_T0)}, {s(S_T1)}")
        A("v_and_b32 v248, 15, v1")
        A("v_lshlrev_b32 v248, 4, v248")
        A("v_lshrrev_b32 v249, 5, v1")
        A("v_lshl_add_u32 v248, v249, 8, v248")
        A("v_bfe_u32 v249, v1, 4, 1")
        A("v_cmp_eq_u32 vcc, 1, v249")
        A("v_mov_b32 v249, 1024")
        A("v_mov_b32 v250, 512")
        A(f"v_cndmask_b32 {v(PAV0)}, v248, v249, vcc")
        A(f"v_cndmask_b32 {v(PAV1)}, v248, v250, vcc")
        A(f"v_add_u32 {v(PAV0)}, {s(S_T0)}, {v(PAV0)}")
        A(f"v_add_u32 {v(PAV1)}, {s(S_T0)}, {v(PAV1)}")
        A(f"s_lshl_b32 {s(S_T0)}, {s(S_RB)}, 2")
        A(f"s_add_u32 {s(S_T0)}, {s(S_T0)}, {s(S_LI)}")
        A(f"s_lshl_b32 {s(S_T0)}, {s(S_T0)}, 5")
        A(f"s_lshl_b32 {s(S_T1)}, {s(S_HP)}, 1")
        A(f"s_add_u32 {s(S_T0)}, {s(S_T0)}, {s(S_T1)}")
        A(f"s_add_u32 {s(S_T0)}, {s(S_T0)}, {s(S_HD)}")
        A(f"s_lshl_b32 {s(S_T0)}, {s(S_T0)}, 10")
        A(f"s_add_u32 {s(S_T0)}, {s(S_T0)}, {OW}")
        A(f"v_add_u32 {v(PO)}, {s(S_T0)}, {v(PL16)}")
        A("v_lshrrev_b32 v248, 3, v1")
        A("v_bfe_u32 v249, v248, 1, 1")
        A("v_lshlrev_b32 v249, 2, v249")
        A("v_and_b32 v250, 7, v1")
        A("v_xor_b32 v249, v249, v250")
        A("v_lshlrev_b32 v249, 4, v249")
        A(f"v_lshl_add_u32 {v(PWO)}, v248, 10, v249")
        A(f"s_lshr_b32 {s(S_T0)}, {s(S_J)}, 2")
        A(f"s_lshl_b32 {s(S_T0)}, {s(S_T0)}, 7")
        A(f"s_lshl_b32 {s(S_T1)}, {s(S_WV)}, 16")
        A(f"s_add_u32 {s(S_WOB)}, {s(S_T0)}, {s(S_T1)}")
        A(f"s_lshl_b32 {s(S_WOL)}, {s(S_WV)}, 13")
        srd(R_WO, S_WO, 512*1024)
        A("v_and_b32 v248, 31, v1")
        A("v_lshrrev_b32 v249, 5, v1")
        A(f"s_lshl_b32 {s(S_T0)}, {s(S_WV)}, 1")
        A(f"v_add_u32 v249, {s(S_T0)}, v249")
        A(f"s_lshl_b32 {s(S_T0)}, {s(S_J)}, 6")
        A("v_lshlrev_b32 v250, 2, v249")
        A(f"v_add_u32 v250, {s(S_T0)}, v250")
        A(f"s_lshl_b32 {s(S_T0)}, {s(S_XCD)}, 7")
        A("v_lshlrev_b32 v251, 2, v248")
        A(f"v_add_u32 v251, {s(S_T0)}, v251")
        A(f"v_lshl_add_u32 {v(PQ3)}, v250, 10, v251")
        A(f"v_lshl_add_u32 {v(PB3)}, v250, 11, v251")
        A(f"v_add_u32 {v(PB3)}, 1024, {v(PB3)}")
        A("v_lshrrev_b32 v250, 1, v249")
        A("v_and_b32 v251, 7, v248")
        A("v_xor_b32 v250, v250, v251")
        A("v_lshlrev_b32 v250, 4, v250")
        A("v_and_b32 v251, 1, v249")
        A("v_lshl_add_u32 v250, v251, 3, v250")
        A("v_lshl_add_u32 v250, v248, 8, v250")
        A(f"v_add_u32 {v(PYR)}, {LYT}, v250")
        A(f"v_lshrrev_b32 {v(PFB2)}, 1, v1")
        A(f"v_lshlrev_b32 {v(PFB2)}, 10, {v(PFB2)}")
        A("v_and_b32 v248, 1, v1")
        A(f"v_lshl_add_u32 {v(PFB2)}, v248, 3, {v(PFB2)}")
        A(f"s_lshr_b32 {s(S_T0)}, {s(S_J)}, 4")
        A(f"s_add_u32 {s(S_T0)}, {s(S_T0)}, 4")
        A(f"s_lshl_b32 {s(S_T0)}, {s(S_T0)}, 2")
        A(f"s_lshl_b32 {s(S_T1)}, {s(S_XCD)}, 7")
        A(f"s_add_u32 {s(S_T0)}, {s(S_T0)}, {s(S_T1)}")
        A(f"s_add_u32 {s(S_T0)}, {s(S_T0)}, {FLG + F_B2}")
        A(f"v_add_u32 {v(PFB2)}, {s(S_T0)}, {v(PFB2)}")
        A(f"s_setpc_b64 {s(S_LINK,2)}")
    def tail_addr():
        A(f"s_lshl_b32 {s(S_TB64)}, {s(S_XCD)}, 2")
        A(f"s_and_b32 {s(S_T0)}, {s(S_J)}, 3")
        A(f"s_add_u32 {s(S_TB64)}, {s(S_TB64)}, {s(S_T0)}")
        A("v_and_b32 v248, 1, v1")
        A("v_bfe_u32 v249, v1, 1, 2")
        A(f"s_lshl_b32 {s(S_T0)}, {s(S_WV)}, 2")
        A(f"v_add_u32 v249, {s(S_T0)}, v249")
        A(f"s_lshl_b32 {s(S_T0)}, {s(S_TB64)}, 1")
        A(f"v_add_u32 v248, {s(S_T0)}, v248")
        A("v_lshrrev_b32 v250, 2, v248")
        A("v_lshrrev_b32 v251, 1, v249")
        A("v_and_b32 v252, 3, v250")
        A("v_and_b32 v253, 7, v251")
        A("v_lshl_add_u32 v252, v253, 2, v252")
        A("v_lshlrev_b32 v252, 3, v252")
        A("v_lshrrev_b32 v253, 2, v250")
        A("v_lshl_add_u32 v252, v253, 1, v252")
        A("v_lshrrev_b32 v253, 3, v251")
        A("v_add_u32 v252, v252, v253")
        A("v_lshlrev_b32 v252, 7, v252")
        A("v_and_b32 v253, 3, v248")
        A("v_and_b32 v250, 1, v249")
        A("v_lshl_add_u32 v253, v250, 2, v253")
        A("v_lshl_add_u32 v252, v253, 2, v252")
        A(f"v_add_u32 {v(PFA2)}, {FLG + F_A2}, v252")
        A("v_lshrrev_b32 v248, 3, v1")
        A("v_and_b32 v249, 7, v1")
        A("v_lshrrev_b32 v250, 1, v248")
        A("v_xor_b32 v249, v249, v250")
        A("v_lshlrev_b32 v248, 12, v248")
        A(f"v_lshl_add_u32 {v(PY0)}, v249, 4, v248")
        A("v_xor_b32 v249, 4, v249")
        A(f"v_lshl_add_u32 {v(PY1)}, v249, 4, v248")
        A(f"s_and_b32 {s(S_T0)}, {s(S_WV)}, 1")
        A(f"s_lshl_b32 {s(S_T0)}, {s(S_T0)}, 15")
        A(f"s_lshl_b32 {s(S_T2)}, {s(S_HD)}, 14")
        A(f"s_add_u32 {s(S_T0)}, {s(S_T0)}, {s(S_T2)}")
        A(f"v_add_u32 {v(PAO)}, {s(S_T0)}, {v(PL16)}")
        A("v_and_b32 v248, 15, v1")
        A("v_lshrrev_b32 v248, 2, v248")
        A("v_lshrrev_b32 v249, 5, v1")
        A("v_lshl_add_u32 v249, v249, 2, v248")
        A("v_lshlrev_b32 v249, 7, v249")
        A("v_lshrrev_b32 v248, 1, v248")
        A(f"s_bfe_u32 {s(S_T0)}, {s(S_WV)}, 0x10001")
        A(f"v_xor_b32 v248, {s(S_T0)}, v248")
        A("v_lshl_add_u32 v249, v248, 6, v249")
        A("v_bfe_u32 v248, v1, 4, 1")
        A("v_lshl_add_u32 v249, v248, 5, v249")
        A("v_and_b32 v248, 3, v1")
        A("v_lshl_add_u32 v249, v248, 3, v249")
        A(f"s_lshl_b32 {s(S_T2)}, {s(S_HD)}, 15")
        A(f"s_add_u32 {s(S_T2)}, {s(S_T2)}, {LWO}")
        A(f"v_add_u32 {v(PAW)}, {s(S_T2)}, v249")
        A("v_and_b32 v248, 31, v1")
        A("v_lshrrev_b32 v249, 5, v1")
        A(f"s_lshl_b32 {s(S_T0)}, {s(S_T0)}, 3")
        A(f"v_add_u32 v249, {s(S_T0)}, v249")
        A("v_and_b32 v250, 15, v248")
        A("v_xor_b32 v249, v249, v250")
        A("v_lshlrev_b32 v249, 4, v249")
        A(f"s_and_b32 {s(S_T0)}, {s(S_WV)}, 1")
        A(f"s_lshl_b32 {s(S_T0)}, {s(S_T0)}, 13")
        A(f"s_mul_i32 {s(S_T2)}, {s(S_HD)}, {LS1 - LS0}")
        A(f"s_add_u32 {s(S_T0)}, {s(S_T0)}, {s(S_T2)}")
        A(f"s_add_u32 {s(S_T0)}, {s(S_T0)}, {LS0}")
        A("v_lshl_add_u32 v249, v248, 8, v249")
        A(f"v_add_u32 v249, {s(S_T0)}, v249")
        for m in range(4):
            A(f"v_xor_b32 {v(PPW[m])}, {m*32}, v249")
        A("v_lshrrev_b32 v248, 3, v0")
        A("v_and_b32 v249, 7, v0")
        A("v_lshlrev_b32 v250, 1, v249")
        A("v_and_b32 v251, 15, v248")
        A("v_xor_b32 v250, v250, v251")
        A("v_lshlrev_b32 v250, 4, v250")
        A("v_lshl_add_u32 v250, v248, 8, v250")
        A("v_xor_b32 v251, 16, v250")
        A(f"v_add_u32 {v(PPR[0])}, {LS0}, v250"); A(f"v_add_u32 {v(PPR[1])}, {LS0}, v251")
        A(f"v_add_u32 {v(PPR[2])}, {LS1}, v250"); A(f"v_add_u32 {v(PPR[3])}, {LS1}, v251")
        A(f"s_lshl_b32 {s(S_T0)}, {s(S_TB64)}, 17")
        A(f"s_lshr_b32 {s(S_T1)}, {s(S_J)}, 2")
        A(f"s_lshl_b32 {s(S_T1)}, {s(S_T1)}, 7")
        A(f"s_add_u32 {s(S_T0)}, {s(S_T0)}, {s(S_T1)}")
        A("v_lshlrev_b32 v250, 11, v248")
        A("v_lshl_add_u32 v250, v249, 4, v250")
        A(f"v_add_u32 {v(POUT)}, {s(S_T0)}, v250")
    def call(lab): A(f"s_call_b64 {s(S_LINK,2)}, {lab}")
    def wo_dma(n):
        A(f"s_add_u32 m0, {s(S_WOL)}, {LWO + n*1024}")
        A(f"s_add_u32 {s(S_T1)}, {s(S_WOB)}, {n*8192}")
        A(f"buffer_load_dwordx4 {v(PWO)}, {s(R_WO,4)}, {s(S_T1)} offen {NT_WO} lds")

    stamp(0)
    DBG = opt.get("dbg", 0)
    if DBG: A("s_memrealtime s[8:9]")
    A("s_load_dwordx16 s[16:31], s[0:1], 0")
    A("s_load_dwordx8 s[32:39], s[0:1], 64")
    A("s_cmp_ge_u32 s2, 256")
    A("s_cbranch_scc1 L_end")
    A("v_and_b32 v1, 63, v0")
    A("v_lshrrev_b32 v2, 6, v0")
    A(f"s_and_b32 {s(S_XCD)}, s2, 7")
    A(f"s_lshr_b32 {s(S_J)}, s2, 3")
    A(f"v_readfirstlane_b32 {s(S_WV)}, v2")
    A(f"s_lshr_b32 {s(S_T0)}, {s(S_XCD)}, 1")
    A(f"s_lshl_b32 {s(S_T0)}, {s(S_T0)}, 2")
    A(f"s_and_b32 {s(S_T1)}, {s(S_J)}, 3")
    A(f"s_add_u32 {s(S_RB)}, {s(S_T0)}, {s(S_T1)}")
    A(f"s_and_b32 {s(S_T0)}, {s(S_XCD)}, 1")
    A(f"s_lshl_b32 {s(S_T0)}, {s(S_T0)}, 3")
    A(f"s_lshr_b32 {s(S_T1)}, {s(S_J)}, 2")
    A(f"s_add_u32 {s(S_HP)}, {s(S_T0)}, {s(S_T1)}")
    A(f"s_and_b32 {s(S_LI)}, {s(S_WV)}, 3")
    A("v_and_b32 v3, 31, v1")
    A("v_lshrrev_b32 v4, 5, v1")
    A(f"s_cmp_ge_u32 {s(S_WV)}, 4")
    A("s_cbranch_scc1 L_lwave")
    A("v_lshrrev_b32 v5, 3, v1")
    A("v_and_b32 v6, 7, v1")
    A("v_lshlrev_b32 v6, 4, v6")
    A(f"s_lshl_b32 {s(S_T0)}, {s(S_J)}, 6")
    A(f"s_lshl_b32 {s(S_T1)}, {s(S_WV)}, 4")
    A(f"s_add_u32 {s(S_T0)}, {s(S_T0)}, {s(S_T1)}")
    A(f"v_add_u32 v5, {s(S_T0)}, v5")
    A("v_lshlrev_b32 v5, 10, v5")
    A(f"s_lshl_b32 {s(S_T1)}, {s(S_XCD)}, 7")
    A(f"v_add3_u32 v7, v5, v6, {s(S_T1)}")
    A("v_add_u32 v8, 0xffffe000, v7")
    A("v_add_u32 v9, 0x2000, v7")
    A(f"s_mul_i32 {s(S_T4)}, {s(S_WV)}, 5120")
    A(f"s_add_u32 {s(S_T4)}, {s(S_T4)}, {KVS}")
    A(f"s_lshl_b32 {s(S_T0)}, {s(S_XCD)}, 9")
    A("v_lshlrev_b32 v11, 4, v3")
    A(f"v_add_u32 v11, {s(S_T0)}, v11")
    A("s_waitcnt lgkmcnt(0)")
    stamp(1)
    srd(R_BK, S_BK, 2048*1024)
    srd(R_X, S_BV, 2048*1024)
    A(f"s_load_dword {s(S_NONCE)}, {s(S_WS,2)}, {EP}")
    for n, vr in enumerate((8, 7, 9)):
        A(f"s_add_u32 m0, {s(S_T4)}, {n*1024}")
        A(f"buffer_load_dwordx4 {v(vr)}, {s(R_BK,4)}, 0 offen {NT_B} lds")
    for n, vr in enumerate((7, 9)):
        A(f"s_add_u32 m0, {s(S_T4)}, {3072 + n*1024}")
        A(f"buffer_load_dwordx4 {v(vr)}, {s(R_X,4)}, 0 offen {NT_B} lds")
    A(f"global_load_dwordx4 v[36:39], v11, {s(S_SK,2)}")
    XA, XB, WA, WB, WC = 144, 148, 152, 153, 154
    A(f"s_lshl_b32 {s(S_T0)}, {s(S_LI)}, 5")
    A(f"v_add_u32 v110, {s(S_T0)}, v3")
    A("v_lshrrev_b32 v111, 1, v110")
    A("v_and_b32 v111, 7, v111")
    A("v_xor_b32 v111, v111, v4")
    A("v_lshlrev_b32 v111, 4, v111")
    A("v_lshl_add_u32 v111, v110, 7, v111")
    for st in range(4):
        A(f"v_xor_b32 {v(XA+st)}, {st*32}, v111")
        A(f"v_add_u32 {v(XB+st)}, {2*STG}, {v(XA+st)}")
    A("v_and_b32 v110, 15, v1")
    A("v_lshrrev_b32 v110, 2, v110")
    A("v_lshl_add_u32 v110, v4, 3, v110")
    A("v_lshlrev_b32 v110, 6, v110")
    A("v_bfe_u32 v111, v1, 4, 1")
    A("v_lshl_add_u32 v110, v111, 5, v110")
    A("v_and_b32 v111, 3, v1")
    A("v_lshl_add_u32 v110, v111, 3, v110")
    A(f"v_add_u32 {v(WA)}, 16384, v110")
    A(f"v_add_u32 {v(WB)}, {2*STG}, {v(WA)}")
    A(f"v_add_u32 {v(WC)}, {4*STG}, {v(WA)}")
    ACC = 64
    FR = [160, 176, 128]
    def reads(n):
        c, st = n >> 2, n & 3
        stage = STAGE[c]
        xa = (XA if stage < 2 else XB) + st
        wa = WA if stage < 2 else WB if stage < 4 else WC
        so = (stage & 1) * STG
        xo = so if stage < 4 else 2*STG
        f = FR[n % 3]
        L = [f"ds_read_b128 {v(f,4)}, {v(xa)} offset:{xo}"]
        for p in range(3):
            L.append(f"ds_read_b64_tr_b16 {v(f+4+4*p,2)}, {v(wa)} offset:{so + p*4096 + st*1024}")
            L.append(f"ds_read_b64_tr_b16 {v(f+6+4*p,2)}, {v(wa)} offset:{so + p*4096 + st*1024 + 256}")
        return L
    def mfma(n, p):
        f = FR[n % 3]
        acc = v(ACC + 16*p, 16)
        cin = "0" if n == 0 else acc
        if p < 2: return f"{MF} {acc}, {v(f+4+4*p,4)}, {v(f,4)}, {cin}"
        else:     return f"{MF} {acc}, {v(f,4)}, {v(f+4+4*p,4)}, {cin}"
    def epi_addr():
        A("v_lshlrev_b32 v32, 4, v1")
        A(f"s_lshl_b32 {s(S_T0)}, {s(S_HP)}, 7")
        A(f"s_lshl_b32 {s(S_T1)}, {s(S_RB)}, 2")
        A(f"s_add_u32 {s(S_T0)}, {s(S_T0)}, {s(S_T1)}")
        A(f"s_add_u32 {s(S_T0)}, {s(S_T0)}, {s(S_LI)}")
        A(f"s_lshl_b32 {s(S_T0)}, {s(S_T0)}, 10")
        A(f"s_add_u32 {s(S_T1)}, {s(S_T0)}, {KW}")
        A(f"v_add_u32 v37, {s(S_T1)}, v32")
        A("v_add_u32 v38, 0x10000, v37")
        A("v_and_b32 v34, 15, v1")
        A("v_lshlrev_b32 v34, 4, v34")
        A("v_lshl_add_u32 v34, v4, 8, v34")
        A("v_bfe_u32 v35, v1, 4, 1")
        A(f"s_add_u32 {s(S_T1)}, {s(S_T0)}, {VW}")
        A("v_lshlrev_b32 v39, 16, v35")
        A(f"v_add3_u32 v39, v39, v34, {s(S_T1)}")
        A(f"s_lshl_b32 {s(S_T0)}, {s(S_LI)}, 10")
        A(f"v_add_u32 v33, {s(S_T0)}, v32")
        A(f"s_mul_i32 {s(S_T0)}, {s(S_LI)}, {VTS}")
        A(f"v_mov_b32 v36, {VHS}")
        A("v_mul_u32_u24 v36, v36, v35")
        A(f"v_add3_u32 v36, v36, v34, {s(S_T0)}")
    def halo_addr():
        srd(R_WS, S_WS, WS_BYTES)
        A(f"s_sub_u32 {s(S_T2)}, {s(S_RB)}, 1")
        A(f"s_sub_u32 {s(S_T3)}, {s(S_RB)}, 2")
        A(f"s_max_i32 {s(S_T3)}, {s(S_T3)}, 0")
        A(f"s_max_i32 {s(S_T2)}, {s(S_T2)}, 0")
        A("v_and_b32 v158, 1, v1")
        A("v_cmp_eq_u32 vcc, 1, v158")
        A(f"v_mov_b32 v158, {s(S_T2)}")
        A(f"v_mov_b32 v157, {s(S_T3)}")
        A("v_cndmask_b32 v158, v158, v157, vcc")
        A(f"s_and_b32 {s(S_T0)}, {s(S_HP)}, 7")
        A(f"s_lshl_b32 {s(S_T0)}, {s(S_T0)}, 5")
        A(f"s_lshr_b32 {s(S_T1)}, {s(S_HP)}, 3")
        A(f"s_add_u32 {s(S_T0)}, {s(S_T0)}, {s(S_T1)}")
        A("v_and_b32 v157, 3, v158")
        A("v_lshlrev_b32 v157, 3, v157")
        A("v_lshrrev_b32 v158, 2, v158")
        A("v_lshl_add_u32 v157, v158, 1, v157")
        A(f"v_add_u32 v157, {s(S_T0)}, v157")
        A("v_lshlrev_b32 v157, 7, v157")
        A(f"s_lshl_b32 {s(S_T0)}, {s(S_LI)}, 2")
        A(f"s_add_u32 {s(S_T0)}, {s(S_T0)}, {FLG + F_A1}")
        A(f"v_add_u32 v157, {s(S_T0)}, v157")
    A("v_lshlrev_b32 v5, 10, v4")
    A("v_lshl_add_u32 v5, v3, 2, v5")
    A(f"v_add_u32 v5, {s(S_T4)}, v5")
    A(f"s_lshl_b32 {s(S_T0)}, {s(S_WV)}, 1")
    A(f"v_add_u32 v6, {s(S_T0)}, v4")
    A("v_sub_u32 v112, 7, v6")
    A("v_and_b32 v113, 7, v3")
    A("v_xor_b32 v112, v112, v113")
    A("v_lshlrev_b32 v112, 4, v112")
    A("v_lshl_add_u32 v112, v3, 8, v112")
    A(f"v_add_u32 v112, {T0}, v112")
    A("v_lshrrev_b32 v114, 3, v1")
    A(f"s_lshl_b32 {s(S_T0)}, {s(S_LI)}, 4")
    A(f"v_add_u32 v114, {s(S_T0)}, v114")
    A("v_and_b32 v115, 7, v1")
    A("v_lshrrev_b32 v116, 1, v114")
    A("v_and_b32 v116, 7, v116")
    A("v_xor_b32 v116, v116, v115")
    A("v_lshlrev_b32 v117, 7, v114")
    A("v_lshl_add_u32 v118, v116, 4, v117")
    A("v_xor_b32 v116, 4, v116")
    A("v_lshl_add_u32 v119, v116, 4, v117")
    A(f"v_add_u32 v118, {T0}, v118")
    A(f"v_add_u32 v119, {T0 + 1024}, v119")
    A(f"s_lshl_b32 {s(S_T0)}, {s(S_XCD)}, 18")
    A(f"s_lshl_b32 {s(S_T1)}, {s(S_J)}, 7")
    A(f"s_sub_u32 {s(S_T0)}, {s(S_T0)}, {s(S_T1)}")
    A(f"s_add_u32 {s(S_T0)}, {s(S_T0)}, {UR + 1984*2}")
    A("v_lshlrev_b32 v120, 12, v114")
    A("v_lshl_add_u32 v120, v115, 4, v120")
    A(f"v_add_u32 v120, {s(S_T0)}, v120")
    A("v_add_u32 v121, 0x8000, v120")
    A("s_waitcnt vmcnt(0) lgkmcnt(0)")
    stamp(2)
    for r in range(11):
        A(f"ds_read_b32 {v(16+r)}, v5 offset:{(5+r)*128}")
    for r in range(8):
        A(f"ds_read_b32 {v(28+r)}, v5 offset:{3072 + r*128}")
    A("v_lshlrev_b32 v78, 16, v36"); A("v_lshlrev_b32 v79, 16, v38")
    A("v_and_b32 v80, 0xffff0000, v36"); A("v_and_b32 v81, 0xffff0000, v38")
    A("v_lshlrev_b32 v82, 16, v37"); A("v_lshlrev_b32 v83, 16, v39")
    A("v_and_b32 v84, 0xffff0000, v37"); A("v_and_b32 v85, 0xffff0000, v39")
    A(f"s_add_u32 {s(S_NONCE)}, {s(S_NONCE)}, 1")
    A("s_waitcnt lgkmcnt(8)")
    for r in range(11):
        A(f"v_lshlrev_b32 {v(40+2*r)}, 16, {v(16+r)}")
        A(f"v_and_b32 {v(41+2*r)}, 0xffff0000, {v(16+r)}")
    for tau in range(8):
        A(f"v_pk_mul_f32 {v(86+2*tau,2)}, {v(40+2*(tau+3),2)}, {v(78,2)}")
    for jj in range(1, 4):
        for tau in range(8):
            d = 86 + 2*tau
            A(f"v_pk_fma_f32 {v(d,2)}, {v(40+2*(tau+3-jj),2)}, {v(78+2*jj,2)}, {v(d,2)}")
    A("s_waitcnt lgkmcnt(0)")
    for r in range(8):
        A(f"v_lshlrev_b32 {v(62+2*r)}, 16, {v(28+r)}")
        A(f"v_and_b32 {v(63+2*r)}, 0xffff0000, {v(28+r)}")
    for tau in range(8):
        d = 86 + 2*tau
        A(f"v_pk_mul_f32 {v(d,2)}, {v(d,2)}, {v(62+2*tau,2)}")
    for e in range(4):
        A(f"v_cvt_pk_bf16_f32 {v(104+e)}, {v(86+2*(7-2*e))}, {v(86+2*(6-2*e))}")
        A(f"v_cvt_pk_bf16_f32 {v(108+e)}, {v(87+2*(7-2*e))}, {v(87+2*(6-2*e))}")
    A("ds_write_b128 v112, v[104:107]")
    A("ds_write_b128 v112, v[108:111] offset:128")
    A(f"s_lshl_b32 {s(S_T0)}, {s(S_LI)}, 2")
    A(f"s_add_u32 {s(S_T0)}, {s(S_T0)}, {CSW}")
    A(f"v_mov_b32 v155, {s(S_T0)}")
    A("v_mov_b32 v156, 0")
    A("ds_write_b32 v155, v156")
    A(f"v_mov_b32 v16, {OK2}")
    A("ds_write_b32 v16, v156")
    A("s_waitcnt lgkmcnt(0)")
    stamp(3)
    A("s_barrier")
    stamp(4)
    A("ds_read_b128 v[24:27], v118")
    A("ds_read_b128 v[28:31], v119")
    for t in reads(0): A(t)
    A("s_waitcnt lgkmcnt(7)")
    A(f"global_store_dwordx4 v120, v[24:27], {s(S_WS,2)} {SCS}")
    A(f"global_store_dwordx4 v121, v[28:31], {s(S_WS,2)} {SCS}")
    for t in reads(1): A(t)
    for n in range(32):
        if (n & 3) == 2 and n + 2 < 32:
            A("s_waitcnt lgkmcnt(0)")
            if n == 2: epi_addr()
            if n == 6: halo_addr()
            if n == 10:
                A("s_waitcnt vmcnt(0)")
                publish(F_B1, 16, 17)

            if prof and n <= 14: A(f"s_memtime s[{8+2*(n>>2)}:{9+2*(n>>2)}]")
            A("s_barrier")
        elif n + 1 < 32:
            A("s_waitcnt lgkmcnt(7)")
        else:
            A("s_waitcnt lgkmcnt(0)")
            A(f"v_mov_b32 v156, {s(S_NONCE)}")
            A("ds_write_b32 v155, v156")
        R = reads(n + 2) if n + 2 < 32 else []
        A(mfma(n, 0))
        for t in R[0:3]: A(t)
        A(mfma(n, 1))
        for t in R[3:5]: A(t)
        A(mfma(n, 2))
        for t in R[5:7]: A(t)
    if prof:
        A("s_waitcnt lgkmcnt(0)")
        for c in range(4): A(f"v_writelane_b32 v255, s{8+2*c}, {22+c}")
    stamp(5)
    PK = 112
    for i in range(8):
        A(f"v_cvt_pk_bf16_f32 {v(PK+8+i)}, {v(ACC+16+2*i)}, {v(ACC+17+2*i)}")
    A(f"global_store_dwordx4 v37, {v(PK+8,4)}, {s(S_WS,2)} {SCS}")
    A(f"global_store_dwordx4 v38, {v(PK+12,4)}, {s(S_WS,2)} {SCS}")
    for i in range(8):
        A(f"v_cvt_pk_bf16_f32 {v(PK+16+i)}, {v(ACC+32+2*i)}, {v(ACC+33+2*i)}")
    A(f"global_store_dwordx4 v39, {v(PK+16,4)}, {s(S_WS,2)} {SCS}")
    A(f"global_store_dwordx4 v39, {v(PK+20,4)}, {s(S_WS,2)} offset:512 {SCS}")
    A(f"s_mov_b32 {s(S_T0)}, {QSCALE}")
    for r in range(16):
        A(f"v_mul_f32 {v(ACC+r)}, {s(S_T0)}, {v(ACC+r)}")
    for i in range(8):
        A(f"v_cvt_pk_bf16_f32 {v(PK+i)}, {v(ACC+2*i)}, {v(ACC+2*i+1)}")
    A(f"ds_write_b128 v33, {v(PK+8,4)} offset:{LK + 8*1024}")
    A(f"ds_write_b128 v33, {v(PK+12,4)} offset:{LK + KHS + 8*1024}")
    A(f"ds_write_b128 v36, {v(PK+16,4)} offset:{LV + 8*VTS}")
    A(f"ds_write_b128 v36, {v(PK+20,4)} offset:{LV + 8*VTS + 512}")
    A(f"ds_write_b128 v33, {v(PK,4)} offset:{LQ}")
    A(f"ds_write_b128 v33, {v(PK+4,4)} offset:{LQ+4096}")
    A(f"s_cmp_lg_u32 {s(S_LI)}, 0")
    A("s_cbranch_scc1 L_c_nopad")
    A(f"v_mov_b32 v24, {ONES}"); A("v_mov_b32 v25, v24"); A("v_mov_b32 v26, v24"); A("v_mov_b32 v27, v24")
    A(f"v_mul_u32_u24 v28, {VTS}, v1")
    A("v_cmp_gt_u32 vcc, 24, v1")
    A(f"s_and_saveexec_b64 {s(S_EX,2)}, vcc")
    A(f"ds_write_b128 v28, v[24:27] offset:{LV + 1024}")
    A(f"s_mov_b64 exec, {s(S_EX,2)}")
    A("L_c_nopad:")
    A("s_waitcnt vmcnt(0)")
    publish(F_A1, 16, 17)
    stamp(6)
    A(f"s_cmp_eq_u32 {s(S_RB)}, 0")
    A("s_cbranch_scc1 L_c_nosample")
    flag_load(157, 158)
    A("L_c_nosample:")
    A(f"v_mov_b32 v16, {CSW}")
    A(f"s_mov_b32 {s(S_SPIN)}, {SPIN*8}")
    A("L_c_sync:")
    A("ds_read_b128 v[20:23], v16")
    A("s_waitcnt lgkmcnt(0)")
    A(f"v_cmp_ne_u32 vcc, {s(S_NONCE)}, v20")
    A(f"v_cmp_ne_u32 {s(S_CMP,2)}, {s(S_NONCE)}, v21")
    A(f"v_cmp_ne_u32 {s(S_CMP+2,2)}, {s(S_NONCE)}, v22")
    A(f"v_cmp_ne_u32 {s(S_CMP+4,2)}, {s(S_NONCE)}, v23")
    A(f"s_or_b64 vcc, vcc, {s(S_CMP,2)}")
    A(f"s_or_b64 vcc, vcc, {s(S_CMP+2,2)}")
    A(f"s_or_b64 vcc, vcc, {s(S_CMP+4,2)}")
    A("s_cbranch_vccz L_c_synced")
    A(f"s_sub_u32 {s(S_SPIN)}, {s(S_SPIN)}, 1")
    A(f"s_cmp_lg_u32 {s(S_SPIN)}, 0")
    A("s_cbranch_scc1 L_c_sync")
    A("L_c_synced:")
    A(f"s_mov_b32 {s(S_T4)}, {s(S_T2)}")
    A(f"s_mov_b32 {s(S_T5)}, {s(S_T3)}")
    call("L_sub_a")
    A(f"s_mov_b32 {s(S_T2)}, {s(S_T4)}")
    A(f"s_mov_b32 {s(S_T3)}, {s(S_T5)}")
    A(f"s_cmp_eq_u32 {s(S_RB)}, 0")
    A("s_cbranch_scc1 L_c_halo_done")
    A("s_waitcnt vmcnt(0)")
    check_or_spin(157, 158, "L_poll_h")
    stamp(7)
    A("v_lshlrev_b32 v18, 4, v1")
    A(f"s_lshl_b32 {s(S_T4)}, {s(S_LI)}, 10")
    A(f"s_mul_i32 {s(S_T5)}, {s(S_LI)}, {VTS}")
    def halo(rbreg, toff):
        A(f"s_lshl_b32 {s(S_T0)}, {s(S_HP)}, 7")
        A(f"s_lshl_b32 {s(S_T1)}, {s(rbreg)}, 2")
        A(f"s_add_u32 {s(S_T0)}, {s(S_T0)}, {s(S_T1)}")
        A(f"s_add_u32 {s(S_T0)}, {s(S_T0)}, {s(S_LI)}")
        A(f"s_lshl_b32 {s(S_T0)}, {s(S_T0)}, 10")
        for hd in range(2):
            A(f"s_add_u32 m0, {s(S_T4)}, {LK + hd*KHS + toff*1024}")
            A(f"s_add_u32 {s(S_T1)}, {s(S_T0)}, {KW + hd*65536}")
            A(f"buffer_load_dwordx4 v18, {s(R_WS,4)}, {s(S_T1)} offen sc1 lds")
            A(f"s_add_u32 m0, {s(S_T5)}, {LV + hd*VHS + toff*VTS}")
            A(f"s_add_u32 {s(S_T1)}, {s(S_T0)}, {VW + hd*65536}")
            A(f"buffer_load_dwordx4 v18, {s(R_WS,4)}, {s(S_T1)} offen sc1 lds")
    halo(S_T2, 4)
    A(f"s_cmp_eq_u32 {s(S_RB)}, 1")
    A("s_cbranch_scc1 L_c_halo_done")
    halo(S_T3, 0)
    A("L_c_halo_done:")
    for n in range(8): wo_dma(n)
    A("s_barrier")
    A(f"s_add_u32 {s(S_WOL)}, {s(S_WOL)}, {4*8192}")
    A(f"s_add_u32 {s(S_WOB)}, {s(S_WOB)}, {4*65536}")
    for n in range(8): wo_dma(n)
    A("s_waitcnt vmcnt(16) lgkmcnt(0)")
    stamp(8)
    A("s_barrier")
    stamp(9)
    A("s_branch L_a2")

    A("L_lwave:")
    if opt.get("lprio", 0): A(f"s_setprio {opt.get('lprio')}")
    A("v_lshrrev_b32 v220, 3, v1")
    A(f"s_lshl_b32 {s(S_T0)}, {s(S_RB)}, 7")
    A(f"s_lshl_b32 {s(S_T1)}, {s(S_LI)}, 5")
    A(f"s_add_u32 {s(S_T0)}, {s(S_T0)}, {s(S_T1)}")
    A(f"v_add_u32 v220, {s(S_T0)}, v220")
    A("v_lshlrev_b32 v220, 10, v220")
    A("v_and_b32 v221, 7, v1")
    A("v_lshrrev_b32 v222, 4, v1")
    A("v_xor_b32 v223, v221, v222")
    A("v_lshl_add_u32 v200, v223, 4, v220")
    A("v_xor_b32 v223, 4, v223")
    A("v_lshl_add_u32 v201, v223, 4, v220")
    A("v_lshrrev_b32 v220, 2, v1")
    A(f"s_lshl_b32 {s(S_T0)}, {s(S_LI)}, 4")
    A(f"v_add_u32 v220, {s(S_T0)}, v220")
    A(f"v_mul_u32_u24 v220, 3072, v220")
    A("v_and_b32 v221, 3, v1")
    A("v_lshlrev_b32 v221, 4, v221")
    A(f"s_lshl_b32 {s(S_T0)}, {s(S_HP)}, 6")
    A(f"v_add3_u32 v202, v220, v221, {s(S_T0)}")
    S_LX, S_LW = S_T4, S_T5
    A(f"s_lshl_b32 {s(S_LX)}, {s(S_LI)}, 12")
    A(f"s_lshl_b32 {s(S_LW)}, {s(S_LI)}, 10")
    A(f"s_lshl_b32 {s(S_CH)}, {s(S_XCD)}, 6")
    A(f"s_lshl_b32 {s(S_T1)}, {s(S_J)}, 1")
    A(f"s_add_u32 {s(S_CH)}, {s(S_CH)}, {s(S_T1)}")
    A(f"s_lshr_b32 {s(S_T1)}, {s(S_LI)}, 1")
    A(f"s_add_u32 {s(S_CH)}, {s(S_CH)}, {s(S_T1)}")
    A(f"s_mul_i32 {s(S_CBASE)}, {s(S_T1)}, {CB}")
    A(f"s_add_u32 {s(S_CBASE)}, {s(S_CBASE)}, {B2R}")
    A(f"s_and_b32 {s(S_T2)}, {s(S_LI)}, 1")
    A(f"s_lshl_b32 {s(S_T1)}, {s(S_CH)}, 12")
    A(f"s_lshl_b32 {s(S_T3)}, {s(S_T2)}, 11")
    A(f"s_add_u32 {s(S_T1)}, {s(S_T1)}, {s(S_T3)}")
    A("v_lshlrev_b32 v203, 4, v1")
    A(f"v_add_u32 v203, {s(S_T1)}, v203")
    A("v_add_u32 v204, 2, v203")
    A("s_waitcnt lgkmcnt(0)")
    stamp(1)
    srd(R_X, S_X, 2048*1024)
    srd(R_W, S_WQKV, 512*3072)
    A(f"s_load_dword {s(S_NONCE)}, {s(S_WS,2)}, {EP}")
    if opt.get("rot", 1):
        A(f"s_and_b32 {s(S_T0)}, {s(S_RB)}, 3")
        A(f"s_lshl_b32 {s(S_T0)}, {s(S_T0)}, 1")
        A(f"s_add_u32 {s(S_ROT)}, {s(S_HP)}, {s(S_T0)}")
    else:
        A(f"s_mov_b32 {s(S_ROT)}, 0")
    def dma_chunk(c):
        st = STAGE[c] * STG
        A(f"s_add_u32 {s(S_T1)}, {s(S_ROT)}, {c}")
        A(f"s_and_b32 {s(S_T1)}, {s(S_T1)}, 7")
        A(f"s_mul_i32 {s(S_T2)}, {s(S_T1)}, {64*3072}")
        A(f"s_lshl_b32 {s(S_T1)}, {s(S_T1)}, 7")
        for n in range(4):
            A(f"s_add_u32 m0, {s(S_LX)}, {st + n*1024}")
            A(f"s_add_u32 {s(S_T0)}, {s(S_T1)}, {n*8192}")
            A(f"buffer_load_dwordx4 {v(200 + (n & 1))}, {s(R_X,4)}, {s(S_T0)} offen {NT_XW} lds")
        for p in range(3):
            A(f"s_add_u32 m0, {s(S_LW)}, {st + 16384 + p*4096}")
            A(f"s_add_u32 {s(S_T0)}, {s(S_T2)}, {p*1024}")
            A(f"buffer_load_dwordx4 v202, {s(R_W,4)}, {s(S_T0)} offen {NT_XW} lds")
    DIST = opt.get('dist', 3)
    for c in range(DIST): dma_chunk(c)
    def h_loads():
        srd(R_WO, S_SSMK, 512*4096)
        A(f"s_and_b32 {s(S_T2)}, {s(S_LI)}, 1")
        A(f"s_lshl_b32 {s(S_T2)}, {s(S_T2)}, 11")
        A(f"s_add_u32 {s(S_T2)}, {s(S_T2)}, {s(S_CBASE)}")
        for n in range(2):
            A(f"s_add_u32 m0, {s(S_T2)}, {O_OFF + 28 + n*1024}")
            A(f"s_mov_b32 {s(S_T0)}, {n*1024}")
            A(f"buffer_load_dwordx4 v203, {s(R_WO,4)}, {s(S_T0)} offen {NT_B} lds")
            A(f"s_add_u32 m0, {s(S_T2)}, {E_OFF + 32 + n*1024}")
            A(f"buffer_load_dwordx4 v204, {s(R_WO,4)}, {s(S_T0)} offen {NT_B} lds")
        A(f"s_lshl_b32 {s(S_T0)}, {s(S_CH)}, 12")
        A(f"v_mov_b32 v34, {s(S_T0)}")
        A(f"global_load_dword v32, v34, {s(S_SSMK,2)}")
        A(f"s_lshl_b32 {s(S_T0)}, {s(S_CH)}, 1")
        A(f"s_and_b32 {s(S_T0)}, {s(S_T0)}, 0xfffffffc")
        A(f"v_mov_b32 v35, {s(S_T0)}")
        A(f"global_load_dword v33, v35, {s(S_SD,2)}")
    stamp(2)
    AA, AB = 16, 24
    CA = [32, 64]
    CBf = [96, 128]
    CACC = 160
    def build_eo():
        A(f"s_and_b32 {s(S_T2)}, {s(S_LI)}, 1")
        A(f"s_cmp_lg_u32 {s(S_T2)}, 0")
        A("s_cbranch_scc1 L_l_nopad")
        A(f"s_lshr_b32 {s(S_T0)}, {s(S_LI)}, 1")
        A(f"s_lshl_b32 {s(S_T0)}, {s(S_T0)}, 4")
        A(f"v_lshrrev_b32 v33, {s(S_T0)}, v33")
        A("v_lshlrev_b32 v33, 16, v33")
        A("v_lshlrev_b32 v34, 16, v32")
        A("v_add_f32 v34, v33, v34")
        A("v_cvt_pk_bf16_f32 v34, v34, v34")
        A("v_and_b32 v34, 0xffff, v34")
        A("v_and_b32 v35, 0xffff0000, v32")
        A("v_or_b32 v35, v35, v34")
        A("v_lshlrev_b32 v34, 16, v34")
        A("v_mov_b32 v36, 0")
        A("v_lshlrev_b32 v37, 2, v1")
        A(f"v_add_u32 v37, {s(S_CBASE)}, v37")
        A("v_cmp_eq_u32 vcc, 7, v1")
        A("v_cndmask_b32 v34, v36, v34, vcc")
        A("v_cndmask_b32 v35, v36, v35, vcc")
        A("v_cmp_gt_u32 vcc, 8, v1")
        A(f"s_and_saveexec_b64 {s(S_EX,2)}, vcc")
        A(f"ds_write_b32 v37, v34 offset:{E_OFF}")
        A(f"ds_write_b32 v37, v35 offset:{O_OFF}")
        A(f"s_mov_b64 exec, {s(S_EX,2)}")
        A("v_mov_b32 v39, 0")
        A("v_mov_b32 v38, 0")
        A("v_lshlrev_b32 v37, 3, v1")
        A(f"v_add_u32 v37, {s(S_CBASE)}, v37")
        A("v_cmp_gt_u32 vcc, 60, v1")
        A(f"s_and_saveexec_b64 {s(S_EX,2)}, vcc")
        A(f"ds_write_b64 v37, v[38:39] offset:{U_OFF + 4096}")
        A(f"s_mov_b64 exec, {s(S_EX,2)}")
        A("L_l_nopad:")
        A("s_waitcnt lgkmcnt(0)")
    def conv_addr():
        A("v_and_b32 v25, 15, v1")
        A("v_lshrrev_b32 v26, 4, v1")
        A("v_lshrrev_b32 v27, 1, v25")
        A("v_lshl_add_u32 v27, v26, 2, v27")
        A("v_lshlrev_b32 v27, 2, v27")
        A("v_and_b32 v28, 1, v25")
        A(f"v_mul_u32_u24 v28, {O_OFF}, v28")
        A(f"s_and_b32 {s(S_T2)}, {s(S_LI)}, 1")
        A(f"s_lshl_b32 {s(S_T0)}, {s(S_T2)}, 8")
        A(f"s_add_u32 {s(S_T0)}, {s(S_T0)}, {s(S_CBASE)}")
        A(f"v_add3_u32 {v(AA)}, v27, v28, {s(S_T0)}")
        for jj in range(1, 8):
            A(f"v_add_u32 {v(AA+jj)}, {512*jj}, {v(AA)}")
        A("v_lshlrev_b32 v27, 4, v26")
        A("v_lshlrev_b32 v28, 5, v25")
        A("v_sub_u32 v27, v27, v28")
        A(f"s_add_u32 {s(S_T0)}, {s(S_T0)}, {U_OFF + 480}")
        A(f"v_add_u32 {v(AB)}, {s(S_T0)}, v27")
    def ur_dma():
        A(f"s_lshl_b32 {s(S_T0)}, {s(S_CH)}, 12")
        A(f"s_add_u32 {s(S_T0)}, {s(S_T0)}, {UR}")
        A("v_lshlrev_b32 v28, 4, v1")
        for cs in range(2):
            for n in range(4):
                A(f"s_mov_b32 m0, {B2R + cs*CB + U_OFF + n*1024}")
                A(f"s_add_u32 {s(S_T1)}, {s(S_T0)}, {cs*4096 + n*1024}")
                A(f"buffer_load_dwordx4 v28, {s(R_WS,4)}, {s(S_T1)} offen sc1 lds")
    def lbar(c, n):
        if n is not None: A(f"s_waitcnt vmcnt({n})")
        if prof:
            A("s_memtime s[98:99]"); A("s_waitcnt lgkmcnt(0)"); A(f"v_writelane_b32 v255, s98, {22+c}")
        A("s_barrier")
        if prof:
            A("s_memtime s[98:99]"); A("s_waitcnt lgkmcnt(0)"); A(f"v_writelane_b32 v255, s98, {54+c}")
    A("s_waitcnt lgkmcnt(0)")
    A(f"s_lshl_b32 {s(S_T0)}, {s(S_LI)}, 2")
    A(f"s_add_u32 {s(S_T0)}, {s(S_T0)}, {OKW}")
    A(f"v_mov_b32 v29, {s(S_T0)}")
    A("v_mov_b32 v26, 0")
    A("ds_write_b32 v29, v26")
    A("s_waitcnt lgkmcnt(0)")
    def b1_flag_sample():
        A("v_and_b32 v30, 31, v1")
        A("v_lshlrev_b32 v30, 10, v30")
        A(f"s_lshl_b32 {s(S_T0)}, {s(S_XCD)}, 7")
        A(f"s_lshr_b32 {s(S_T1)}, {s(S_J)}, 3")
        A(f"s_lshl_b32 {s(S_T1)}, {s(S_T1)}, 2")
        A(f"s_add_u32 {s(S_T0)}, {s(S_T0)}, {s(S_T1)}")
        A(f"s_add_u32 {s(S_T0)}, {s(S_T0)}, {FLG + F_B1}")
        A(f"v_add_u32 v30, {s(S_T0)}, v30")
        A(f"s_cmp_eq_u32 {s(S_LI)}, 0")
        A("s_cbranch_scc1 L_l_w4a")
        A(f"s_lshl_b32 {s(S_T0)}, s2, 7")
        A(f"s_add_u32 {s(S_T0)}, {s(S_T0)}, {FLG + F_B2}")
        A(f"v_mov_b32 v30, {s(S_T0)}")
        A("L_l_w4a:")
        flag_load(30, 31)
    if DIST == 3:
        lbar(0, 14)
        dma_chunk(3)
        A(f"s_add_u32 {s(S_NONCE)}, {s(S_NONCE)}, 1")
        srd(R_WS, S_WS, WS_BYTES)
        lbar(1, 14)
        dma_chunk(4)
        lbar(2, 14)
        dma_chunk(5)
        lbar(3, 14)
        dma_chunk(6)
        lbar(4, 14)
        dma_chunk(7)
        lbar(5, 14)
        b1_flag_sample()
        h_loads()
        lbar(6, 14)
        conv_addr()
    else:
        lbar(0, 7)
        dma_chunk(2)
        A(f"s_add_u32 {s(S_NONCE)}, {s(S_NONCE)}, 1")
        srd(R_WS, S_WS, WS_BYTES)
        lbar(1, 7)
        dma_chunk(3)
        h_loads()
        lbar(2, 12)
        dma_chunk(4)
        lbar(3, 12)
        dma_chunk(5)
        lbar(4, 7)
        dma_chunk(6)
        lbar(5, 7)
        dma_chunk(7)
        b1_flag_sample()
        build_eo()
        lbar(6, 8)
        conv_addr()
    A("s_waitcnt vmcnt(6)")
    A(f"s_mov_b32 {s(S_OK)}, 0")
    A(f"s_cmp_lg_u32 {s(S_LI)}, 0")
    A("s_cbranch_scc1 L_l_late")
    A(f"v_cmp_ne_u32 vcc, {s(S_NONCE)}, v31")
    A("s_cbranch_vccnz L_l_late")
    ur_dma()
    A(f"s_mov_b32 {s(S_OK)}, 1")
    A("L_l_late:")
    if prof:
        A("s_memtime s[98:99]"); A("s_waitcnt lgkmcnt(0)"); A(f"v_writelane_b32 v255, s98, 29")
    A("s_barrier")
    if opt.get("lprio", 0) != opt.get("cprio", 0): A(f"s_setprio {opt.get('cprio', 0)}")
    stamp(5)
    call("L_sub_a")
    stamp(6)
    A(f"s_cmp_lg_u32 {s(S_LI)}, 0")
    A("s_cbranch_scc1 L_l_have")
    A(f"s_cmp_eq_u32 {s(S_OK)}, 1")
    A("s_cbranch_scc1 L_l_have")
    spin(30, 31, "L_poll_b1")
    ur_dma()
    A("L_l_have:")
    A("s_waitcnt vmcnt(0)")
    stamp(3)
    build_eo()
    stamp(4)
    A(f"v_mov_b32 v26, {s(S_NONCE)}")
    A("ds_write_b32 v29, v26")
    A(f"v_mov_b32 v25, {OKW}")
    A(f"s_mov_b32 {s(S_SPIN)}, {SPIN*8}")
    A("L_l_ospin:")
    A("ds_read_b128 v[32:35], v25")
    A("s_waitcnt lgkmcnt(0)")
    A(f"v_cmp_ne_u32 vcc, {s(S_NONCE)}, v32")
    A(f"v_cmp_ne_u32 {s(S_CMP,2)}, {s(S_NONCE)}, v33")
    A(f"v_cmp_ne_u32 {s(S_CMP+2,2)}, {s(S_NONCE)}, v34")
    A(f"v_cmp_ne_u32 {s(S_CMP+4,2)}, {s(S_NONCE)}, v35")
    A(f"s_or_b64 vcc, vcc, {s(S_CMP,2)}")
    A(f"s_or_b64 vcc, vcc, {s(S_CMP+2,2)}")
    A(f"s_or_b64 vcc, vcc, {s(S_CMP+4,2)}")
    A("s_cbranch_vccz L_l_go")
    A(f"s_sub_u32 {s(S_SPIN)}, {s(S_SPIN)}, 1")
    A(f"s_cmp_lg_u32 {s(S_SPIN)}, 0")
    A("s_cbranch_scc1 L_l_ospin")
    A("L_l_go:")
    A(f"s_and_b32 {s(S_T2)}, {s(S_LI)}, 1")
    stamp(7)
    def conv_reads(ii):
        st = ii & 1
        L = []
        for k in range(8):
            L.append(f"ds_read_b128 {v(CBf[st]+4*k,4)}, {v(AB)} offset:{512*(7-k) + 64*ii}")
            L.append(f"ds_read2_b32 {v(CA[st]+4*k,2)}, {v(AA+k)} offset0:{16*ii} offset1:{16*ii+1}")
            L.append(f"ds_read2_b32 {v(CA[st]+4*k+2,2)}, {v(AA+k)} offset0:{16*ii+2} offset1:{16*ii+3}")
        return L
    r0 = conv_reads(0)
    first = [r0[1], r0[2]] + [r0[3*k] for k in range(8)] + [x for k in range(1, 8) for x in (r0[3*k+1], r0[3*k+2])]
    for r in first: A(r)
    for ii in range(4):
        nxt = conv_reads(ii + 1) if ii < 3 else []
        st = ii & 1
        k = 0
        for jj in range(8):
            if ii == 0:
                if jj == 0: A("s_waitcnt lgkmcnt(14)")
                elif jj == 1: A("s_waitcnt lgkmcnt(0)")
            elif jj == 0:
                A("s_waitcnt lgkmcnt(0)")
            for cp in range(8 - jj):
                acc = v(CACC + 4*(cp + jj), 4)
                cin = "0" if (ii == 0 and jj == 0) else acc
                A(f"{MF16} {acc}, {v(CA[st]+4*jj,4)}, {v(CBf[st]+4*cp,4)}, {cin}")
                if k < len(nxt) and not (ii == 0 and jj == 0):
                    A(nxt[k]); k += 1
        while k < len(nxt):
            A(nxt[k]); k += 1
    stamp(8)
    if opt.get("cprio", 0): A("s_setprio 0")
    A("s_nop 7")
    A(f"s_and_b32 {s(S_T2)}, {s(S_LI)}, 1")
    A("v_lshlrev_b32 v25, 4, v1")
    A(f"s_lshl_b32 {s(S_T0)}, {s(S_LI)}, 12")
    A(f"v_add_u32 v26, {s(S_T0)}, v25")
    A(f"s_xor_b32 {s(S_T0)}, {s(S_T0)}, 4096")
    A(f"v_add_u32 v27, {s(S_T0)}, v25")
    A(f"s_cmp_lg_u32 {s(S_T2)}, 0")
    A("s_cbranch_scc1 L_l_x1")
    for k in range(4):
        A(f"ds_write_b128 v26, {v(CACC+16+4*k,4)} offset:{LR + 1024*k}")
    A("s_waitcnt lgkmcnt(0)")
    A("s_barrier")
    for k in range(4):
        A(f"ds_read_b128 {v(32+4*k,4)}, v27 offset:{LR + 1024*k}")
    A("s_waitcnt lgkmcnt(0)")
    for r in range(16):
        A(f"v_add_f32 {v(48+r)}, {v(32+r)}, {v(CACC+r)}")
    A("s_branch L_l_x2")
    A("L_l_x1:")
    A("s_nop 7")
    for k in range(4):
        A(f"ds_write_b128 v26, {v(CACC+4*k,4)} offset:{LR + 1024*k}")
    A("s_waitcnt lgkmcnt(0)")
    A("s_barrier")
    for k in range(4):
        A(f"ds_read_b128 {v(32+4*k,4)}, v27 offset:{LR + 1024*k}")
    A("s_waitcnt lgkmcnt(0)")
    for r in range(16):
        A(f"v_add_f32 {v(48+r)}, {v(32+r)}, {v(CACC+16+r)}")
    A("L_l_x2:")
    for k in range(4):
        A(f"v_cvt_pk_bf16_f32 {v(32+2*k)}, {v(48+4*k)}, {v(49+4*k)}")
        A(f"v_cvt_pk_bf16_f32 {v(33+2*k)}, {v(50+4*k)}, {v(51+4*k)}")
    A("v_and_b32 v25, 15, v1")
    A("v_lshlrev_b32 v25, 5, v25")
    A("v_bfe_u32 v26, v1, 4, 1")
    A("v_lshl_add_u32 v25, v26, 9, v25")
    A("v_lshrrev_b32 v26, 5, v1")
    A("v_lshl_add_u32 v25, v26, 4, v25")
    A(f"s_lshl_b32 {s(S_T0)}, {s(S_CH)}, 12")
    A(f"s_lshl_b32 {s(S_T1)}, {s(S_T2)}, 11")
    A(f"s_add_u32 {s(S_T0)}, {s(S_T0)}, {s(S_T1)}")
    A(f"s_add_u32 {s(S_T0)}, {s(S_T0)}, {YT}")
    A(f"v_add_u32 v25, {s(S_T0)}, v25")
    A("v_permlane16_swap_b32 v32, v34")
    A("v_permlane16_swap_b32 v33, v35")
    A("v_permlane16_swap_b32 v36, v38")
    A("v_permlane16_swap_b32 v37, v39")
    A(f"global_store_dwordx4 v25, v[32:35], {s(S_WS,2)} {SCS}")
    A(f"global_store_dwordx4 v25, v[36:39], {s(S_WS,2)} offset:1024 {SCS}")
    A("s_barrier")
    stamp(9)
    A("L_a2:")
    if DBG: A("s_memrealtime s[10:11]")
    if opt.get("prio", 1): A("s_setprio 1")
    Q, KF, SA, SB, CN, PP, VF, O = 16, 20, 56, 72, 88, 104, 120, 136
    AK, AV0, AV1, TM, TM2 = PAK, PAV0, PAV1, 155, 156
    TM3 = 169
    VQ3, VF2A, VF2 = 160, PFB2, 165
    A(f"ds_read_b128 {v(Q,4)}, {v(PAQ)} offset:{LQ}")
    order = [8, 0, 7, 6, 5, 4, 3, 2, 1]
    for jj in order:
        A(f"ds_read_b128 {v(KF+4*jj,4)}, {v(AK)} offset:{LK + jj*1024}")
    for r in range(4):
        A(f"global_load_dword {v(VQ3+r)}, {v(PQ3)}, {s(S_BQ,2)} offset:{1024*r} {NT_B}")
    buf = lambda jj: SA if (jj & 1) else SB
    A("s_waitcnt lgkmcnt(7)")
    A(f"{MF} {v(MM8,16)}, {v(KF+32,4)}, {v(Q,4)}, {v(MM8,16)}")
    A(f"{MF} {v(MM0,16)}, {v(KF+0,4)}, {v(Q,4)}, {v(MM0,16)}")
    A("s_waitcnt lgkmcnt(5)")
    A(f"{MF} {v(SA,16)}, {v(KF+28,4)}, {v(Q,4)}, 0")
    A(f"{MF} {v(SB,16)}, {v(KF+24,4)}, {v(Q,4)}, 0")
    A(f"s_cmp_gt_u32 {s(S_J0)}, 0")
    A("s_cbranch_scc1 L_st_nomerge")
    stubs.append(["L_st_nomerge:", "s_nop 15", "s_branch L_a2_nomerge"])
    for r in range(16):
        A(f"v_max_f32 {v(MM8+r)}, {v(MM0+r)}, {v(MM8+r)}")
    A("L_a2_nomerge:")
    A(f"v_max_f32 {v(TM)}, {v(MM8)}, {v(MM8+1)}")
    A(f"v_max_f32 {v(TM3)}, {v(MM8+2)}, {v(MM8+3)}")
    for r in range(4, 16, 2):
        t = TM if (r & 2) == 0 else TM3
        A(f"v_max3_f32 {v(t)}, {v(t)}, {v(MM8+r)}, {v(MM8+r+1)}")
    A("s_waitcnt lgkmcnt(0)")
    for jj in range(7, 0, -1):
        b = buf(jj)
        A(f"s_cmp_gt_u32 {s(S_J0)}, {jj}")
        A("s_cbranch_scc1 L_a2_p1done")
        for r in range(0, 16, 2):
            t = TM if (r & 2) == 0 else TM3
            A(f"v_max3_f32 {v(t)}, {v(t)}, {v(b+r)}, {v(b+r+1)}")
        if jj - 2 >= 1:
            A(f"{MF} {v(b,16)}, {v(KF+4*(jj-2),4)}, {v(Q,4)}, 0")
    A("L_a2_p1done:")
    A(f"v_max_f32 {v(TM)}, {v(TM)}, {v(TM3)}")
    A(f"v_mov_b32 {v(TM2)}, {v(TM)}")
    A(f"v_permlane32_swap_b32 {v(TM)}, {v(TM2)}")
    A(f"v_max_f32 {v(TM)}, {v(TM)}, {v(TM2)}")
    A(f"v_sub_f32 {v(TM2)}, 0, {v(TM)}")
    for r in range(16):
        A(f"v_mov_b32 {v(CN+r)}, {v(TM2)}")
    stamp(10)
    A(f"{MF} {v(SA,16)}, {v(KF+28,4)}, {v(Q,4)}, {v(CN,16)}")
    A(f"{MF} {v(SB,16)}, {v(KF+24,4)}, {v(Q,4)}, {v(CN,16)}")
    def vread(slot, jj, sidx):
        A(f"ds_read_b128 {v(VF+4*slot,4)}, {v(AV0 if sidx == 0 else AV1)} offset:{LV + jj*VTS + sidx*512}")
    vread(0, 8, 0); vread(1, 8, 1); vread(2, 0, 0); vread(3, 0, 1)
    def pub_b2(lab, n):
        A(f"s_waitcnt vmcnt({n})")
        A(f"s_cmp_lt_u32 {s(S_WV)}, 4")
        A(f"s_cbranch_scc1 {lab}")
        publish(F_B2, 157, 158)
        A(f"{lab}:")
    if opt.get("prio", 1): A("s_setprio 0")
    P0, P1 = PP, PP + 8
    for r in range(16):
        A(f"v_add_f32 {v(MM8+r)}, {v(TM2)}, {v(MM8+r)}")
    for r in range(16):
        A(f"v_exp_f32 {v(MM8+r)}, {v(MM8+r)}")
    for i in range(8):
        A(f"v_cvt_pk_bf16_f32 {v(P0+i)}, {v(MM8+2*i)}, {v(MM8+2*i+1)}")
    for i in range(8):
        A(f"v_and_b32 {v(P1+i)}, {v(MMK+i)}, {v(P0+i)}")
    for i in range(8):
        A(f"v_xor_b32 {v(P0+i)}, {v(P1+i)}, {v(P0+i)}")
    A("s_waitcnt lgkmcnt(0)")
    A(f"{MF} {v(O,16)}, {v(VF+0,4)}, {v(P0,4)}, 0")
    A(f"s_cmp_gt_u32 {s(S_J0)}, 0")
    A("s_cbranch_scc1 L_a2_nopv0")
    A(f"{MF} {v(O,16)}, {v(VF+8,4)}, {v(P1,4)}, {v(O,16)}")
    A(f"{MF} {v(O,16)}, {v(VF+12,4)}, {v(P1+4,4)}, {v(O,16)}")
    A("L_a2_nopv0:")
    pb = lambda jj: PP + 8*(jj & 1)
    sl = lambda jj: 2*(jj & 1)
    def pend(jj):
        if jj == 7: return [f"{MF} {v(O,16)}, {v(VF+4,4)}, {v(P0+4,4)}, {v(O,16)}"]
        p = jj + 1
        return [f"{MF} {v(O,16)}, {v(VF+4*sl(p),4)}, {v(pb(p),4)}, {v(O,16)}",
                f"{MF} {v(O,16)}, {v(VF+4*sl(p)+4,4)}, {v(pb(p)+4,4)}, {v(O,16)}"]
    for jj in range(7, 0, -1):
        b = buf(jj)
        A(f"s_cmp_gt_u32 {s(S_J0)}, {jj}")
        A(f"s_cbranch_scc1 L_st_p2_{jj}")
        def stub(jj=jj):
            A(f"L_st_p2_{jj}:")
            A("s_waitcnt lgkmcnt(0)")
            A("s_nop 1")
            for m in pend(jj): A(m)
            if jj >= 5: pub_b2(f"L_st_nopub_{jj}", 0)
            if jj >= 3:
                A(f"s_cmp_lg_u32 {s(S_WV)}, 0")
                A("s_cbranch_scc1 L_a2_p2done")
                flag_load(VF2A, VF2)
            A("s_branch L_a2_p2done")
        stubs.append(stub)
        pm = pend(jj)
        pass
        if jj == 5: pub_b2("L_a2_nopub", 4)
        for r in range(16):
            A(f"v_exp_f32 {v(b+r)}, {v(b+r)}")
            if r == 1:
                A("s_waitcnt lgkmcnt(0)")
                A(pm[0])
            if r == 7 and len(pm) > 1: A(pm[1])
            if r == 9:
                vread(sl(jj), jj, 0); vread(sl(jj) + 1, jj, 1)
            if jj == 3 and r == 13:
                A(f"s_cmp_lg_u32 {s(S_WV)}, 0")
                A("s_cbranch_scc1 L_a2_nosample")
                flag_load(VF2A, VF2)
                A("L_a2_nosample:")
        for i in range(8):
            A(f"v_cvt_pk_bf16_f32 {v(pb(jj)+i)}, {v(b+2*i)}, {v(b+2*i+1)}")
        if jj - 2 >= 1:
            A(f"{MF} {v(b,16)}, {v(KF+4*(jj-2),4)}, {v(Q,4)}, {v(CN,16)}")
    A("s_waitcnt lgkmcnt(0)")
    for m in pend(0): A(m)
    A("L_a2_p2done:")

    A("s_nop 15")
    A(f"v_rcp_f32 {v(TM)}, {v(O+8)}")
    for r in range(8):
        A(f"v_mul_f32 {v(O+r)}, {v(TM)}, {v(O+r)}")
    for i in range(4):
        A(f"v_cvt_pk_bf16_f32 {v(PP+i)}, {v(O+2*i)}, {v(O+2*i+1)}")
    A(f"global_store_dwordx4 {v(PO)}, {v(PP,4)}, {s(S_WS,2)} {SCS}")
    stamp(11)
    tail_addr()
    if prof:
        stamp(19)
        A("s_waitcnt vmcnt(1)")
        stamp(20)
    A("s_waitcnt vmcnt(0)")
    publish(F_A2, 157, 158)
    stamp(12)
    flag_load(PFA2, 31)
    A(f"s_cmp_lg_u32 {s(S_WV)}, 0")
    A("s_cbranch_scc1 L_nob2poll")
    check_or_spin(VF2A, VF2, "L_poll_b2")
    A(f"s_lshl_b32 {s(S_T0)}, {s(S_XCD)}, 18")
    A(f"s_lshl_b32 {s(S_T1)}, {s(S_J)}, 7")
    A(f"s_add_u32 {s(S_T0)}, {s(S_T0)}, {s(S_T1)}")
    A(f"s_add_u32 {s(S_T0)}, {s(S_T0)}, {YT}")
    for n in range(8):
        A(f"s_mov_b32 m0, {LYT + n*1024}")
        A(f"s_add_u32 {s(S_T1)}, {s(S_T0)}, {n*8*4096}")
        A(f"buffer_load_dwordx4 {v(PY0 + (n & 1))}, {s(R_WS,4)}, {s(S_T1)} offen sc1 lds")
    A("L_nob2poll:")
    A(f"s_or_b32 {s(S_T0)}, s2, {s(S_WV)}")
    A(f"s_cmp_lg_u32 {s(S_T0)}, 0")
    A("s_cbranch_scc0 L_st_epoch")
    stubs.append("EPOCH")
    A("L_noep:")
    A("s_barrier")
    stamp(13)
    A("s_waitcnt vmcnt(0)")
    A(f"v_mov_b32 v20, {OK2}")
    A(f"s_cmp_lg_u32 {s(S_WV)}, 0")
    A("s_cbranch_scc1 L_nosig")
    A(f"v_mov_b32 v21, {s(S_NONCE)}")
    A("ds_write_b32 v20, v21")
    A("L_nosig:")
    check_or_spin(PFA2, 31, "L_poll_a2")
    stamp(14)
    A(f"s_lshl_b32 {s(S_T0)}, {s(S_TB64)}, 16")
    A(f"s_lshl_b32 {s(S_T1)}, {s(S_WV)}, 12")
    A(f"s_add_u32 {s(S_T0)}, {s(S_T0)}, {s(S_T1)}")
    for hh in range(4):
        for ts in range(2):
            A(f"s_add_u32 m0, {s(S_T1)}, {LO + ts*32768 + hh*1024}")
            A(f"s_add_u32 {s(S_T2)}, {s(S_T0)}, {OW + ts*32768 + hh*1024}")
            A(f"buffer_load_dwordx4 {v(PL16)}, {s(R_WS,4)}, {s(S_T2)} offen sc1 lds")
    A(f"s_mov_b32 {s(S_SPIN)}, {SPIN*8}")
    A("L_y_spin:")
    A("ds_read_b32 v21, v20")
    A("s_waitcnt lgkmcnt(0)")
    A(f"v_cmp_ne_u32 vcc, {s(S_NONCE)}, v21")
    A("s_cbranch_vccz L_y_ok")
    A(f"s_sub_u32 {s(S_SPIN)}, {s(S_SPIN)}, 1")
    A(f"s_cmp_lg_u32 {s(S_SPIN)}, 0")
    A("s_cbranch_scc1 L_y_spin")
    A("L_y_ok:")
    A(f"ds_read_b64 v[22:23], {v(PYR)}")
    A(f"ds_read_b64 v[24:25], {v(PYR)} offset:128")
    for r in range(4):
        A(f"v_lshlrev_b32 {v(34+2*r)}, 16, {v(VQ3+r)}")
        A(f"v_and_b32 {v(35+2*r)}, 0xffff0000, {v(VQ3+r)}")
    A("s_waitcnt lgkmcnt(0)")
    A("v_lshlrev_b32 v42, 16, v22"); A("v_lshlrev_b32 v43, 16, v24")
    A("v_and_b32 v44, 0xffff0000, v22"); A("v_and_b32 v45, 0xffff0000, v24")
    A("v_lshlrev_b32 v46, 16, v23"); A("v_lshlrev_b32 v47, 16, v25")
    A("v_and_b32 v48, 0xffff0000, v23"); A("v_and_b32 v49, 0xffff0000, v25")
    for r in range(4):
        A(f"v_pk_mul_f32 {v(42+2*r,2)}, {v(42+2*r,2)}, {v(34+2*r,2)}")
    for r in range(4):
        A(f"v_cvt_pk_bf16_f32 {v(50+r)}, {v(42+2*r)}, {v(43+2*r)}")
    A(f"v_add_u32 v21, 0x1000, {v(PB3)}")
    A(f"global_store_dword {v(PB3)}, v50, {s(S_OUT,2)} {BST}")
    A(f"global_store_dword {v(PB3)}, v51, {s(S_OUT,2)} offset:2048 {BST}")
    A(f"global_store_dword v21, v52, {s(S_OUT,2)} {BST}")
    A(f"global_store_dword v21, v53, {s(S_OUT,2)} offset:2048 {BST}")
    A("s_waitcnt vmcnt(4)")
    stamp(15)
    A("s_barrier")
    stamp(16)
    OA = 80
    F3 = [32 + 8*i for i in range(6)]
    def a3reads(hs):
        f = F3[hs % 6]
        A(f"ds_read_b128 {v(f,4)}, {v(PAO)} offset:{hs*1024}")
        A(f"ds_read_b64_tr_b16 {v(f+4,2)}, {v(PAW)} offset:{hs*2048}")
        A(f"ds_read_b64_tr_b16 {v(f+6,2)}, {v(PAW)} offset:{hs*2048 + 1024}")
    DEP = 4
    for hs in range(DEP): a3reads(hs)
    for hs in range(16):
        if hs + DEP < 16:
            a3reads(hs + DEP); A(f"s_waitcnt lgkmcnt({3*DEP})")
        else:
            A(f"s_waitcnt lgkmcnt({3*(15-hs)})")
        f = F3[hs % 6]
        cin = "0" if hs == 0 else v(OA,16)
        A(f"{MF} {v(OA,16)}, {v(f+4,4)}, {v(f,4)}, {cin}")
    for m in range(4):
        A(f"ds_write_b128 {v(PPW[m])}, {v(OA+4*m,4)}")
    A("s_waitcnt lgkmcnt(0)")
    A("s_barrier")
    stamp(17)
    A(f"ds_read_b128 v[32:35], {v(PPR[0])}"); A(f"ds_read_b128 v[40:43], {v(PPR[2])}")
    A(f"ds_read_b128 v[36:39], {v(PPR[1])}"); A(f"ds_read_b128 v[44:47], {v(PPR[3])}")
    A("s_waitcnt lgkmcnt(0)")
    for r in range(8):
        A(f"v_add_f32 {v(32+r)}, {v(32+r)}, {v(40+r)}")
    for i in range(4):
        A(f"v_cvt_pk_bf16_f32 {v(48+i)}, {v(32+2*i)}, {v(33+2*i)}")
    A(f"global_store_dwordx4 {v(POUT)}, v[48:51], {s(S_OUT,2)} {FST}")
    if prof:
        stamp(18)
        A(f"s_lshl_b32 {s(S_T0)}, s2, 3")
        A(f"s_add_u32 {s(S_T0)}, {s(S_T0)}, {s(S_WV)}")
        A(f"s_lshl_b32 {s(S_T0)}, {s(S_T0)}, 8")
        A(f"s_add_u32 {s(S_T0)}, {s(S_T0)}, {PROF}")
        A("v_lshlrev_b32 v16, 2, v1")
        A(f"v_add_u32 v16, {s(S_T0)}, v16")
        A(f"global_store_dword v16, v255, {s(S_WS,2)}")
    if DBG:
        A("s_memrealtime s[12:13]")
        A("s_waitcnt lgkmcnt(0)")
        A("v_mov_b32 v16, 0")
        A("s_mov_b64 exec, 1")
        A("v_mov_b32 v17, s12"); A(f"global_atomic_umax v16, v17, {s(S_DBG,2)}")
        A("s_not_b32 s8, s8"); A("v_mov_b32 v17, s8"); A(f"global_atomic_umax v16, v17, {s(S_DBG,2)} offset:4")
        A("v_mov_b32 v17, s10"); A(f"global_atomic_umax v16, v17, {s(S_DBG,2)} offset:8")
        A("s_not_b32 s10, s10"); A("v_mov_b32 v17, s10"); A(f"global_atomic_umax v16, v17, {s(S_DBG,2)} offset:12")
        A("s_not_b32 s12, s12"); A("v_mov_b32 v17, s12"); A(f"global_atomic_umax v16, v17, {s(S_DBG,2)} offset:16")
    A("L_end:")
    A("s_endpgm")
    sub_setup()
    for st in stubs:
        if st == "EPOCH":
            A("L_st_epoch:")
            for q in range(4):
                A(f"v_lshlrev_b32 v157, 7, v1")
                A(f"v_add_u32 v157, {FLG + F_B1 + q*8192}, v157")
                spin(157, 158, f"L_poll_ep{q}")
            A(f"v_mov_b32 v157, {EP}")
            A(f"v_mov_b32 v158, {s(S_NONCE)}")
            A(f"s_mov_b64 {s(S_EX,2)}, exec")
            A("s_mov_b64 exec, 1")
            A(f"global_store_dword v157, v158, {s(S_WS,2)} {SCS}")
            A(f"s_mov_b64 exec, {s(S_EX,2)}")
            A("s_branch L_noep")
        elif callable(st):
            st()
        else:
            for line in st: A(line)
    n = a.fix_hazards()
    return a, n

HEAD = f"""; Fused sliding-window attention block + H3 SSM conv, one persistent launch (generated by gen/gen2.py)
; @launch grid=(256,1,1) block=(512,1,1) lds={LDS_BYTES}
.amdgcn_target "amdgcn-amd-amdhsa--gfx950"
.text
.globl {KN}
.p2align 8
.type {KN},@function
{KN}:
"""
TAIL = f""".section .rodata,"a"
.p2align 6
.amdhsa_kernel {KN}
  .amdhsa_next_free_vgpr 256
  .amdhsa_next_free_sgpr 102
  .amdhsa_accum_offset 256
  .amdhsa_group_segment_fixed_size 0
  .amdhsa_kernarg_size 96
  .amdhsa_user_sgpr_count 2
  .amdhsa_user_sgpr_kernarg_segment_ptr 1
  .amdhsa_system_sgpr_workgroup_id_x 1
.end_amdhsa_kernel
"""
if __name__ == "__main__":
    out = sys.argv[1] if len(sys.argv) > 1 else f"cdna_kernels/{NAME}.s"
    opt = {}
    for x in sys.argv[2:]:
        if "=" in x:
            k, val = x.split("="); opt[k] = int(val)
    a, n = build(prof=("prof" in sys.argv), opt=opt)
    open(out, "w").write(HEAD + a.text() + TAIL)
    print("instructions:", a.count(), "hazard pads:", n)
```

```python
import sys
from asmlib import Asm, v, s

NAME = "concat_heads__sliding_block__ssm_conv_h3__prompt"
KN = NAME + "_kernel"

FLG = 0x0
F_B1, F_A1, F_B2, F_A2 = 0, 32768, 65536, 98304
EP  = 0x20000
KW  = 0x100000
VW  = 0x300000
OW  = 0x500000
UR  = 0x700000
YT  = 0x900000
WS_BYTES = 0xB00000
PROF = 0xC00000

STG = 28672
B2R = 114688
CB  = 12864
T0  = B2R
KVS = 140416
E_OFF, O_OFF, U_OFF = 0, 4164, 8288
LK, LV, LQ = 0, 24576, 49536
KHS, VHS, VTS = 12288, 12480, 1040
LR  = 57728
LO  = 0
LWO = 81920
LS0, LS1 = 65536, 147456
LYT = 65536
CSW = 163808
OK2 = 163824
OKW = 163792
OKW_OLD = 163832
LDS_BYTES = 163840

S_X, S_WQKV, S_WO, S_BQ, S_BK, S_BV, S_SK, S_SSMK = 16, 18, 20, 22, 24, 26, 28, 30
S_SD, S_OUT, S_DBG, S_WS = 32, 34, 36, 38
R_X, R_W, R_BK, R_WS, R_WO = 40, 44, 48, 52, 56
S_NONCE, S_WV, S_J, S_XCD, S_RB, S_HP = 60, 61, 62, 63, 64, 65
S_T0, S_T1, S_T2, S_T3, S_T4, S_T5 = 66, 67, 68, 69, 70, 71
S_LI = 72
S_J0 = 73
S_SPIN = 74
S_OK = 75
S_EX = 76
S_CBASE, S_CH = 78, 79
S_CMP = 80
S_HD, S_TB64 = 96, 97
S_ROT = 75

PAK, PAV0, PAV1, PAQ = 192, 193, 194, 195
PFB2, PFA2, PY0, PY1, PYR, PO, PWO, PAO, PAW, POUT, PL16, PQ3 = 196, 197, 198, 199, 200, 201, 202, 203, 204, 205, 206, 207
PPW = [9, 10, 11, 12]
PPR = [13, 14, 15, 2]
PB3 = 8
S_LINK = 4
S_WOB, S_WOL = 6, 7
SPIN = 200000
NEGBIG = 0xF149F2CA
QSCALE = 0x3EB8AA3B
ONES = 0x3F803F80
STAGE = [0, 1, 2, 3, 0, 1, 2, 3]
MF = "v_mfma_f32_32x32x16_bf16"
MF16 = "v_mfma_f32_16x16x32_bf16"

def build(prof=False, opt=None):
    opt = opt or {}
    NT_B = "nt" if opt.get("nt_b", 0) else ""
    NT_XW = "nt" if opt.get("nt_xw", 0) else ""
    NT_WO = "nt" if opt.get("nt_wo", 0) else ""
    SCP = {0: "sc0 sc1", 1: "sc1"}[opt.get("sc_poll", 1)]
    SCS = {0: "sc0 sc1", 1: "sc1"}[opt.get("sc_store", 1)]
    SLEEP = opt.get("sleep", 0)
    FST = {0: "", 1: "sc0 sc1", 2: "nt", 3: "sc1"}[opt.get("fst", 2)]
    BST = {0: "", 1: "sc0 sc1", 2: "nt", 3: "sc1"}[opt.get("bst", 2)]
    a = Asm()
    A = a
    stubs = []
    def stamp(k):
        if not prof: return
        A("s_memrealtime s[100:101]")
        A("s_memtime s[98:99]")
        A("s_waitcnt lgkmcnt(0)")
        A(f"v_writelane_b32 v255, s100, {k}")
        A(f"v_writelane_b32 v255, s98, {k+32}")
    def srd(dst, base, nbytes):
        A(f"s_mov_b32 {s(dst)}, {s(base)}")
        A(f"s_and_b32 {s(dst+1)}, {s(base+1)}, 0xffff")
        A(f"s_mov_b32 {s(dst+2)}, {nbytes}")
        A(f"s_mov_b32 {s(dst+3)}, 0x00020000")
    def flag_load(vaddr, vtmp):
        A(f"global_load_dword {v(vtmp)}, {v(vaddr)}, {s(S_WS,2)} {SCP}")
    def spin(vaddr, vtmp, label):
        A(f"s_mov_b32 {s(S_SPIN)}, {SPIN}")
        A(f"{label}:")
        flag_load(vaddr, vtmp)
        A("s_waitcnt vmcnt(0)")
        A(f"v_cmp_ne_u32 vcc, {s(S_NONCE)}, {v(vtmp)}")
        A(f"s_cbranch_vccz {label}_done")
        if SLEEP: A(f"s_sleep {SLEEP}")
        A(f"s_sub_u32 {s(S_SPIN)}, {s(S_SPIN)}, 1")
        A(f"s_cmp_lg_u32 {s(S_SPIN)}, 0")
        A(f"s_cbranch_scc1 {label}")
        A(f"{label}_done:")
    def check_or_spin(vaddr, vtmp, label):
        A(f"v_cmp_ne_u32 vcc, {s(S_NONCE)}, {v(vtmp)}")
        A(f"s_cbranch_vccz {label}_done")
        spin(vaddr, vtmp, label)
    def publish(kind, vt0, vt1):
        A(f"s_lshl_b32 {s(S_T0)}, s2, 7")
        A(f"s_lshl_b32 {s(S_T1)}, {s(S_WV)}, 2")
        A(f"s_add_u32 {s(S_T0)}, {s(S_T0)}, {s(S_T1)}")
        A(f"s_add_u32 {s(S_T0)}, {s(S_T0)}, {FLG + kind}")
        A(f"v_mov_b32 {v(vt0)}, {s(S_T0)}")
        A(f"v_mov_b32 {v(vt1)}, {s(S_NONCE)}")
        A(f"s_mov_b64 {s(S_EX,2)}, exec")
        A(f"s_mov_b64 exec, 1")
        A(f"global_store_dword {v(vt0)}, {v(vt1)}, {s(S_WS,2)} {SCS}")
        A(f"s_mov_b64 exec, {s(S_EX,2)}")

    def record(fn):
        n0 = len(a.items)
        fn()
        out = [it.text for k, it in a.items[n0:]]
        assert all(k == "i" for k, it in a.items[n0:])
        del a.items[n0:]
        return out
    MM0, MM8, MMK = 208, 224, 240
    def gen_masks():
        A("v_and_b32 v248, 31, v1")
        A("v_lshrrev_b32 v249, 5, v1")
        A("v_lshlrev_b32 v249, 2, v249")
        A("v_sub_u32 v248, v248, v249")
        A(f"v_mov_b32 v249, {NEGBIG}")
        A("v_mov_b32 v250, 0xffff")
        for r in range(16):
            cst = (r & 3) + 8*(r >> 2)
            A(f"v_subrev_u32 {v(MM0+r)}, {cst}, v248")
        for r in range(16):
            A(f"v_ashrrev_i32 {v(MM0+r)}, 31, {v(MM0+r)}")
        for i in range(8):
            A(f"v_bfi_b32 {v(MMK+i)}, v250, {v(MM0+2*i)}, {v(MM0+2*i+1)}")
        for r in range(16):
            A(f"v_and_b32 {v(MM8+r)}, v249, {v(MM0+r)}")
        for r in range(16):
            A(f"v_xor_b32 {v(MM0+r)}, v249, {v(MM8+r)}")

    def sub_setup():
        A("L_sub_a:")
        gen_masks()
        A(f"s_lshr_b32 {s(S_HD)}, {s(S_WV)}, 2")
        A(f"s_lshl_b32 {s(S_T0)}, {s(S_RB)}, 2")
        A(f"s_add_u32 {s(S_T0)}, {s(S_T0)}, {s(S_LI)}")
        A(f"s_sub_i32 {s(S_J0)}, 8, {s(S_T0)}")
        A(f"s_max_i32 {s(S_J0)}, {s(S_J0)}, 0")
        A(f"v_lshlrev_b32 {v(PL16)}, 4, v1")
        A(f"s_lshl_b32 {s(S_T0)}, {s(S_HD)}, 12")
        A(f"s_lshl_b32 {s(S_T1)}, {s(S_LI)}, 10")
        A(f"s_add_u32 {s(S_T0)}, {s(S_T0)}, {s(S_T1)}")
        A(f"v_add_u32 {v(PAQ)}, {s(S_T0)}, {v(PL16)}")
        A(f"s_mul_i32 {s(S_T0)}, {s(S_HD)}, {KHS}")
        A(f"s_add_u32 {s(S_T0)}, {s(S_T0)}, {s(S_T1)}")
        A(f"v_add_u32 {v(PAK)}, {s(S_T0)}, {v(PL16)}")
        A(f"s_mul_i32 {s(S_T0)}, {s(S_HD)}, {VHS}")
        A(f"s_mul_i32 {s(S_T1)}, {s(S_LI)}, {VTS}")
        A(f"s_add_u32 {s(S_T0)}, {s(S_T0)}, {s(S_T1)}")
        A("v_and_b32 v248, 15, v1")
        A("v_lshlrev_b32 v248, 4, v248")
        A("v_lshrrev_b32 v249, 5, v1")
        A("v_lshl_add_u32 v248, v249, 8, v248")
        A("v_bfe_u32 v249, v1, 4, 1")
        A("v_cmp_eq_u32 vcc, 1, v249")
        A("v_mov_b32 v249, 1024")
        A("v_mov_b32 v250, 512")
        A(f"v_cndmask_b32 {v(PAV0)}, v248, v249, vcc")
        A(f"v_cndmask_b32 {v(PAV1)}, v248, v250, vcc")
        A(f"v_add_u32 {v(PAV0)}, {s(S_T0)}, {v(PAV0)}")
        A(f"v_add_u32 {v(PAV1)}, {s(S_T0)}, {v(PAV1)}")
        A(f"s_lshl_b32 {s(S_T0)}, {s(S_RB)}, 2")
        A(f"s_add_u32 {s(S_T0)}, {s(S_T0)}, {s(S_LI)}")
        A(f"s_lshl_b32 {s(S_T0)}, {s(S_T0)}, 5")
        A(f"s_lshl_b32 {s(S_T1)}, {s(S_HP)}, 1")
        A(f"s_add_u32 {s(S_T0)}, {s(S_T0)}, {s(S_T1)}")
        A(f"s_add_u32 {s(S_T0)}, {s(S_T0)}, {s(S_HD)}")
        A(f"s_lshl_b32 {s(S_T0)}, {s(S_T0)}, 10")
        A(f"s_add_u32 {s(S_T0)}, {s(S_T0)}, {OW}")
        A(f"v_add_u32 {v(PO)}, {s(S_T0)}, {v(PL16)}")
        A("v_lshrrev_b32 v248, 3, v1")
        A("v_bfe_u32 v249, v248, 1, 1")
        A("v_lshlrev_b32 v249, 2, v249")
        A("v_and_b32 v250, 7, v1")
        A("v_xor_b32 v249, v249, v250")
        A("v_lshlrev_b32 v249, 4, v249")
        A(f"v_lshl_add_u32 {v(PWO)}, v248, 10, v249")
        A(f"s_lshr_b32 {s(S_T0)}, {s(S_J)}, 2")
        A(f"s_lshl_b32 {s(S_T0)}, {s(S_T0)}, 7")
        A(f"s_lshl_b32 {s(S_T1)}, {s(S_WV)}, 16")
        A(f"s_add_u32 {s(S_WOB)}, {s(S_T0)}, {s(S_T1)}")
        A(f"s_lshl_b32 {s(S_WOL)}, {s(S_WV)}, 13")
        srd(R_WO, S_WO, 512*1024)
        A("v_and_b32 v248, 31, v1")
        A("v_lshrrev_b32 v249, 5, v1")
        A(f"s_lshl_b32 {s(S_T0)}, {s(S_WV)}, 1")
        A(f"v_add_u32 v249, {s(S_T0)}, v249")
        A(f"s_lshl_b32 {s(S_T0)}, {s(S_J)}, 6")
        A("v_lshlrev_b32 v250, 2, v249")
        A(f"v_add_u32 v250, {s(S_T0)}, v250")
        A(f"s_lshl_b32 {s(S_T0)}, {s(S_XCD)}, 7")
        A("v_lshlrev_b32 v251, 2, v248")
        A(f"v_add_u32 v251, {s(S_T0)}, v251")
        A(f"v_lshl_add_u32 {v(PQ3)}, v250, 10, v251")
        A(f"v_lshl_add_u32 {v(PB3)}, v250, 11, v251")
        A(f"v_add_u32 {v(PB3)}, 1024, {v(PB3)}")
        A("v_lshrrev_b32 v250, 1, v249")
        A("v_and_b32 v251, 7, v248")
        A("v_xor_b32 v250, v250, v251")
        A("v_lshlrev_b32 v250, 4, v250")
        A("v_and_b32 v251, 1, v249")
        A("v_lshl_add_u32 v250, v251, 3, v250")
        A("v_lshl_add_u32 v250, v248, 8, v250")
        A(f"v_add_u32 {v(PYR)}, {LYT}, v250")
        A(f"v_lshrrev_b32 {v(PFB2)}, 1, v1")
        A(f"v_lshlrev_b32 {v(PFB2)}, 10, {v(PFB2)}")
        A("v_and_b32 v248, 1, v1")
        A(f"v_lshl_add_u32 {v(PFB2)}, v248, 3, {v(PFB2)}")
        A(f"s_lshr_b32 {s(S_T0)}, {s(S_J)}, 4")
        A(f"s_add_u32 {s(S_T0)}, {s(S_T0)}, 4")
        A(f"s_lshl_b32 {s(S_T0)}, {s(S_T0)}, 2")
        A(f"s_lshl_b32 {s(S_T1)}, {s(S_XCD)}, 7")
        A(f"s_add_u32 {s(S_T0)}, {s(S_T0)}, {s(S_T1)}")
        A(f"s_add_u32 {s(S_T0)}, {s(S_T0)}, {FLG + F_B2}")
        A(f"v_add_u32 {v(PFB2)}, {s(S_T0)}, {v(PFB2)}")
        A(f"s_setpc_b64 {s(S_LINK,2)}")
    def tail_addr():
        A(f"s_lshl_b32 {s(S_TB64)}, {s(S_XCD)}, 2")
        A(f"s_and_b32 {s(S_T0)}, {s(S_J)}, 3")
        A(f"s_add_u32 {s(S_TB64)}, {s(S_TB64)}, {s(S_T0)}")
        A("v_and_b32 v248, 1, v1")
        A("v_bfe_u32 v249, v1, 1, 2")
        A(f"s_lshl_b32 {s(S_T0)}, {s(S_WV)}, 2")
        A(f"v_add_u32 v249, {s(S_T0)}, v249")
        A(f"s_lshl_b32 {s(S_T0)}, {s(S_TB64)}, 1")
        A(f"v_add_u32 v248, {s(S_T0)}, v248")
        A("v_lshrrev_b32 v250, 2, v248")
        A("v_lshrrev_b32 v251, 1, v249")
        A("v_and_b32 v252, 3, v250")
        A("v_and_b32 v253, 7, v251")
        A("v_lshl_add_u32 v252, v253, 2, v252")
        A("v_lshlrev_b32 v252, 3, v252")
        A("v_lshrrev_b32 v253, 2, v250")
        A("v_lshl_add_u32 v252, v253, 1, v252")
        A("v_lshrrev_b32 v253, 3, v251")
        A("v_add_u32 v252, v252, v253")
        A("v_lshlrev_b32 v252, 7, v252")
        A("v_and_b32 v253, 3, v248")
        A("v_and_b32 v250, 1, v249")
        A("v_lshl_add_u32 v253, v250, 2, v253")
        A("v_lshl_add_u32 v252, v253, 2, v252")
        A(f"v_add_u32 {v(PFA2)}, {FLG + F_A2}, v252")
        A("v_lshrrev_b32 v248, 3, v1")
        A("v_and_b32 v249, 7, v1")
        A("v_lshrrev_b32 v250, 1, v248")
        A("v_xor_b32 v249, v249, v250")
        A("v_lshlrev_b32 v248, 12, v248")
        A(f"v_lshl_add_u32 {v(PY0)}, v249, 4, v248")
        A("v_xor_b32 v249, 4, v249")
        A(f"v_lshl_add_u32 {v(PY1)}, v249, 4, v248")
        A(f"s_and_b32 {s(S_T0)}, {s(S_WV)}, 1")
        A(f"s_lshl_b32 {s(S_T0)}, {s(S_T0)}, 15")
        A(f"s_lshl_b32 {s(S_T2)}, {s(S_HD)}, 14")
        A(f"s_add_u32 {s(S_T0)}, {s(S_T0)}, {s(S_T2)}")
        A(f"v_add_u32 {v(PAO)}, {s(S_T0)}, {v(PL16)}")
        A("v_and_b32 v248, 15, v1")
        A("v_lshrrev_b32 v248, 2, v248")
        A("v_lshrrev_b32 v249, 5, v1")
        A("v_lshl_add_u32 v249, v249, 2, v248")
        A("v_lshlrev_b32 v249, 7, v249")
        A("v_lshrrev_b32 v248, 1, v248")
        A(f"s_bfe_u32 {s(S_T0)}, {s(S_WV)}, 0x10001")
        A(f"v_xor_b32 v248, {s(S_T0)}, v248")
        A("v_lshl_add_u32 v249, v248, 6, v249")
        A("v_bfe_u32 v248, v1, 4, 1")
        A("v_lshl_add_u32 v249, v248, 5, v249")
        A("v_and_b32 v248, 3, v1")
        A("v_lshl_add_u32 v249, v248, 3, v249")
        A(f"s_lshl_b32 {s(S_T2)}, {s(S_HD)}, 15")
        A(f"s_add_u32 {s(S_T2)}, {s(S_T2)}, {LWO}")
        A(f"v_add_u32 {v(PAW)}, {s(S_T2)}, v249")
        A("v_and_b32 v248, 31, v1")
        A("v_lshrrev_b32 v249, 5, v1")
        A(f"s_lshl_b32 {s(S_T0)}, {s(S_T0)}, 3")
        A(f"v_add_u32 v249, {s(S_T0)}, v249")
        A("v_and_b32 v250, 15, v248")
        A("v_xor_b32 v249, v249, v250")
        A("v_lshlrev_b32 v249, 4, v249")
        A(f"s_and_b32 {s(S_T0)}, {s(S_WV)}, 1")
        A(f"s_lshl_b32 {s(S_T0)}, {s(S_T0)}, 13")
        A(f"s_mul_i32 {s(S_T2)}, {s(S_HD)}, {LS1 - LS0}")
        A(f"s_add_u32 {s(S_T0)}, {s(S_T0)}, {s(S_T2)}")
        A(f"s_add_u32 {s(S_T0)}, {s(S_T0)}, {LS0}")
        A("v_lshl_add_u32 v249, v248, 8, v249")
        A(f"v_add_u32 v249, {s(S_T0)}, v249")
        for m in range(4):
            A(f"v_xor_b32 {v(PPW[m])}, {m*32}, v249")
        A("v_lshrrev_b32 v248, 3, v0")
        A("v_and_b32 v249, 7, v0")
        A("v_lshlrev_b32 v250, 1, v249")
        A("v_and_b32 v251, 15, v248")
        A("v_xor_b32 v250, v250, v251")
        A("v_lshlrev_b32 v250, 4, v250")
        A("v_lshl_add_u32 v250, v248, 8, v250")
        A("v_xor_b32 v251, 16, v250")
        A(f"v_add_u32 {v(PPR[0])}, {LS0}, v250"); A(f"v_add_u32 {v(PPR[1])}, {LS0}, v251")
        A(f"v_add_u32 {v(PPR[2])}, {LS1}, v250"); A(f"v_add_u32 {v(PPR[3])}, {LS1}, v251")
        A(f"s_lshl_b32 {s(S_T0)}, {s(S_TB64)}, 17")
        A(f"s_lshr_b32 {s(S_T1)}, {s(S_J)}, 2")
        A(f"s_lshl_b32 {s(S_T1)}, {s(S_T1)}, 7")
        A(f"s_add_u32 {s(S_T0)}, {s(S_T0)}, {s(S_T1)}")
        A("v_lshlrev_b32 v250, 11, v248")
        A("v_lshl_add_u32 v250, v249, 4, v250")
        A(f"v_add_u32 {v(POUT)}, {s(S_T0)}, v250")
    def call(lab): A(f"s_call_b64 {s(S_LINK,2)}, {lab}")
    def wo_dma(n):
        A(f"s_add_u32 m0, {s(S_WOL)}, {LWO + n*1024}")
        A(f"s_add_u32 {s(S_T1)}, {s(S_WOB)}, {n*8192}")
        A(f"buffer_load_dwordx4 {v(PWO)}, {s(R_WO,4)}, {s(S_T1)} offen {NT_WO} lds")

    stamp(0)
    DBG = opt.get("dbg", 0)
    if DBG: A("s_memrealtime s[8:9]")
    A("s_load_dwordx16 s[16:31], s[0:1], 0")
    A("s_load_dwordx8 s[32:39], s[0:1], 64")
    A("s_cmp_ge_u32 s2, 256")
    A("s_cbranch_scc1 L_end")
    A("v_and_b32 v1, 63, v0")
    A("v_lshrrev_b32 v2, 6, v0")
    A(f"s_and_b32 {s(S_XCD)}, s2, 7")
    A(f"s_lshr_b32 {s(S_J)}, s2, 3")
    A(f"v_readfirstlane_b32 {s(S_WV)}, v2")
    A(f"s_lshr_b32 {s(S_T0)}, {s(S_XCD)}, 1")
    A(f"s_lshl_b32 {s(S_T0)}, {s(S_T0)}, 2")
    A(f"s_and_b32 {s(S_T1)}, {s(S_J)}, 3")
    A(f"s_add_u32 {s(S_RB)}, {s(S_T0)}, {s(S_T1)}")
    A(f"s_and_b32 {s(S_T0)}, {s(S_XCD)}, 1")
    A(f"s_lshl_b32 {s(S_T0)}, {s(S_T0)}, 3")
    A(f"s_lshr_b32 {s(S_T1)}, {s(S_J)}, 2")
    A(f"s_add_u32 {s(S_HP)}, {s(S_T0)}, {s(S_T1)}")
    A(f"s_and_b32 {s(S_LI)}, {s(S_WV)}, 3")
    A("v_and_b32 v3, 31, v1")
    A("v_lshrrev_b32 v4, 5, v1")
    A(f"s_cmp_ge_u32 {s(S_WV)}, 4")
    A("s_cbranch_scc1 L_lwave")
    A("v_lshrrev_b32 v5, 3, v1")
    A("v_and_b32 v6, 7, v1")
    A("v_lshlrev_b32 v6, 4, v6")
    A(f"s_lshl_b32 {s(S_T0)}, {s(S_J)}, 6")
    A(f"s_lshl_b32 {s(S_T1)}, {s(S_WV)}, 4")
    A(f"s_add_u32 {s(S_T0)}, {s(S_T0)}, {s(S_T1)}")
    A(f"v_add_u32 v5, {s(S_T0)}, v5")
    A("v_lshlrev_b32 v5, 10, v5")
    A(f"s_lshl_b32 {s(S_T1)}, {s(S_XCD)}, 7")
    A(f"v_add3_u32 v7, v5, v6, {s(S_T1)}")
    A("v_add_u32 v8, 0xffffe000, v7")
    A("v_add_u32 v9, 0x2000, v7")
    A(f"s_mul_i32 {s(S_T4)}, {s(S_WV)}, 5120")
    A(f"s_add_u32 {s(S_T4)}, {s(S_T4)}, {KVS}")
    A(f"s_lshl_b32 {s(S_T0)}, {s(S_XCD)}, 9")
    A("v_lshlrev_b32 v11, 4, v3")
    A(f"v_add_u32 v11, {s(S_T0)}, v11")
    A("s_waitcnt lgkmcnt(0)")
    stamp(1)
    srd(R_BK, S_BK, 2048*1024)
    srd(R_X, S_BV, 2048*1024)
    A(f"s_load_dword {s(S_NONCE)}, {s(S_WS,2)}, {EP}")
    for n, vr in enumerate((8, 7, 9)):
        A(f"s_add_u32 m0, {s(S_T4)}, {n*1024}")
        A(f"buffer_load_dwordx4 {v(vr)}, {s(R_BK,4)}, 0 offen {NT_B} lds")
    for n, vr in enumerate((7, 9)):
        A(f"s_add_u32 m0, {s(S_T4)}, {3072 + n*1024}")
        A(f"buffer_load_dwordx4 {v(vr)}, {s(R_X,4)}, 0 offen {NT_B} lds")
    A(f"global_load_dwordx4 v[36:39], v11, {s(S_SK,2)}")
    NTOUCH = 0
    if opt.get("touch", 0):
        A("v_and_b32 v40, 7, v1")
        A("v_lshlrev_b32 v40, 21, v40")
        A("v_min_u32 v40, 0xa00000, v40")
        A(f"global_load_dword v200, v40, {s(S_WS,2)} offset:2048")
        A(f"s_lshl_b32 {s(S_T0)}, {s(S_J)}, 16")
        A(f"v_mov_b32 v42, {s(S_T0)}")
        A(f"global_load_dword v201, v42, {s(S_BQ,2)}")
        A(f"s_lshl_b32 {s(S_T0)}, {s(S_J)}, 17")
        A(f"v_mov_b32 v44, {s(S_T0)}")
        A(f"global_load_dword v202, v44, {s(S_OUT,2)}")
        A(f"s_lshl_b32 {s(S_T0)}, {s(S_XCD)}, 19")
        A(f"v_mov_b32 v46, {s(S_T0)}")
        A(f"global_load_dword v203, v46, {s(S_OUT,2)}")
        A("v_mov_b32 v48, 0")
        A(f"global_load_dword v204, v48, {s(S_WO,2)}")
        A(f"global_load_dword v205, v48, {s(S_SSMK,2)}")
        NTOUCH = 6
    XA, XB, WA, WB, WC = 144, 148, 152, 153, 154
    A(f"s_lshl_b32 {s(S_T0)}, {s(S_LI)}, 5")
    A(f"v_add_u32 v110, {s(S_T0)}, v3")
    A("v_lshrrev_b32 v111, 1, v110")
    A("v_and_b32 v111, 7, v111")
    A("v_xor_b32 v111, v111, v4")
    A("v_lshlrev_b32 v111, 4, v111")
    A("v_lshl_add_u32 v111, v110, 7, v111")
    for st in range(4):
        A(f"v_xor_b32 {v(XA+st)}, {st*32}, v111")
        A(f"v_add_u32 {v(XB+st)}, {2*STG}, {v(XA+st)}")
    A("v_and_b32 v110, 15, v1")
    A("v_lshrrev_b32 v110, 2, v110")
    A("v_lshl_add_u32 v110, v4, 3, v110")
    A("v_lshlrev_b32 v110, 6, v110")
    A("v_bfe_u32 v111, v1, 4, 1")
    A("v_lshl_add_u32 v110, v111, 5, v110")
    A("v_and_b32 v111, 3, v1")
    A("v_lshl_add_u32 v110, v111, 3, v110")
    A(f"v_add_u32 {v(WA)}, 16384, v110")
    A(f"v_add_u32 {v(WB)}, {2*STG}, {v(WA)}")
    A(f"v_add_u32 {v(WC)}, {4*STG}, {v(WA)}")
    ACC = 64
    FR = [160, 176, 128]
    def reads(n):
        c, st = n >> 2, n & 3
        stage = STAGE[c]
        xa = (XA if stage < 2 else XB) + st
        wa = WA if stage < 2 else WB if stage < 4 else WC
        so = (stage & 1) * STG
        xo = so if stage < 4 else 2*STG
        f = FR[n % 3]
        L = [f"ds_read_b128 {v(f,4)}, {v(xa)} offset:{xo}"]
        for p in range(3):
            L.append(f"ds_read_b64_tr_b16 {v(f+4+4*p,2)}, {v(wa)} offset:{so + p*4096 + st*1024}")
            L.append(f"ds_read_b64_tr_b16 {v(f+6+4*p,2)}, {v(wa)} offset:{so + p*4096 + st*1024 + 256}")
        return L
    def mfma(n, p):
        f = FR[n % 3]
        acc = v(ACC + 16*p, 16)
        cin = "0" if n == 0 else acc
        if p < 2: return f"{MF} {acc}, {v(f+4+4*p,4)}, {v(f,4)}, {cin}"
        else:     return f"{MF} {acc}, {v(f,4)}, {v(f+4+4*p,4)}, {cin}"
    def epi_addr():
        A("v_lshlrev_b32 v32, 4, v1")
        A(f"s_lshl_b32 {s(S_T0)}, {s(S_HP)}, 7")
        A(f"s_lshl_b32 {s(S_T1)}, {s(S_RB)}, 2")
        A(f"s_add_u32 {s(S_T0)}, {s(S_T0)}, {s(S_T1)}")
        A(f"s_add_u32 {s(S_T0)}, {s(S_T0)}, {s(S_LI)}")
        A(f"s_lshl_b32 {s(S_T0)}, {s(S_T0)}, 10")
        A(f"s_add_u32 {s(S_T1)}, {s(S_T0)}, {KW}")
        A(f"v_add_u32 v37, {s(S_T1)}, v32")
        A("v_add_u32 v38, 0x10000, v37")
        A("v_and_b32 v34, 15, v1")
        A("v_lshlrev_b32 v34, 4, v34")
        A("v_lshl_add_u32 v34, v4, 8, v34")
        A("v_bfe_u32 v35, v1, 4, 1")
        A(f"s_add_u32 {s(S_T1)}, {s(S_T0)}, {VW}")
        A("v_lshlrev_b32 v39, 16, v35")
        A(f"v_add3_u32 v39, v39, v34, {s(S_T1)}")
        A(f"s_lshl_b32 {s(S_T0)}, {s(S_LI)}, 10")
        A(f"v_add_u32 v33, {s(S_T0)}, v32")
        A(f"s_mul_i32 {s(S_T0)}, {s(S_LI)}, {VTS}")
        A(f"v_mov_b32 v36, {VHS}")
        A("v_mul_u32_u24 v36, v36, v35")
        A(f"v_add3_u32 v36, v36, v34, {s(S_T0)}")
    def halo_addr():
        srd(R_WS, S_WS, WS_BYTES)
        A(f"s_sub_u32 {s(S_T2)}, {s(S_RB)}, 1")
        A(f"s_sub_u32 {s(S_T3)}, {s(S_RB)}, 2")
        A(f"s_max_i32 {s(S_T3)}, {s(S_T3)}, 0")
        A(f"s_max_i32 {s(S_T2)}, {s(S_T2)}, 0")
        A("v_and_b32 v158, 1, v1")
        A("v_cmp_eq_u32 vcc, 1, v158")
        A(f"v_mov_b32 v158, {s(S_T2)}")
        A(f"v_mov_b32 v157, {s(S_T3)}")
        A("v_cndmask_b32 v158, v158, v157, vcc")
        A(f"s_and_b32 {s(S_T0)}, {s(S_HP)}, 7")
        A(f"s_lshl_b32 {s(S_T0)}, {s(S_T0)}, 5")
        A(f"s_lshr_b32 {s(S_T1)}, {s(S_HP)}, 3")
        A(f"s_add_u32 {s(S_T0)}, {s(S_T0)}, {s(S_T1)}")
        A("v_and_b32 v157, 3, v158")
        A("v_lshlrev_b32 v157, 3, v157")
        A("v_lshrrev_b32 v158, 2, v158")
        A("v_lshl_add_u32 v157, v158, 1, v157")
        A(f"v_add_u32 v157, {s(S_T0)}, v157")
        A("v_lshlrev_b32 v157, 7, v157")
        A(f"s_lshl_b32 {s(S_T0)}, {s(S_LI)}, 2")
        A(f"s_add_u32 {s(S_T0)}, {s(S_T0)}, {FLG + F_A1}")
        A(f"v_add_u32 v157, {s(S_T0)}, v157")
    A("v_lshlrev_b32 v5, 10, v4")
    A("v_lshl_add_u32 v5, v3, 2, v5")
    A(f"v_add_u32 v5, {s(S_T4)}, v5")
    A(f"s_lshl_b32 {s(S_T0)}, {s(S_WV)}, 1")
    A(f"v_add_u32 v6, {s(S_T0)}, v4")
    A("v_sub_u32 v112, 7, v6")
    A("v_and_b32 v113, 7, v3")
    A("v_xor_b32 v112, v112, v113")
    A("v_lshlrev_b32 v112, 4, v112")
    A("v_lshl_add_u32 v112, v3, 8, v112")
    A(f"v_add_u32 v112, {T0}, v112")
    A("v_lshrrev_b32 v114, 3, v1")
    A(f"s_lshl_b32 {s(S_T0)}, {s(S_LI)}, 4")
    A(f"v_add_u32 v114, {s(S_T0)}, v114")
    A("v_and_b32 v115, 7, v1")
    A("v_lshrrev_b32 v116, 1, v114")
    A("v_and_b32 v116, 7, v116")
    A("v_xor_b32 v116, v116, v115")
    A("v_lshlrev_b32 v117, 7, v114")
    A("v_lshl_add_u32 v118, v116, 4, v117")
    A("v_xor_b32 v116, 4, v116")
    A("v_lshl_add_u32 v119, v116, 4, v117")
    A(f"v_add_u32 v118, {T0}, v118")
    A(f"v_add_u32 v119, {T0 + 1024}, v119")
    A(f"s_lshl_b32 {s(S_T0)}, {s(S_XCD)}, 18")
    A(f"s_lshl_b32 {s(S_T1)}, {s(S_J)}, 7")
    A(f"s_sub_u32 {s(S_T0)}, {s(S_T0)}, {s(S_T1)}")
    A(f"s_add_u32 {s(S_T0)}, {s(S_T0)}, {UR + 1984*2}")
    A("v_lshlrev_b32 v120, 12, v114")
    A("v_lshl_add_u32 v120, v115, 4, v120")
    A(f"v_add_u32 v120, {s(S_T0)}, v120")
    A("v_add_u32 v121, 0x8000, v120")
    A(f"s_waitcnt vmcnt({NTOUCH}) lgkmcnt(0)")
    stamp(2)
    for r in range(11):
        A(f"ds_read_b32 {v(16+r)}, v5 offset:{(5+r)*128}")
    for r in range(8):
        A(f"ds_read_b32 {v(28+r)}, v5 offset:{3072 + r*128}")
    A("v_lshlrev_b32 v78, 16, v36"); A("v_lshlrev_b32 v79, 16, v38")
    A("v_and_b32 v80, 0xffff0000, v36"); A("v_and_b32 v81, 0xffff0000, v38")
    A("v_lshlrev_b32 v82, 16, v37"); A("v_lshlrev_b32 v83, 16, v39")
    A("v_and_b32 v84, 0xffff0000, v37"); A("v_and_b32 v85, 0xffff0000, v39")
    A(f"s_add_u32 {s(S_NONCE)}, {s(S_NONCE)}, 1")
    A("s_waitcnt lgkmcnt(8)")
    for r in range(11):
        A(f"v_lshlrev_b32 {v(40+2*r)}, 16, {v(16+r)}")
        A(f"v_and_b32 {v(41+2*r)}, 0xffff0000, {v(16+r)}")
    for tau in range(8):
        A(f"v_pk_mul_f32 {v(86+2*tau,2)}, {v(40+2*(tau+3),2)}, {v(78,2)}")
    for jj in range(1, 4):
        for tau in range(8):
            d = 86 + 2*tau
            A(f"v_pk_fma_f32 {v(d,2)}, {v(40+2*(tau+3-jj),2)}, {v(78+2*jj,2)}, {v(d,2)}")
    A("s_waitcnt lgkmcnt(0)")
    for r in range(8):
        A(f"v_lshlrev_b32 {v(62+2*r)}, 16, {v(28+r)}")
        A(f"v_and_b32 {v(63+2*r)}, 0xffff0000, {v(28+r)}")
    for tau in range(8):
        d = 86 + 2*tau
        A(f"v_pk_mul_f32 {v(d,2)}, {v(d,2)}, {v(62+2*tau,2)}")
    for e in range(4):
        A(f"v_cvt_pk_bf16_f32 {v(104+e)}, {v(86+2*(7-2*e))}, {v(86+2*(6-2*e))}")
        A(f"v_cvt_pk_bf16_f32 {v(108+e)}, {v(87+2*(7-2*e))}, {v(87+2*(6-2*e))}")
    A("ds_write_b128 v112, v[104:107]")
    A("ds_write_b128 v112, v[108:111] offset:128")
    A(f"s_lshl_b32 {s(S_T0)}, {s(S_LI)}, 2")
    A(f"s_add_u32 {s(S_T0)}, {s(S_T0)}, {CSW}")
    A(f"v_mov_b32 v155, {s(S_T0)}")
    A("v_mov_b32 v156, 0")
    A("ds_write_b32 v155, v156")
    A(f"v_mov_b32 v16, {OK2}")
    A("ds_write_b32 v16, v156")
    A("s_waitcnt lgkmcnt(0)")
    stamp(3)
    A("s_barrier")
    stamp(4)
    A("ds_read_b128 v[24:27], v118")
    A("ds_read_b128 v[28:31], v119")
    for t in reads(0): A(t)
    A("s_waitcnt lgkmcnt(7)")
    A(f"global_store_dwordx4 v120, v[24:27], {s(S_WS,2)} {SCS}")
    A(f"global_store_dwordx4 v121, v[28:31], {s(S_WS,2)} {SCS}")
    for t in reads(1): A(t)
    for n in range(32):
        if (n & 3) == 2 and n + 2 < 32:
            A("s_waitcnt lgkmcnt(0)")
            if n == 2: epi_addr()
            if n == 6: halo_addr()
            if n == 10:
                A("s_waitcnt vmcnt(0)")
                publish(F_B1, 16, 17)

            if prof and n <= 14: A(f"s_memtime s[{8+2*(n>>2)}:{9+2*(n>>2)}]")
            A("s_barrier")
        elif n + 1 < 32:
            A("s_waitcnt lgkmcnt(7)")
        else:
            A("s_waitcnt lgkmcnt(0)")
            A(f"v_mov_b32 v156, {s(S_NONCE)}")
            A("ds_write_b32 v155, v156")
        R = reads(n + 2) if n + 2 < 32 else []
        A(mfma(n, 0))
        for t in R[0:3]: A(t)
        A(mfma(n, 1))
        for t in R[3:5]: A(t)
        A(mfma(n, 2))
        for t in R[5:7]: A(t)
    if prof:
        A("s_waitcnt lgkmcnt(0)")
        for c in range(4): A(f"v_writelane_b32 v255, s{8+2*c}, {22+c}")
    stamp(5)
    PK = 112
    for i in range(8):
        A(f"v_cvt_pk_bf16_f32 {v(PK+8+i)}, {v(ACC+16+2*i)}, {v(ACC+17+2*i)}")
    A(f"global_store_dwordx4 v37, {v(PK+8,4)}, {s(S_WS,2)} {SCS}")
    A(f"global_store_dwordx4 v38, {v(PK+12,4)}, {s(S_WS,2)} {SCS}")
    for i in range(8):
        A(f"v_cvt_pk_bf16_f32 {v(PK+16+i)}, {v(ACC+32+2*i)}, {v(ACC+33+2*i)}")
    A(f"global_store_dwordx4 v39, {v(PK+16,4)}, {s(S_WS,2)} {SCS}")
    A(f"global_store_dwordx4 v39, {v(PK+20,4)}, {s(S_WS,2)} offset:512 {SCS}")
    A(f"s_mov_b32 {s(S_T0)}, {QSCALE}")
    for r in range(16):
        A(f"v_mul_f32 {v(ACC+r)}, {s(S_T0)}, {v(ACC+r)}")
    for i in range(8):
        A(f"v_cvt_pk_bf16_f32 {v(PK+i)}, {v(ACC+2*i)}, {v(ACC+2*i+1)}")
    A(f"ds_write_b128 v33, {v(PK+8,4)} offset:{LK + 8*1024}")
    A(f"ds_write_b128 v33, {v(PK+12,4)} offset:{LK + KHS + 8*1024}")
    A(f"ds_write_b128 v36, {v(PK+16,4)} offset:{LV + 8*VTS}")
    A(f"ds_write_b128 v36, {v(PK+20,4)} offset:{LV + 8*VTS + 512}")
    A(f"ds_write_b128 v33, {v(PK,4)} offset:{LQ}")
    A(f"ds_write_b128 v33, {v(PK+4,4)} offset:{LQ+4096}")
    A(f"s_cmp_lg_u32 {s(S_LI)}, 0")
    A("s_cbranch_scc1 L_c_nopad")
    A(f"v_mov_b32 v24, {ONES}"); A("v_mov_b32 v25, v24"); A("v_mov_b32 v26, v24"); A("v_mov_b32 v27, v24")
    A(f"v_mul_u32_u24 v28, {VTS}, v1")
    A("v_cmp_gt_u32 vcc, 24, v1")
    A(f"s_and_saveexec_b64 {s(S_EX,2)}, vcc")
    A(f"ds_write_b128 v28, v[24:27] offset:{LV + 1024}")
    A(f"s_mov_b64 exec, {s(S_EX,2)}")
    A("L_c_nopad:")
    A("s_waitcnt vmcnt(0)")
    publish(F_A1, 16, 17)
    stamp(6)
    A(f"s_cmp_eq_u32 {s(S_RB)}, 0")
    A("s_cbranch_scc1 L_c_nosample")
    flag_load(157, 158)
    A("L_c_nosample:")
    A(f"v_mov_b32 v16, {CSW}")
    A(f"s_mov_b32 {s(S_SPIN)}, {SPIN*8}")
    A("L_c_sync:")
    A("ds_read_b128 v[20:23], v16")
    A("s_waitcnt lgkmcnt(0)")
    A(f"v_cmp_ne_u32 vcc, {s(S_NONCE)}, v20")
    A(f"v_cmp_ne_u32 {s(S_CMP,2)}, {s(S_NONCE)}, v21")
    A(f"v_cmp_ne_u32 {s(S_CMP+2,2)}, {s(S_NONCE)}, v22")
    A(f"v_cmp_ne_u32 {s(S_CMP+4,2)}, {s(S_NONCE)}, v23")
    A(f"s_or_b64 vcc, vcc, {s(S_CMP,2)}")
    A(f"s_or_b64 vcc, vcc, {s(S_CMP+2,2)}")
    A(f"s_or_b64 vcc, vcc, {s(S_CMP+4,2)}")
    A("s_cbranch_vccz L_c_synced")
    A(f"s_sub_u32 {s(S_SPIN)}, {s(S_SPIN)}, 1")
    A(f"s_cmp_lg_u32 {s(S_SPIN)}, 0")
    A("s_cbranch_scc1 L_c_sync")
    A("L_c_synced:")
    A(f"s_mov_b32 {s(S_T4)}, {s(S_T2)}")
    A(f"s_mov_b32 {s(S_T5)}, {s(S_T3)}")
    call("L_sub_a")
    A(f"s_mov_b32 {s(S_T2)}, {s(S_T4)}")
    A(f"s_mov_b32 {s(S_T3)}, {s(S_T5)}")
    A(f"s_cmp_eq_u32 {s(S_RB)}, 0")
    A("s_cbranch_scc1 L_c_halo_done")
    A("s_waitcnt vmcnt(0)")
    check_or_spin(157, 158, "L_poll_h")
    stamp(7)
    A("v_lshlrev_b32 v18, 4, v1")
    A(f"s_lshl_b32 {s(S_T4)}, {s(S_LI)}, 10")
    A(f"s_mul_i32 {s(S_T5)}, {s(S_LI)}, {VTS}")
    def halo(rbreg, toff):
        A(f"s_lshl_b32 {s(S_T0)}, {s(S_HP)}, 7")
        A(f"s_lshl_b32 {s(S_T1)}, {s(rbreg)}, 2")
        A(f"s_add_u32 {s(S_T0)}, {s(S_T0)}, {s(S_T1)}")
        A(f"s_add_u32 {s(S_T0)}, {s(S_T0)}, {s(S_LI)}")
        A(f"s_lshl_b32 {s(S_T0)}, {s(S_T0)}, 10")
        for hd in range(2):
            A(f"s_add_u32 m0, {s(S_T4)}, {LK + hd*KHS + toff*1024}")
            A(f"s_add_u32 {s(S_T1)}, {s(S_T0)}, {KW + hd*65536}")
            A(f"buffer_load_dwordx4 v18, {s(R_WS,4)}, {s(S_T1)} offen sc1 lds")
            A(f"s_add_u32 m0, {s(S_T5)}, {LV + hd*VHS + toff*VTS}")
            A(f"s_add_u32 {s(S_T1)}, {s(S_T0)}, {VW + hd*65536}")
            A(f"buffer_load_dwordx4 v18, {s(R_WS,4)}, {s(S_T1)} offen sc1 lds")
    halo(S_T2, 4)
    A(f"s_cmp_eq_u32 {s(S_RB)}, 1")
    A("s_cbranch_scc1 L_c_halo_done")
    halo(S_T3, 0)
    A("L_c_halo_done:")
    for n in range(8): wo_dma(n)
    A("s_barrier")
    A(f"s_add_u32 {s(S_WOL)}, {s(S_WOL)}, {4*8192}")
    A(f"s_add_u32 {s(S_WOB)}, {s(S_WOB)}, {4*65536}")
    for n in range(8): wo_dma(n)
    A("s_waitcnt vmcnt(16) lgkmcnt(0)")
    stamp(8)
    A("s_barrier")
    stamp(9)
    A("s_branch L_a2")

    A("L_lwave:")
    if opt.get("lprio", 0): A(f"s_setprio {opt.get('lprio')}")
    A("v_lshrrev_b32 v220, 3, v1")
    A(f"s_lshl_b32 {s(S_T0)}, {s(S_RB)}, 7")
    A(f"s_lshl_b32 {s(S_T1)}, {s(S_LI)}, 5")
    A(f"s_add_u32 {s(S_T0)}, {s(S_T0)}, {s(S_T1)}")
    A(f"v_add_u32 v220, {s(S_T0)}, v220")
    A("v_lshlrev_b32 v220, 10, v220")
    A("v_and_b32 v221, 7, v1")
    A("v_lshrrev_b32 v222, 4, v1")
    A("v_xor_b32 v223, v221, v222")
    A("v_lshl_add_u32 v200, v223, 4, v220")
    A("v_xor_b32 v223, 4, v223")
    A("v_lshl_add_u32 v201, v223, 4, v220")
    A("v_lshrrev_b32 v220, 2, v1")
    A(f"s_lshl_b32 {s(S_T0)}, {s(S_LI)}, 4")
    A(f"v_add_u32 v220, {s(S_T0)}, v220")
    A(f"v_mul_u32_u24 v220, 3072, v220")
    A("v_and_b32 v221, 3, v1")
    A("v_lshlrev_b32 v221, 4, v221")
    A(f"s_lshl_b32 {s(S_T0)}, {s(S_HP)}, 6")
    A(f"v_add3_u32 v202, v220, v221, {s(S_T0)}")
    S_LX, S_LW = S_T4, S_T5
    A(f"s_lshl_b32 {s(S_LX)}, {s(S_LI)}, 12")
    A(f"s_lshl_b32 {s(S_LW)}, {s(S_LI)}, 10")
    A(f"s_lshl_b32 {s(S_CH)}, {s(S_XCD)}, 6")
    A(f"s_lshl_b32 {s(S_T1)}, {s(S_J)}, 1")
    A(f"s_add_u32 {s(S_CH)}, {s(S_CH)}, {s(S_T1)}")
    A(f"s_lshr_b32 {s(S_T1)}, {s(S_LI)}, 1")
    A(f"s_add_u32 {s(S_CH)}, {s(S_CH)}, {s(S_T1)}")
    A(f"s_mul_i32 {s(S_CBASE)}, {s(S_T1)}, {CB}")
    A(f"s_add_u32 {s(S_CBASE)}, {s(S_CBASE)}, {B2R}")
    A(f"s_and_b32 {s(S_T2)}, {s(S_LI)}, 1")
    A(f"s_lshl_b32 {s(S_T1)}, {s(S_CH)}, 12")
    A(f"s_lshl_b32 {s(S_T3)}, {s(S_T2)}, 11")
    A(f"s_add_u32 {s(S_T1)}, {s(S_T1)}, {s(S_T3)}")
    A("v_lshlrev_b32 v203, 4, v1")
    A(f"v_add_u32 v203, {s(S_T1)}, v203")
    A("v_add_u32 v204, 2, v203")
    A("s_waitcnt lgkmcnt(0)")
    stamp(1)
    srd(R_X, S_X, 2048*1024)
    srd(R_W, S_WQKV, 512*3072)
    A(f"s_load_dword {s(S_NONCE)}, {s(S_WS,2)}, {EP}")
    if opt.get("rot", 1):
        A(f"s_and_b32 {s(S_T0)}, {s(S_RB)}, 3")
        A(f"s_lshl_b32 {s(S_T0)}, {s(S_T0)}, 1")
        A(f"s_add_u32 {s(S_ROT)}, {s(S_HP)}, {s(S_T0)}")
    else:
        A(f"s_mov_b32 {s(S_ROT)}, 0")
    def dma_chunk(c):
        st = STAGE[c] * STG
        A(f"s_add_u32 {s(S_T1)}, {s(S_ROT)}, {c}")
        A(f"s_and_b32 {s(S_T1)}, {s(S_T1)}, 7")
        A(f"s_mul_i32 {s(S_T2)}, {s(S_T1)}, {64*3072}")
        A(f"s_lshl_b32 {s(S_T1)}, {s(S_T1)}, 7")
        for n in range(4):
            A(f"s_add_u32 m0, {s(S_LX)}, {st + n*1024}")
            A(f"s_add_u32 {s(S_T0)}, {s(S_T1)}, {n*8192}")
            A(f"buffer_load_dwordx4 {v(200 + (n & 1))}, {s(R_X,4)}, {s(S_T0)} offen {NT_XW} lds")
        for p in range(3):
            A(f"s_add_u32 m0, {s(S_LW)}, {st + 16384 + p*4096}")
            A(f"s_add_u32 {s(S_T0)}, {s(S_T2)}, {p*1024}")
            A(f"buffer_load_dwordx4 v202, {s(R_W,4)}, {s(S_T0)} offen {NT_XW} lds")
    DIST = opt.get('dist', 3)
    for c in range(DIST): dma_chunk(c)
    def h_loads():
        srd(R_WO, S_SSMK, 512*4096)
        A(f"s_and_b32 {s(S_T2)}, {s(S_LI)}, 1")
        A(f"s_lshl_b32 {s(S_T2)}, {s(S_T2)}, 11")
        A(f"s_add_u32 {s(S_T2)}, {s(S_T2)}, {s(S_CBASE)}")
        for n in range(2):
            A(f"s_add_u32 m0, {s(S_T2)}, {O_OFF + 28 + n*1024}")
            A(f"s_mov_b32 {s(S_T0)}, {n*1024}")
            A(f"buffer_load_dwordx4 v203, {s(R_WO,4)}, {s(S_T0)} offen {NT_B} lds")
            A(f"s_add_u32 m0, {s(S_T2)}, {E_OFF + 32 + n*1024}")
            A(f"buffer_load_dwordx4 v204, {s(R_WO,4)}, {s(S_T0)} offen {NT_B} lds")
        A(f"s_lshl_b32 {s(S_T0)}, {s(S_CH)}, 12")
        A(f"v_mov_b32 v34, {s(S_T0)}")
        A(f"global_load_dword v32, v34, {s(S_SSMK,2)}")
        A(f"s_lshl_b32 {s(S_T0)}, {s(S_CH)}, 1")
        A(f"s_and_b32 {s(S_T0)}, {s(S_T0)}, 0xfffffffc")
        A(f"v_mov_b32 v35, {s(S_T0)}")
        A(f"global_load_dword v33, v35, {s(S_SD,2)}")
    stamp(2)
    AA, AB = 16, 24
    CA = [32, 64]
    CBf = [96, 128]
    CACC = 160
    def build_eo():
        A(f"s_and_b32 {s(S_T2)}, {s(S_LI)}, 1")
        A(f"s_cmp_lg_u32 {s(S_T2)}, 0")
        A("s_cbranch_scc1 L_l_nopad")
        A(f"s_lshr_b32 {s(S_T0)}, {s(S_LI)}, 1")
        A(f"s_lshl_b32 {s(S_T0)}, {s(S_T0)}, 4")
        A(f"v_lshrrev_b32 v33, {s(S_T0)}, v33")
        A("v_lshlrev_b32 v33, 16, v33")
        A("v_lshlrev_b32 v34, 16, v32")
        A("v_add_f32 v34, v33, v34")
        A("v_cvt_pk_bf16_f32 v34, v34, v34")
        A("v_and_b32 v34, 0xffff, v34")
        A("v_and_b32 v35, 0xffff0000, v32")
        A("v_or_b32 v35, v35, v34")
        A("v_lshlrev_b32 v34, 16, v34")
        A("v_mov_b32 v36, 0")
        A("v_lshlrev_b32 v37, 2, v1")
        A(f"v_add_u32 v37, {s(S_CBASE)}, v37")
        A("v_cmp_eq_u32 vcc, 7, v1")
        A("v_cndmask_b32 v34, v36, v34, vcc")
        A("v_cndmask_b32 v35, v36, v35, vcc")
        A("v_cmp_gt_u32 vcc, 8, v1")
        A(f"s_and_saveexec_b64 {s(S_EX,2)}, vcc")
        A(f"ds_write_b32 v37, v34 offset:{E_OFF}")
        A(f"ds_write_b32 v37, v35 offset:{O_OFF}")
        A(f"s_mov_b64 exec, {s(S_EX,2)}")
        A("v_mov_b32 v39, 0")
        A("v_mov_b32 v38, 0")
        A("v_lshlrev_b32 v37, 3, v1")
        A(f"v_add_u32 v37, {s(S_CBASE)}, v37")
        A("v_cmp_gt_u32 vcc, 60, v1")
        A(f"s_and_saveexec_b64 {s(S_EX,2)}, vcc")
        A(f"ds_write_b64 v37, v[38:39] offset:{U_OFF + 4096}")
        A(f"s_mov_b64 exec, {s(S_EX,2)}")
        A("L_l_nopad:")
        A("s_waitcnt lgkmcnt(0)")
    def conv_addr():
        A("v_and_b32 v25, 15, v1")
        A("v_lshrrev_b32 v26, 4, v1")
        A("v_lshrrev_b32 v27, 1, v25")
        A("v_lshl_add_u32 v27, v26, 2, v27")
        A("v_lshlrev_b32 v27, 2, v27")
        A("v_and_b32 v28, 1, v25")
        A(f"v_mul_u32_u24 v28, {O_OFF}, v28")
        A(f"s_and_b32 {s(S_T2)}, {s(S_LI)}, 1")
        A(f"s_lshl_b32 {s(S_T0)}, {s(S_T2)}, 8")
        A(f"s_add_u32 {s(S_T0)}, {s(S_T0)}, {s(S_CBASE)}")
        A(f"v_add3_u32 {v(AA)}, v27, v28, {s(S_T0)}")
        for jj in range(1, 8):
            A(f"v_add_u32 {v(AA+jj)}, {512*jj}, {v(AA)}")
        A("v_lshlrev_b32 v27, 4, v26")
        A("v_lshlrev_b32 v28, 5, v25")
        A("v_sub_u32 v27, v27, v28")
        A(f"s_add_u32 {s(S_T0)}, {s(S_T0)}, {U_OFF + 480}")
        A(f"v_add_u32 {v(AB)}, {s(S_T0)}, v27")
    def ur_dma():
        A(f"s_lshl_b32 {s(S_T0)}, {s(S_CH)}, 12")
        A(f"s_add_u32 {s(S_T0)}, {s(S_T0)}, {UR}")
        A("v_lshlrev_b32 v28, 4, v1")
        for cs in range(2):
            for n in range(4):
                A(f"s_mov_b32 m0, {B2R + cs*CB + U_OFF + n*1024}")
                A(f"s_add_u32 {s(S_T1)}, {s(S_T0)}, {cs*4096 + n*1024}")
                A(f"buffer_load_dwordx4 v28, {s(R_WS,4)}, {s(S_T1)} offen sc1 lds")
    def lbar(c, n):
        if n is not None: A(f"s_waitcnt vmcnt({n})")
        if prof:
            A("s_memtime s[98:99]"); A("s_waitcnt lgkmcnt(0)"); A(f"v_writelane_b32 v255, s98, {22+c}")
        A("s_barrier")
        if prof:
            A("s_memtime s[98:99]"); A("s_waitcnt lgkmcnt(0)"); A(f"v_writelane_b32 v255, s98, {54+c}")
    A("s_waitcnt lgkmcnt(0)")
    A(f"s_lshl_b32 {s(S_T0)}, {s(S_LI)}, 2")
    A(f"s_add_u32 {s(S_T0)}, {s(S_T0)}, {OKW}")
    A(f"v_mov_b32 v29, {s(S_T0)}")
    A("v_mov_b32 v26, 0")
    A("ds_write_b32 v29, v26")
    A("s_waitcnt lgkmcnt(0)")
    def b1_flag_sample():
        A("v_and_b32 v30, 31, v1")
        A("v_lshlrev_b32 v30, 10, v30")
        A(f"s_lshl_b32 {s(S_T0)}, {s(S_XCD)}, 7")
        A(f"s_lshr_b32 {s(S_T1)}, {s(S_J)}, 3")
        A(f"s_lshl_b32 {s(S_T1)}, {s(S_T1)}, 2")
        A(f"s_add_u32 {s(S_T0)}, {s(S_T0)}, {s(S_T1)}")
        A(f"s_add_u32 {s(S_T0)}, {s(S_T0)}, {FLG + F_B1}")
        A(f"v_add_u32 v30, {s(S_T0)}, v30")
        A(f"s_cmp_eq_u32 {s(S_LI)}, 0")
        A("s_cbranch_scc1 L_l_w4a")
        A(f"s_lshl_b32 {s(S_T0)}, s2, 7")
        A(f"s_add_u32 {s(S_T0)}, {s(S_T0)}, {FLG + F_B2}")
        A(f"v_mov_b32 v30, {s(S_T0)}")
        A("L_l_w4a:")
        flag_load(30, 31)
    if DIST == 3:
        lbar(0, 14)
        dma_chunk(3)
        A(f"s_add_u32 {s(S_NONCE)}, {s(S_NONCE)}, 1")
        srd(R_WS, S_WS, WS_BYTES)
        lbar(1, 14)
        dma_chunk(4)
        lbar(2, 14)
        dma_chunk(5)
        lbar(3, 14)
        dma_chunk(6)
        lbar(4, 14)
        dma_chunk(7)
        lbar(5, 14)
        b1_flag_sample()
        h_loads()
        lbar(6, 14)
        conv_addr()
    else:
        lbar(0, 7)
        dma_chunk(2)
        A(f"s_add_u32 {s(S_NONCE)}, {s(S_NONCE)}, 1")
        srd(R_WS, S_WS, WS_BYTES)
        lbar(1, 7)
        dma_chunk(3)
        h_loads()
        lbar(2, 12)
        dma_chunk(4)
        lbar(3, 12)
        dma_chunk(5)
        lbar(4, 7)
        dma_chunk(6)
        lbar(5, 7)
        dma_chunk(7)
        b1_flag_sample()
        build_eo()
        lbar(6, 8)
        conv_addr()
    A("s_waitcnt vmcnt(6)")
    A(f"s_mov_b32 {s(S_OK)}, 0")
    A(f"s_cmp_lg_u32 {s(S_LI)}, 0")
    A("s_cbranch_scc1 L_l_late")
    A(f"v_cmp_ne_u32 vcc, {s(S_NONCE)}, v31")
    A("s_cbranch_vccnz L_l_late")
    ur_dma()
    A(f"s_mov_b32 {s(S_OK)}, 1")
    A("L_l_late:")
    if prof:
        A("s_memtime s[98:99]"); A("s_waitcnt lgkmcnt(0)"); A(f"v_writelane_b32 v255, s98, 29")
    A("s_barrier")
    if opt.get("lprio", 0) != opt.get("cprio", 0): A(f"s_setprio {opt.get('cprio', 0)}")
    stamp(5)
    call("L_sub_a")
    stamp(6)
    A(f"s_cmp_lg_u32 {s(S_LI)}, 0")
    A("s_cbranch_scc1 L_l_have")
    A(f"s_cmp_eq_u32 {s(S_OK)}, 1")
    A("s_cbranch_scc1 L_l_have")
    spin(30, 31, "L_poll_b1")
    ur_dma()
    A("L_l_have:")
    A("s_waitcnt vmcnt(0)")
    stamp(3)
    build_eo()
    stamp(4)
    A(f"v_mov_b32 v26, {s(S_NONCE)}")
    A("ds_write_b32 v29, v26")
    A(f"v_mov_b32 v25, {OKW}")
    A(f"s_mov_b32 {s(S_SPIN)}, {SPIN*8}")
    A("L_l_ospin:")
    A("ds_read_b128 v[32:35], v25")
    A("s_waitcnt lgkmcnt(0)")
    A(f"v_cmp_ne_u32 vcc, {s(S_NONCE)}, v32")
    A(f"v_cmp_ne_u32 {s(S_CMP,2)}, {s(S_NONCE)}, v33")
    A(f"v_cmp_ne_u32 {s(S_CMP+2,2)}, {s(S_NONCE)}, v34")
    A(f"v_cmp_ne_u32 {s(S_CMP+4,2)}, {s(S_NONCE)}, v35")
    A(f"s_or_b64 vcc, vcc, {s(S_CMP,2)}")
    A(f"s_or_b64 vcc, vcc, {s(S_CMP+2,2)}")
    A(f"s_or_b64 vcc, vcc, {s(S_CMP+4,2)}")
    A("s_cbranch_vccz L_l_go")
    A(f"s_sub_u32 {s(S_SPIN)}, {s(S_SPIN)}, 1")
    A(f"s_cmp_lg_u32 {s(S_SPIN)}, 0")
    A("s_cbranch_scc1 L_l_ospin")
    A("L_l_go:")
    A(f"s_and_b32 {s(S_T2)}, {s(S_LI)}, 1")
    stamp(7)
    def conv_reads(ii):
        st = ii & 1
        L = []
        for k in range(8):
            L.append(f"ds_read_b128 {v(CBf[st]+4*k,4)}, {v(AB)} offset:{512*(7-k) + 64*ii}")
            L.append(f"ds_read2_b32 {v(CA[st]+4*k,2)}, {v(AA+k)} offset0:{16*ii} offset1:{16*ii+1}")
            L.append(f"ds_read2_b32 {v(CA[st]+4*k+2,2)}, {v(AA+k)} offset0:{16*ii+2} offset1:{16*ii+3}")
        return L
    r0 = conv_reads(0)
    first = [r0[1], r0[2]] + [r0[3*k] for k in range(8)] + [x for k in range(1, 8) for x in (r0[3*k+1], r0[3*k+2])]
    for r in first: A(r)
    for ii in range(4):
        nxt = conv_reads(ii + 1) if ii < 3 else []
        st = ii & 1
        k = 0
        for jj in range(8):
            if ii == 0:
                if jj == 0: A("s_waitcnt lgkmcnt(14)")
                elif jj == 1: A("s_waitcnt lgkmcnt(0)")
            elif jj == 0:
                A("s_waitcnt lgkmcnt(0)")
            for cp in range(8 - jj):
                acc = v(CACC + 4*(cp + jj), 4)
                cin = "0" if (ii == 0 and jj == 0) else acc
                A(f"{MF16} {acc}, {v(CA[st]+4*jj,4)}, {v(CBf[st]+4*cp,4)}, {cin}")
                if k < len(nxt) and not (ii == 0 and jj == 0):
                    A(nxt[k]); k += 1
        while k < len(nxt):
            A(nxt[k]); k += 1
    stamp(8)
    if opt.get("cprio", 0): A("s_setprio 0")
    A("s_nop 7")
    A(f"s_and_b32 {s(S_T2)}, {s(S_LI)}, 1")
    A("v_lshlrev_b32 v25, 4, v1")
    A(f"s_lshl_b32 {s(S_T0)}, {s(S_LI)}, 12")
    A(f"v_add_u32 v26, {s(S_T0)}, v25")
    A(f"s_xor_b32 {s(S_T0)}, {s(S_T0)}, 4096")
    A(f"v_add_u32 v27, {s(S_T0)}, v25")
    A(f"s_cmp_lg_u32 {s(S_T2)}, 0")
    A("s_cbranch_scc1 L_l_x1")
    for k in range(4):
        A(f"ds_write_b128 v26, {v(CACC+16+4*k,4)} offset:{LR + 1024*k}")
    A("s_waitcnt lgkmcnt(0)")
    A("s_barrier")
    for k in range(4):
        A(f"ds_read_b128 {v(32+4*k,4)}, v27 offset:{LR + 1024*k}")
    A("s_waitcnt lgkmcnt(0)")
    for r in range(16):
        A(f"v_add_f32 {v(48+r)}, {v(32+r)}, {v(CACC+r)}")
    A("s_branch L_l_x2")
    A("L_l_x1:")
    A("s_nop 7")
    for k in range(4):
        A(f"ds_write_b128 v26, {v(CACC+4*k,4)} offset:{LR + 1024*k}")
    A("s_waitcnt lgkmcnt(0)")
    A("s_barrier")
    for k in range(4):
        A(f"ds_read_b128 {v(32+4*k,4)}, v27 offset:{LR + 1024*k}")
    A("s_waitcnt lgkmcnt(0)")
    for r in range(16):
        A(f"v_add_f32 {v(48+r)}, {v(32+r)}, {v(CACC+16+r)}")
    A("L_l_x2:")
    for k in range(4):
        A(f"v_cvt_pk_bf16_f32 {v(32+2*k)}, {v(48+4*k)}, {v(49+4*k)}")
        A(f"v_cvt_pk_bf16_f32 {v(33+2*k)}, {v(50+4*k)}, {v(51+4*k)}")
    A("v_and_b32 v25, 15, v1")
    A("v_lshlrev_b32 v25, 5, v25")
    A("v_bfe_u32 v26, v1, 4, 1")
    A("v_lshl_add_u32 v25, v26, 9, v25")
    A("v_lshrrev_b32 v26, 5, v1")
    A("v_lshl_add_u32 v25, v26, 4, v25")
    A(f"s_lshl_b32 {s(S_T0)}, {s(S_CH)}, 12")
    A(f"s_lshl_b32 {s(S_T1)}, {s(S_T2)}, 11")
    A(f"s_add_u32 {s(S_T0)}, {s(S_T0)}, {s(S_T1)}")
    A(f"s_add_u32 {s(S_T0)}, {s(S_T0)}, {YT}")
    A(f"v_add_u32 v25, {s(S_T0)}, v25")
    A("v_permlane16_swap_b32 v32, v34")
    A("v_permlane16_swap_b32 v33, v35")
    A("v_permlane16_swap_b32 v36, v38")
    A("v_permlane16_swap_b32 v37, v39")
    A(f"global_store_dwordx4 v25, v[32:35], {s(S_WS,2)} {SCS}")
    A(f"global_store_dwordx4 v25, v[36:39], {s(S_WS,2)} offset:1024 {SCS}")
    A("s_barrier")
    stamp(9)
    A("L_a2:")
    if DBG: A("s_memrealtime s[10:11]")
    if opt.get("prio", 0): A("s_setprio 1")
    Q, KF, SA, SB, CN, PP, VF, O = 16, 20, 56, 72, 88, 104, 120, 136
    AK, AV0, AV1, TM, TM2 = PAK, PAV0, PAV1, 155, 156
    TM3 = 169
    VQ3, VF2A, VF2 = 160, PFB2, 165
    A(f"ds_read_b128 {v(Q,4)}, {v(PAQ)} offset:{LQ}")
    order = [8, 0, 7, 6, 5, 4, 3, 2, 1]
    for jj in order:
        A(f"ds_read_b128 {v(KF+4*jj,4)}, {v(AK)} offset:{LK + jj*1024}")
    for r in range(4):
        A(f"global_load_dword {v(VQ3+r)}, {v(PQ3)}, {s(S_BQ,2)} offset:{1024*r} {NT_B}")
    buf = lambda jj: SA if (jj & 1) else SB
    A("s_waitcnt lgkmcnt(7)")
    A(f"{MF} {v(MM8,16)}, {v(KF+32,4)}, {v(Q,4)}, {v(MM8,16)}")
    A(f"{MF} {v(MM0,16)}, {v(KF+0,4)}, {v(Q,4)}, {v(MM0,16)}")
    A("s_waitcnt lgkmcnt(5)")
    A(f"{MF} {v(SA,16)}, {v(KF+28,4)}, {v(Q,4)}, 0")
    A(f"{MF} {v(SB,16)}, {v(KF+24,4)}, {v(Q,4)}, 0")
    A(f"s_cmp_gt_u32 {s(S_J0)}, 0")
    A("s_cbranch_scc1 L_st_nomerge")
    stubs.append(["L_st_nomerge:", "s_nop 15", "s_branch L_a2_nomerge"])
    for r in range(16):
        A(f"v_max_f32 {v(MM8+r)}, {v(MM0+r)}, {v(MM8+r)}")
    A("L_a2_nomerge:")
    A(f"v_max_f32 {v(TM)}, {v(MM8)}, {v(MM8+1)}")
    A(f"v_max_f32 {v(TM3)}, {v(MM8+2)}, {v(MM8+3)}")
    for r in range(4, 16, 2):
        t = TM if (r & 2) == 0 else TM3
        A(f"v_max3_f32 {v(t)}, {v(t)}, {v(MM8+r)}, {v(MM8+r+1)}")
    A("s_waitcnt lgkmcnt(0)")
    for jj in range(7, 0, -1):
        b = buf(jj)
        A(f"s_cmp_gt_u32 {s(S_J0)}, {jj}")
        A("s_cbranch_scc1 L_a2_p1done")
        for r in range(0, 16, 2):
            t = TM if (r & 2) == 0 else TM3
            A(f"v_max3_f32 {v(t)}, {v(t)}, {v(b+r)}, {v(b+r+1)}")
        if jj - 2 >= 1:
            A(f"{MF} {v(b,16)}, {v(KF+4*(jj-2),4)}, {v(Q,4)}, 0")
    A("L_a2_p1done:")
    A(f"v_max_f32 {v(TM)}, {v(TM)}, {v(TM3)}")
    A(f"v_mov_b32 {v(TM2)}, {v(TM)}")
    A(f"v_permlane32_swap_b32 {v(TM)}, {v(TM2)}")
    A(f"v_max_f32 {v(TM)}, {v(TM)}, {v(TM2)}")
    A(f"v_sub_f32 {v(TM2)}, 0, {v(TM)}")
    for r in range(16):
        A(f"v_mov_b32 {v(CN+r)}, {v(TM2)}")
    stamp(10)
    A(f"{MF} {v(SA,16)}, {v(KF+28,4)}, {v(Q,4)}, {v(CN,16)}")
    A(f"{MF} {v(SB,16)}, {v(KF+24,4)}, {v(Q,4)}, {v(CN,16)}")
    def vread(slot, jj, sidx):
        A(f"ds_read_b128 {v(VF+4*slot,4)}, {v(AV0 if sidx == 0 else AV1)} offset:{LV + jj*VTS + sidx*512}")
    vread(0, 8, 0); vread(1, 8, 1); vread(2, 0, 0); vread(3, 0, 1)
    def pub_b2(lab, n):
        A(f"s_waitcnt vmcnt({n})")
        A(f"s_cmp_lt_u32 {s(S_WV)}, 4")
        A(f"s_cbranch_scc1 {lab}")
        publish(F_B2, 157, 158)
        A(f"{lab}:")
    if opt.get("prio", 0): A("s_setprio 0")
    P0, P1 = PP, PP + 8
    for r in range(16):
        A(f"v_add_f32 {v(MM8+r)}, {v(TM2)}, {v(MM8+r)}")
    for r in range(16):
        A(f"v_exp_f32 {v(MM8+r)}, {v(MM8+r)}")
    for i in range(8):
        A(f"v_cvt_pk_bf16_f32 {v(P0+i)}, {v(MM8+2*i)}, {v(MM8+2*i+1)}")
    for i in range(8):
        A(f"v_and_b32 {v(P1+i)}, {v(MMK+i)}, {v(P0+i)}")
    for i in range(8):
        A(f"v_xor_b32 {v(P0+i)}, {v(P1+i)}, {v(P0+i)}")
    A("s_waitcnt lgkmcnt(0)")
    A(f"{MF} {v(O,16)}, {v(VF+0,4)}, {v(P0,4)}, 0")
    A(f"s_cmp_gt_u32 {s(S_J0)}, 0")
    A("s_cbranch_scc1 L_a2_nopv0")
    A(f"{MF} {v(O,16)}, {v(VF+8,4)}, {v(P1,4)}, {v(O,16)}")
    A(f"{MF} {v(O,16)}, {v(VF+12,4)}, {v(P1+4,4)}, {v(O,16)}")
    A("L_a2_nopv0:")
    pb = lambda jj: PP + 8*(jj & 1)
    sl = lambda jj: 2*(jj & 1)
    def pend(jj):
        if jj == 7: return [f"{MF} {v(O,16)}, {v(VF+4,4)}, {v(P0+4,4)}, {v(O,16)}"]
        p = jj + 1
        return [f"{MF} {v(O,16)}, {v(VF+4*sl(p),4)}, {v(pb(p),4)}, {v(O,16)}",
                f"{MF} {v(O,16)}, {v(VF+4*sl(p)+4,4)}, {v(pb(p)+4,4)}, {v(O,16)}"]
    for jj in range(7, 0, -1):
        b = buf(jj)
        A(f"s_cmp_gt_u32 {s(S_J0)}, {jj}")
        A(f"s_cbranch_scc1 L_st_p2_{jj}")
        def stub(jj=jj):
            A(f"L_st_p2_{jj}:")
            A("s_waitcnt lgkmcnt(0)")
            A("s_nop 1")
            for m in pend(jj): A(m)
            if jj >= 5: pub_b2(f"L_st_nopub_{jj}", 0)
            if jj >= 3:
                A(f"s_cmp_lg_u32 {s(S_WV)}, 0")
                A("s_cbranch_scc1 L_a2_p2done")
                flag_load(VF2A, VF2)
            A("s_branch L_a2_p2done")
        stubs.append(stub)
        pm = pend(jj)
        pass
        if jj == 5: pub_b2("L_a2_nopub", 4)
        for r in range(16):
            A(f"v_exp_f32 {v(b+r)}, {v(b+r)}")
            if r == 1:
                A("s_waitcnt lgkmcnt(0)")
                A(pm[0])
            if r == 7 and len(pm) > 1: A(pm[1])
            if r == 9:
                vread(sl(jj), jj, 0); vread(sl(jj) + 1, jj, 1)
            if jj == 3 and r == 13:
                A(f"s_cmp_lg_u32 {s(S_WV)}, 0")
                A("s_cbranch_scc1 L_a2_nosample")
                flag_load(VF2A, VF2)
                A("L_a2_nosample:")
        for i in range(8):
            A(f"v_cvt_pk_bf16_f32 {v(pb(jj)+i)}, {v(b+2*i)}, {v(b+2*i+1)}")
        if jj - 2 >= 1:
            A(f"{MF} {v(b,16)}, {v(KF+4*(jj-2),4)}, {v(Q,4)}, {v(CN,16)}")
    A("s_waitcnt lgkmcnt(0)")
    for m in pend(0): A(m)
    A("L_a2_p2done:")

    A("s_nop 15")
    A(f"v_rcp_f32 {v(TM)}, {v(O+8)}")
    for r in range(8):
        A(f"v_mul_f32 {v(O+r)}, {v(TM)}, {v(O+r)}")
    for i in range(4):
        A(f"v_cvt_pk_bf16_f32 {v(PP+i)}, {v(O+2*i)}, {v(O+2*i+1)}")
    A(f"global_store_dwordx4 {v(PO)}, {v(PP,4)}, {s(S_WS,2)} {SCS}")
    stamp(11)
    tail_addr()
    if prof:
        stamp(19)
        A("s_waitcnt vmcnt(1)")
        stamp(20)
    A("s_waitcnt vmcnt(0)")
    publish(F_A2, 157, 158)
    stamp(12)
    flag_load(PFA2, 31)
    A(f"s_cmp_lg_u32 {s(S_WV)}, 0")
    A("s_cbranch_scc1 L_nob2poll")
    check_or_spin(VF2A, VF2, "L_poll_b2")
    A(f"s_lshl_b32 {s(S_T0)}, {s(S_XCD)}, 18")
    A(f"s_lshl_b32 {s(S_T1)}, {s(S_J)}, 7")
    A(f"s_add_u32 {s(S_T0)}, {s(S_T0)}, {s(S_T1)}")
    A(f"s_add_u32 {s(S_T0)}, {s(S_T0)}, {YT}")
    for n in range(8):
        A(f"s_mov_b32 m0, {LYT + n*1024}")
        A(f"s_add_u32 {s(S_T1)}, {s(S_T0)}, {n*8*4096}")
        A(f"buffer_load_dwordx4 {v(PY0 + (n & 1))}, {s(R_WS,4)}, {s(S_T1)} offen sc1 lds")
    A("L_nob2poll:")
    A(f"s_or_b32 {s(S_T0)}, s2, {s(S_WV)}")
    A(f"s_cmp_lg_u32 {s(S_T0)}, 0")
    A("s_cbranch_scc0 L_st_epoch")
    stubs.append("EPOCH")
    A("L_noep:")
    A("s_barrier")
    stamp(13)
    A("s_waitcnt vmcnt(0)")
    A(f"v_mov_b32 v20, {OK2}")
    A(f"s_cmp_lg_u32 {s(S_WV)}, 0")
    A("s_cbranch_scc1 L_nosig")
    A(f"v_mov_b32 v21, {s(S_NONCE)}")
    A("ds_write_b32 v20, v21")
    A("L_nosig:")
    check_or_spin(PFA2, 31, "L_poll_a2")
    stamp(14)
    A(f"s_lshl_b32 {s(S_T0)}, {s(S_TB64)}, 16")
    A(f"s_lshl_b32 {s(S_T1)}, {s(S_WV)}, 12")
    A(f"s_add_u32 {s(S_T0)}, {s(S_T0)}, {s(S_T1)}")
    for hh in range(4):
        for ts in range(2):
            A(f"s_add_u32 m0, {s(S_T1)}, {LO + ts*32768 + hh*1024}")
            A(f"s_add_u32 {s(S_T2)}, {s(S_T0)}, {OW + ts*32768 + hh*1024}")
            A(f"buffer_load_dwordx4 {v(PL16)}, {s(R_WS,4)}, {s(S_T2)} offen sc1 lds")
    A(f"s_mov_b32 {s(S_SPIN)}, {SPIN*8}")
    A("L_y_spin:")
    A("ds_read_b32 v21, v20")
    A("s_waitcnt lgkmcnt(0)")
    A(f"v_cmp_ne_u32 vcc, {s(S_NONCE)}, v21")
    A("s_cbranch_vccz L_y_ok")
    A(f"s_sub_u32 {s(S_SPIN)}, {s(S_SPIN)}, 1")
    A(f"s_cmp_lg_u32 {s(S_SPIN)}, 0")
    A("s_cbranch_scc1 L_y_spin")
    A("L_y_ok:")
    A(f"ds_read_b64 v[22:23], {v(PYR)}")
    A(f"ds_read_b64 v[24:25], {v(PYR)} offset:128")
    for r in range(4):
        A(f"v_lshlrev_b32 {v(34+2*r)}, 16, {v(VQ3+r)}")
        A(f"v_and_b32 {v(35+2*r)}, 0xffff0000, {v(VQ3+r)}")
    A("s_waitcnt lgkmcnt(0)")
    A("v_lshlrev_b32 v42, 16, v22"); A("v_lshlrev_b32 v43, 16, v24")
    A("v_and_b32 v44, 0xffff0000, v22"); A("v_and_b32 v45, 0xffff0000, v24")
    A("v_lshlrev_b32 v46, 16, v23"); A("v_lshlrev_b32 v47, 16, v25")
    A("v_and_b32 v48, 0xffff0000, v23"); A("v_and_b32 v49, 0xffff0000, v25")
    for r in range(4):
        A(f"v_pk_mul_f32 {v(42+2*r,2)}, {v(42+2*r,2)}, {v(34+2*r,2)}")
    for r in range(4):
        A(f"v_cvt_pk_bf16_f32 {v(50+r)}, {v(42+2*r)}, {v(43+2*r)}")
    A(f"v_add_u32 v21, 0x1000, {v(PB3)}")
    A(f"global_store_dword {v(PB3)}, v50, {s(S_OUT,2)} {BST}")
    A(f"global_store_dword {v(PB3)}, v51, {s(S_OUT,2)} offset:2048 {BST}")
    A(f"global_store_dword v21, v52, {s(S_OUT,2)} {BST}")
    A(f"global_store_dword v21, v53, {s(S_OUT,2)} offset:2048 {BST}")
    A("s_waitcnt vmcnt(4)")
    stamp(15)
    A("s_barrier")
    stamp(16)
    OA = 80
    F3 = [32 + 8*i for i in range(6)]
    def a3reads(hs):
        f = F3[hs % 6]
        A(f"ds_read_b128 {v(f,4)}, {v(PAO)} offset:{hs*1024}")
        A(f"ds_read_b64_tr_b16 {v(f+4,2)}, {v(PAW)} offset:{hs*2048}")
        A(f"ds_read_b64_tr_b16 {v(f+6,2)}, {v(PAW)} offset:{hs*2048 + 1024}")
    DEP = 4
    for hs in range(DEP): a3reads(hs)
    for hs in range(16):
        if hs + DEP < 16:
            a3reads(hs + DEP); A(f"s_waitcnt lgkmcnt({3*DEP})")
        else:
            A(f"s_waitcnt lgkmcnt({3*(15-hs)})")
        f = F3[hs % 6]
        cin = "0" if hs == 0 else v(OA,16)
        A(f"{MF} {v(OA,16)}, {v(f+4,4)}, {v(f,4)}, {cin}")
    for m in range(4):
        A(f"ds_write_b128 {v(PPW[m])}, {v(OA+4*m,4)}")
    A("s_waitcnt lgkmcnt(0)")
    A("s_barrier")
    stamp(17)
    A(f"ds_read_b128 v[32:35], {v(PPR[0])}"); A(f"ds_read_b128 v[40:43], {v(PPR[2])}")
    A(f"ds_read_b128 v[36:39], {v(PPR[1])}"); A(f"ds_read_b128 v[44:47], {v(PPR[3])}")
    A("s_waitcnt lgkmcnt(0)")
    for r in range(8):
        A(f"v_add_f32 {v(32+r)}, {v(32+r)}, {v(40+r)}")
    for i in range(4):
        A(f"v_cvt_pk_bf16_f32 {v(48+i)}, {v(32+2*i)}, {v(33+2*i)}")
    A(f"global_store_dwordx4 {v(POUT)}, v[48:51], {s(S_OUT,2)} {FST}")
    if prof:
        stamp(18)
        A(f"s_lshl_b32 {s(S_T0)}, s2, 3")
        A(f"s_add_u32 {s(S_T0)}, {s(S_T0)}, {s(S_WV)}")
        A(f"s_lshl_b32 {s(S_T0)}, {s(S_T0)}, 8")
        A(f"s_add_u32 {s(S_T0)}, {s(S_T0)}, {PROF}")
        A("v_lshlrev_b32 v16, 2, v1")
        A(f"v_add_u32 v16, {s(S_T0)}, v16")
        A(f"global_store_dword v16, v255, {s(S_WS,2)}")
    if DBG:
        A("s_memrealtime s[12:13]")
        A("s_waitcnt lgkmcnt(0)")
        A("v_mov_b32 v16, 0")
        A("s_mov_b64 exec, 1")
        A("v_mov_b32 v17, s12"); A(f"global_atomic_umax v16, v17, {s(S_DBG,2)}")
        A("s_not_b32 s8, s8"); A("v_mov_b32 v17, s8"); A(f"global_atomic_umax v16, v17, {s(S_DBG,2)} offset:4")
        A("v_mov_b32 v17, s10"); A(f"global_atomic_umax v16, v17, {s(S_DBG,2)} offset:8")
        A("s_not_b32 s10, s10"); A("v_mov_b32 v17, s10"); A(f"global_atomic_umax v16, v17, {s(S_DBG,2)} offset:12")
        A("s_not_b32 s12, s12"); A("v_mov_b32 v17, s12"); A(f"global_atomic_umax v16, v17, {s(S_DBG,2)} offset:16")
    A("L_end:")
    A("s_endpgm")
    sub_setup()
    for st in stubs:
        if st == "EPOCH":
            A("L_st_epoch:")
            for q in range(4):
                A(f"v_lshlrev_b32 v157, 7, v1")
                A(f"v_add_u32 v157, {FLG + F_B1 + q*8192}, v157")
                spin(157, 158, f"L_poll_ep{q}")
            A(f"v_mov_b32 v157, {EP}")
            A(f"v_mov_b32 v158, {s(S_NONCE)}")
            A(f"s_mov_b64 {s(S_EX,2)}, exec")
            A("s_mov_b64 exec, 1")
            A(f"global_store_dword v157, v158, {s(S_WS,2)} {SCS}")
            A(f"s_mov_b64 exec, {s(S_EX,2)}")
            A("s_branch L_noep")
        elif callable(st):
            st()
        else:
            for line in st: A(line)
    n = a.fix_hazards()
    return a, n

HEAD = f"""; Fused sliding-window attention block + H3 SSM conv, one persistent launch (generated by gen/gen2.py)
; @launch grid=(256,1,1) block=(512,1,1) lds={LDS_BYTES}
.amdgcn_target "amdgcn-amd-amdhsa--gfx950"
.text
.globl {KN}
.p2align 8
.type {KN},@function
{KN}:
"""
TAIL = f""".section .rodata,"a"
.p2align 6
.amdhsa_kernel {KN}
  .amdhsa_next_free_vgpr 256
  .amdhsa_next_free_sgpr 102
  .amdhsa_accum_offset 256
  .amdhsa_group_segment_fixed_size 0
  .amdhsa_kernarg_size 96
  .amdhsa_user_sgpr_count 2
  .amdhsa_user_sgpr_kernarg_segment_ptr 1
  .amdhsa_system_sgpr_workgroup_id_x 1
.end_amdhsa_kernel
"""
if __name__ == "__main__":
    out = sys.argv[1] if len(sys.argv) > 1 else f"cdna_kernels/{NAME}.s"
    opt = {}
    for x in sys.argv[2:]:
        if "=" in x:
            k, val = x.split("="); opt[k] = int(val)
    a, n = build(prof=("prof" in sys.argv), opt=opt)
    open(out, "w").write(HEAD + a.text() + TAIL)
    print("instructions:", a.count(), "hazard pads:", n)
```

```python
import sys
from asmlib import Asm, v, s

NAME = "concat_heads__sliding_block__ssm_conv_h3__prompt"
KN = NAME + "_kernel"

FLG = 0x0
F_B1, F_A1, F_B2, F_A2 = 0, 32768, 65536, 98304
EP  = 0x20000
KW  = 0x100000
VW  = 0x300000
OW  = 0x500000
UR  = 0x700000
YT  = 0x900000
WS_BYTES = 0xB00000
PROF = 0xC00000

STG = 28672
B2R = 114688
CB  = 12864
T0  = B2R
KVS = 140416
E_OFF, O_OFF, U_OFF = 0, 4164, 8288
LK, LV, LQ = 0, 24576, 49536
KHS, VHS, VTS = 12288, 12480, 1040
LR  = 57728
LO  = 0
LWO = 81920
LS0, LS1 = 65536, 147456
LYT = 65536
CSW = 163808
OK2 = 163824
OKW = 163792
OKW_OLD = 163832
LDS_BYTES = 163840

S_X, S_WQKV, S_WO, S_BQ, S_BK, S_BV, S_SK, S_SSMK = 16, 18, 20, 22, 24, 26, 28, 30
S_SD, S_OUT, S_DBG, S_WS = 32, 34, 36, 38
R_X, R_W, R_BK, R_WS, R_WO = 40, 44, 48, 52, 56
S_NONCE, S_WV, S_J, S_XCD, S_RB, S_HP = 60, 61, 62, 63, 64, 65
S_T0, S_T1, S_T2, S_T3, S_T4, S_T5 = 66, 67, 68, 69, 70, 71
S_LI = 72
S_J0 = 73
S_SPIN = 74
S_OK = 75
S_EX = 76
S_CBASE, S_CH = 78, 79
S_CMP = 80
S_HD, S_TB64 = 96, 97
S_ROT = 75

PAK, PAV0, PAV1, PAQ = 192, 193, 194, 195
PFB2, PFA2, PY0, PY1, PYR, PO, PWO, PAO, PAW, POUT, PL16, PQ3 = 196, 197, 198, 199, 200, 201, 202, 203, 204, 205, 206, 207
PPW = [9, 10, 11, 12]
PPR = [13, 14, 15, 2]
PB3 = 8
S_LINK = 4
S_WOB, S_WOL = 6, 7
SPIN = 200000
NEGBIG = 0xF149F2CA
QSCALE = 0x3EB8AA3B
ONES = 0x3F803F80
STAGE = [0, 1, 2, 3, 0, 1, 2, 3]
MF = "v_mfma_f32_32x32x16_bf16"
MF16 = "v_mfma_f32_16x16x32_bf16"

def build(prof=False, opt=None):
    opt = opt or {}
    NT_B = "nt" if opt.get("nt_b", 0) else ""
    NT_XW = "nt" if opt.get("nt_xw", 0) else ""
    NT_WO = "nt" if opt.get("nt_wo", 0) else ""
    SCP = {0: "sc0 sc1", 1: "sc1"}[opt.get("sc_poll", 1)]
    SCS = {0: "sc0 sc1", 1: "sc1"}[opt.get("sc_store", 1)]
    SLEEP = opt.get("sleep", 0)
    FST = {0: "", 1: "sc0 sc1", 2: "nt", 3: "sc1"}[opt.get("fst", 2)]
    BST = {0: "", 1: "sc0 sc1", 2: "nt", 3: "sc1"}[opt.get("bst", 2)]
    a = Asm()
    A = a
    stubs = []
    def stamp(k):
        if not prof: return
        A("s_memrealtime s[100:101]")
        A("s_memtime s[98:99]")
        A("s_waitcnt lgkmcnt(0)")
        A(f"v_writelane_b32 v255, s100, {k}")
        A(f"v_writelane_b32 v255, s98, {k+32}")
    def srd(dst, base, nbytes):
        A(f"s_mov_b32 {s(dst)}, {s(base)}")
        A(f"s_and_b32 {s(dst+1)}, {s(base+1)}, 0xffff")
        A(f"s_mov_b32 {s(dst+2)}, {nbytes}")
        A(f"s_mov_b32 {s(dst+3)}, 0x00020000")
    def flag_load(vaddr, vtmp):
        A(f"global_load_dword {v(vtmp)}, {v(vaddr)}, {s(S_WS,2)} {SCP}")
    def spin(vaddr, vtmp, label):
        A(f"s_mov_b32 {s(S_SPIN)}, {SPIN}")
        A(f"{label}:")
        flag_load(vaddr, vtmp)
        A("s_waitcnt vmcnt(0)")
        A(f"v_cmp_ne_u32 vcc, {s(S_NONCE)}, {v(vtmp)}")
        A(f"s_cbranch_vccz {label}_done")
        if SLEEP: A(f"s_sleep {SLEEP}")
        A(f"s_sub_u32 {s(S_SPIN)}, {s(S_SPIN)}, 1")
        A(f"s_cmp_lg_u32 {s(S_SPIN)}, 0")
        A(f"s_cbranch_scc1 {label}")
        A(f"{label}_done:")
    def check_or_spin(vaddr, vtmp, label):
        A(f"v_cmp_ne_u32 vcc, {s(S_NONCE)}, {v(vtmp)}")
        A(f"s_cbranch_vccz {label}_done")
        spin(vaddr, vtmp, label)
    def publish(kind, vt0, vt1):
        A(f"s_lshl_b32 {s(S_T0)}, s2, 7")
        A(f"s_lshl_b32 {s(S_T1)}, {s(S_WV)}, 2")
        A(f"s_add_u32 {s(S_T0)}, {s(S_T0)}, {s(S_T1)}")
        A(f"s_add_u32 {s(S_T0)}, {s(S_T0)}, {FLG + kind}")
        A(f"v_mov_b32 {v(vt0)}, {s(S_T0)}")
        A(f"v_mov_b32 {v(vt1)}, {s(S_NONCE)}")
        A(f"s_mov_b64 {s(S_EX,2)}, exec")
        A(f"s_mov_b64 exec, 1")
        A(f"global_store_dword {v(vt0)}, {v(vt1)}, {s(S_WS,2)} {SCS}")
        A(f"s_mov_b64 exec, {s(S_EX,2)}")

    def record(fn):
        n0 = len(a.items)
        fn()
        out = [it.text for k, it in a.items[n0:]]
        assert all(k == "i" for k, it in a.items[n0:])
        del a.items[n0:]
        return out
    MM0, MM8, MMK = 208, 224, 240
    def gen_masks():
        A("v_and_b32 v248, 31, v1")
        A("v_lshrrev_b32 v249, 5, v1")
        A("v_lshlrev_b32 v249, 2, v249")
        A("v_sub_u32 v248, v248, v249")
        A(f"v_mov_b32 v249, {NEGBIG}")
        A("v_mov_b32 v250, 0xffff")
        for r in range(16):
            cst = (r & 3) + 8*(r >> 2)
            A(f"v_subrev_u32 {v(MM0+r)}, {cst}, v248")
        for r in range(16):
            A(f"v_ashrrev_i32 {v(MM0+r)}, 31, {v(MM0+r)}")
        for i in range(8):
            A(f"v_bfi_b32 {v(MMK+i)}, v250, {v(MM0+2*i)}, {v(MM0+2*i+1)}")
        for r in range(16):
            A(f"v_and_b32 {v(MM8+r)}, v249, {v(MM0+r)}")
        for r in range(16):
            A(f"v_xor_b32 {v(MM0+r)}, v249, {v(MM8+r)}")

    def sub_setup():
        A("L_sub_a:")
        gen_masks()
        A(f"s_lshr_b32 {s(S_HD)}, {s(S_WV)}, 2")
        A(f"s_lshl_b32 {s(S_T0)}, {s(S_RB)}, 2")
        A(f"s_add_u32 {s(S_T0)}, {s(S_T0)}, {s(S_LI)}")
        A(f"s_sub_i32 {s(S_J0)}, 8, {s(S_T0)}")
        A(f"s_max_i32 {s(S_J0)}, {s(S_J0)}, 0")
        A(f"v_lshlrev_b32 {v(PL16)}, 4, v1")
        A(f"s_lshl_b32 {s(S_T0)}, {s(S_HD)}, 12")
        A(f"s_lshl_b32 {s(S_T1)}, {s(S_LI)}, 10")
        A(f"s_add_u32 {s(S_T0)}, {s(S_T0)}, {s(S_T1)}")
        A(f"v_add_u32 {v(PAQ)}, {s(S_T0)}, {v(PL16)}")
        A(f"s_mul_i32 {s(S_T0)}, {s(S_HD)}, {KHS}")
        A(f"s_add_u32 {s(S_T0)}, {s(S_T0)}, {s(S_T1)}")
        A(f"v_add_u32 {v(PAK)}, {s(S_T0)}, {v(PL16)}")
        A(f"s_mul_i32 {s(S_T0)}, {s(S_HD)}, {VHS}")
        A(f"s_mul_i32 {s(S_T1)}, {s(S_LI)}, {VTS}")
        A(f"s_add_u32 {s(S_T0)}, {s(S_T0)}, {s(S_T1)}")
        A("v_and_b32 v248, 15, v1")
        A("v_lshlrev_b32 v248, 4, v248")
        A("v_lshrrev_b32 v249, 5, v1")
        A("v_lshl_add_u32 v248, v249, 8, v248")
        A("v_bfe_u32 v249, v1, 4, 1")
        A("v_cmp_eq_u32 vcc, 1, v249")
        A("v_mov_b32 v249, 1024")
        A("v_mov_b32 v250, 512")
        A(f"v_cndmask_b32 {v(PAV0)}, v248, v249, vcc")
        A(f"v_cndmask_b32 {v(PAV1)}, v248, v250, vcc")
        A(f"v_add_u32 {v(PAV0)}, {s(S_T0)}, {v(PAV0)}")
        A(f"v_add_u32 {v(PAV1)}, {s(S_T0)}, {v(PAV1)}")
        A(f"s_lshl_b32 {s(S_T0)}, {s(S_RB)}, 2")
        A(f"s_add_u32 {s(S_T0)}, {s(S_T0)}, {s(S_LI)}")
        A(f"s_lshl_b32 {s(S_T0)}, {s(S_T0)}, 5")
        A(f"s_lshl_b32 {s(S_T1)}, {s(S_HP)}, 1")
        A(f"s_add_u32 {s(S_T0)}, {s(S_T0)}, {s(S_T1)}")
        A(f"s_add_u32 {s(S_T0)}, {s(S_T0)}, {s(S_HD)}")
        A(f"s_lshl_b32 {s(S_T0)}, {s(S_T0)}, 10")
        A(f"s_add_u32 {s(S_T0)}, {s(S_T0)}, {OW}")
        A(f"v_add_u32 {v(PO)}, {s(S_T0)}, {v(PL16)}")
        A("v_lshrrev_b32 v248, 3, v1")
        A("v_bfe_u32 v249, v248, 1, 1")
        A("v_lshlrev_b32 v249, 2, v249")
        A("v_and_b32 v250, 7, v1")
        A("v_xor_b32 v249, v249, v250")
        A("v_lshlrev_b32 v249, 4, v249")
        A(f"v_lshl_add_u32 {v(PWO)}, v248, 10, v249")
        A(f"s_lshr_b32 {s(S_T0)}, {s(S_J)}, 2")
        A(f"s_lshl_b32 {s(S_T0)}, {s(S_T0)}, 7")
        A(f"s_lshl_b32 {s(S_T1)}, {s(S_WV)}, 16")
        A(f"s_add_u32 {s(S_WOB)}, {s(S_T0)}, {s(S_T1)}")
        A(f"s_lshl_b32 {s(S_WOL)}, {s(S_WV)}, 13")
        srd(R_WO, S_WO, 512*1024)
        A("v_and_b32 v248, 31, v1")
        A("v_lshrrev_b32 v249, 5, v1")
        A(f"s_lshl_b32 {s(S_T0)}, {s(S_WV)}, 1")
        A(f"v_add_u32 v249, {s(S_T0)}, v249")
        A(f"s_lshl_b32 {s(S_T0)}, {s(S_J)}, 6")
        A("v_lshlrev_b32 v250, 2, v249")
        A(f"v_add_u32 v250, {s(S_T0)}, v250")
        A(f"s_lshl_b32 {s(S_T0)}, {s(S_XCD)}, 7")
        A("v_lshlrev_b32 v251, 2, v248")
        A(f"v_add_u32 v251, {s(S_T0)}, v251")
        A(f"v_lshl_add_u32 {v(PQ3)}, v250, 10, v251")
        A(f"v_lshl_add_u32 {v(PB3)}, v250, 11, v251")
        A(f"v_add_u32 {v(PB3)}, 1024, {v(PB3)}")
        A("v_lshrrev_b32 v250, 1, v249")
        A("v_and_b32 v251, 7, v248")
        A("v_xor_b32 v250, v250, v251")
        A("v_lshlrev_b32 v250, 4, v250")
        A("v_and_b32 v251, 1, v249")
        A("v_lshl_add_u32 v250, v251, 3, v250")
        A("v_lshl_add_u32 v250, v248, 8, v250")
        A(f"v_add_u32 {v(PYR)}, {LYT}, v250")
        A(f"v_lshrrev_b32 {v(PFB2)}, 1, v1")
        A(f"v_lshlrev_b32 {v(PFB2)}, 10, {v(PFB2)}")
        A("v_and_b32 v248, 1, v1")
        A(f"v_lshl_add_u32 {v(PFB2)}, v248, 3, {v(PFB2)}")
        A(f"s_lshr_b32 {s(S_T0)}, {s(S_J)}, 4")
        A(f"s_add_u32 {s(S_T0)}, {s(S_T0)}, 4")
        A(f"s_lshl_b32 {s(S_T0)}, {s(S_T0)}, 2")
        A(f"s_lshl_b32 {s(S_T1)}, {s(S_XCD)}, 7")
        A(f"s_add_u32 {s(S_T0)}, {s(S_T0)}, {s(S_T1)}")
        A(f"s_add_u32 {s(S_T0)}, {s(S_T0)}, {FLG + F_B2}")
        A(f"v_add_u32 {v(PFB2)}, {s(S_T0)}, {v(PFB2)}")
        A(f"s_setpc_b64 {s(S_LINK,2)}")
    def tail_addr():
        A(f"s_lshl_b32 {s(S_TB64)}, {s(S_XCD)}, 2")
        A(f"s_and_b32 {s(S_T0)}, {s(S_J)}, 3")
        A(f"s_add_u32 {s(S_TB64)}, {s(S_TB64)}, {s(S_T0)}")
        A("v_and_b32 v248, 1, v1")
        A("v_bfe_u32 v249, v1, 1, 2")
        A(f"s_lshl_b32 {s(S_T0)}, {s(S_WV)}, 2")
        A(f"v_add_u32 v249, {s(S_T0)}, v249")
        A(f"s_lshl_b32 {s(S_T0)}, {s(S_TB64)}, 1")
        A(f"v_add_u32 v248, {s(S_T0)}, v248")
        A("v_lshrrev_b32 v250, 2, v248")
        A("v_lshrrev_b32 v251, 1, v249")
        A("v_and_b32 v252, 3, v250")
        A("v_and_b32 v253, 7, v251")
        A("v_lshl_add_u32 v252, v253, 2, v252")
        A("v_lshlrev_b32 v252, 3, v252")
        A("v_lshrrev_b32 v253, 2, v250")
        A("v_lshl_add_u32 v252, v253, 1, v252")
        A("v_lshrrev_b32 v253, 3, v251")
        A("v_add_u32 v252, v252, v253")
        A("v_lshlrev_b32 v252, 7, v252")
        A("v_and_b32 v253, 3, v248")
        A("v_and_b32 v250, 1, v249")
        A("v_lshl_add_u32 v253, v250, 2, v253")
        A("v_lshl_add_u32 v252, v253, 2, v252")
        A(f"v_add_u32 {v(PFA2)}, {FLG + F_A2}, v252")
        A("v_lshrrev_b32 v248, 3, v1")
        A("v_and_b32 v249, 7, v1")
        A("v_lshrrev_b32 v250, 1, v248")
        A("v_xor_b32 v249, v249, v250")
        A("v_lshlrev_b32 v248, 12, v248")
        A(f"v_lshl_add_u32 {v(PY0)}, v249, 4, v248")
        A("v_xor_b32 v249, 4, v249")
        A(f"v_lshl_add_u32 {v(PY1)}, v249, 4, v248")
        A(f"s_and_b32 {s(S_T0)}, {s(S_WV)}, 1")
        A(f"s_lshl_b32 {s(S_T0)}, {s(S_T0)}, 15")
        A(f"s_lshl_b32 {s(S_T2)}, {s(S_HD)}, 14")
        A(f"s_add_u32 {s(S_T0)}, {s(S_T0)}, {s(S_T2)}")
        A(f"v_add_u32 {v(PAO)}, {s(S_T0)}, {v(PL16)}")
        A("v_and_b32 v248, 15, v1")
        A("v_lshrrev_b32 v248, 2, v248")
        A("v_lshrrev_b32 v249, 5, v1")
        A("v_lshl_add_u32 v249, v249, 2, v248")
        A("v_lshlrev_b32 v249, 7, v249")
        A("v_lshrrev_b32 v248, 1, v248")
        A(f"s_bfe_u32 {s(S_T0)}, {s(S_WV)}, 0x10001")
        A(f"v_xor_b32 v248, {s(S_T0)}, v248")
        A("v_lshl_add_u32 v249, v248, 6, v249")
        A("v_bfe_u32 v248, v1, 4, 1")
        A("v_lshl_add_u32 v249, v248, 5, v249")
        A("v_and_b32 v248, 3, v1")
        A("v_lshl_add_u32 v249, v248, 3, v249")
        A(f"s_lshl_b32 {s(S_T2)}, {s(S_HD)}, 15")
        A(f"s_add_u32 {s(S_T2)}, {s(S_T2)}, {LWO}")
        A(f"v_add_u32 {v(PAW)}, {s(S_T2)}, v249")
        A("v_and_b32 v248, 31, v1")
        A("v_lshrrev_b32 v249, 5, v1")
        A(f"s_lshl_b32 {s(S_T0)}, {s(S_T0)}, 3")
        A(f"v_add_u32 v249, {s(S_T0)}, v249")
        A("v_and_b32 v250, 15, v248")
        A("v_xor_b32 v249, v249, v250")
        A("v_lshlrev_b32 v249, 4, v249")
        A(f"s_and_b32 {s(S_T0)}, {s(S_WV)}, 1")
        A(f"s_lshl_b32 {s(S_T0)}, {s(S_T0)}, 13")
        A(f"s_mul_i32 {s(S_T2)}, {s(S_HD)}, {LS1 - LS0}")
        A(f"s_add_u32 {s(S_T0)}, {s(S_T0)}, {s(S_T2)}")
        A(f"s_add_u32 {s(S_T0)}, {s(S_T0)}, {LS0}")
        A("v_lshl_add_u32 v249, v248, 8, v249")
        A(f"v_add_u32 v249, {s(S_T0)}, v249")
        for m in range(4):
            A(f"v_xor_b32 {v(PPW[m])}, {m*32}, v249")
        A("v_lshrrev_b32 v248, 3, v0")
        A("v_and_b32 v249, 7, v0")
        A("v_lshlrev_b32 v250, 1, v249")
        A("v_and_b32 v251, 15, v248")
        A("v_xor_b32 v250, v250, v251")
        A("v_lshlrev_b32 v250, 4, v250")
        A("v_lshl_add_u32 v250, v248, 8, v250")
        A("v_xor_b32 v251, 16, v250")
        A(f"v_add_u32 {v(PPR[0])}, {LS0}, v250"); A(f"v_add_u32 {v(PPR[1])}, {LS0}, v251")
        A(f"v_add_u32 {v(PPR[2])}, {LS1}, v250"); A(f"v_add_u32 {v(PPR[3])}, {LS1}, v251")
        A(f"s_lshl_b32 {s(S_T0)}, {s(S_TB64)}, 17")
        A(f"s_lshr_b32 {s(S_T1)}, {s(S_J)}, 2")
        A(f"s_lshl_b32 {s(S_T1)}, {s(S_T1)}, 7")
        A(f"s_add_u32 {s(S_T0)}, {s(S_T0)}, {s(S_T1)}")
        A("v_lshlrev_b32 v250, 11, v248")
        A("v_lshl_add_u32 v250, v249, 4, v250")
        A(f"v_add_u32 {v(POUT)}, {s(S_T0)}, v250")
    def call(lab): A(f"s_call_b64 {s(S_LINK,2)}, {lab}")
    def wo_dma(n):
        A(f"s_add_u32 m0, {s(S_WOL)}, {LWO + n*1024}")
        A(f"s_add_u32 {s(S_T1)}, {s(S_WOB)}, {n*8192}")
        A(f"buffer_load_dwordx4 {v(PWO)}, {s(R_WO,4)}, {s(S_T1)} offen {NT_WO} lds")

    stamp(0)
    DBG = opt.get("dbg", 0)
    if DBG: A("s_memrealtime s[8:9]")
    A("s_load_dwordx16 s[16:31], s[0:1], 0")
    A("s_load_dwordx8 s[32:39], s[0:1], 64")
    A("s_cmp_ge_u32 s2, 256")
    A("s_cbranch_scc1 L_end")
    A("v_and_b32 v1, 63, v0")
    A("v_lshrrev_b32 v2, 6, v0")
    A(f"s_and_b32 {s(S_XCD)}, s2, 7")
    A(f"s_lshr_b32 {s(S_J)}, s2, 3")
    A(f"v_readfirstlane_b32 {s(S_WV)}, v2")
    A(f"s_lshr_b32 {s(S_T0)}, {s(S_XCD)}, 1")
    A(f"s_lshl_b32 {s(S_T0)}, {s(S_T0)}, 2")
    A(f"s_and_b32 {s(S_T1)}, {s(S_J)}, 3")
    A(f"s_add_u32 {s(S_RB)}, {s(S_T0)}, {s(S_T1)}")
    A(f"s_and_b32 {s(S_T0)}, {s(S_XCD)}, 1")
    A(f"s_lshl_b32 {s(S_T0)}, {s(S_T0)}, 3")
    A(f"s_lshr_b32 {s(S_T1)}, {s(S_J)}, 2")
    A(f"s_add_u32 {s(S_HP)}, {s(S_T0)}, {s(S_T1)}")
    A(f"s_and_b32 {s(S_LI)}, {s(S_WV)}, 3")
    A("v_and_b32 v3, 31, v1")
    A("v_lshrrev_b32 v4, 5, v1")
    A(f"s_cmp_ge_u32 {s(S_WV)}, 4")
    A("s_cbranch_scc1 L_lwave")
    A("v_lshrrev_b32 v5, 3, v1")
    A("v_and_b32 v6, 7, v1")
    A("v_lshlrev_b32 v6, 4, v6")
    A(f"s_lshl_b32 {s(S_T0)}, {s(S_J)}, 6")
    A(f"s_lshl_b32 {s(S_T1)}, {s(S_WV)}, 4")
    A(f"s_add_u32 {s(S_T0)}, {s(S_T0)}, {s(S_T1)}")
    A(f"v_add_u32 v5, {s(S_T0)}, v5")
    A("v_lshlrev_b32 v5, 10, v5")
    A(f"s_lshl_b32 {s(S_T1)}, {s(S_XCD)}, 7")
    A(f"v_add3_u32 v7, v5, v6, {s(S_T1)}")
    A("v_add_u32 v8, 0xffffe000, v7")
    A("v_add_u32 v9, 0x2000, v7")
    A(f"s_mul_i32 {s(S_T4)}, {s(S_WV)}, 5120")
    A(f"s_add_u32 {s(S_T4)}, {s(S_T4)}, {KVS}")
    A(f"s_lshl_b32 {s(S_T0)}, {s(S_XCD)}, 9")
    A("v_lshlrev_b32 v11, 4, v3")
    A(f"v_add_u32 v11, {s(S_T0)}, v11")
    A("s_waitcnt lgkmcnt(0)")
    if opt.get("wsoff", 0):
        A(f"s_add_u32 {s(S_WS)}, {s(S_WS)}, {opt['wsoff'] << 20}")
        A(f"s_addc_u32 {s(S_WS+1)}, {s(S_WS+1)}, 0")
    stamp(1)
    srd(R_BK, S_BK, 2048*1024)
    srd(R_X, S_BV, 2048*1024)
    A(f"s_load_dword {s(S_NONCE)}, {s(S_WS,2)}, {EP}")
    for n, vr in enumerate((8, 7, 9)):
        A(f"s_add_u32 m0, {s(S_T4)}, {n*1024}")
        A(f"buffer_load_dwordx4 {v(vr)}, {s(R_BK,4)}, 0 offen {NT_B} lds")
    for n, vr in enumerate((7, 9)):
        A(f"s_add_u32 m0, {s(S_T4)}, {3072 + n*1024}")
        A(f"buffer_load_dwordx4 {v(vr)}, {s(R_X,4)}, 0 offen {NT_B} lds")
    A(f"global_load_dwordx4 v[36:39], v11, {s(S_SK,2)}")
    NTOUCH = 0
    if opt.get("touch", 0):
        A("v_and_b32 v40, 7, v1")
        A("v_lshlrev_b32 v40, 21, v40")
        A("v_min_u32 v40, 0xa00000, v40")
        A(f"global_load_dword v200, v40, {s(S_WS,2)} offset:2048")
        A(f"s_lshl_b32 {s(S_T0)}, {s(S_J)}, 16")
        A(f"v_mov_b32 v42, {s(S_T0)}")
        A(f"global_load_dword v201, v42, {s(S_BQ,2)}")
        A(f"s_lshl_b32 {s(S_T0)}, {s(S_J)}, 17")
        A(f"v_mov_b32 v44, {s(S_T0)}")
        A(f"global_load_dword v202, v44, {s(S_OUT,2)}")
        A(f"s_lshl_b32 {s(S_T0)}, {s(S_XCD)}, 19")
        A(f"v_mov_b32 v46, {s(S_T0)}")
        A(f"global_load_dword v203, v46, {s(S_OUT,2)}")
        A("v_mov_b32 v48, 0")
        A(f"global_load_dword v204, v48, {s(S_WO,2)}")
        A(f"global_load_dword v205, v48, {s(S_SSMK,2)}")
        NTOUCH = 6
    XA, XB, WA, WB, WC = 144, 148, 152, 153, 154
    A(f"s_lshl_b32 {s(S_T0)}, {s(S_LI)}, 5")
    A(f"v_add_u32 v110, {s(S_T0)}, v3")
    A("v_lshrrev_b32 v111, 1, v110")
    A("v_and_b32 v111, 7, v111")
    A("v_xor_b32 v111, v111, v4")
    A("v_lshlrev_b32 v111, 4, v111")
    A("v_lshl_add_u32 v111, v110, 7, v111")
    for st in range(4):
        A(f"v_xor_b32 {v(XA+st)}, {st*32}, v111")
        A(f"v_add_u32 {v(XB+st)}, {2*STG}, {v(XA+st)}")
    A("v_and_b32 v110, 15, v1")
    A("v_lshrrev_b32 v110, 2, v110")
    A("v_lshl_add_u32 v110, v4, 3, v110")
    A("v_lshlrev_b32 v110, 6, v110")
    A("v_bfe_u32 v111, v1, 4, 1")
    A("v_lshl_add_u32 v110, v111, 5, v110")
    A("v_and_b32 v111, 3, v1")
    A("v_lshl_add_u32 v110, v111, 3, v110")
    A(f"v_add_u32 {v(WA)}, 16384, v110")
    A(f"v_add_u32 {v(WB)}, {2*STG}, {v(WA)}")
    A(f"v_add_u32 {v(WC)}, {4*STG}, {v(WA)}")
    ACC = 64
    FR = [160, 176, 128]
    def reads(n):
        c, st = n >> 2, n & 3
        stage = STAGE[c]
        xa = (XA if stage < 2 else XB) + st
        wa = WA if stage < 2 else WB if stage < 4 else WC
        so = (stage & 1) * STG
        xo = so if stage < 4 else 2*STG
        f = FR[n % 3]
        L = [f"ds_read_b128 {v(f,4)}, {v(xa)} offset:{xo}"]
        for p in range(3):
            L.append(f"ds_read_b64_tr_b16 {v(f+4+4*p,2)}, {v(wa)} offset:{so + p*4096 + st*1024}")
            L.append(f"ds_read_b64_tr_b16 {v(f+6+4*p,2)}, {v(wa)} offset:{so + p*4096 + st*1024 + 256}")
        return L
    def mfma(n, p):
        f = FR[n % 3]
        acc = v(ACC + 16*p, 16)
        cin = "0" if n == 0 else acc
        if p < 2: return f"{MF} {acc}, {v(f+4+4*p,4)}, {v(f,4)}, {cin}"
        else:     return f"{MF} {acc}, {v(f,4)}, {v(f+4+4*p,4)}, {cin}"
    def epi_addr():
        A("v_lshlrev_b32 v32, 4, v1")
        A(f"s_lshl_b32 {s(S_T0)}, {s(S_HP)}, 7")
        A(f"s_lshl_b32 {s(S_T1)}, {s(S_RB)}, 2")
        A(f"s_add_u32 {s(S_T0)}, {s(S_T0)}, {s(S_T1)}")
        A(f"s_add_u32 {s(S_T0)}, {s(S_T0)}, {s(S_LI)}")
        A(f"s_lshl_b32 {s(S_T0)}, {s(S_T0)}, 10")
        A(f"s_add_u32 {s(S_T1)}, {s(S_T0)}, {KW}")
        A(f"v_add_u32 v37, {s(S_T1)}, v32")
        A("v_add_u32 v38, 0x10000, v37")
        A("v_and_b32 v34, 15, v1")
        A("v_lshlrev_b32 v34, 4, v34")
        A("v_lshl_add_u32 v34, v4, 8, v34")
        A("v_bfe_u32 v35, v1, 4, 1")
        A(f"s_add_u32 {s(S_T1)}, {s(S_T0)}, {VW}")
        A("v_lshlrev_b32 v39, 16, v35")
        A(f"v_add3_u32 v39, v39, v34, {s(S_T1)}")
        A(f"s_lshl_b32 {s(S_T0)}, {s(S_LI)}, 10")
        A(f"v_add_u32 v33, {s(S_T0)}, v32")
        A(f"s_mul_i32 {s(S_T0)}, {s(S_LI)}, {VTS}")
        A(f"v_mov_b32 v36, {VHS}")
        A("v_mul_u32_u24 v36, v36, v35")
        A(f"v_add3_u32 v36, v36, v34, {s(S_T0)}")
    def halo_addr():
        srd(R_WS, S_WS, WS_BYTES)
        A(f"s_sub_u32 {s(S_T2)}, {s(S_RB)}, 1")
        A(f"s_sub_u32 {s(S_T3)}, {s(S_RB)}, 2")
        A(f"s_max_i32 {s(S_T3)}, {s(S_T3)}, 0")
        A(f"s_max_i32 {s(S_T2)}, {s(S_T2)}, 0")
        A("v_and_b32 v158, 1, v1")
        A("v_cmp_eq_u32 vcc, 1, v158")
        A(f"v_mov_b32 v158, {s(S_T2)}")
        A(f"v_mov_b32 v157, {s(S_T3)}")
        A("v_cndmask_b32 v158, v158, v157, vcc")
        A(f"s_and_b32 {s(S_T0)}, {s(S_HP)}, 7")
        A(f"s_lshl_b32 {s(S_T0)}, {s(S_T0)}, 5")
        A(f"s_lshr_b32 {s(S_T1)}, {s(S_HP)}, 3")
        A(f"s_add_u32 {s(S_T0)}, {s(S_T0)}, {s(S_T1)}")
        A("v_and_b32 v157, 3, v158")
        A("v_lshlrev_b32 v157, 3, v157")
        A("v_lshrrev_b32 v158, 2, v158")
        A("v_lshl_add_u32 v157, v158, 1, v157")
        A(f"v_add_u32 v157, {s(S_T0)}, v157")
        A("v_lshlrev_b32 v157, 7, v157")
        A(f"s_lshl_b32 {s(S_T0)}, {s(S_LI)}, 2")
        A(f"s_add_u32 {s(S_T0)}, {s(S_T0)}, {FLG + F_A1}")
        A(f"v_add_u32 v157, {s(S_T0)}, v157")
    A("v_lshlrev_b32 v5, 10, v4")
    A("v_lshl_add_u32 v5, v3, 2, v5")
    A(f"v_add_u32 v5, {s(S_T4)}, v5")
    A(f"s_lshl_b32 {s(S_T0)}, {s(S_WV)}, 1")
    A(f"v_add_u32 v6, {s(S_T0)}, v4")
    A("v_sub_u32 v112, 7, v6")
    A("v_and_b32 v113, 7, v3")
    A("v_xor_b32 v112, v112, v113")
    A("v_lshlrev_b32 v112, 4, v112")
    A("v_lshl_add_u32 v112, v3, 8, v112")
    A(f"v_add_u32 v112, {T0}, v112")
    A("v_lshrrev_b32 v114, 3, v1")
    A(f"s_lshl_b32 {s(S_T0)}, {s(S_LI)}, 4")
    A(f"v_add_u32 v114, {s(S_T0)}, v114")
    A("v_and_b32 v115, 7, v1")
    A("v_lshrrev_b32 v116, 1, v114")
    A("v_and_b32 v116, 7, v116")
    A("v_xor_b32 v116, v116, v115")
    A("v_lshlrev_b32 v117, 7, v114")
    A("v_lshl_add_u32 v118, v116, 4, v117")
    A("v_xor_b32 v116, 4, v116")
    A("v_lshl_add_u32 v119, v116, 4, v117")
    A(f"v_add_u32 v118, {T0}, v118")
    A(f"v_add_u32 v119, {T0 + 1024}, v119")
    A(f"s_lshl_b32 {s(S_T0)}, {s(S_XCD)}, 18")
    A(f"s_lshl_b32 {s(S_T1)}, {s(S_J)}, 7")
    A(f"s_sub_u32 {s(S_T0)}, {s(S_T0)}, {s(S_T1)}")
    A(f"s_add_u32 {s(S_T0)}, {s(S_T0)}, {UR + 1984*2}")
    A("v_lshlrev_b32 v120, 12, v114")
    A("v_lshl_add_u32 v120, v115, 4, v120")
    A(f"v_add_u32 v120, {s(S_T0)}, v120")
    A("v_add_u32 v121, 0x8000, v120")
    A(f"s_waitcnt vmcnt({NTOUCH}) lgkmcnt(0)")
    stamp(2)
    for r in range(11):
        A(f"ds_read_b32 {v(16+r)}, v5 offset:{(5+r)*128}")
    for r in range(8):
        A(f"ds_read_b32 {v(28+r)}, v5 offset:{3072 + r*128}")
    A("v_lshlrev_b32 v78, 16, v36"); A("v_lshlrev_b32 v79, 16, v38")
    A("v_and_b32 v80, 0xffff0000, v36"); A("v_and_b32 v81, 0xffff0000, v38")
    A("v_lshlrev_b32 v82, 16, v37"); A("v_lshlrev_b32 v83, 16, v39")
    A("v_and_b32 v84, 0xffff0000, v37"); A("v_and_b32 v85, 0xffff0000, v39")
    A(f"s_add_u32 {s(S_NONCE)}, {s(S_NONCE)}, 1")
    A("s_waitcnt lgkmcnt(8)")
    for r in range(11):
        A(f"v_lshlrev_b32 {v(40+2*r)}, 16, {v(16+r)}")
        A(f"v_and_b32 {v(41+2*r)}, 0xffff0000, {v(16+r)}")
    for tau in range(8):
        A(f"v_pk_mul_f32 {v(86+2*tau,2)}, {v(40+2*(tau+3),2)}, {v(78,2)}")
    for jj in range(1, 4):
        for tau in range(8):
            d = 86 + 2*tau
            A(f"v_pk_fma_f32 {v(d,2)}, {v(40+2*(tau+3-jj),2)}, {v(78+2*jj,2)}, {v(d,2)}")
    A("s_waitcnt lgkmcnt(0)")
    for r in range(8):
        A(f"v_lshlrev_b32 {v(62+2*r)}, 16, {v(28+r)}")
        A(f"v_and_b32 {v(63+2*r)}, 0xffff0000, {v(28+r)}")
    for tau in range(8):
        d = 86 + 2*tau
        A(f"v_pk_mul_f32 {v(d,2)}, {v(d,2)}, {v(62+2*tau,2)}")
    for e in range(4):
        A(f"v_cvt_pk_bf16_f32 {v(104+e)}, {v(86+2*(7-2*e))}, {v(86+2*(6-2*e))}")
        A(f"v_cvt_pk_bf16_f32 {v(108+e)}, {v(87+2*(7-2*e))}, {v(87+2*(6-2*e))}")
    A("ds_write_b128 v112, v[104:107]")
    A("ds_write_b128 v112, v[108:111] offset:128")
    A(f"s_lshl_b32 {s(S_T0)}, {s(S_LI)}, 2")
    A(f"s_add_u32 {s(S_T0)}, {s(S_T0)}, {CSW}")
    A(f"v_mov_b32 v155, {s(S_T0)}")
    A("v_mov_b32 v156, 0")
    A("ds_write_b32 v155, v156")
    A(f"v_mov_b32 v16, {OK2}")
    A("ds_write_b32 v16, v156")
    A("s_waitcnt lgkmcnt(0)")
    stamp(3)
    A("s_barrier")
    stamp(4)
    A("ds_read_b128 v[24:27], v118")
    A("ds_read_b128 v[28:31], v119")
    for t in reads(0): A(t)
    A("s_waitcnt lgkmcnt(7)")
    A(f"global_store_dwordx4 v120, v[24:27], {s(S_WS,2)} {SCS}")
    A(f"global_store_dwordx4 v121, v[28:31], {s(S_WS,2)} {SCS}")
    for t in reads(1): A(t)
    for n in range(32):
        if (n & 3) == 2 and n + 2 < 32:
            A("s_waitcnt lgkmcnt(0)")
            if n == 2: epi_addr()
            if n == 6: halo_addr()
            if n == 10:
                A("s_waitcnt vmcnt(0)")
                publish(F_B1, 16, 17)

            if prof and n <= 14: A(f"s_memtime s[{8+2*(n>>2)}:{9+2*(n>>2)}]")
            A("s_barrier")
        elif n + 1 < 32:
            A("s_waitcnt lgkmcnt(7)")
        else:
            A("s_waitcnt lgkmcnt(0)")
            A(f"v_mov_b32 v156, {s(S_NONCE)}")
            A("ds_write_b32 v155, v156")
        R = reads(n + 2) if n + 2 < 32 else []
        A(mfma(n, 0))
        for t in R[0:3]: A(t)
        A(mfma(n, 1))
        for t in R[3:5]: A(t)
        A(mfma(n, 2))
        for t in R[5:7]: A(t)
    if prof:
        A("s_waitcnt lgkmcnt(0)")
        for c in range(4): A(f"v_writelane_b32 v255, s{8+2*c}, {22+c}")
    stamp(5)
    PK = 112
    for i in range(8):
        A(f"v_cvt_pk_bf16_f32 {v(PK+8+i)}, {v(ACC+16+2*i)}, {v(ACC+17+2*i)}")
    A(f"global_store_dwordx4 v37, {v(PK+8,4)}, {s(S_WS,2)} {SCS}")
    A(f"global_store_dwordx4 v38, {v(PK+12,4)}, {s(S_WS,2)} {SCS}")
    for i in range(8):
        A(f"v_cvt_pk_bf16_f32 {v(PK+16+i)}, {v(ACC+32+2*i)}, {v(ACC+33+2*i)}")
    A(f"global_store_dwordx4 v39, {v(PK+16,4)}, {s(S_WS,2)} {SCS}")
    A(f"global_store_dwordx4 v39, {v(PK+20,4)}, {s(S_WS,2)} offset:512 {SCS}")
    A(f"s_mov_b32 {s(S_T0)}, {QSCALE}")
    for r in range(16):
        A(f"v_mul_f32 {v(ACC+r)}, {s(S_T0)}, {v(ACC+r)}")
    for i in range(8):
        A(f"v_cvt_pk_bf16_f32 {v(PK+i)}, {v(ACC+2*i)}, {v(ACC+2*i+1)}")
    A(f"ds_write_b128 v33, {v(PK+8,4)} offset:{LK + 8*1024}")
    A(f"ds_write_b128 v33, {v(PK+12,4)} offset:{LK + KHS + 8*1024}")
    A(f"ds_write_b128 v36, {v(PK+16,4)} offset:{LV + 8*VTS}")
    A(f"ds_write_b128 v36, {v(PK+20,4)} offset:{LV + 8*VTS + 512}")
    A(f"ds_write_b128 v33, {v(PK,4)} offset:{LQ}")
    A(f"ds_write_b128 v33, {v(PK+4,4)} offset:{LQ+4096}")
    A(f"s_cmp_lg_u32 {s(S_LI)}, 0")
    A("s_cbranch_scc1 L_c_nopad")
    A(f"v_mov_b32 v24, {ONES}"); A("v_mov_b32 v25, v24"); A("v_mov_b32 v26, v24"); A("v_mov_b32 v27, v24")
    A(f"v_mul_u32_u24 v28, {VTS}, v1")
    A("v_cmp_gt_u32 vcc, 24, v1")
    A(f"s_and_saveexec_b64 {s(S_EX,2)}, vcc")
    A(f"ds_write_b128 v28, v[24:27] offset:{LV + 1024}")
    A(f"s_mov_b64 exec, {s(S_EX,2)}")
    A("L_c_nopad:")
    A("s_waitcnt vmcnt(0)")
    publish(F_A1, 16, 17)
    stamp(6)
    A(f"s_cmp_eq_u32 {s(S_RB)}, 0")
    A("s_cbranch_scc1 L_c_nosample")
    flag_load(157, 158)
    A("L_c_nosample:")
    A(f"v_mov_b32 v16, {CSW}")
    A(f"s_mov_b32 {s(S_SPIN)}, {SPIN*8}")
    A("L_c_sync:")
    A("ds_read_b128 v[20:23], v16")
    A("s_waitcnt lgkmcnt(0)")
    A(f"v_cmp_ne_u32 vcc, {s(S_NONCE)}, v20")
    A(f"v_cmp_ne_u32 {s(S_CMP,2)}, {s(S_NONCE)}, v21")
    A(f"v_cmp_ne_u32 {s(S_CMP+2,2)}, {s(S_NONCE)}, v22")
    A(f"v_cmp_ne_u32 {s(S_CMP+4,2)}, {s(S_NONCE)}, v23")
    A(f"s_or_b64 vcc, vcc, {s(S_CMP,2)}")
    A(f"s_or_b64 vcc, vcc, {s(S_CMP+2,2)}")
    A(f"s_or_b64 vcc, vcc, {s(S_CMP+4,2)}")
    A("s_cbranch_vccz L_c_synced")
    A(f"s_sub_u32 {s(S_SPIN)}, {s(S_SPIN)}, 1")
    A(f"s_cmp_lg_u32 {s(S_SPIN)}, 0")
    A("s_cbranch_scc1 L_c_sync")
    A("L_c_synced:")
    A(f"s_mov_b32 {s(S_T4)}, {s(S_T2)}")
    A(f"s_mov_b32 {s(S_T5)}, {s(S_T3)}")
    call("L_sub_a")
    A(f"s_mov_b32 {s(S_T2)}, {s(S_T4)}")
    A(f"s_mov_b32 {s(S_T3)}, {s(S_T5)}")
    A(f"s_cmp_eq_u32 {s(S_RB)}, 0")
    A("s_cbranch_scc1 L_c_halo_done")
    A("s_waitcnt vmcnt(0)")
    check_or_spin(157, 158, "L_poll_h")
    stamp(7)
    A("v_lshlrev_b32 v18, 4, v1")
    A(f"s_lshl_b32 {s(S_T4)}, {s(S_LI)}, 10")
    A(f"s_mul_i32 {s(S_T5)}, {s(S_LI)}, {VTS}")
    def halo(rbreg, toff):
        A(f"s_lshl_b32 {s(S_T0)}, {s(S_HP)}, 7")
        A(f"s_lshl_b32 {s(S_T1)}, {s(rbreg)}, 2")
        A(f"s_add_u32 {s(S_T0)}, {s(S_T0)}, {s(S_T1)}")
        A(f"s_add_u32 {s(S_T0)}, {s(S_T0)}, {s(S_LI)}")
        A(f"s_lshl_b32 {s(S_T0)}, {s(S_T0)}, 10")
        for hd in range(2):
            A(f"s_add_u32 m0, {s(S_T4)}, {LK + hd*KHS + toff*1024}")
            A(f"s_add_u32 {s(S_T1)}, {s(S_T0)}, {KW + hd*65536}")
            A(f"buffer_load_dwordx4 v18, {s(R_WS,4)}, {s(S_T1)} offen sc1 lds")
            A(f"s_add_u32 m0, {s(S_T5)}, {LV + hd*VHS + toff*VTS}")
            A(f"s_add_u32 {s(S_T1)}, {s(S_T0)}, {VW + hd*65536}")
            A(f"buffer_load_dwordx4 v18, {s(R_WS,4)}, {s(S_T1)} offen sc1 lds")
    halo(S_T2, 4)
    A(f"s_cmp_eq_u32 {s(S_RB)}, 1")
    A("s_cbranch_scc1 L_c_halo_done")
    halo(S_T3, 0)
    A("L_c_halo_done:")
    for n in range(8): wo_dma(n)
    A("s_barrier")
    A(f"s_add_u32 {s(S_WOL)}, {s(S_WOL)}, {4*8192}")
    A(f"s_add_u32 {s(S_WOB)}, {s(S_WOB)}, {4*65536}")
    A("s_waitcnt vmcnt(8) lgkmcnt(0)")
    stamp(8)
    A("s_barrier")
    stamp(9)
    A("s_branch L_a2")

    A("L_lwave:")
    if opt.get("lprio", 0): A(f"s_setprio {opt.get('lprio')}")
    A("v_lshrrev_b32 v220, 3, v1")
    A(f"s_lshl_b32 {s(S_T0)}, {s(S_RB)}, 7")
    A(f"s_lshl_b32 {s(S_T1)}, {s(S_LI)}, 5")
    A(f"s_add_u32 {s(S_T0)}, {s(S_T0)}, {s(S_T1)}")
    A(f"v_add_u32 v220, {s(S_T0)}, v220")
    A("v_lshlrev_b32 v220, 10, v220")
    A("v_and_b32 v221, 7, v1")
    A("v_lshrrev_b32 v222, 4, v1")
    A("v_xor_b32 v223, v221, v222")
    A("v_lshl_add_u32 v200, v223, 4, v220")
    A("v_xor_b32 v223, 4, v223")
    A("v_lshl_add_u32 v201, v223, 4, v220")
    A("v_lshrrev_b32 v220, 2, v1")
    A(f"s_lshl_b32 {s(S_T0)}, {s(S_LI)}, 4")
    A(f"v_add_u32 v220, {s(S_T0)}, v220")
    A(f"v_mul_u32_u24 v220, 3072, v220")
    A("v_and_b32 v221, 3, v1")
    A("v_lshlrev_b32 v221, 4, v221")
    A(f"s_lshl_b32 {s(S_T0)}, {s(S_HP)}, 6")
    A(f"v_add3_u32 v202, v220, v221, {s(S_T0)}")
    S_LX, S_LW = S_T4, S_T5
    A(f"s_lshl_b32 {s(S_LX)}, {s(S_LI)}, 12")
    A(f"s_lshl_b32 {s(S_LW)}, {s(S_LI)}, 10")
    A(f"s_lshl_b32 {s(S_CH)}, {s(S_XCD)}, 6")
    A(f"s_lshl_b32 {s(S_T1)}, {s(S_J)}, 1")
    A(f"s_add_u32 {s(S_CH)}, {s(S_CH)}, {s(S_T1)}")
    A(f"s_lshr_b32 {s(S_T1)}, {s(S_LI)}, 1")
    A(f"s_add_u32 {s(S_CH)}, {s(S_CH)}, {s(S_T1)}")
    A(f"s_mul_i32 {s(S_CBASE)}, {s(S_T1)}, {CB}")
    A(f"s_add_u32 {s(S_CBASE)}, {s(S_CBASE)}, {B2R}")
    A(f"s_and_b32 {s(S_T2)}, {s(S_LI)}, 1")
    A(f"s_lshl_b32 {s(S_T1)}, {s(S_CH)}, 12")
    A(f"s_lshl_b32 {s(S_T3)}, {s(S_T2)}, 11")
    A(f"s_add_u32 {s(S_T1)}, {s(S_T1)}, {s(S_T3)}")
    A("v_lshlrev_b32 v203, 4, v1")
    A(f"v_add_u32 v203, {s(S_T1)}, v203")
    A("v_add_u32 v204, 2, v203")
    A("s_waitcnt lgkmcnt(0)")
    if opt.get("wsoff", 0):
        A(f"s_add_u32 {s(S_WS)}, {s(S_WS)}, {opt['wsoff'] << 20}")
        A(f"s_addc_u32 {s(S_WS+1)}, {s(S_WS+1)}, 0")
    stamp(1)
    srd(R_X, S_X, 2048*1024)
    srd(R_W, S_WQKV, 512*3072)
    A(f"s_load_dword {s(S_NONCE)}, {s(S_WS,2)}, {EP}")
    if opt.get("rot", 1):
        A(f"s_and_b32 {s(S_T0)}, {s(S_RB)}, 3")
        A(f"s_lshl_b32 {s(S_T0)}, {s(S_T0)}, 1")
        A(f"s_add_u32 {s(S_ROT)}, {s(S_HP)}, {s(S_T0)}")
    else:
        A(f"s_mov_b32 {s(S_ROT)}, 0")
    def dma_chunk(c):
        st = STAGE[c] * STG
        A(f"s_add_u32 {s(S_T1)}, {s(S_ROT)}, {c}")
        A(f"s_and_b32 {s(S_T1)}, {s(S_T1)}, 7")
        A(f"s_mul_i32 {s(S_T2)}, {s(S_T1)}, {64*3072}")
        A(f"s_lshl_b32 {s(S_T1)}, {s(S_T1)}, 7")
        for n in range(4):
            A(f"s_add_u32 m0, {s(S_LX)}, {st + n*1024}")
            A(f"s_add_u32 {s(S_T0)}, {s(S_T1)}, {n*8192}")
            A(f"buffer_load_dwordx4 {v(200 + (n & 1))}, {s(R_X,4)}, {s(S_T0)} offen {NT_XW} lds")
        for p in range(3):
            A(f"s_add_u32 m0, {s(S_LW)}, {st + 16384 + p*4096}")
            A(f"s_add_u32 {s(S_T0)}, {s(S_T2)}, {p*1024}")
            A(f"buffer_load_dwordx4 v202, {s(R_W,4)}, {s(S_T0)} offen {NT_XW} lds")
    DIST = opt.get('dist', 3)
    for c in range(DIST): dma_chunk(c)
    def h_loads():
        srd(R_WO, S_SSMK, 512*4096)
        A(f"s_and_b32 {s(S_T2)}, {s(S_LI)}, 1")
        A(f"s_lshl_b32 {s(S_T2)}, {s(S_T2)}, 11")
        A(f"s_add_u32 {s(S_T2)}, {s(S_T2)}, {s(S_CBASE)}")
        for n in range(2):
            A(f"s_add_u32 m0, {s(S_T2)}, {O_OFF + 28 + n*1024}")
            A(f"s_mov_b32 {s(S_T0)}, {n*1024}")
            A(f"buffer_load_dwordx4 v203, {s(R_WO,4)}, {s(S_T0)} offen {NT_B} lds")
            A(f"s_add_u32 m0, {s(S_T2)}, {E_OFF + 32 + n*1024}")
            A(f"buffer_load_dwordx4 v204, {s(R_WO,4)}, {s(S_T0)} offen {NT_B} lds")
        A(f"s_lshl_b32 {s(S_T0)}, {s(S_CH)}, 12")
        A(f"v_mov_b32 v34, {s(S_T0)}")
        A(f"global_load_dword v32, v34, {s(S_SSMK,2)}")
        A(f"s_lshl_b32 {s(S_T0)}, {s(S_CH)}, 1")
        A(f"s_and_b32 {s(S_T0)}, {s(S_T0)}, 0xfffffffc")
        A(f"v_mov_b32 v35, {s(S_T0)}")
        A(f"global_load_dword v33, v35, {s(S_SD,2)}")
    stamp(2)
    AA, AB = 16, 24
    CA = [32, 64]
    CBf = [96, 128]
    CACC = 160
    def build_eo():
        A(f"s_and_b32 {s(S_T2)}, {s(S_LI)}, 1")
        A(f"s_cmp_lg_u32 {s(S_T2)}, 0")
        A("s_cbranch_scc1 L_l_nopad")
        A(f"s_lshr_b32 {s(S_T0)}, {s(S_LI)}, 1")
        A(f"s_lshl_b32 {s(S_T0)}, {s(S_T0)}, 4")
        A(f"v_lshrrev_b32 v33, {s(S_T0)}, v33")
        A("v_lshlrev_b32 v33, 16, v33")
        A("v_lshlrev_b32 v34, 16, v32")
        A("v_add_f32 v34, v33, v34")
        A("v_cvt_pk_bf16_f32 v34, v34, v34")
        A("v_and_b32 v34, 0xffff, v34")
        A("v_and_b32 v35, 0xffff0000, v32")
        A("v_or_b32 v35, v35, v34")
        A("v_lshlrev_b32 v34, 16, v34")
        A("v_mov_b32 v36, 0")
        A("v_lshlrev_b32 v37, 2, v1")
        A(f"v_add_u32 v37, {s(S_CBASE)}, v37")
        A("v_cmp_eq_u32 vcc, 7, v1")
        A("v_cndmask_b32 v34, v36, v34, vcc")
        A("v_cndmask_b32 v35, v36, v35, vcc")
        A("v_cmp_gt_u32 vcc, 8, v1")
        A(f"s_and_saveexec_b64 {s(S_EX,2)}, vcc")
        A(f"ds_write_b32 v37, v34 offset:{E_OFF}")
        A(f"ds_write_b32 v37, v35 offset:{O_OFF}")
        A(f"s_mov_b64 exec, {s(S_EX,2)}")
        A("v_mov_b32 v39, 0")
        A("v_mov_b32 v38, 0")
        A("v_lshlrev_b32 v37, 3, v1")
        A(f"v_add_u32 v37, {s(S_CBASE)}, v37")
        A("v_cmp_gt_u32 vcc, 60, v1")
        A(f"s_and_saveexec_b64 {s(S_EX,2)}, vcc")
        A(f"ds_write_b64 v37, v[38:39] offset:{U_OFF + 4096}")
        A(f"s_mov_b64 exec, {s(S_EX,2)}")
        A("L_l_nopad:")
        A("s_waitcnt lgkmcnt(0)")
    def conv_addr():
        A("v_and_b32 v25, 15, v1")
        A("v_lshrrev_b32 v26, 4, v1")
        A("v_lshrrev_b32 v27, 1, v25")
        A("v_lshl_add_u32 v27, v26, 2, v27")
        A("v_lshlrev_b32 v27, 2, v27")
        A("v_and_b32 v28, 1, v25")
        A(f"v_mul_u32_u24 v28, {O_OFF}, v28")
        A(f"s_and_b32 {s(S_T2)}, {s(S_LI)}, 1")
        A(f"s_lshl_b32 {s(S_T0)}, {s(S_T2)}, 8")
        A(f"s_add_u32 {s(S_T0)}, {s(S_T0)}, {s(S_CBASE)}")
        A(f"v_add3_u32 {v(AA)}, v27, v28, {s(S_T0)}")
        for jj in range(1, 8):
            A(f"v_add_u32 {v(AA+jj)}, {512*jj}, {v(AA)}")
        A("v_lshlrev_b32 v27, 4, v26")
        A("v_lshlrev_b32 v28, 5, v25")
        A("v_sub_u32 v27, v27, v28")
        A(f"s_add_u32 {s(S_T0)}, {s(S_T0)}, {U_OFF + 480}")
        A(f"v_add_u32 {v(AB)}, {s(S_T0)}, v27")
    def ur_dma():
        A(f"s_lshl_b32 {s(S_T0)}, {s(S_CH)}, 12")
        A(f"s_add_u32 {s(S_T0)}, {s(S_T0)}, {UR}")
        A("v_lshlrev_b32 v28, 4, v1")
        for cs in range(2):
            for n in range(4):
                A(f"s_mov_b32 m0, {B2R + cs*CB + U_OFF + n*1024}")
                A(f"s_add_u32 {s(S_T1)}, {s(S_T0)}, {cs*4096 + n*1024}")
                A(f"buffer_load_dwordx4 v28, {s(R_WS,4)}, {s(S_T1)} offen sc1 lds")
    def lbar(c, n):
        if n is not None: A(f"s_waitcnt vmcnt({n})")
        if prof:
            A("s_memtime s[98:99]"); A("s_waitcnt lgkmcnt(0)"); A(f"v_writelane_b32 v255, s98, {22+c}")
        A("s_barrier")
        if prof:
            A("s_memtime s[98:99]"); A("s_waitcnt lgkmcnt(0)"); A(f"v_writelane_b32 v255, s98, {54+c}")
    A("s_waitcnt lgkmcnt(0)")
    A(f"s_lshl_b32 {s(S_T0)}, {s(S_LI)}, 2")
    A(f"s_add_u32 {s(S_T0)}, {s(S_T0)}, {OKW}")
    A(f"v_mov_b32 v29, {s(S_T0)}")
    A("v_mov_b32 v26, 0")
    A("ds_write_b32 v29, v26")
    A("s_waitcnt lgkmcnt(0)")
    def b1_flag_sample():
        A("v_and_b32 v30, 31, v1")
        A("v_lshlrev_b32 v30, 10, v30")
        A(f"s_lshl_b32 {s(S_T0)}, {s(S_XCD)}, 7")
        A(f"s_lshr_b32 {s(S_T1)}, {s(S_J)}, 3")
        A(f"s_lshl_b32 {s(S_T1)}, {s(S_T1)}, 2")
        A(f"s_add_u32 {s(S_T0)}, {s(S_T0)}, {s(S_T1)}")
        A(f"s_add_u32 {s(S_T0)}, {s(S_T0)}, {FLG + F_B1}")
        A(f"v_add_u32 v30, {s(S_T0)}, v30")
        A(f"s_cmp_eq_u32 {s(S_LI)}, 0")
        A("s_cbranch_scc1 L_l_w4a")
        A(f"s_lshl_b32 {s(S_T0)}, s2, 7")
        A(f"s_add_u32 {s(S_T0)}, {s(S_T0)}, {FLG + F_B2}")
        A(f"v_mov_b32 v30, {s(S_T0)}")
        A("L_l_w4a:")
        flag_load(30, 31)
    if DIST == 3:
        lbar(0, 14)
        dma_chunk(3)
        A(f"s_add_u32 {s(S_NONCE)}, {s(S_NONCE)}, 1")
        srd(R_WS, S_WS, WS_BYTES)
        lbar(1, 14)
        dma_chunk(4)
        lbar(2, 14)
        dma_chunk(5)
        lbar(3, 14)
        dma_chunk(6)
        lbar(4, 14)
        dma_chunk(7)
        lbar(5, 14)
        b1_flag_sample()
        h_loads()
        lbar(6, 14)
        conv_addr()
    else:
        lbar(0, 7)
        dma_chunk(2)
        A(f"s_add_u32 {s(S_NONCE)}, {s(S_NONCE)}, 1")
        srd(R_WS, S_WS, WS_BYTES)
        lbar(1, 7)
        dma_chunk(3)
        h_loads()
        lbar(2, 12)
        dma_chunk(4)
        lbar(3, 12)
        dma_chunk(5)
        lbar(4, 7)
        dma_chunk(6)
        lbar(5, 7)
        dma_chunk(7)
        b1_flag_sample()
        build_eo()
        lbar(6, 8)
        conv_addr()
    A("s_waitcnt vmcnt(6)")
    A(f"s_mov_b32 {s(S_OK)}, 0")
    A(f"s_cmp_lg_u32 {s(S_LI)}, 0")
    A("s_cbranch_scc1 L_l_late")
    A(f"v_cmp_ne_u32 vcc, {s(S_NONCE)}, v31")
    A("s_cbranch_vccnz L_l_late")
    ur_dma()
    A(f"s_mov_b32 {s(S_OK)}, 1")
    A("L_l_late:")
    if prof:
        A("s_memtime s[98:99]"); A("s_waitcnt lgkmcnt(0)"); A(f"v_writelane_b32 v255, s98, 29")
    A("s_barrier")
    if opt.get("lprio", 0) != opt.get("cprio", 0): A(f"s_setprio {opt.get('cprio', 0)}")
    stamp(5)
    call("L_sub_a")
    stamp(6)
    A(f"s_cmp_lg_u32 {s(S_LI)}, 0")
    A("s_cbranch_scc1 L_l_have")
    A(f"s_cmp_eq_u32 {s(S_OK)}, 1")
    A("s_cbranch_scc1 L_l_have")
    spin(30, 31, "L_poll_b1")
    ur_dma()
    A("L_l_have:")
    A("s_waitcnt vmcnt(0)")
    stamp(3)
    build_eo()
    stamp(4)
    A(f"v_mov_b32 v26, {s(S_NONCE)}")
    A("ds_write_b32 v29, v26")
    A(f"v_mov_b32 v25, {OKW}")
    A(f"s_mov_b32 {s(S_SPIN)}, {SPIN*8}")
    A("L_l_ospin:")
    A("ds_read_b128 v[32:35], v25")
    A("s_waitcnt lgkmcnt(0)")
    A(f"v_cmp_ne_u32 vcc, {s(S_NONCE)}, v32")
    A(f"v_cmp_ne_u32 {s(S_CMP,2)}, {s(S_NONCE)}, v33")
    A(f"v_cmp_ne_u32 {s(S_CMP+2,2)}, {s(S_NONCE)}, v34")
    A(f"v_cmp_ne_u32 {s(S_CMP+4,2)}, {s(S_NONCE)}, v35")
    A(f"s_or_b64 vcc, vcc, {s(S_CMP,2)}")
    A(f"s_or_b64 vcc, vcc, {s(S_CMP+2,2)}")
    A(f"s_or_b64 vcc, vcc, {s(S_CMP+4,2)}")
    A("s_cbranch_vccz L_l_go")
    A(f"s_sub_u32 {s(S_SPIN)}, {s(S_SPIN)}, 1")
    A(f"s_cmp_lg_u32 {s(S_SPIN)}, 0")
    A("s_cbranch_scc1 L_l_ospin")
    A("L_l_go:")
    A(f"s_and_b32 {s(S_T2)}, {s(S_LI)}, 1")
    stamp(7)
    def conv_reads(ii):
        st = ii & 1
        L = []
        for k in range(8):
            L.append(f"ds_read_b128 {v(CBf[st]+4*k,4)}, {v(AB)} offset:{512*(7-k) + 64*ii}")
            L.append(f"ds_read2_b32 {v(CA[st]+4*k,2)}, {v(AA+k)} offset0:{16*ii} offset1:{16*ii+1}")
            L.append(f"ds_read2_b32 {v(CA[st]+4*k+2,2)}, {v(AA+k)} offset0:{16*ii+2} offset1:{16*ii+3}")
        return L
    r0 = conv_reads(0)
    first = [r0[1], r0[2]] + [r0[3*k] for k in range(8)] + [x for k in range(1, 8) for x in (r0[3*k+1], r0[3*k+2])]
    for r in first: A(r)
    for ii in range(4):
        nxt = conv_reads(ii + 1) if ii < 3 else []
        st = ii & 1
        k = 0
        for jj in range(8):
            if ii == 0:
                if jj == 0: A("s_waitcnt lgkmcnt(14)")
                elif jj == 1: A("s_waitcnt lgkmcnt(0)")
            elif jj == 0:
                A("s_waitcnt lgkmcnt(0)")
            for cp in range(8 - jj):
                acc = v(CACC + 4*(cp + jj), 4)
                cin = "0" if (ii == 0 and jj == 0) else acc
                A(f"{MF16} {acc}, {v(CA[st]+4*jj,4)}, {v(CBf[st]+4*cp,4)}, {cin}")
                if k < len(nxt) and not (ii == 0 and jj == 0):
                    A(nxt[k]); k += 1
        while k < len(nxt):
            A(nxt[k]); k += 1
    stamp(8)
    if opt.get("cprio", 0): A("s_setprio 0")
    A("s_nop 7")
    A(f"s_and_b32 {s(S_T2)}, {s(S_LI)}, 1")
    A("v_lshlrev_b32 v25, 4, v1")
    A(f"s_lshl_b32 {s(S_T0)}, {s(S_LI)}, 12")
    A(f"v_add_u32 v26, {s(S_T0)}, v25")
    A(f"s_xor_b32 {s(S_T0)}, {s(S_T0)}, 4096")
    A(f"v_add_u32 v27, {s(S_T0)}, v25")
    A(f"s_cmp_lg_u32 {s(S_T2)}, 0")
    A("s_cbranch_scc1 L_l_x1")
    for k in range(4):
        A(f"ds_write_b128 v26, {v(CACC+16+4*k,4)} offset:{LR + 1024*k}")
    A("s_waitcnt lgkmcnt(0)")
    A("s_barrier")
    for k in range(4):
        A(f"ds_read_b128 {v(32+4*k,4)}, v27 offset:{LR + 1024*k}")
    A("s_waitcnt lgkmcnt(0)")
    for r in range(16):
        A(f"v_add_f32 {v(48+r)}, {v(32+r)}, {v(CACC+r)}")
    A("s_branch L_l_x2")
    A("L_l_x1:")
    A("s_nop 7")
    for k in range(4):
        A(f"ds_write_b128 v26, {v(CACC+4*k,4)} offset:{LR + 1024*k}")
    A("s_waitcnt lgkmcnt(0)")
    A("s_barrier")
    for k in range(4):
        A(f"ds_read_b128 {v(32+4*k,4)}, v27 offset:{LR + 1024*k}")
    A("s_waitcnt lgkmcnt(0)")
    for r in range(16):
        A(f"v_add_f32 {v(48+r)}, {v(32+r)}, {v(CACC+16+r)}")
    A("L_l_x2:")
    for k in range(4):
        A(f"v_cvt_pk_bf16_f32 {v(32+2*k)}, {v(48+4*k)}, {v(49+4*k)}")
        A(f"v_cvt_pk_bf16_f32 {v(33+2*k)}, {v(50+4*k)}, {v(51+4*k)}")
    A("v_and_b32 v25, 15, v1")
    A("v_lshlrev_b32 v25, 5, v25")
    A("v_bfe_u32 v26, v1, 4, 1")
    A("v_lshl_add_u32 v25, v26, 9, v25")
    A("v_lshrrev_b32 v26, 5, v1")
    A("v_lshl_add_u32 v25, v26, 4, v25")
    A(f"s_lshl_b32 {s(S_T0)}, {s(S_CH)}, 12")
    A(f"s_lshl_b32 {s(S_T1)}, {s(S_T2)}, 11")
    A(f"s_add_u32 {s(S_T0)}, {s(S_T0)}, {s(S_T1)}")
    A(f"s_add_u32 {s(S_T0)}, {s(S_T0)}, {YT}")
    A(f"v_add_u32 v25, {s(S_T0)}, v25")
    A("v_permlane16_swap_b32 v32, v34")
    A("v_permlane16_swap_b32 v33, v35")
    A("v_permlane16_swap_b32 v36, v38")
    A("v_permlane16_swap_b32 v37, v39")
    A(f"global_store_dwordx4 v25, v[32:35], {s(S_WS,2)} {SCS}")
    A(f"global_store_dwordx4 v25, v[36:39], {s(S_WS,2)} offset:1024 {SCS}")
    A("s_barrier")
    stamp(9)
    A("L_a2:")
    if DBG: A("s_memrealtime s[10:11]")
    if opt.get("prio", 0): A("s_setprio 1")
    Q, KF, SA, SB, CN, PP, VF, O = 16, 20, 56, 72, 88, 104, 120, 136
    AK, AV0, AV1, TM, TM2 = PAK, PAV0, PAV1, 155, 156
    TM3 = 169
    VQ3, VF2A, VF2 = 160, PFB2, 165
    A(f"ds_read_b128 {v(Q,4)}, {v(PAQ)} offset:{LQ}")
    order = [8, 0, 7, 6, 5, 4, 3, 2, 1]
    for jj in order:
        A(f"ds_read_b128 {v(KF+4*jj,4)}, {v(AK)} offset:{LK + jj*1024}")
    for r in range(4):
        A(f"global_load_dword {v(VQ3+r)}, {v(PQ3)}, {s(S_BQ,2)} offset:{1024*r} {NT_B}")
    buf = lambda jj: SA if (jj & 1) else SB
    A("s_waitcnt lgkmcnt(7)")
    A(f"{MF} {v(MM8,16)}, {v(KF+32,4)}, {v(Q,4)}, {v(MM8,16)}")
    A(f"{MF} {v(MM0,16)}, {v(KF+0,4)}, {v(Q,4)}, {v(MM0,16)}")
    A("s_waitcnt lgkmcnt(5)")
    A(f"{MF} {v(SA,16)}, {v(KF+28,4)}, {v(Q,4)}, 0")
    A(f"{MF} {v(SB,16)}, {v(KF+24,4)}, {v(Q,4)}, 0")
    A(f"s_cmp_gt_u32 {s(S_J0)}, 0")
    A("s_cbranch_scc1 L_st_nomerge")
    stubs.append(["L_st_nomerge:", "s_nop 15", "s_branch L_a2_nomerge"])
    for r in range(16):
        A(f"v_max_f32 {v(MM8+r)}, {v(MM0+r)}, {v(MM8+r)}")
    A("L_a2_nomerge:")
    A(f"v_max_f32 {v(TM)}, {v(MM8)}, {v(MM8+1)}")
    A(f"v_max_f32 {v(TM3)}, {v(MM8+2)}, {v(MM8+3)}")
    for r in range(4, 16, 2):
        t = TM if (r & 2) == 0 else TM3
        A(f"v_max3_f32 {v(t)}, {v(t)}, {v(MM8+r)}, {v(MM8+r+1)}")
    A("s_waitcnt lgkmcnt(0)")
    for jj in range(7, 0, -1):
        b = buf(jj)
        A(f"s_cmp_gt_u32 {s(S_J0)}, {jj}")
        A("s_cbranch_scc1 L_a2_p1done")
        for r in range(0, 16, 2):
            t = TM if (r & 2) == 0 else TM3
            A(f"v_max3_f32 {v(t)}, {v(t)}, {v(b+r)}, {v(b+r+1)}")
        if jj - 2 >= 1:
            A(f"{MF} {v(b,16)}, {v(KF+4*(jj-2),4)}, {v(Q,4)}, 0")
    A("L_a2_p1done:")
    A(f"v_max_f32 {v(TM)}, {v(TM)}, {v(TM3)}")
    A(f"v_mov_b32 {v(TM2)}, {v(TM)}")
    A(f"v_permlane32_swap_b32 {v(TM)}, {v(TM2)}")
    A(f"v_max_f32 {v(TM)}, {v(TM)}, {v(TM2)}")
    A(f"v_sub_f32 {v(TM2)}, 0, {v(TM)}")
    for r in range(16):
        A(f"v_mov_b32 {v(CN+r)}, {v(TM2)}")
    stamp(10)
    A(f"{MF} {v(SA,16)}, {v(KF+28,4)}, {v(Q,4)}, {v(CN,16)}")
    A(f"{MF} {v(SB,16)}, {v(KF+24,4)}, {v(Q,4)}, {v(CN,16)}")
    def vread(slot, jj, sidx):
        A(f"ds_read_b128 {v(VF+4*slot,4)}, {v(AV0 if sidx == 0 else AV1)} offset:{LV + jj*VTS + sidx*512}")
    vread(0, 8, 0); vread(1, 8, 1); vread(2, 0, 0); vread(3, 0, 1)
    def pub_b2(lab, n):
        A(f"s_waitcnt vmcnt({n})")
        A(f"s_cmp_lt_u32 {s(S_WV)}, 4")
        A(f"s_cbranch_scc1 {lab}")
        publish(F_B2, 157, 158)
        A(f"{lab}:")
    if opt.get("prio", 0): A("s_setprio 0")
    pub_b2("L_a2_nopub", 4)
    P0, P1 = PP, PP + 8
    for r in range(16):
        A(f"v_add_f32 {v(MM8+r)}, {v(TM2)}, {v(MM8+r)}")
    for r in range(16):
        A(f"v_exp_f32 {v(MM8+r)}, {v(MM8+r)}")
    for i in range(8):
        A(f"v_cvt_pk_bf16_f32 {v(P0+i)}, {v(MM8+2*i)}, {v(MM8+2*i+1)}")
    for i in range(8):
        A(f"v_and_b32 {v(P1+i)}, {v(MMK+i)}, {v(P0+i)}")
    for i in range(8):
        A(f"v_xor_b32 {v(P0+i)}, {v(P1+i)}, {v(P0+i)}")
    A("s_waitcnt lgkmcnt(0)")
    A(f"{MF} {v(O,16)}, {v(VF+0,4)}, {v(P0,4)}, 0")
    A(f"s_cmp_gt_u32 {s(S_J0)}, 0")
    A("s_cbranch_scc1 L_a2_nopv0")
    A(f"{MF} {v(O,16)}, {v(VF+8,4)}, {v(P1,4)}, {v(O,16)}")
    A(f"{MF} {v(O,16)}, {v(VF+12,4)}, {v(P1+4,4)}, {v(O,16)}")
    A("L_a2_nopv0:")
    pb = lambda jj: PP + 8*(jj & 1)
    sl = lambda jj: 2*(jj & 1)
    def pend(jj):
        if jj == 7: return [f"{MF} {v(O,16)}, {v(VF+4,4)}, {v(P0+4,4)}, {v(O,16)}"]
        p = jj + 1
        return [f"{MF} {v(O,16)}, {v(VF+4*sl(p),4)}, {v(pb(p),4)}, {v(O,16)}",
                f"{MF} {v(O,16)}, {v(VF+4*sl(p)+4,4)}, {v(pb(p)+4,4)}, {v(O,16)}"]
    for jj in range(7, 0, -1):
        b = buf(jj)
        A(f"s_cmp_gt_u32 {s(S_J0)}, {jj}")
        A(f"s_cbranch_scc1 L_st_p2_{jj}")
        def stub(jj=jj):
            A(f"L_st_p2_{jj}:")
            A("s_waitcnt lgkmcnt(0)")
            A("s_nop 1")
            for m in pend(jj): A(m)
            if jj >= 4:
                A(f"s_cmp_ge_u32 {s(S_WV)}, 4")
                A(f"s_cbranch_scc1 L_st_nowo{jj}")
                for n in range(2*(7 - jj), 8): wo_dma(n)
                A(f"L_st_nowo{jj}:")
            if jj >= 3:
                A(f"s_cmp_lg_u32 {s(S_WV)}, 0")
                A("s_cbranch_scc1 L_a2_p2done")
                flag_load(VF2A, VF2)
            A("s_branch L_a2_p2done")
        stubs.append(stub)
        pm = pend(jj)
        pass
        for r in range(16):
            A(f"v_exp_f32 {v(b+r)}, {v(b+r)}")
            if r == 1:
                A("s_waitcnt lgkmcnt(0)")
                A(pm[0])
            if r == 7 and len(pm) > 1: A(pm[1])
            if r == 9:
                vread(sl(jj), jj, 0); vread(sl(jj) + 1, jj, 1)
            if jj >= 4 and r == 11:
                A(f"s_cmp_ge_u32 {s(S_WV)}, 4")
                A(f"s_cbranch_scc1 L_a2_nowo{jj}")
                wo_dma(2*(7 - jj)); wo_dma(2*(7 - jj) + 1)
                A(f"L_a2_nowo{jj}:")
            if jj == 3 and r == 13:
                A(f"s_cmp_lg_u32 {s(S_WV)}, 0")
                A("s_cbranch_scc1 L_a2_nosample")
                flag_load(VF2A, VF2)
                A("L_a2_nosample:")
        for i in range(8):
            A(f"v_cvt_pk_bf16_f32 {v(pb(jj)+i)}, {v(b+2*i)}, {v(b+2*i+1)}")
        if jj - 2 >= 1:
            A(f"{MF} {v(b,16)}, {v(KF+4*(jj-2),4)}, {v(Q,4)}, {v(CN,16)}")
    A("s_waitcnt lgkmcnt(0)")
    for m in pend(0): A(m)
    A("L_a2_p2done:")

    A("s_nop 15")
    A(f"v_rcp_f32 {v(TM)}, {v(O+8)}")
    for r in range(8):
        A(f"v_mul_f32 {v(O+r)}, {v(TM)}, {v(O+r)}")
    for i in range(4):
        A(f"v_cvt_pk_bf16_f32 {v(PP+i)}, {v(O+2*i)}, {v(O+2*i+1)}")
    A(f"global_store_dwordx4 {v(PO)}, {v(PP,4)}, {s(S_WS,2)} {SCS}")
    stamp(11)
    tail_addr()
    A(f"s_cmp_ge_u32 {s(S_WV)}, 4")
    A("s_cbranch_scc1 L_noep")
    A("s_waitcnt vmcnt(0)")
    publish(F_A2, 157, 158)
    stamp(12)
    flag_load(PFA2, 31)
    A(f"s_cmp_lg_u32 {s(S_WV)}, 0")
    A("s_cbranch_scc1 L_nob2poll")
    check_or_spin(VF2A, VF2, "L_poll_b2")
    A(f"s_lshl_b32 {s(S_T0)}, {s(S_XCD)}, 18")
    A(f"s_lshl_b32 {s(S_T1)}, {s(S_J)}, 7")
    A(f"s_add_u32 {s(S_T0)}, {s(S_T0)}, {s(S_T1)}")
    A(f"s_add_u32 {s(S_T0)}, {s(S_T0)}, {YT}")
    for n in range(8):
        A(f"s_mov_b32 m0, {LYT + n*1024}")
        A(f"s_add_u32 {s(S_T1)}, {s(S_T0)}, {n*8*4096}")
        A(f"buffer_load_dwordx4 {v(PY0 + (n & 1))}, {s(R_WS,4)}, {s(S_T1)} offen sc1 lds")
    A("L_nob2poll:")
    A(f"s_or_b32 {s(S_T0)}, s2, {s(S_WV)}")
    A(f"s_cmp_lg_u32 {s(S_T0)}, 0")
    A("s_cbranch_scc0 L_st_epoch")
    stubs.append("EPOCH")
    A("L_noep:")
    A("s_barrier")
    stamp(13)
    WF = 32
    for hs in range(16):
        A(f"ds_read_b64_tr_b16 {v(WF+4*hs,2)}, {v(PAW)} offset:{hs*2048}")
        A(f"ds_read_b64_tr_b16 {v(WF+4*hs+2,2)}, {v(PAW)} offset:{hs*2048 + 1024}")
    A(f"s_cmp_lt_u32 {s(S_WV)}, 4")
    A("s_cbranch_scc1 L_cpub")
    A("s_waitcnt vmcnt(0)")
    publish(F_A2, 157, 158)
    stamp(12)
    flag_load(PFA2, 31)
    A("L_cpub:")
    A("s_waitcnt vmcnt(0)")
    A(f"v_mov_b32 v20, {OK2}")
    A(f"s_cmp_lg_u32 {s(S_WV)}, 0")
    A("s_cbranch_scc1 L_nosig")
    A(f"v_mov_b32 v21, {s(S_NONCE)}")
    A("ds_write_b32 v20, v21")
    A("L_nosig:")
    check_or_spin(PFA2, 31, "L_poll_a2")
    stamp(14)
    A(f"s_lshl_b32 {s(S_T0)}, {s(S_TB64)}, 16")
    A(f"s_lshl_b32 {s(S_T1)}, {s(S_WV)}, 12")
    A(f"s_add_u32 {s(S_T0)}, {s(S_T0)}, {s(S_T1)}")
    for hh in range(4):
        for ts in range(2):
            A(f"s_add_u32 m0, {s(S_T1)}, {LO + ts*32768 + hh*1024}")
            A(f"s_add_u32 {s(S_T2)}, {s(S_T0)}, {OW + ts*32768 + hh*1024}")
            A(f"buffer_load_dwordx4 {v(PL16)}, {s(R_WS,4)}, {s(S_T2)} offen sc1 lds")
    A(f"s_mov_b32 {s(S_SPIN)}, {SPIN*8}")
    A("L_y_spin:")
    A("ds_read_b32 v21, v20")
    A("s_waitcnt lgkmcnt(0)")
    A(f"v_cmp_ne_u32 vcc, {s(S_NONCE)}, v21")
    A("s_cbranch_vccz L_y_ok")
    A(f"s_sub_u32 {s(S_SPIN)}, {s(S_SPIN)}, 1")
    A(f"s_cmp_lg_u32 {s(S_SPIN)}, 0")
    A("s_cbranch_scc1 L_y_spin")
    A("L_y_ok:")
    A(f"ds_read_b64 v[22:23], {v(PYR)}")
    A(f"ds_read_b64 v[24:25], {v(PYR)} offset:128")
    for r in range(4):
        A(f"v_lshlrev_b32 {v(136+2*r)}, 16, {v(VQ3+r)}")
        A(f"v_and_b32 {v(137+2*r)}, 0xffff0000, {v(VQ3+r)}")
    A("s_waitcnt lgkmcnt(0)")
    A("v_lshlrev_b32 v144, 16, v22"); A("v_lshlrev_b32 v145, 16, v24")
    A("v_and_b32 v146, 0xffff0000, v22"); A("v_and_b32 v147, 0xffff0000, v24")
    A("v_lshlrev_b32 v148, 16, v23"); A("v_lshlrev_b32 v149, 16, v25")
    A("v_and_b32 v150, 0xffff0000, v23"); A("v_and_b32 v151, 0xffff0000, v25")
    for r in range(4):
        A(f"v_pk_mul_f32 {v(144+2*r,2)}, {v(144+2*r,2)}, {v(136+2*r,2)}")
    for r in range(4):
        A(f"v_cvt_pk_bf16_f32 {v(152+r)}, {v(144+2*r)}, {v(145+2*r)}")
    A(f"v_add_u32 v21, 0x1000, {v(PB3)}")
    A(f"global_store_dword {v(PB3)}, v152, {s(S_OUT,2)} {BST}")
    A(f"global_store_dword {v(PB3)}, v153, {s(S_OUT,2)} offset:2048 {BST}")
    A(f"global_store_dword v21, v154, {s(S_OUT,2)} {BST}")
    A(f"global_store_dword v21, v155, {s(S_OUT,2)} offset:2048 {BST}")
    A("s_waitcnt vmcnt(4)")
    stamp(15)
    A("s_barrier")
    stamp(16)
    OA = 160
    OF = 96
    for hs in range(16): A(f"ds_read_b128 {v(OF+4*hs,4)}, {v(PAO)} offset:{hs*1024}")
    for hs in range(16):
        if hs % 2 == 0: A(f"s_waitcnt lgkmcnt({min(15, 14 - hs)})" if hs < 14 else "s_waitcnt lgkmcnt(0)")
        cin = "0" if hs == 0 else v(OA,16)
        A(f"{MF} {v(OA,16)}, {v(WF+4*hs,4)}, {v(OF+4*hs,4)}, {cin}")
    if prof:
        A("s_nop 15")
        stamp(21)
    for m in range(4):
        A(f"ds_write_b128 {v(PPW[m])}, {v(OA+4*m,4)}")
    A("s_waitcnt lgkmcnt(0)")
    A("s_barrier")
    stamp(17)
    A(f"ds_read_b128 v[32:35], {v(PPR[0])}"); A(f"ds_read_b128 v[40:43], {v(PPR[2])}")
    A(f"ds_read_b128 v[36:39], {v(PPR[1])}"); A(f"ds_read_b128 v[44:47], {v(PPR[3])}")
    A("s_waitcnt lgkmcnt(0)")
    for r in range(8):
        A(f"v_add_f32 {v(32+r)}, {v(32+r)}, {v(40+r)}")
    for i in range(4):
        A(f"v_cvt_pk_bf16_f32 {v(48+i)}, {v(32+2*i)}, {v(33+2*i)}")
    A(f"global_store_dwordx4 {v(POUT)}, v[48:51], {s(S_OUT,2)} {FST}")
    if prof:
        stamp(18)
        A(f"s_lshl_b32 {s(S_T0)}, s2, 3")
        A(f"s_add_u32 {s(S_T0)}, {s(S_T0)}, {s(S_WV)}")
        A(f"s_lshl_b32 {s(S_T0)}, {s(S_T0)}, 8")
        A(f"s_add_u32 {s(S_T0)}, {s(S_T0)}, {PROF}")
        A("v_lshlrev_b32 v16, 2, v1")
        A(f"v_add_u32 v16, {s(S_T0)}, v16")
        A(f"global_store_dword v16, v255, {s(S_WS,2)}")
    if DBG:
        A("s_memrealtime s[12:13]")
        A("s_waitcnt lgkmcnt(0)")
        A("v_mov_b32 v16, 0")
        A("s_mov_b64 exec, 1")
        A("v_mov_b32 v17, s12"); A(f"global_atomic_umax v16, v17, {s(S_DBG,2)}")
        A("s_not_b32 s8, s8"); A("v_mov_b32 v17, s8"); A(f"global_atomic_umax v16, v17, {s(S_DBG,2)} offset:4")
        A("v_mov_b32 v17, s10"); A(f"global_atomic_umax v16, v17, {s(S_DBG,2)} offset:8")
        A("s_not_b32 s10, s10"); A("v_mov_b32 v17, s10"); A(f"global_atomic_umax v16, v17, {s(S_DBG,2)} offset:12")
        A("s_not_b32 s12, s12"); A("v_mov_b32 v17, s12"); A(f"global_atomic_umax v16, v17, {s(S_DBG,2)} offset:16")
    A("L_end:")
    A("s_endpgm")
    sub_setup()
    for st in stubs:
        if st == "EPOCH":
            A("L_st_epoch:")
            for q in range(4):
                A(f"v_lshlrev_b32 v157, 7, v1")
                A(f"v_add_u32 v157, {FLG + F_B1 + q*8192}, v157")
                spin(157, 158, f"L_poll_ep{q}")
            A(f"v_mov_b32 v157, {EP}")
            A(f"v_mov_b32 v158, {s(S_NONCE)}")
            A(f"s_mov_b64 {s(S_EX,2)}, exec")
            A("s_mov_b64 exec, 1")
            A(f"global_store_dword v157, v158, {s(S_WS,2)} {SCS}")
            A(f"s_mov_b64 exec, {s(S_EX,2)}")
            A("s_branch L_noep")
        elif callable(st):
            st()
        else:
            for line in st: A(line)
    n = a.fix_hazards()
    return a, n

HEAD = f"""; Fused sliding-window attention block + H3 SSM conv, one persistent launch (generated by gen/gen2.py)
; @launch grid=(256,1,1) block=(512,1,1) lds={LDS_BYTES}
.amdgcn_target "amdgcn-amd-amdhsa--gfx950"
.text
.globl {KN}
.p2align 8
.type {KN},@function
{KN}:
"""
TAIL = f""".section .rodata,"a"
.p2align 6
.amdhsa_kernel {KN}
  .amdhsa_next_free_vgpr 256
  .amdhsa_next_free_sgpr 102
  .amdhsa_accum_offset 256
  .amdhsa_group_segment_fixed_size 0
  .amdhsa_kernarg_size 96
  .amdhsa_user_sgpr_count 2
  .amdhsa_user_sgpr_kernarg_segment_ptr 1
  .amdhsa_system_sgpr_workgroup_id_x 1
.end_amdhsa_kernel
"""
if __name__ == "__main__":
    out = sys.argv[1] if len(sys.argv) > 1 else f"cdna_kernels/{NAME}.s"
    opt = {}
    for x in sys.argv[2:]:
        if "=" in x:
            k, val = x.split("="); opt[k] = int(val)
    a, n = build(prof=("prof" in sys.argv), opt=opt)
    open(out, "w").write(HEAD + a.text() + TAIL)
    print("instructions:", a.count(), "hazard pads:", n)
```

```python
import sys
from asmlib import Asm, v, s

NAME = "concat_heads__sliding_block__ssm_conv_h3__prompt"
KN = NAME + "_kernel"

FLG = 0x0
F_B1, F_A1, F_B2, F_A2 = 0, 32768, 65536, 98304
EP  = 0x20000
KW  = 0x100000
VW  = 0x300000
OW  = 0x500000
UR  = 0x700000
YT  = 0x900000
WS_BYTES = 0xB00000
PROF = 0xC00000

STG = 28672
B2R = 114688
CB  = 12864
T0  = B2R
KVS = 140416
E_OFF, O_OFF, U_OFF = 0, 4164, 8288
LK, LV, LQ = 0, 24576, 49536
KHS, VHS, VTS = 12288, 12480, 1040
LR  = 57728
LO  = 0
LWO = 81920
LS0, LS1 = 65536, 147456
LYT = 65536
CSW = 163808
OK2 = 163824
OKW = 163792
OKW_OLD = 163832
LDS_BYTES = 163840

S_X, S_WQKV, S_WO, S_BQ, S_BK, S_BV, S_SK, S_SSMK = 16, 18, 20, 22, 24, 26, 28, 30
S_SD, S_OUT, S_DBG, S_WS = 32, 34, 36, 38
R_X, R_W, R_BK, R_WS, R_WO = 40, 44, 48, 52, 56
S_NONCE, S_WV, S_J, S_XCD, S_RB, S_HP = 60, 61, 62, 63, 64, 65
S_T0, S_T1, S_T2, S_T3, S_T4, S_T5 = 66, 67, 68, 69, 70, 71
S_LI = 72
S_J0 = 73
S_SPIN = 74
S_OK = 75
S_EX = 76
S_CBASE, S_CH = 78, 79
S_CMP = 80
S_HD, S_TB64 = 96, 97
S_ROT = 75

PAK, PAV0, PAV1, PAQ = 192, 193, 194, 195
PFB2, PFA2, PY0, PY1, PYR, PO, PWO, PAO, PAW, POUT, PL16, PQ3 = 196, 197, 198, 199, 200, 201, 202, 203, 204, 205, 206, 207
PPW = [9, 10, 11, 12]
PPR = [13, 14, 15, 2]
PB3 = 8
S_LINK = 4
S_WOB, S_WOL = 6, 7
SPIN = 200000
NEGBIG = 0xF149F2CA
QSCALE = 0x3EB8AA3B
ONES = 0x3F803F80
STAGE = [0, 1, 2, 3, 0, 1, 2, 3]
MF = "v_mfma_f32_32x32x16_bf16"
MF16 = "v_mfma_f32_16x16x32_bf16"

def build(prof=False, opt=None):
    opt = opt or {}
    NT_B = "nt" if opt.get("nt_b", 0) else ""
    NT_XW = "nt" if opt.get("nt_xw", 0) else ""
    NT_WO = "nt" if opt.get("nt_wo", 0) else ""
    SCP = {0: "sc0 sc1", 1: "sc1"}[opt.get("sc_poll", 1)]
    SCS = {0: "sc0 sc1", 1: "sc1"}[opt.get("sc_store", 1)]
    SLEEP = opt.get("sleep", 0)
    FST = {0: "", 1: "sc0 sc1", 2: "nt", 3: "sc1"}[opt.get("fst", 2)]
    BST = {0: "", 1: "sc0 sc1", 2: "nt", 3: "sc1"}[opt.get("bst", 2)]
    a = Asm()
    A = a
    stubs = []
    def stamp(k):
        if not prof: return
        A("s_memrealtime s[100:101]")
        A("s_memtime s[98:99]")
        A("s_waitcnt lgkmcnt(0)")
        A(f"v_writelane_b32 v255, s100, {k}")
        A(f"v_writelane_b32 v255, s98, {k+32}")
    def srd(dst, base, nbytes):
        A(f"s_mov_b32 {s(dst)}, {s(base)}")
        A(f"s_and_b32 {s(dst+1)}, {s(base+1)}, 0xffff")
        A(f"s_mov_b32 {s(dst+2)}, {nbytes}")
        A(f"s_mov_b32 {s(dst+3)}, 0x00020000")
    def flag_load(vaddr, vtmp):
        A(f"global_load_dword {v(vtmp)}, {v(vaddr)}, {s(S_WS,2)} {SCP}")
    def spin(vaddr, vtmp, label):
        A(f"s_mov_b32 {s(S_SPIN)}, {SPIN}")
        A(f"{label}:")
        flag_load(vaddr, vtmp)
        A("s_waitcnt vmcnt(0)")
        A(f"v_cmp_ne_u32 vcc, {s(S_NONCE)}, {v(vtmp)}")
        A(f"s_cbranch_vccz {label}_done")
        if SLEEP: A(f"s_sleep {SLEEP}")
        A(f"s_sub_u32 {s(S_SPIN)}, {s(S_SPIN)}, 1")
        A(f"s_cmp_lg_u32 {s(S_SPIN)}, 0")
        A(f"s_cbranch_scc1 {label}")
        A(f"{label}_done:")
    def check_or_spin(vaddr, vtmp, label):
        A(f"v_cmp_ne_u32 vcc, {s(S_NONCE)}, {v(vtmp)}")
        A(f"s_cbranch_vccz {label}_done")
        spin(vaddr, vtmp, label)
    def publish(kind, vt0, vt1):
        A(f"s_lshl_b32 {s(S_T0)}, s2, 7")
        A(f"s_lshl_b32 {s(S_T1)}, {s(S_WV)}, 2")
        A(f"s_add_u32 {s(S_T0)}, {s(S_T0)}, {s(S_T1)}")
        A(f"s_add_u32 {s(S_T0)}, {s(S_T0)}, {FLG + kind}")
        A(f"v_mov_b32 {v(vt0)}, {s(S_T0)}")
        A(f"v_mov_b32 {v(vt1)}, {s(S_NONCE)}")
        A(f"s_mov_b64 {s(S_EX,2)}, exec")
        A(f"s_mov_b64 exec, 1")
        A(f"global_store_dword {v(vt0)}, {v(vt1)}, {s(S_WS,2)} {SCS}")
        A(f"s_mov_b64 exec, {s(S_EX,2)}")

    def record(fn):
        n0 = len(a.items)
        fn()
        out = [it.text for k, it in a.items[n0:]]
        assert all(k == "i" for k, it in a.items[n0:])
        del a.items[n0:]
        return out
    MM0, MM8, MMK = 208, 224, 240
    def gen_masks():
        A("v_and_b32 v248, 31, v1")
        A("v_lshrrev_b32 v249, 5, v1")
        A("v_lshlrev_b32 v249, 2, v249")
        A("v_sub_u32 v248, v248, v249")
        A(f"v_mov_b32 v249, {NEGBIG}")
        A("v_mov_b32 v250, 0xffff")
        for r in range(16):
            cst = (r & 3) + 8*(r >> 2)
            A(f"v_subrev_u32 {v(MM0+r)}, {cst}, v248")
        for r in range(16):
            A(f"v_ashrrev_i32 {v(MM0+r)}, 31, {v(MM0+r)}")
        for i in range(8):
            A(f"v_bfi_b32 {v(MMK+i)}, v250, {v(MM0+2*i)}, {v(MM0+2*i+1)}")
        for r in range(16):
            A(f"v_and_b32 {v(MM8+r)}, v249, {v(MM0+r)}")
        for r in range(16):
            A(f"v_xor_b32 {v(MM0+r)}, v249, {v(MM8+r)}")

    def sub_setup():
        A("L_sub_a:")
        gen_masks()
        A(f"s_lshr_b32 {s(S_HD)}, {s(S_WV)}, 2")
        A(f"s_lshl_b32 {s(S_T0)}, {s(S_RB)}, 2")
        A(f"s_add_u32 {s(S_T0)}, {s(S_T0)}, {s(S_LI)}")
        A(f"s_sub_i32 {s(S_J0)}, 8, {s(S_T0)}")
        A(f"s_max_i32 {s(S_J0)}, {s(S_J0)}, 0")
        A(f"v_lshlrev_b32 {v(PL16)}, 4, v1")
        A(f"s_lshl_b32 {s(S_T0)}, {s(S_HD)}, 12")
        A(f"s_lshl_b32 {s(S_T1)}, {s(S_LI)}, 10")
        A(f"s_add_u32 {s(S_T0)}, {s(S_T0)}, {s(S_T1)}")
        A(f"v_add_u32 {v(PAQ)}, {s(S_T0)}, {v(PL16)}")
        A(f"s_mul_i32 {s(S_T0)}, {s(S_HD)}, {KHS}")
        A(f"s_add_u32 {s(S_T0)}, {s(S_T0)}, {s(S_T1)}")
        A(f"v_add_u32 {v(PAK)}, {s(S_T0)}, {v(PL16)}")
        A(f"s_mul_i32 {s(S_T0)}, {s(S_HD)}, {VHS}")
        A(f"s_mul_i32 {s(S_T1)}, {s(S_LI)}, {VTS}")
        A(f"s_add_u32 {s(S_T0)}, {s(S_T0)}, {s(S_T1)}")
        A("v_and_b32 v248, 15, v1")
        A("v_lshlrev_b32 v248, 4, v248")
        A("v_lshrrev_b32 v249, 5, v1")
        A("v_lshl_add_u32 v248, v249, 8, v248")
        A("v_bfe_u32 v249, v1, 4, 1")
        A("v_cmp_eq_u32 vcc, 1, v249")
        A("v_mov_b32 v249, 1024")
        A("v_mov_b32 v250, 512")
        A(f"v_cndmask_b32 {v(PAV0)}, v248, v249, vcc")
        A(f"v_cndmask_b32 {v(PAV1)}, v248, v250, vcc")
        A(f"v_add_u32 {v(PAV0)}, {s(S_T0)}, {v(PAV0)}")
        A(f"v_add_u32 {v(PAV1)}, {s(S_T0)}, {v(PAV1)}")
        A(f"s_lshl_b32 {s(S_T0)}, {s(S_RB)}, 2")
        A(f"s_add_u32 {s(S_T0)}, {s(S_T0)}, {s(S_LI)}")
        A(f"s_lshl_b32 {s(S_T0)}, {s(S_T0)}, 5")
        A(f"s_lshl_b32 {s(S_T1)}, {s(S_HP)}, 1")
        A(f"s_add_u32 {s(S_T0)}, {s(S_T0)}, {s(S_T1)}")
        A(f"s_add_u32 {s(S_T0)}, {s(S_T0)}, {s(S_HD)}")
        A(f"s_lshl_b32 {s(S_T0)}, {s(S_T0)}, 10")
        A(f"s_add_u32 {s(S_T0)}, {s(S_T0)}, {OW}")
        A(f"v_add_u32 {v(PO)}, {s(S_T0)}, {v(PL16)}")
        A("v_lshrrev_b32 v248, 3, v1")
        A("v_bfe_u32 v249, v248, 1, 1")
        A("v_lshlrev_b32 v249, 2, v249")
        A("v_and_b32 v250, 7, v1")
        A("v_xor_b32 v249, v249, v250")
        A("v_lshlrev_b32 v249, 4, v249")
        A(f"v_lshl_add_u32 {v(PWO)}, v248, 10, v249")
        A(f"s_lshr_b32 {s(S_T0)}, {s(S_J)}, 2")
        A(f"s_lshl_b32 {s(S_T0)}, {s(S_T0)}, 7")
        A(f"s_lshl_b32 {s(S_T1)}, {s(S_WV)}, 16")
        A(f"s_add_u32 {s(S_WOB)}, {s(S_T0)}, {s(S_T1)}")
        A(f"s_lshl_b32 {s(S_WOL)}, {s(S_WV)}, 13")
        srd(R_WO, S_WO, 512*1024)
        A("v_and_b32 v248, 31, v1")
        A("v_lshrrev_b32 v249, 5, v1")
        A(f"s_lshl_b32 {s(S_T0)}, {s(S_WV)}, 1")
        A(f"v_add_u32 v249, {s(S_T0)}, v249")
        A(f"s_lshl_b32 {s(S_T0)}, {s(S_J)}, 6")
        A("v_lshlrev_b32 v250, 2, v249")
        A(f"v_add_u32 v250, {s(S_T0)}, v250")
        A(f"s_lshl_b32 {s(S_T0)}, {s(S_XCD)}, 7")
        A("v_lshlrev_b32 v251, 2, v248")
        A(f"v_add_u32 v251, {s(S_T0)}, v251")
        A(f"v_lshl_add_u32 {v(PQ3)}, v250, 10, v251")
        A(f"v_lshl_add_u32 {v(PB3)}, v250, 11, v251")
        A(f"v_add_u32 {v(PB3)}, 1024, {v(PB3)}")
        A("v_lshrrev_b32 v250, 1, v249")
        A("v_and_b32 v251, 7, v248")
        A("v_xor_b32 v250, v250, v251")
        A("v_lshlrev_b32 v250, 4, v250")
        A("v_and_b32 v251, 1, v249")
        A("v_lshl_add_u32 v250, v251, 3, v250")
        A("v_lshl_add_u32 v250, v248, 8, v250")
        A(f"v_add_u32 {v(PYR)}, {LYT}, v250")
        A(f"v_lshrrev_b32 {v(PFB2)}, 1, v1")
        A(f"v_lshlrev_b32 {v(PFB2)}, 10, {v(PFB2)}")
        A("v_and_b32 v248, 1, v1")
        A(f"v_lshl_add_u32 {v(PFB2)}, v248, 3, {v(PFB2)}")
        A(f"s_lshr_b32 {s(S_T0)}, {s(S_J)}, 4")
        A(f"s_add_u32 {s(S_T0)}, {s(S_T0)}, 4")
        A(f"s_lshl_b32 {s(S_T0)}, {s(S_T0)}, 2")
        A(f"s_lshl_b32 {s(S_T1)}, {s(S_XCD)}, 7")
        A(f"s_add_u32 {s(S_T0)}, {s(S_T0)}, {s(S_T1)}")
        A(f"s_add_u32 {s(S_T0)}, {s(S_T0)}, {FLG + F_B2}")
        A(f"v_add_u32 {v(PFB2)}, {s(S_T0)}, {v(PFB2)}")
        A(f"s_setpc_b64 {s(S_LINK,2)}")
    def tail_addr():
        A(f"s_lshl_b32 {s(S_TB64)}, {s(S_XCD)}, 2")
        A(f"s_and_b32 {s(S_T0)}, {s(S_J)}, 3")
        A(f"s_add_u32 {s(S_TB64)}, {s(S_TB64)}, {s(S_T0)}")
        A("v_and_b32 v248, 1, v1")
        A("v_bfe_u32 v249, v1, 1, 2")
        A(f"s_lshl_b32 {s(S_T0)}, {s(S_WV)}, 2")
        A(f"v_add_u32 v249, {s(S_T0)}, v249")
        A(f"s_lshl_b32 {s(S_T0)}, {s(S_TB64)}, 1")
        A(f"v_add_u32 v248, {s(S_T0)}, v248")
        A("v_lshrrev_b32 v250, 2, v248")
        A("v_lshrrev_b32 v251, 1, v249")
        A("v_and_b32 v252, 3, v250")
        A("v_and_b32 v253, 7, v251")
        A("v_lshl_add_u32 v252, v253, 2, v252")
        A("v_lshlrev_b32 v252, 3, v252")
        A("v_lshrrev_b32 v253, 2, v250")
        A("v_lshl_add_u32 v252, v253, 1, v252")
        A("v_lshrrev_b32 v253, 3, v251")
        A("v_add_u32 v252, v252, v253")
        A("v_lshlrev_b32 v252, 7, v252")
        A("v_and_b32 v253, 3, v248")
        A("v_and_b32 v250, 1, v249")
        A("v_lshl_add_u32 v253, v250, 2, v253")
        A("v_lshl_add_u32 v252, v253, 2, v252")
        A(f"v_add_u32 {v(PFA2)}, {FLG + F_A2}, v252")
        A("v_lshrrev_b32 v248, 3, v1")
        A("v_and_b32 v249, 7, v1")
        A("v_lshrrev_b32 v250, 1, v248")
        A("v_xor_b32 v249, v249, v250")
        A("v_lshlrev_b32 v248, 12, v248")
        A(f"v_lshl_add_u32 {v(PY0)}, v249, 4, v248")
        A("v_xor_b32 v249, 4, v249")
        A(f"v_lshl_add_u32 {v(PY1)}, v249, 4, v248")
        A(f"s_and_b32 {s(S_T0)}, {s(S_WV)}, 1")
        A(f"s_lshl_b32 {s(S_T0)}, {s(S_T0)}, 15")
        A(f"s_lshl_b32 {s(S_T2)}, {s(S_HD)}, 14")
        A(f"s_add_u32 {s(S_T0)}, {s(S_T0)}, {s(S_T2)}")
        A(f"v_add_u32 {v(PAO)}, {s(S_T0)}, {v(PL16)}")
        A("v_and_b32 v248, 15, v1")
        A("v_lshrrev_b32 v248, 2, v248")
        A("v_lshrrev_b32 v249, 5, v1")
        A("v_lshl_add_u32 v249, v249, 2, v248")
        A("v_lshlrev_b32 v249, 7, v249")
        A("v_lshrrev_b32 v248, 1, v248")
        A(f"s_bfe_u32 {s(S_T0)}, {s(S_WV)}, 0x10001")
        A(f"v_xor_b32 v248, {s(S_T0)}, v248")
        A("v_lshl_add_u32 v249, v248, 6, v249")
        A("v_bfe_u32 v248, v1, 4, 1")
        A("v_lshl_add_u32 v249, v248, 5, v249")
        A("v_and_b32 v248, 3, v1")
        A("v_lshl_add_u32 v249, v248, 3, v249")
        A(f"s_lshl_b32 {s(S_T2)}, {s(S_HD)}, 15")
        A(f"s_add_u32 {s(S_T2)}, {s(S_T2)}, {LWO}")
        A(f"v_add_u32 {v(PAW)}, {s(S_T2)}, v249")
        A("v_and_b32 v248, 31, v1")
        A("v_lshrrev_b32 v249, 5, v1")
        A(f"s_lshl_b32 {s(S_T0)}, {s(S_T0)}, 3")
        A(f"v_add_u32 v249, {s(S_T0)}, v249")
        A("v_and_b32 v250, 15, v248")
        A("v_xor_b32 v249, v249, v250")
        A("v_lshlrev_b32 v249, 4, v249")
        A(f"s_and_b32 {s(S_T0)}, {s(S_WV)}, 1")
        A(f"s_lshl_b32 {s(S_T0)}, {s(S_T0)}, 13")
        A(f"s_mul_i32 {s(S_T2)}, {s(S_HD)}, {LS1 - LS0}")
        A(f"s_add_u32 {s(S_T0)}, {s(S_T0)}, {s(S_T2)}")
        A(f"s_add_u32 {s(S_T0)}, {s(S_T0)}, {LS0}")
        A("v_lshl_add_u32 v249, v248, 8, v249")
        A(f"v_add_u32 v249, {s(S_T0)}, v249")
        for m in range(4):
            A(f"v_xor_b32 {v(PPW[m])}, {m*32}, v249")
        A("v_lshrrev_b32 v248, 3, v0")
        A("v_and_b32 v249, 7, v0")
        A("v_lshlrev_b32 v250, 1, v249")
        A("v_and_b32 v251, 15, v248")
        A("v_xor_b32 v250, v250, v251")
        A("v_lshlrev_b32 v250, 4, v250")
        A("v_lshl_add_u32 v250, v248, 8, v250")
        A("v_xor_b32 v251, 16, v250")
        A(f"v_add_u32 {v(PPR[0])}, {LS0}, v250"); A(f"v_add_u32 {v(PPR[1])}, {LS0}, v251")
        A(f"v_add_u32 {v(PPR[2])}, {LS1}, v250"); A(f"v_add_u32 {v(PPR[3])}, {LS1}, v251")
        A(f"s_lshl_b32 {s(S_T0)}, {s(S_TB64)}, 17")
        A(f"s_lshr_b32 {s(S_T1)}, {s(S_J)}, 2")
        A(f"s_lshl_b32 {s(S_T1)}, {s(S_T1)}, 7")
        A(f"s_add_u32 {s(S_T0)}, {s(S_T0)}, {s(S_T1)}")
        A("v_lshlrev_b32 v250, 11, v248")
        A("v_lshl_add_u32 v250, v249, 4, v250")
        A(f"v_add_u32 {v(POUT)}, {s(S_T0)}, v250")
    def call(lab): A(f"s_call_b64 {s(S_LINK,2)}, {lab}")
    def wo_dma(n):
        A(f"s_add_u32 m0, {s(S_WOL)}, {LWO + n*1024}")
        A(f"s_add_u32 {s(S_T1)}, {s(S_WOB)}, {n*8192}")
        A(f"buffer_load_dwordx4 {v(PWO)}, {s(R_WO,4)}, {s(S_T1)} offen {NT_WO} lds")

    stamp(0)
    DBG = opt.get("dbg", 0)
    if DBG: A("s_memrealtime s[8:9]")
    A("s_load_dwordx16 s[16:31], s[0:1], 0")
    A("s_load_dwordx8 s[32:39], s[0:1], 64")
    A("s_cmp_ge_u32 s2, 256")
    A("s_cbranch_scc1 L_end")
    A("v_and_b32 v1, 63, v0")
    A("v_lshrrev_b32 v2, 6, v0")
    A(f"s_and_b32 {s(S_XCD)}, s2, 7")
    A(f"s_lshr_b32 {s(S_J)}, s2, 3")
    A(f"v_readfirstlane_b32 {s(S_WV)}, v2")
    A(f"s_lshr_b32 {s(S_T0)}, {s(S_XCD)}, 1")
    A(f"s_lshl_b32 {s(S_T0)}, {s(S_T0)}, 2")
    A(f"s_and_b32 {s(S_T1)}, {s(S_J)}, 3")
    A(f"s_add_u32 {s(S_RB)}, {s(S_T0)}, {s(S_T1)}")
    A(f"s_and_b32 {s(S_T0)}, {s(S_XCD)}, 1")
    A(f"s_lshl_b32 {s(S_T0)}, {s(S_T0)}, 3")
    A(f"s_lshr_b32 {s(S_T1)}, {s(S_J)}, 2")
    A(f"s_add_u32 {s(S_HP)}, {s(S_T0)}, {s(S_T1)}")
    A(f"s_and_b32 {s(S_LI)}, {s(S_WV)}, 3")
    A("v_and_b32 v3, 31, v1")
    A("v_lshrrev_b32 v4, 5, v1")
    A(f"s_cmp_ge_u32 {s(S_WV)}, 4")
    A("s_cbranch_scc1 L_lwave")
    A("v_lshrrev_b32 v5, 3, v1")
    A("v_and_b32 v6, 7, v1")
    A("v_lshlrev_b32 v6, 4, v6")
    A(f"s_lshl_b32 {s(S_T0)}, {s(S_J)}, 6")
    A(f"s_lshl_b32 {s(S_T1)}, {s(S_WV)}, 4")
    A(f"s_add_u32 {s(S_T0)}, {s(S_T0)}, {s(S_T1)}")
    A(f"v_add_u32 v5, {s(S_T0)}, v5")
    A("v_lshlrev_b32 v5, 10, v5")
    A(f"s_lshl_b32 {s(S_T1)}, {s(S_XCD)}, 7")
    A(f"v_add3_u32 v7, v5, v6, {s(S_T1)}")
    A("v_add_u32 v8, 0xffffe000, v7")
    A("v_add_u32 v9, 0x2000, v7")
    A(f"s_mul_i32 {s(S_T4)}, {s(S_WV)}, 5120")
    A(f"s_add_u32 {s(S_T4)}, {s(S_T4)}, {KVS}")
    A(f"s_lshl_b32 {s(S_T0)}, {s(S_XCD)}, 9")
    A("v_lshlrev_b32 v11, 4, v3")
    A(f"v_add_u32 v11, {s(S_T0)}, v11")
    A("s_waitcnt lgkmcnt(0)")
    if opt.get("wsoff", 0):
        A(f"s_add_u32 {s(S_WS)}, {s(S_WS)}, {opt['wsoff'] << 20}")
        A(f"s_addc_u32 {s(S_WS+1)}, {s(S_WS+1)}, 0")
    stamp(1)
    srd(R_BK, S_BK, 2048*1024)
    srd(R_X, S_BV, 2048*1024)
    A(f"s_load_dword {s(S_NONCE)}, {s(S_WS,2)}, {EP}")
    for n, vr in enumerate((8, 7, 9)):
        A(f"s_add_u32 m0, {s(S_T4)}, {n*1024}")
        A(f"buffer_load_dwordx4 {v(vr)}, {s(R_BK,4)}, 0 offen {NT_B} lds")
    for n, vr in enumerate((7, 9)):
        A(f"s_add_u32 m0, {s(S_T4)}, {3072 + n*1024}")
        A(f"buffer_load_dwordx4 {v(vr)}, {s(R_X,4)}, 0 offen {NT_B} lds")
    A(f"global_load_dwordx4 v[36:39], v11, {s(S_SK,2)}")
    NTOUCH = 0
    if opt.get("touch", 0):
        A("v_and_b32 v40, 7, v1")
        A("v_lshlrev_b32 v40, 21, v40")
        A("v_min_u32 v40, 0xa00000, v40")
        A(f"global_load_dword v200, v40, {s(S_WS,2)} offset:2048")
        A(f"s_lshl_b32 {s(S_T0)}, {s(S_J)}, 16")
        A(f"v_mov_b32 v42, {s(S_T0)}")
        A(f"global_load_dword v201, v42, {s(S_BQ,2)}")
        A(f"s_lshl_b32 {s(S_T0)}, {s(S_J)}, 17")
        A(f"v_mov_b32 v44, {s(S_T0)}")
        A(f"global_load_dword v202, v44, {s(S_OUT,2)}")
        A(f"s_lshl_b32 {s(S_T0)}, {s(S_XCD)}, 19")
        A(f"v_mov_b32 v46, {s(S_T0)}")
        A(f"global_load_dword v203, v46, {s(S_OUT,2)}")
        A("v_mov_b32 v48, 0")
        A(f"global_load_dword v204, v48, {s(S_WO,2)}")
        A(f"global_load_dword v205, v48, {s(S_SSMK,2)}")
        NTOUCH = 6
    XA, XB, WA, WB, WC = 144, 148, 152, 153, 154
    A(f"s_lshl_b32 {s(S_T0)}, {s(S_LI)}, 5")
    A(f"v_add_u32 v110, {s(S_T0)}, v3")
    A("v_lshrrev_b32 v111, 1, v110")
    A("v_and_b32 v111, 7, v111")
    A("v_xor_b32 v111, v111, v4")
    A("v_lshlrev_b32 v111, 4, v111")
    A("v_lshl_add_u32 v111, v110, 7, v111")
    for st in range(4):
        A(f"v_xor_b32 {v(XA+st)}, {st*32}, v111")
        A(f"v_add_u32 {v(XB+st)}, {2*STG}, {v(XA+st)}")
    A("v_and_b32 v110, 15, v1")
    A("v_lshrrev_b32 v110, 2, v110")
    A("v_lshl_add_u32 v110, v4, 3, v110")
    A("v_lshlrev_b32 v110, 6, v110")
    A("v_bfe_u32 v111, v1, 4, 1")
    A("v_lshl_add_u32 v110, v111, 5, v110")
    A("v_and_b32 v111, 3, v1")
    A("v_lshl_add_u32 v110, v111, 3, v110")
    A(f"v_add_u32 {v(WA)}, 16384, v110")
    A(f"v_add_u32 {v(WB)}, {2*STG}, {v(WA)}")
    A(f"v_add_u32 {v(WC)}, {4*STG}, {v(WA)}")
    ACC = 64
    FR = [160, 176, 128]
    def reads(n):
        c, st = n >> 2, n & 3
        stage = STAGE[c]
        xa = (XA if stage < 2 else XB) + st
        wa = WA if stage < 2 else WB if stage < 4 else WC
        so = (stage & 1) * STG
        xo = so if stage < 4 else 2*STG
        f = FR[n % 3]
        L = [f"ds_read_b128 {v(f,4)}, {v(xa)} offset:{xo}"]
        for p in range(3):
            L.append(f"ds_read_b64_tr_b16 {v(f+4+4*p,2)}, {v(wa)} offset:{so + p*4096 + st*1024}")
            L.append(f"ds_read_b64_tr_b16 {v(f+6+4*p,2)}, {v(wa)} offset:{so + p*4096 + st*1024 + 256}")
        return L
    def mfma(n, p):
        f = FR[n % 3]
        acc = v(ACC + 16*p, 16)
        cin = "0" if n == 0 else acc
        if p < 2: return f"{MF} {acc}, {v(f+4+4*p,4)}, {v(f,4)}, {cin}"
        else:     return f"{MF} {acc}, {v(f,4)}, {v(f+4+4*p,4)}, {cin}"
    def epi_addr():
        A("v_lshlrev_b32 v32, 4, v1")
        A(f"s_lshl_b32 {s(S_T0)}, {s(S_HP)}, 7")
        A(f"s_lshl_b32 {s(S_T1)}, {s(S_RB)}, 2")
        A(f"s_add_u32 {s(S_T0)}, {s(S_T0)}, {s(S_T1)}")
        A(f"s_add_u32 {s(S_T0)}, {s(S_T0)}, {s(S_LI)}")
        A(f"s_lshl_b32 {s(S_T0)}, {s(S_T0)}, 10")
        A(f"s_add_u32 {s(S_T1)}, {s(S_T0)}, {KW}")
        A(f"v_add_u32 v37, {s(S_T1)}, v32")
        A("v_add_u32 v38, 0x10000, v37")
        A("v_and_b32 v34, 15, v1")
        A("v_lshlrev_b32 v34, 4, v34")
        A("v_lshl_add_u32 v34, v4, 8, v34")
        A("v_bfe_u32 v35, v1, 4, 1")
        A(f"s_add_u32 {s(S_T1)}, {s(S_T0)}, {VW}")
        A("v_lshlrev_b32 v39, 16, v35")
        A(f"v_add3_u32 v39, v39, v34, {s(S_T1)}")
        A(f"s_lshl_b32 {s(S_T0)}, {s(S_LI)}, 10")
        A(f"v_add_u32 v33, {s(S_T0)}, v32")
        A(f"s_mul_i32 {s(S_T0)}, {s(S_LI)}, {VTS}")
        A(f"v_mov_b32 v36, {VHS}")
        A("v_mul_u32_u24 v36, v36, v35")
        A(f"v_add3_u32 v36, v36, v34, {s(S_T0)}")
    def halo_addr():
        srd(R_WS, S_WS, WS_BYTES)
        A(f"s_sub_u32 {s(S_T2)}, {s(S_RB)}, 1")
        A(f"s_sub_u32 {s(S_T3)}, {s(S_RB)}, 2")
        A(f"s_max_i32 {s(S_T3)}, {s(S_T3)}, 0")
        A(f"s_max_i32 {s(S_T2)}, {s(S_T2)}, 0")
        A("v_and_b32 v158, 1, v1")
        A("v_cmp_eq_u32 vcc, 1, v158")
        A(f"v_mov_b32 v158, {s(S_T2)}")
        A(f"v_mov_b32 v157, {s(S_T3)}")
        A("v_cndmask_b32 v158, v158, v157, vcc")
        A(f"s_and_b32 {s(S_T0)}, {s(S_HP)}, 7")
        A(f"s_lshl_b32 {s(S_T0)}, {s(S_T0)}, 5")
        A(f"s_lshr_b32 {s(S_T1)}, {s(S_HP)}, 3")
        A(f"s_add_u32 {s(S_T0)}, {s(S_T0)}, {s(S_T1)}")
        A("v_and_b32 v157, 3, v158")
        A("v_lshlrev_b32 v157, 3, v157")
        A("v_lshrrev_b32 v158, 2, v158")
        A("v_lshl_add_u32 v157, v158, 1, v157")
        A(f"v_add_u32 v157, {s(S_T0)}, v157")
        A("v_lshlrev_b32 v157, 7, v157")
        A(f"s_lshl_b32 {s(S_T0)}, {s(S_LI)}, 2")
        A(f"s_add_u32 {s(S_T0)}, {s(S_T0)}, {FLG + F_A1}")
        A(f"v_add_u32 v157, {s(S_T0)}, v157")
    A("v_lshlrev_b32 v5, 10, v4")
    A("v_lshl_add_u32 v5, v3, 2, v5")
    A(f"v_add_u32 v5, {s(S_T4)}, v5")
    A(f"s_lshl_b32 {s(S_T0)}, {s(S_WV)}, 1")
    A(f"v_add_u32 v6, {s(S_T0)}, v4")
    A("v_sub_u32 v112, 7, v6")
    A("v_and_b32 v113, 7, v3")
    A("v_xor_b32 v112, v112, v113")
    A("v_lshlrev_b32 v112, 4, v112")
    A("v_lshl_add_u32 v112, v3, 8, v112")
    A(f"v_add_u32 v112, {T0}, v112")
    A("v_lshrrev_b32 v114, 3, v1")
    A(f"s_lshl_b32 {s(S_T0)}, {s(S_LI)}, 4")
    A(f"v_add_u32 v114, {s(S_T0)}, v114")
    A("v_and_b32 v115, 7, v1")
    A("v_lshrrev_b32 v116, 1, v114")
    A("v_and_b32 v116, 7, v116")
    A("v_xor_b32 v116, v116, v115")
    A("v_lshlrev_b32 v117, 7, v114")
    A("v_lshl_add_u32 v118, v116, 4, v117")
    A("v_xor_b32 v116, 4, v116")
    A("v_lshl_add_u32 v119, v116, 4, v117")
    A(f"v_add_u32 v118, {T0}, v118")
    A(f"v_add_u32 v119, {T0 + 1024}, v119")
    A(f"s_lshl_b32 {s(S_T0)}, {s(S_XCD)}, 18")
    A(f"s_lshl_b32 {s(S_T1)}, {s(S_J)}, 7")
    A(f"s_sub_u32 {s(S_T0)}, {s(S_T0)}, {s(S_T1)}")
    A(f"s_add_u32 {s(S_T0)}, {s(S_T0)}, {UR + 1984*2}")
    A("v_lshlrev_b32 v120, 12, v114")
    A("v_lshl_add_u32 v120, v115, 4, v120")
    A(f"v_add_u32 v120, {s(S_T0)}, v120")
    A("v_add_u32 v121, 0x8000, v120")
    A(f"s_waitcnt vmcnt({NTOUCH}) lgkmcnt(0)")
    stamp(2)
    for r in range(11):
        A(f"ds_read_b32 {v(16+r)}, v5 offset:{(5+r)*128}")
    for r in range(8):
        A(f"ds_read_b32 {v(28+r)}, v5 offset:{3072 + r*128}")
    A("v_lshlrev_b32 v78, 16, v36"); A("v_lshlrev_b32 v79, 16, v38")
    A("v_and_b32 v80, 0xffff0000, v36"); A("v_and_b32 v81, 0xffff0000, v38")
    A("v_lshlrev_b32 v82, 16, v37"); A("v_lshlrev_b32 v83, 16, v39")
    A("v_and_b32 v84, 0xffff0000, v37"); A("v_and_b32 v85, 0xffff0000, v39")
    A(f"s_add_u32 {s(S_NONCE)}, {s(S_NONCE)}, 1")
    A("s_waitcnt lgkmcnt(8)")
    for r in range(11):
        A(f"v_lshlrev_b32 {v(40+2*r)}, 16, {v(16+r)}")
        A(f"v_and_b32 {v(41+2*r)}, 0xffff0000, {v(16+r)}")
    for tau in range(8):
        A(f"v_pk_mul_f32 {v(86+2*tau,2)}, {v(40+2*(tau+3),2)}, {v(78,2)}")
    for jj in range(1, 4):
        for tau in range(8):
            d = 86 + 2*tau
            A(f"v_pk_fma_f32 {v(d,2)}, {v(40+2*(tau+3-jj),2)}, {v(78+2*jj,2)}, {v(d,2)}")
    A("s_waitcnt lgkmcnt(0)")
    for r in range(8):
        A(f"v_lshlrev_b32 {v(62+2*r)}, 16, {v(28+r)}")
        A(f"v_and_b32 {v(63+2*r)}, 0xffff0000, {v(28+r)}")
    for tau in range(8):
        d = 86 + 2*tau
        A(f"v_pk_mul_f32 {v(d,2)}, {v(d,2)}, {v(62+2*tau,2)}")
    for e in range(4):
        A(f"v_cvt_pk_bf16_f32 {v(104+e)}, {v(86+2*(7-2*e))}, {v(86+2*(6-2*e))}")
        A(f"v_cvt_pk_bf16_f32 {v(108+e)}, {v(87+2*(7-2*e))}, {v(87+2*(6-2*e))}")
    A("ds_write_b128 v112, v[104:107]")
    A("ds_write_b128 v112, v[108:111] offset:128")
    A(f"s_lshl_b32 {s(S_T0)}, {s(S_LI)}, 2")
    A(f"s_add_u32 {s(S_T0)}, {s(S_T0)}, {CSW}")
    A(f"v_mov_b32 v155, {s(S_T0)}")
    A("v_mov_b32 v156, 0")
    A("ds_write_b32 v155, v156")
    A(f"v_mov_b32 v16, {OK2}")
    A("ds_write_b32 v16, v156")
    A("s_waitcnt lgkmcnt(0)")
    stamp(3)
    A("s_barrier")
    stamp(4)
    A("ds_read_b128 v[24:27], v118")
    A("ds_read_b128 v[28:31], v119")
    for t in reads(0): A(t)
    A("s_waitcnt lgkmcnt(7)")
    A(f"global_store_dwordx4 v120, v[24:27], {s(S_WS,2)} {SCS}")
    A(f"global_store_dwordx4 v121, v[28:31], {s(S_WS,2)} {SCS}")
    for t in reads(1): A(t)
    for n in range(32):
        if (n & 3) == 2 and n + 2 < 32:
            A("s_waitcnt lgkmcnt(0)")
            if n == 2: epi_addr()
            if n == 6: halo_addr()
            if n == 10:
                A("s_waitcnt vmcnt(0)")
                publish(F_B1, 16, 17)

            if prof and n <= 14: A(f"s_memtime s[{8+2*(n>>2)}:{9+2*(n>>2)}]")
            A("s_barrier")
        elif n + 1 < 32:
            A("s_waitcnt lgkmcnt(7)")
        else:
            A("s_waitcnt lgkmcnt(0)")
            A(f"v_mov_b32 v156, {s(S_NONCE)}")
            A("ds_write_b32 v155, v156")
        R = reads(n + 2) if n + 2 < 32 else []
        A(mfma(n, 0))
        for t in R[0:3]: A(t)
        A(mfma(n, 1))
        for t in R[3:5]: A(t)
        A(mfma(n, 2))
        for t in R[5:7]: A(t)
    if prof:
        A("s_waitcnt lgkmcnt(0)")
        for c in range(4): A(f"v_writelane_b32 v255, s{8+2*c}, {22+c}")
    stamp(5)
    PK = 112
    for i in range(8):
        A(f"v_cvt_pk_bf16_f32 {v(PK+8+i)}, {v(ACC+16+2*i)}, {v(ACC+17+2*i)}")
    A(f"global_store_dwordx4 v37, {v(PK+8,4)}, {s(S_WS,2)} {SCS}")
    A(f"global_store_dwordx4 v38, {v(PK+12,4)}, {s(S_WS,2)} {SCS}")
    for i in range(8):
        A(f"v_cvt_pk_bf16_f32 {v(PK+16+i)}, {v(ACC+32+2*i)}, {v(ACC+33+2*i)}")
    A(f"global_store_dwordx4 v39, {v(PK+16,4)}, {s(S_WS,2)} {SCS}")
    A(f"global_store_dwordx4 v39, {v(PK+20,4)}, {s(S_WS,2)} offset:512 {SCS}")
    A(f"s_mov_b32 {s(S_T0)}, {QSCALE}")
    for r in range(16):
        A(f"v_mul_f32 {v(ACC+r)}, {s(S_T0)}, {v(ACC+r)}")
    for i in range(8):
        A(f"v_cvt_pk_bf16_f32 {v(PK+i)}, {v(ACC+2*i)}, {v(ACC+2*i+1)}")
    A(f"ds_write_b128 v33, {v(PK+8,4)} offset:{LK + 8*1024}")
    A(f"ds_write_b128 v33, {v(PK+12,4)} offset:{LK + KHS + 8*1024}")
    A(f"ds_write_b128 v36, {v(PK+16,4)} offset:{LV + 8*VTS}")
    A(f"ds_write_b128 v36, {v(PK+20,4)} offset:{LV + 8*VTS + 512}")
    A(f"ds_write_b128 v33, {v(PK,4)} offset:{LQ}")
    A(f"ds_write_b128 v33, {v(PK+4,4)} offset:{LQ+4096}")
    A(f"s_cmp_lg_u32 {s(S_LI)}, 0")
    A("s_cbranch_scc1 L_c_nopad")
    A(f"v_mov_b32 v24, {ONES}"); A("v_mov_b32 v25, v24"); A("v_mov_b32 v26, v24"); A("v_mov_b32 v27, v24")
    A(f"v_mul_u32_u24 v28, {VTS}, v1")
    A("v_cmp_gt_u32 vcc, 24, v1")
    A(f"s_and_saveexec_b64 {s(S_EX,2)}, vcc")
    A(f"ds_write_b128 v28, v[24:27] offset:{LV + 1024}")
    A(f"s_mov_b64 exec, {s(S_EX,2)}")
    A("L_c_nopad:")
    A("s_waitcnt vmcnt(0)")
    publish(F_A1, 16, 17)
    stamp(6)
    A(f"s_cmp_eq_u32 {s(S_RB)}, 0")
    A("s_cbranch_scc1 L_c_nosample")
    flag_load(157, 158)
    A("L_c_nosample:")
    A(f"v_mov_b32 v16, {CSW}")
    A(f"s_mov_b32 {s(S_SPIN)}, {SPIN*8}")
    A("L_c_sync:")
    A("ds_read_b128 v[20:23], v16")
    A("s_waitcnt lgkmcnt(0)")
    A(f"v_cmp_ne_u32 vcc, {s(S_NONCE)}, v20")
    A(f"v_cmp_ne_u32 {s(S_CMP,2)}, {s(S_NONCE)}, v21")
    A(f"v_cmp_ne_u32 {s(S_CMP+2,2)}, {s(S_NONCE)}, v22")
    A(f"v_cmp_ne_u32 {s(S_CMP+4,2)}, {s(S_NONCE)}, v23")
    A(f"s_or_b64 vcc, vcc, {s(S_CMP,2)}")
    A(f"s_or_b64 vcc, vcc, {s(S_CMP+2,2)}")
    A(f"s_or_b64 vcc, vcc, {s(S_CMP+4,2)}")
    A("s_cbranch_vccz L_c_synced")
    A(f"s_sub_u32 {s(S_SPIN)}, {s(S_SPIN)}, 1")
    A(f"s_cmp_lg_u32 {s(S_SPIN)}, 0")
    A("s_cbranch_scc1 L_c_sync")
    A("L_c_synced:")
    A(f"s_mov_b32 {s(S_T4)}, {s(S_T2)}")
    A(f"s_mov_b32 {s(S_T5)}, {s(S_T3)}")
    call("L_sub_a")
    A(f"s_mov_b32 {s(S_T2)}, {s(S_T4)}")
    A(f"s_mov_b32 {s(S_T3)}, {s(S_T5)}")
    A(f"s_cmp_eq_u32 {s(S_RB)}, 0")
    A("s_cbranch_scc1 L_c_halo_done")
    A("s_waitcnt vmcnt(0)")
    check_or_spin(157, 158, "L_poll_h")
    stamp(7)
    A("v_lshlrev_b32 v18, 4, v1")
    A(f"s_lshl_b32 {s(S_T4)}, {s(S_LI)}, 10")
    A(f"s_mul_i32 {s(S_T5)}, {s(S_LI)}, {VTS}")
    def halo(rbreg, toff):
        A(f"s_lshl_b32 {s(S_T0)}, {s(S_HP)}, 7")
        A(f"s_lshl_b32 {s(S_T1)}, {s(rbreg)}, 2")
        A(f"s_add_u32 {s(S_T0)}, {s(S_T0)}, {s(S_T1)}")
        A(f"s_add_u32 {s(S_T0)}, {s(S_T0)}, {s(S_LI)}")
        A(f"s_lshl_b32 {s(S_T0)}, {s(S_T0)}, 10")
        for hd in range(2):
            A(f"s_add_u32 m0, {s(S_T4)}, {LK + hd*KHS + toff*1024}")
            A(f"s_add_u32 {s(S_T1)}, {s(S_T0)}, {KW + hd*65536}")
            A(f"buffer_load_dwordx4 v18, {s(R_WS,4)}, {s(S_T1)} offen sc1 lds")
            A(f"s_add_u32 m0, {s(S_T5)}, {LV + hd*VHS + toff*VTS}")
            A(f"s_add_u32 {s(S_T1)}, {s(S_T0)}, {VW + hd*65536}")
            A(f"buffer_load_dwordx4 v18, {s(R_WS,4)}, {s(S_T1)} offen sc1 lds")
    halo(S_T2, 4)
    A(f"s_cmp_eq_u32 {s(S_RB)}, 1")
    A("s_cbranch_scc1 L_c_halo_done")
    halo(S_T3, 0)
    A("L_c_halo_done:")
    A(f"s_or_b32 {s(S_T0)}, s2, {s(S_WV)}")
    A(f"s_cmp_lg_u32 {s(S_T0)}, 0")
    A("s_cbranch_scc0 L_st_epoch")
    stubs.append("EPOCH")
    A("L_epdone:")
    for n in range(8): wo_dma(n)
    A("s_barrier")
    A(f"s_add_u32 {s(S_WOL)}, {s(S_WOL)}, {4*8192}")
    A(f"s_add_u32 {s(S_WOB)}, {s(S_WOB)}, {4*65536}")
    A("s_waitcnt vmcnt(8) lgkmcnt(0)")
    stamp(8)
    A("s_barrier")
    stamp(9)
    A("s_branch L_a2")

    A("L_lwave:")
    if opt.get("lprio", 0): A(f"s_setprio {opt.get('lprio')}")
    A("v_lshrrev_b32 v220, 3, v1")
    A(f"s_lshl_b32 {s(S_T0)}, {s(S_RB)}, 7")
    A(f"s_lshl_b32 {s(S_T1)}, {s(S_LI)}, 5")
    A(f"s_add_u32 {s(S_T0)}, {s(S_T0)}, {s(S_T1)}")
    A(f"v_add_u32 v220, {s(S_T0)}, v220")
    A("v_lshlrev_b32 v220, 10, v220")
    A("v_and_b32 v221, 7, v1")
    A("v_lshrrev_b32 v222, 4, v1")
    A("v_xor_b32 v223, v221, v222")
    A("v_lshl_add_u32 v200, v223, 4, v220")
    A("v_xor_b32 v223, 4, v223")
    A("v_lshl_add_u32 v201, v223, 4, v220")
    A("v_lshrrev_b32 v220, 2, v1")
    A(f"s_lshl_b32 {s(S_T0)}, {s(S_LI)}, 4")
    A(f"v_add_u32 v220, {s(S_T0)}, v220")
    A(f"v_mul_u32_u24 v220, 3072, v220")
    A("v_and_b32 v221, 3, v1")
    A("v_lshlrev_b32 v221, 4, v221")
    A(f"s_lshl_b32 {s(S_T0)}, {s(S_HP)}, 6")
    A(f"v_add3_u32 v202, v220, v221, {s(S_T0)}")
    S_LX, S_LW = S_T4, S_T5
    A(f"s_lshl_b32 {s(S_LX)}, {s(S_LI)}, 12")
    A(f"s_lshl_b32 {s(S_LW)}, {s(S_LI)}, 10")
    A(f"s_lshl_b32 {s(S_CH)}, {s(S_XCD)}, 6")
    A(f"s_lshl_b32 {s(S_T1)}, {s(S_J)}, 1")
    A(f"s_add_u32 {s(S_CH)}, {s(S_CH)}, {s(S_T1)}")
    A(f"s_lshr_b32 {s(S_T1)}, {s(S_LI)}, 1")
    A(f"s_add_u32 {s(S_CH)}, {s(S_CH)}, {s(S_T1)}")
    A(f"s_mul_i32 {s(S_CBASE)}, {s(S_T1)}, {CB}")
    A(f"s_add_u32 {s(S_CBASE)}, {s(S_CBASE)}, {B2R}")
    A(f"s_and_b32 {s(S_T2)}, {s(S_LI)}, 1")
    A(f"s_lshl_b32 {s(S_T1)}, {s(S_CH)}, 12")
    A(f"s_lshl_b32 {s(S_T3)}, {s(S_T2)}, 11")
    A(f"s_add_u32 {s(S_T1)}, {s(S_T1)}, {s(S_T3)}")
    A("v_lshlrev_b32 v203, 4, v1")
    A(f"v_add_u32 v203, {s(S_T1)}, v203")
    A("v_add_u32 v204, 2, v203")
    A("s_waitcnt lgkmcnt(0)")
    if opt.get("wsoff", 0):
        A(f"s_add_u32 {s(S_WS)}, {s(S_WS)}, {opt['wsoff'] << 20}")
        A(f"s_addc_u32 {s(S_WS+1)}, {s(S_WS+1)}, 0")
    stamp(1)
    srd(R_X, S_X, 2048*1024)
    srd(R_W, S_WQKV, 512*3072)
    A(f"s_load_dword {s(S_NONCE)}, {s(S_WS,2)}, {EP}")
    if opt.get("rot", 1):
        A(f"s_and_b32 {s(S_T0)}, {s(S_RB)}, 3")
        A(f"s_lshl_b32 {s(S_T0)}, {s(S_T0)}, 1")
        A(f"s_add_u32 {s(S_ROT)}, {s(S_HP)}, {s(S_T0)}")
    else:
        A(f"s_mov_b32 {s(S_ROT)}, 0")
    def dma_chunk(c):
        st = STAGE[c] * STG
        A(f"s_add_u32 {s(S_T1)}, {s(S_ROT)}, {c}")
        A(f"s_and_b32 {s(S_T1)}, {s(S_T1)}, 7")
        A(f"s_mul_i32 {s(S_T2)}, {s(S_T1)}, {64*3072}")
        A(f"s_lshl_b32 {s(S_T1)}, {s(S_T1)}, 7")
        for n in range(4):
            A(f"s_add_u32 m0, {s(S_LX)}, {st + n*1024}")
            A(f"s_add_u32 {s(S_T0)}, {s(S_T1)}, {n*8192}")
            A(f"buffer_load_dwordx4 {v(200 + (n & 1))}, {s(R_X,4)}, {s(S_T0)} offen {NT_XW} lds")
        for p in range(3):
            A(f"s_add_u32 m0, {s(S_LW)}, {st + 16384 + p*4096}")
            A(f"s_add_u32 {s(S_T0)}, {s(S_T2)}, {p*1024}")
            A(f"buffer_load_dwordx4 v202, {s(R_W,4)}, {s(S_T0)} offen {NT_XW} lds")
    DIST = opt.get('dist', 3)
    for c in range(DIST): dma_chunk(c)
    def h_loads():
        srd(R_WO, S_SSMK, 512*4096)
        A(f"s_and_b32 {s(S_T2)}, {s(S_LI)}, 1")
        A(f"s_lshl_b32 {s(S_T2)}, {s(S_T2)}, 11")
        A(f"s_add_u32 {s(S_T2)}, {s(S_T2)}, {s(S_CBASE)}")
        for n in range(2):
            A(f"s_add_u32 m0, {s(S_T2)}, {O_OFF + 28 + n*1024}")
            A(f"s_mov_b32 {s(S_T0)}, {n*1024}")
            A(f"buffer_load_dwordx4 v203, {s(R_WO,4)}, {s(S_T0)} offen {NT_B} lds")
            A(f"s_add_u32 m0, {s(S_T2)}, {E_OFF + 32 + n*1024}")
            A(f"buffer_load_dwordx4 v204, {s(R_WO,4)}, {s(S_T0)} offen {NT_B} lds")
        A(f"s_lshl_b32 {s(S_T0)}, {s(S_CH)}, 12")
        A(f"v_mov_b32 v34, {s(S_T0)}")
        A(f"global_load_dword v32, v34, {s(S_SSMK,2)}")
        A(f"s_lshl_b32 {s(S_T0)}, {s(S_CH)}, 1")
        A(f"s_and_b32 {s(S_T0)}, {s(S_T0)}, 0xfffffffc")
        A(f"v_mov_b32 v35, {s(S_T0)}")
        A(f"global_load_dword v33, v35, {s(S_SD,2)}")
    stamp(2)
    AA, AB = 16, 24
    CA = [32, 64]
    CBf = [96, 128]
    CACC = 160
    def build_eo():
        A(f"s_and_b32 {s(S_T2)}, {s(S_LI)}, 1")
        A(f"s_cmp_lg_u32 {s(S_T2)}, 0")
        A("s_cbranch_scc1 L_l_nopad")
        A(f"s_lshr_b32 {s(S_T0)}, {s(S_LI)}, 1")
        A(f"s_lshl_b32 {s(S_T0)}, {s(S_T0)}, 4")
        A(f"v_lshrrev_b32 v33, {s(S_T0)}, v33")
        A("v_lshlrev_b32 v33, 16, v33")
        A("v_lshlrev_b32 v34, 16, v32")
        A("v_add_f32 v34, v33, v34")
        A("v_cvt_pk_bf16_f32 v34, v34, v34")
        A("v_and_b32 v34, 0xffff, v34")
        A("v_and_b32 v35, 0xffff0000, v32")
        A("v_or_b32 v35, v35, v34")
        A("v_lshlrev_b32 v34, 16, v34")
        A("v_mov_b32 v36, 0")
        A("v_lshlrev_b32 v37, 2, v1")
        A(f"v_add_u32 v37, {s(S_CBASE)}, v37")
        A("v_cmp_eq_u32 vcc, 7, v1")
        A("v_cndmask_b32 v34, v36, v34, vcc")
        A("v_cndmask_b32 v35, v36, v35, vcc")
        A("v_cmp_gt_u32 vcc, 8, v1")
        A(f"s_and_saveexec_b64 {s(S_EX,2)}, vcc")
        A(f"ds_write_b32 v37, v34 offset:{E_OFF}")
        A(f"ds_write_b32 v37, v35 offset:{O_OFF}")
        A(f"s_mov_b64 exec, {s(S_EX,2)}")
        A("v_mov_b32 v39, 0")
        A("v_mov_b32 v38, 0")
        A("v_lshlrev_b32 v37, 3, v1")
        A(f"v_add_u32 v37, {s(S_CBASE)}, v37")
        A("v_cmp_gt_u32 vcc, 60, v1")
        A(f"s_and_saveexec_b64 {s(S_EX,2)}, vcc")
        A(f"ds_write_b64 v37, v[38:39] offset:{U_OFF + 4096}")
        A(f"s_mov_b64 exec, {s(S_EX,2)}")
        A("L_l_nopad:")
        A("s_waitcnt lgkmcnt(0)")
    def conv_addr():
        A("v_and_b32 v25, 15, v1")
        A("v_lshrrev_b32 v26, 4, v1")
        A("v_lshrrev_b32 v27, 1, v25")
        A("v_lshl_add_u32 v27, v26, 2, v27")
        A("v_lshlrev_b32 v27, 2, v27")
        A("v_and_b32 v28, 1, v25")
        A(f"v_mul_u32_u24 v28, {O_OFF}, v28")
        A(f"s_and_b32 {s(S_T2)}, {s(S_LI)}, 1")
        A(f"s_lshl_b32 {s(S_T0)}, {s(S_T2)}, 8")
        A(f"s_add_u32 {s(S_T0)}, {s(S_T0)}, {s(S_CBASE)}")
        A(f"v_add3_u32 {v(AA)}, v27, v28, {s(S_T0)}")
        for jj in range(1, 8):
            A(f"v_add_u32 {v(AA+jj)}, {512*jj}, {v(AA)}")
        A("v_lshlrev_b32 v27, 4, v26")
        A("v_lshlrev_b32 v28, 5, v25")
        A("v_sub_u32 v27, v27, v28")
        A(f"s_add_u32 {s(S_T0)}, {s(S_T0)}, {U_OFF + 480}")
        A(f"v_add_u32 {v(AB)}, {s(S_T0)}, v27")
    def ur_dma():
        A(f"s_lshl_b32 {s(S_T0)}, {s(S_CH)}, 12")
        A(f"s_add_u32 {s(S_T0)}, {s(S_T0)}, {UR}")
        A("v_lshlrev_b32 v28, 4, v1")
        for cs in range(2):
            for n in range(4):
                A(f"s_mov_b32 m0, {B2R + cs*CB + U_OFF + n*1024}")
                A(f"s_add_u32 {s(S_T1)}, {s(S_T0)}, {cs*4096 + n*1024}")
                A(f"buffer_load_dwordx4 v28, {s(R_WS,4)}, {s(S_T1)} offen sc1 lds")
    def lbar(c, n):
        if n is not None: A(f"s_waitcnt vmcnt({n})")
        if prof:
            A("s_memtime s[98:99]"); A("s_waitcnt lgkmcnt(0)"); A(f"v_writelane_b32 v255, s98, {22+c}")
        A("s_barrier")
        if prof:
            A("s_memtime s[98:99]"); A("s_waitcnt lgkmcnt(0)"); A(f"v_writelane_b32 v255, s98, {54+c}")
    A("s_waitcnt lgkmcnt(0)")
    A(f"s_lshl_b32 {s(S_T0)}, {s(S_LI)}, 2")
    A(f"s_add_u32 {s(S_T0)}, {s(S_T0)}, {OKW}")
    A(f"v_mov_b32 v29, {s(S_T0)}")
    A("v_mov_b32 v26, 0")
    A("ds_write_b32 v29, v26")
    A("s_waitcnt lgkmcnt(0)")
    def b1_flag_sample():
        A("v_and_b32 v30, 31, v1")
        A("v_lshlrev_b32 v30, 10, v30")
        A(f"s_lshl_b32 {s(S_T0)}, {s(S_XCD)}, 7")
        A(f"s_lshr_b32 {s(S_T1)}, {s(S_J)}, 3")
        A(f"s_lshl_b32 {s(S_T1)}, {s(S_T1)}, 2")
        A(f"s_add_u32 {s(S_T0)}, {s(S_T0)}, {s(S_T1)}")
        A(f"s_add_u32 {s(S_T0)}, {s(S_T0)}, {FLG + F_B1}")
        A(f"v_add_u32 v30, {s(S_T0)}, v30")
        A(f"s_cmp_eq_u32 {s(S_LI)}, 0")
        A("s_cbranch_scc1 L_l_w4a")
        A(f"s_lshl_b32 {s(S_T0)}, s2, 7")
        A(f"s_add_u32 {s(S_T0)}, {s(S_T0)}, {FLG + F_B2}")
        A(f"v_mov_b32 v30, {s(S_T0)}")
        A("L_l_w4a:")
        flag_load(30, 31)
    if DIST == 3:
        lbar(0, 14)
        dma_chunk(3)
        A(f"s_add_u32 {s(S_NONCE)}, {s(S_NONCE)}, 1")
        srd(R_WS, S_WS, WS_BYTES)
        lbar(1, 14)
        dma_chunk(4)
        lbar(2, 14)
        dma_chunk(5)
        lbar(3, 14)
        dma_chunk(6)
        lbar(4, 14)
        dma_chunk(7)
        lbar(5, 14)
        b1_flag_sample()
        h_loads()
        lbar(6, 14)
        conv_addr()
    else:
        lbar(0, 7)
        dma_chunk(2)
        A(f"s_add_u32 {s(S_NONCE)}, {s(S_NONCE)}, 1")
        srd(R_WS, S_WS, WS_BYTES)
        lbar(1, 7)
        dma_chunk(3)
        h_loads()
        lbar(2, 12)
        dma_chunk(4)
        lbar(3, 12)
        dma_chunk(5)
        lbar(4, 7)
        dma_chunk(6)
        lbar(5, 7)
        dma_chunk(7)
        b1_flag_sample()
        build_eo()
        lbar(6, 8)
        conv_addr()
    A("s_waitcnt vmcnt(6)")
    A(f"s_mov_b32 {s(S_OK)}, 0")
    A(f"s_cmp_lg_u32 {s(S_LI)}, 0")
    A("s_cbranch_scc1 L_l_late")
    A(f"v_cmp_ne_u32 vcc, {s(S_NONCE)}, v31")
    A("s_cbranch_vccnz L_l_late")
    ur_dma()
    A(f"s_mov_b32 {s(S_OK)}, 1")
    A("L_l_late:")
    if prof:
        A("s_memtime s[98:99]"); A("s_waitcnt lgkmcnt(0)"); A(f"v_writelane_b32 v255, s98, 29")
    A("s_barrier")
    if opt.get("lprio", 0) != opt.get("cprio", 0): A(f"s_setprio {opt.get('cprio', 0)}")
    stamp(5)
    call("L_sub_a")
    stamp(6)
    A(f"s_cmp_lg_u32 {s(S_LI)}, 0")
    A("s_cbranch_scc1 L_l_have")
    A(f"s_cmp_eq_u32 {s(S_OK)}, 1")
    A("s_cbranch_scc1 L_l_have")
    spin(30, 31, "L_poll_b1")
    ur_dma()
    A("L_l_have:")
    A("s_waitcnt vmcnt(0)")
    stamp(3)
    build_eo()
    stamp(4)
    A(f"v_mov_b32 v26, {s(S_NONCE)}")
    A("ds_write_b32 v29, v26")
    A(f"v_mov_b32 v25, {OKW}")
    A(f"s_mov_b32 {s(S_SPIN)}, {SPIN*8}")
    A("L_l_ospin:")
    A("ds_read_b128 v[32:35], v25")
    A("s_waitcnt lgkmcnt(0)")
    A(f"v_cmp_ne_u32 vcc, {s(S_NONCE)}, v32")
    A(f"v_cmp_ne_u32 {s(S_CMP,2)}, {s(S_NONCE)}, v33")
    A(f"v_cmp_ne_u32 {s(S_CMP+2,2)}, {s(S_NONCE)}, v34")
    A(f"v_cmp_ne_u32 {s(S_CMP+4,2)}, {s(S_NONCE)}, v35")
    A(f"s_or_b64 vcc, vcc, {s(S_CMP,2)}")
    A(f"s_or_b64 vcc, vcc, {s(S_CMP+2,2)}")
    A(f"s_or_b64 vcc, vcc, {s(S_CMP+4,2)}")
    A("s_cbranch_vccz L_l_go")
    A(f"s_sub_u32 {s(S_SPIN)}, {s(S_SPIN)}, 1")
    A(f"s_cmp_lg_u32 {s(S_SPIN)}, 0")
    A("s_cbranch_scc1 L_l_ospin")
    A("L_l_go:")
    A(f"s_and_b32 {s(S_T2)}, {s(S_LI)}, 1")
    stamp(7)
    def conv_reads(ii):
        st = ii & 1
        L = []
        for k in range(8):
            L.append(f"ds_read_b128 {v(CBf[st]+4*k,4)}, {v(AB)} offset:{512*(7-k) + 64*ii}")
            L.append(f"ds_read2_b32 {v(CA[st]+4*k,2)}, {v(AA+k)} offset0:{16*ii} offset1:{16*ii+1}")
            L.append(f"ds_read2_b32 {v(CA[st]+4*k+2,2)}, {v(AA+k)} offset0:{16*ii+2} offset1:{16*ii+3}")
        return L
    r0 = conv_reads(0)
    first = [r0[1], r0[2]] + [r0[3*k] for k in range(8)] + [x for k in range(1, 8) for x in (r0[3*k+1], r0[3*k+2])]
    for r in first: A(r)
    for ii in range(4):
        nxt = conv_reads(ii + 1) if ii < 3 else []
        st = ii & 1
        k = 0
        for jj in range(8):
            if ii == 0:
                if jj == 0: A("s_waitcnt lgkmcnt(14)")
                elif jj == 1: A("s_waitcnt lgkmcnt(0)")
            elif jj == 0:
                A("s_waitcnt lgkmcnt(0)")
            for cp in range(8 - jj):
                acc = v(CACC + 4*(cp + jj), 4)
                cin = "0" if (ii == 0 and jj == 0) else acc
                A(f"{MF16} {acc}, {v(CA[st]+4*jj,4)}, {v(CBf[st]+4*cp,4)}, {cin}")
                if k < len(nxt) and not (ii == 0 and jj == 0):
                    A(nxt[k]); k += 1
        while k < len(nxt):
            A(nxt[k]); k += 1
    stamp(8)
    if opt.get("cprio", 0): A("s_setprio 0")
    A("s_nop 7")
    A(f"s_and_b32 {s(S_T2)}, {s(S_LI)}, 1")
    A("v_lshlrev_b32 v25, 4, v1")
    A(f"s_lshl_b32 {s(S_T0)}, {s(S_LI)}, 12")
    A(f"v_add_u32 v26, {s(S_T0)}, v25")
    A(f"s_xor_b32 {s(S_T0)}, {s(S_T0)}, 4096")
    A(f"v_add_u32 v27, {s(S_T0)}, v25")
    A(f"s_cmp_lg_u32 {s(S_T2)}, 0")
    A("s_cbranch_scc1 L_l_x1")
    for k in range(4):
        A(f"ds_write_b128 v26, {v(CACC+16+4*k,4)} offset:{LR + 1024*k}")
    A("s_waitcnt lgkmcnt(0)")
    A("s_barrier")
    for k in range(4):
        A(f"ds_read_b128 {v(32+4*k,4)}, v27 offset:{LR + 1024*k}")
    A("s_waitcnt lgkmcnt(0)")
    for r in range(16):
        A(f"v_add_f32 {v(48+r)}, {v(32+r)}, {v(CACC+r)}")
    A("s_branch L_l_x2")
    A("L_l_x1:")
    A("s_nop 7")
    for k in range(4):
        A(f"ds_write_b128 v26, {v(CACC+4*k,4)} offset:{LR + 1024*k}")
    A("s_waitcnt lgkmcnt(0)")
    A("s_barrier")
    for k in range(4):
        A(f"ds_read_b128 {v(32+4*k,4)}, v27 offset:{LR + 1024*k}")
    A("s_waitcnt lgkmcnt(0)")
    for r in range(16):
        A(f"v_add_f32 {v(48+r)}, {v(32+r)}, {v(CACC+16+r)}")
    A("L_l_x2:")
    for k in range(4):
        A(f"v_cvt_pk_bf16_f32 {v(32+2*k)}, {v(48+4*k)}, {v(49+4*k)}")
        A(f"v_cvt_pk_bf16_f32 {v(33+2*k)}, {v(50+4*k)}, {v(51+4*k)}")
    A("v_and_b32 v25, 15, v1")
    A("v_lshlrev_b32 v25, 5, v25")
    A("v_bfe_u32 v26, v1, 4, 1")
    A("v_lshl_add_u32 v25, v26, 9, v25")
    A("v_lshrrev_b32 v26, 5, v1")
    A("v_lshl_add_u32 v25, v26, 4, v25")
    A(f"s_lshl_b32 {s(S_T0)}, {s(S_CH)}, 12")
    A(f"s_lshl_b32 {s(S_T1)}, {s(S_T2)}, 11")
    A(f"s_add_u32 {s(S_T0)}, {s(S_T0)}, {s(S_T1)}")
    A(f"s_add_u32 {s(S_T0)}, {s(S_T0)}, {YT}")
    A(f"v_add_u32 v25, {s(S_T0)}, v25")
    A("v_permlane16_swap_b32 v32, v34")
    A("v_permlane16_swap_b32 v33, v35")
    A("v_permlane16_swap_b32 v36, v38")
    A("v_permlane16_swap_b32 v37, v39")
    A(f"global_store_dwordx4 v25, v[32:35], {s(S_WS,2)} {SCS}")
    A(f"global_store_dwordx4 v25, v[36:39], {s(S_WS,2)} offset:1024 {SCS}")
    A("s_barrier")
    stamp(9)
    A("L_a2:")
    if DBG: A("s_memrealtime s[10:11]")
    if opt.get("prio", 0): A("s_setprio 1")
    Q, KF, SA, SB, CN, PP, VF, O = 16, 20, 56, 72, 88, 104, 120, 136
    AK, AV0, AV1, TM, TM2 = PAK, PAV0, PAV1, 155, 156
    TM3 = 169
    VQ3, VF2A, VF2 = 160, PFB2, 165
    A(f"ds_read_b128 {v(Q,4)}, {v(PAQ)} offset:{LQ}")
    order = [8, 0, 7, 6, 5, 4, 3, 2, 1]
    for jj in order:
        A(f"ds_read_b128 {v(KF+4*jj,4)}, {v(AK)} offset:{LK + jj*1024}")
    for r in range(4):
        A(f"global_load_dword {v(VQ3+r)}, {v(PQ3)}, {s(S_BQ,2)} offset:{1024*r} {NT_B}")
    buf = lambda jj: SA if (jj & 1) else SB
    A("s_waitcnt lgkmcnt(7)")
    A(f"{MF} {v(MM8,16)}, {v(KF+32,4)}, {v(Q,4)}, {v(MM8,16)}")
    A(f"{MF} {v(MM0,16)}, {v(KF+0,4)}, {v(Q,4)}, {v(MM0,16)}")
    A("s_waitcnt lgkmcnt(5)")
    A(f"{MF} {v(SA,16)}, {v(KF+28,4)}, {v(Q,4)}, 0")
    A(f"{MF} {v(SB,16)}, {v(KF+24,4)}, {v(Q,4)}, 0")
    A(f"s_cmp_gt_u32 {s(S_J0)}, 0")
    A("s_cbranch_scc1 L_st_nomerge")
    stubs.append(["L_st_nomerge:", "s_nop 15", "s_branch L_a2_nomerge"])
    for r in range(16):
        A(f"v_max_f32 {v(MM8+r)}, {v(MM0+r)}, {v(MM8+r)}")
    A("L_a2_nomerge:")
    A(f"v_max_f32 {v(TM)}, {v(MM8)}, {v(MM8+1)}")
    A(f"v_max_f32 {v(TM3)}, {v(MM8+2)}, {v(MM8+3)}")
    for r in range(4, 16, 2):
        t = TM if (r & 2) == 0 else TM3
        A(f"v_max3_f32 {v(t)}, {v(t)}, {v(MM8+r)}, {v(MM8+r+1)}")
    A("s_waitcnt lgkmcnt(0)")
    for jj in range(7, 0, -1):
        b = buf(jj)
        A(f"s_cmp_gt_u32 {s(S_J0)}, {jj}")
        A("s_cbranch_scc1 L_a2_p1done")
        for r in range(0, 16, 2):
            t = TM if (r & 2) == 0 else TM3
            A(f"v_max3_f32 {v(t)}, {v(t)}, {v(b+r)}, {v(b+r+1)}")
        if jj - 2 >= 1:
            A(f"{MF} {v(b,16)}, {v(KF+4*(jj-2),4)}, {v(Q,4)}, 0")
    A("L_a2_p1done:")
    A(f"v_max_f32 {v(TM)}, {v(TM)}, {v(TM3)}")
    A(f"v_mov_b32 {v(TM2)}, {v(TM)}")
    A(f"v_permlane32_swap_b32 {v(TM)}, {v(TM2)}")
    A(f"v_max_f32 {v(TM)}, {v(TM)}, {v(TM2)}")
    A(f"v_sub_f32 {v(TM2)}, 0, {v(TM)}")
    for r in range(16):
        A(f"v_mov_b32 {v(CN+r)}, {v(TM2)}")
    stamp(10)
    A(f"{MF} {v(SA,16)}, {v(KF+28,4)}, {v(Q,4)}, {v(CN,16)}")
    A(f"{MF} {v(SB,16)}, {v(KF+24,4)}, {v(Q,4)}, {v(CN,16)}")
    def vread(slot, jj, sidx):
        A(f"ds_read_b128 {v(VF+4*slot,4)}, {v(AV0 if sidx == 0 else AV1)} offset:{LV + jj*VTS + sidx*512}")
    vread(0, 8, 0); vread(1, 8, 1); vread(2, 0, 0); vread(3, 0, 1)
    def pub_b2(lab, n):
        A(f"s_waitcnt vmcnt({n})")
        A(f"s_cmp_lt_u32 {s(S_WV)}, 4")
        A(f"s_cbranch_scc1 {lab}")
        publish(F_B2, 157, 158)
        A(f"{lab}:")
    if opt.get("prio", 0): A("s_setprio 0")
    pub_b2("L_a2_nopub", 4)
    P0, P1 = PP, PP + 8
    for r in range(16):
        A(f"v_add_f32 {v(MM8+r)}, {v(TM2)}, {v(MM8+r)}")
    for r in range(16):
        A(f"v_exp_f32 {v(MM8+r)}, {v(MM8+r)}")
    for i in range(8):
        A(f"v_cvt_pk_bf16_f32 {v(P0+i)}, {v(MM8+2*i)}, {v(MM8+2*i+1)}")
    for i in range(8):
        A(f"v_and_b32 {v(P1+i)}, {v(MMK+i)}, {v(P0+i)}")
    for i in range(8):
        A(f"v_xor_b32 {v(P0+i)}, {v(P1+i)}, {v(P0+i)}")
    A("s_waitcnt lgkmcnt(0)")
    A(f"{MF} {v(O,16)}, {v(VF+0,4)}, {v(P0,4)}, 0")
    A(f"s_cmp_gt_u32 {s(S_J0)}, 0")
    A("s_cbranch_scc1 L_a2_nopv0")
    A(f"{MF} {v(O,16)}, {v(VF+8,4)}, {v(P1,4)}, {v(O,16)}")
    A(f"{MF} {v(O,16)}, {v(VF+12,4)}, {v(P1+4,4)}, {v(O,16)}")
    A("L_a2_nopv0:")
    pb = lambda jj: PP + 8*(jj & 1)
    sl = lambda jj: 2*(jj & 1)
    def pend(jj):
        if jj == 7: return [f"{MF} {v(O,16)}, {v(VF+4,4)}, {v(P0+4,4)}, {v(O,16)}"]
        p = jj + 1
        return [f"{MF} {v(O,16)}, {v(VF+4*sl(p),4)}, {v(pb(p),4)}, {v(O,16)}",
                f"{MF} {v(O,16)}, {v(VF+4*sl(p)+4,4)}, {v(pb(p)+4,4)}, {v(O,16)}"]
    for jj in range(7, 0, -1):
        b = buf(jj)
        A(f"s_cmp_gt_u32 {s(S_J0)}, {jj}")
        A(f"s_cbranch_scc1 L_st_p2_{jj}")
        def stub(jj=jj):
            A(f"L_st_p2_{jj}:")
            A("s_waitcnt lgkmcnt(0)")
            A("s_nop 1")
            for m in pend(jj): A(m)
            if jj >= 4:
                A(f"s_cmp_ge_u32 {s(S_WV)}, 4")
                A(f"s_cbranch_scc1 L_st_nowo{jj}")
                for n in range(2*(7 - jj), 8): wo_dma(n)
                A(f"L_st_nowo{jj}:")
            if jj >= 3:
                A(f"s_cmp_lg_u32 {s(S_WV)}, 0")
                A("s_cbranch_scc1 L_a2_p2done")
                flag_load(VF2A, VF2)
            A("s_branch L_a2_p2done")
        stubs.append(stub)
        pm = pend(jj)
        pass
        for r in range(16):
            A(f"v_exp_f32 {v(b+r)}, {v(b+r)}")
            if r == 1:
                A("s_waitcnt lgkmcnt(0)")
                A(pm[0])
            if r == 7 and len(pm) > 1: A(pm[1])
            if r == 9:
                vread(sl(jj), jj, 0); vread(sl(jj) + 1, jj, 1)
            if jj >= 4 and r == 11:
                A(f"s_cmp_ge_u32 {s(S_WV)}, 4")
                A(f"s_cbranch_scc1 L_a2_nowo{jj}")
                wo_dma(2*(7 - jj)); wo_dma(2*(7 - jj) + 1)
                A(f"L_a2_nowo{jj}:")
            if jj == 3 and r == 13:
                A(f"s_cmp_lg_u32 {s(S_WV)}, 0")
                A("s_cbranch_scc1 L_a2_nosample")
                flag_load(VF2A, VF2)
                A("L_a2_nosample:")
        for i in range(8):
            A(f"v_cvt_pk_bf16_f32 {v(pb(jj)+i)}, {v(b+2*i)}, {v(b+2*i+1)}")
        if jj - 2 >= 1:
            A(f"{MF} {v(b,16)}, {v(KF+4*(jj-2),4)}, {v(Q,4)}, {v(CN,16)}")
    A("s_waitcnt lgkmcnt(0)")
    for m in pend(0): A(m)
    A("L_a2_p2done:")

    A("s_nop 15")
    A(f"v_rcp_f32 {v(TM)}, {v(O+8)}")
    for r in range(8):
        A(f"v_mul_f32 {v(O+r)}, {v(TM)}, {v(O+r)}")
    for i in range(4):
        A(f"v_cvt_pk_bf16_f32 {v(PP+i)}, {v(O+2*i)}, {v(O+2*i+1)}")
    A(f"global_store_dwordx4 {v(PO)}, {v(PP,4)}, {s(S_WS,2)} {SCS}")
    stamp(11)
    tail_addr()
    A(f"s_cmp_ge_u32 {s(S_WV)}, 4")
    A("s_cbranch_scc1 L_noep")
    A("s_waitcnt vmcnt(0)")
    publish(F_A2, 157, 158)
    stamp(12)
    flag_load(PFA2, 31)
    A(f"s_cmp_lg_u32 {s(S_WV)}, 0")
    A("s_cbranch_scc1 L_nob2poll")
    check_or_spin(VF2A, VF2, "L_poll_b2")
    A(f"s_lshl_b32 {s(S_T0)}, {s(S_XCD)}, 18")
    A(f"s_lshl_b32 {s(S_T1)}, {s(S_J)}, 7")
    A(f"s_add_u32 {s(S_T0)}, {s(S_T0)}, {s(S_T1)}")
    A(f"s_add_u32 {s(S_T0)}, {s(S_T0)}, {YT}")
    for n in range(8):
        A(f"s_mov_b32 m0, {LYT + n*1024}")
        A(f"s_add_u32 {s(S_T1)}, {s(S_T0)}, {n*8*4096}")
        A(f"buffer_load_dwordx4 {v(PY0 + (n & 1))}, {s(R_WS,4)}, {s(S_T1)} offen sc1 lds")
    A("L_nob2poll:")
    A("L_noep:")
    A("s_barrier")
    stamp(13)
    WF = 32
    for hs in range(16):
        A(f"ds_read_b64_tr_b16 {v(WF+4*hs,2)}, {v(PAW)} offset:{hs*2048}")
        A(f"ds_read_b64_tr_b16 {v(WF+4*hs+2,2)}, {v(PAW)} offset:{hs*2048 + 1024}")
    A(f"s_cmp_lt_u32 {s(S_WV)}, 4")
    A("s_cbranch_scc1 L_cpub")
    A("s_waitcnt vmcnt(0)")
    publish(F_A2, 157, 158)
    stamp(12)
    flag_load(PFA2, 31)
    A("L_cpub:")
    A("s_waitcnt vmcnt(0)")
    A(f"v_mov_b32 v20, {OK2}")
    A(f"s_cmp_lg_u32 {s(S_WV)}, 0")
    A("s_cbranch_scc1 L_nosig")
    A(f"v_mov_b32 v21, {s(S_NONCE)}")
    A("ds_write_b32 v20, v21")
    A("L_nosig:")
    check_or_spin(PFA2, 31, "L_poll_a2")
    stamp(14)
    A(f"s_lshl_b32 {s(S_T0)}, {s(S_TB64)}, 16")
    A(f"s_lshl_b32 {s(S_T1)}, {s(S_WV)}, 12")
    A(f"s_add_u32 {s(S_T0)}, {s(S_T0)}, {s(S_T1)}")
    for hh in range(4):
        for ts in range(2):
            A(f"s_add_u32 m0, {s(S_T1)}, {LO + ts*32768 + hh*1024}")
            A(f"s_add_u32 {s(S_T2)}, {s(S_T0)}, {OW + ts*32768 + hh*1024}")
            A(f"buffer_load_dwordx4 {v(PL16)}, {s(R_WS,4)}, {s(S_T2)} offen sc1 lds")
    A(f"s_mov_b32 {s(S_SPIN)}, {SPIN*8}")
    A("L_y_spin:")
    A("ds_read_b32 v21, v20")
    A("s_waitcnt lgkmcnt(0)")
    A(f"v_cmp_ne_u32 vcc, {s(S_NONCE)}, v21")
    A("s_cbranch_vccz L_y_ok")
    A(f"s_sub_u32 {s(S_SPIN)}, {s(S_SPIN)}, 1")
    A(f"s_cmp_lg_u32 {s(S_SPIN)}, 0")
    A("s_cbranch_scc1 L_y_spin")
    A("L_y_ok:")
    A(f"ds_read_b64 v[22:23], {v(PYR)}")
    A(f"ds_read_b64 v[24:25], {v(PYR)} offset:128")
    for r in range(4):
        A(f"v_lshlrev_b32 {v(136+2*r)}, 16, {v(VQ3+r)}")
        A(f"v_and_b32 {v(137+2*r)}, 0xffff0000, {v(VQ3+r)}")
    A("s_waitcnt lgkmcnt(0)")
    A("v_lshlrev_b32 v144, 16, v22"); A("v_lshlrev_b32 v145, 16, v24")
    A("v_and_b32 v146, 0xffff0000, v22"); A("v_and_b32 v147, 0xffff0000, v24")
    A("v_lshlrev_b32 v148, 16, v23"); A("v_lshlrev_b32 v149, 16, v25")
    A("v_and_b32 v150, 0xffff0000, v23"); A("v_and_b32 v151, 0xffff0000, v25")
    for r in range(4):
        A(f"v_pk_mul_f32 {v(144+2*r,2)}, {v(144+2*r,2)}, {v(136+2*r,2)}")
    for r in range(4):
        A(f"v_cvt_pk_bf16_f32 {v(152+r)}, {v(144+2*r)}, {v(145+2*r)}")
    A(f"v_add_u32 v21, 0x1000, {v(PB3)}")
    A(f"global_store_dword {v(PB3)}, v152, {s(S_OUT,2)} {BST}")
    A(f"global_store_dword {v(PB3)}, v153, {s(S_OUT,2)} offset:2048 {BST}")
    A(f"global_store_dword v21, v154, {s(S_OUT,2)} {BST}")
    A(f"global_store_dword v21, v155, {s(S_OUT,2)} offset:2048 {BST}")
    A("s_waitcnt vmcnt(4)")
    stamp(15)
    A("s_barrier")
    stamp(16)
    OA = 160
    OF = 96
    for hs in range(16): A(f"ds_read_b128 {v(OF+4*hs,4)}, {v(PAO)} offset:{hs*1024}")
    for hs in range(16):
        if hs % 2 == 0: A(f"s_waitcnt lgkmcnt({min(15, 14 - hs)})" if hs < 14 else "s_waitcnt lgkmcnt(0)")
        cin = "0" if hs == 0 else v(OA,16)
        A(f"{MF} {v(OA,16)}, {v(WF+4*hs,4)}, {v(OF+4*hs,4)}, {cin}")
    if prof:
        A("s_nop 15")
        stamp(21)
    for m in range(4):
        A(f"ds_write_b128 {v(PPW[m])}, {v(OA+4*m,4)}")
    A("s_waitcnt lgkmcnt(0)")
    A("s_barrier")
    stamp(17)
    A(f"ds_read_b128 v[32:35], {v(PPR[0])}"); A(f"ds_read_b128 v[40:43], {v(PPR[2])}")
    A(f"ds_read_b128 v[36:39], {v(PPR[1])}"); A(f"ds_read_b128 v[44:47], {v(PPR[3])}")
    A("s_waitcnt lgkmcnt(0)")
    for r in range(8):
        A(f"v_add_f32 {v(32+r)}, {v(32+r)}, {v(40+r)}")
    for i in range(4):
        A(f"v_cvt_pk_bf16_f32 {v(48+i)}, {v(32+2*i)}, {v(33+2*i)}")
    A(f"global_store_dwordx4 {v(POUT)}, v[48:51], {s(S_OUT,2)} {FST}")
    if prof:
        stamp(18)
        A(f"s_lshl_b32 {s(S_T0)}, s2, 3")
        A(f"s_add_u32 {s(S_T0)}, {s(S_T0)}, {s(S_WV)}")
        A(f"s_lshl_b32 {s(S_T0)}, {s(S_T0)}, 8")
        A(f"s_add_u32 {s(S_T0)}, {s(S_T0)}, {PROF}")
        A("v_lshlrev_b32 v16, 2, v1")
        A(f"v_add_u32 v16, {s(S_T0)}, v16")
        A(f"global_store_dword v16, v255, {s(S_WS,2)}")
    if DBG:
        A("s_memrealtime s[12:13]")
        A("s_waitcnt lgkmcnt(0)")
        A("v_mov_b32 v16, 0")
        A("s_mov_b64 exec, 1")
        A("v_mov_b32 v17, s12"); A(f"global_atomic_umax v16, v17, {s(S_DBG,2)}")
        A("s_not_b32 s8, s8"); A("v_mov_b32 v17, s8"); A(f"global_atomic_umax v16, v17, {s(S_DBG,2)} offset:4")
        A("v_mov_b32 v17, s10"); A(f"global_atomic_umax v16, v17, {s(S_DBG,2)} offset:8")
        A("s_not_b32 s10, s10"); A("v_mov_b32 v17, s10"); A(f"global_atomic_umax v16, v17, {s(S_DBG,2)} offset:12")
        A("s_not_b32 s12, s12"); A("v_mov_b32 v17, s12"); A(f"global_atomic_umax v16, v17, {s(S_DBG,2)} offset:16")
    A("L_end:")
    A("s_endpgm")
    sub_setup()
    for st in stubs:
        if st == "EPOCH":
            A("L_st_epoch:")
            A(f"s_mov_b32 {s(S_SPIN)}, {SPIN}")
            A("v_lshlrev_b32 v20, 7, v1")
            A(f"v_add_u32 v20, {FLG + F_B1}, v20")
            for q in range(1, 4): A(f"v_add_u32 {v(20+q)}, {q*8192}, v20")
            A("L_ep_spin:")
            for q in range(4): A(f"global_load_dword {v(24+q)}, {v(20+q)}, {s(S_WS,2)} {SCP}")
            A("s_waitcnt vmcnt(0)")
            A(f"v_cmp_ne_u32 vcc, {s(S_NONCE)}, v24")
            for q in range(1, 4):
                A(f"v_cmp_ne_u32 {s(S_CMP+2*q,2)}, {s(S_NONCE)}, {v(24+q)}")
            for q in range(1, 4): A(f"s_or_b64 vcc, vcc, {s(S_CMP+2*q,2)}")
            A("s_cbranch_vccz L_ep_ok")
            A(f"s_sub_u32 {s(S_SPIN)}, {s(S_SPIN)}, 1")
            A(f"s_cmp_lg_u32 {s(S_SPIN)}, 0")
            A("s_cbranch_scc1 L_ep_spin")
            A("L_ep_ok:")
            A(f"v_mov_b32 v20, {EP}")
            A(f"v_mov_b32 v21, {s(S_NONCE)}")
            A(f"s_mov_b64 {s(S_EX,2)}, exec")
            A("s_mov_b64 exec, 1")
            A(f"global_store_dword v20, v21, {s(S_WS,2)} {SCS}")
            A(f"s_mov_b64 exec, {s(S_EX,2)}")
            A("s_branch L_epdone")
        elif callable(st):
            st()
        else:
            for line in st: A(line)
    n = a.fix_hazards()
    return a, n

HEAD = f"""; Fused sliding-window attention block + H3 SSM conv, one persistent launch (generated by gen/gen2.py)
; @launch grid=(256,1,1) block=(512,1,1) lds={LDS_BYTES}
.amdgcn_target "amdgcn-amd-amdhsa--gfx950"
.text
.globl {KN}
.p2align 8
.type {KN},@function
{KN}:
"""
TAIL = f""".section .rodata,"a"
.p2align 6
.amdhsa_kernel {KN}
  .amdhsa_next_free_vgpr 256
  .amdhsa_next_free_sgpr 102
  .amdhsa_accum_offset 256
  .amdhsa_group_segment_fixed_size 0
  .amdhsa_kernarg_size 96
  .amdhsa_user_sgpr_count 2
  .amdhsa_user_sgpr_kernarg_segment_ptr 1
  .amdhsa_system_sgpr_workgroup_id_x 1
.end_amdhsa_kernel
"""
if __name__ == "__main__":
    out = sys.argv[1] if len(sys.argv) > 1 else f"cdna_kernels/{NAME}.s"
    opt = {}
    for x in sys.argv[2:]:
        if "=" in x:
            k, val = x.split("="); opt[k] = int(val)
    a, n = build(prof=("prof" in sys.argv), opt=opt)
    open(out, "w").write(HEAD + a.text() + TAIL)
    print("instructions:", a.count(), "hazard pads:", n)
```

```python
import sys
from asmlib import Asm, v, s

NAME = "concat_heads__sliding_block__ssm_conv_h3__prompt"
KN = NAME + "_kernel"

FLG = 0x0
F_B1, F_A1, F_B2, F_A2 = 0, 32768, 65536, 98304
EP  = 0x20000
KW  = 0x100000
VW  = 0x300000
OW  = 0x500000
UR  = 0x700000
YT  = 0x900000
WS_BYTES = 0xB00000
PROF = 0xC00000

STG = 28672
B2R = 114688
CB  = 12864
T0  = B2R
KVS = 140416
E_OFF, O_OFF, U_OFF = 0, 4164, 8288
LK, LV, LQ = 0, 24576, 49536
KHS, VHS, VTS = 12288, 12480, 1040
LR  = 57728
LO  = 0
LWO = 81920
LS0, LS1 = 65536, 147456
LYT = 65536
CSW = 163808
MSK = 147456
OK2 = 163824
OKW = 163792
OKW_OLD = 163832
LDS_BYTES = 163840

S_X, S_WQKV, S_WO, S_BQ, S_BK, S_BV, S_SK, S_SSMK = 16, 18, 20, 22, 24, 26, 28, 30
S_SD, S_OUT, S_DBG, S_WS = 32, 34, 36, 38
R_X, R_W, R_BK, R_WS, R_WO = 40, 44, 48, 52, 56
S_NONCE, S_WV, S_J, S_XCD, S_RB, S_HP = 60, 61, 62, 63, 64, 65
S_T0, S_T1, S_T2, S_T3, S_T4, S_T5 = 66, 67, 68, 69, 70, 71
S_LI = 72
S_J0 = 73
S_SPIN = 74
S_OK = 75
S_EX = 76
S_CBASE, S_CH = 78, 79
S_CMP = 80
S_HD, S_TB64 = 96, 97
S_ROT = 75

PAK, PAV0, PAV1, PAQ = 192, 193, 194, 195
PFB2, PFA2, PY0, PY1, PYR, PO, PWO, PAO, PAW, POUT, PL16, PQ3 = 196, 197, 198, 199, 200, 201, 202, 203, 204, 205, 206, 207
PPW = [9, 10, 11, 12]
PPR = [13, 14, 15, 2]
PB3 = 8
S_LINK = 4
S_WOB, S_WOL = 6, 7
SPIN = 200000
NEGBIG = 0xF149F2CA
QSCALE = 0x3EB8AA3B
ONES = 0x3F803F80
STAGE = [0, 1, 2, 3, 0, 1, 2, 3]
MF = "v_mfma_f32_32x32x16_bf16"
MF16 = "v_mfma_f32_16x16x32_bf16"

def build(prof=False, opt=None):
    opt = opt or {}
    NT_B = "nt" if opt.get("nt_b", 0) else ""
    NT_XW = "nt" if opt.get("nt_xw", 0) else ""
    NT_WO = "nt" if opt.get("nt_wo", 0) else ""
    SCP = {0: "sc0 sc1", 1: "sc1"}[opt.get("sc_poll", 1)]
    SCS = {0: "sc0 sc1", 1: "sc1"}[opt.get("sc_store", 1)]
    SLEEP = opt.get("sleep", 0)
    FST = {0: "", 1: "sc0 sc1", 2: "nt", 3: "sc1"}[opt.get("fst", 2)]
    BST = {0: "", 1: "sc0 sc1", 2: "nt", 3: "sc1"}[opt.get("bst", 2)]
    a = Asm()
    A = a
    stubs = []
    def stamp(k):
        if not prof: return
        A("s_memrealtime s[100:101]")
        A("s_memtime s[98:99]")
        A("s_waitcnt lgkmcnt(0)")
        A(f"v_writelane_b32 v255, s100, {k}")
        A(f"v_writelane_b32 v255, s98, {k+32}")
    def srd(dst, base, nbytes):
        A(f"s_mov_b32 {s(dst)}, {s(base)}")
        A(f"s_and_b32 {s(dst+1)}, {s(base+1)}, 0xffff")
        A(f"s_mov_b32 {s(dst+2)}, {nbytes}")
        A(f"s_mov_b32 {s(dst+3)}, 0x00020000")
    def flag_load(vaddr, vtmp):
        A(f"global_load_dword {v(vtmp)}, {v(vaddr)}, {s(S_WS,2)} {SCP}")
    def spin(vaddr, vtmp, label):
        A(f"s_mov_b32 {s(S_SPIN)}, {SPIN}")
        A(f"{label}:")
        flag_load(vaddr, vtmp)
        A("s_waitcnt vmcnt(0)")
        A(f"v_cmp_ne_u32 vcc, {s(S_NONCE)}, {v(vtmp)}")
        A(f"s_cbranch_vccz {label}_done")
        if SLEEP: A(f"s_sleep {SLEEP}")
        A(f"s_sub_u32 {s(S_SPIN)}, {s(S_SPIN)}, 1")
        A(f"s_cmp_lg_u32 {s(S_SPIN)}, 0")
        A(f"s_cbranch_scc1 {label}")
        A(f"{label}_done:")
    def check_or_spin(vaddr, vtmp, label):
        A(f"v_cmp_ne_u32 vcc, {s(S_NONCE)}, {v(vtmp)}")
        A(f"s_cbranch_vccz {label}_done")
        spin(vaddr, vtmp, label)
    def publish(kind, vt0, vt1):
        A(f"s_lshl_b32 {s(S_T0)}, s2, 7")
        A(f"s_lshl_b32 {s(S_T1)}, {s(S_WV)}, 2")
        A(f"s_add_u32 {s(S_T0)}, {s(S_T0)}, {s(S_T1)}")
        A(f"s_add_u32 {s(S_T0)}, {s(S_T0)}, {FLG + kind}")
        A(f"v_mov_b32 {v(vt0)}, {s(S_T0)}")
        A(f"v_mov_b32 {v(vt1)}, {s(S_NONCE)}")
        A(f"s_mov_b64 {s(S_EX,2)}, exec")
        A(f"s_mov_b64 exec, 1")
        A(f"global_store_dword {v(vt0)}, {v(vt1)}, {s(S_WS,2)} {SCS}")
        A(f"s_mov_b64 exec, {s(S_EX,2)}")

    def record(fn):
        n0 = len(a.items)
        fn()
        out = [it.text for k, it in a.items[n0:]]
        assert all(k == "i" for k, it in a.items[n0:])
        del a.items[n0:]
        return out
    MM0, MM8, MMK = 208, 224, 240
    def gen_masks():
        A("v_and_b32 v248, 31, v1")
        A("v_lshrrev_b32 v249, 5, v1")
        A("v_lshlrev_b32 v249, 2, v249")
        A("v_sub_u32 v248, v248, v249")
        A(f"v_mov_b32 v249, {NEGBIG}")
        A("v_mov_b32 v250, 0xffff")
        for r in range(16):
            cst = (r & 3) + 8*(r >> 2)
            A(f"v_subrev_u32 {v(MM0+r)}, {cst}, v248")
        for r in range(16):
            A(f"v_ashrrev_i32 {v(MM0+r)}, 31, {v(MM0+r)}")
        for i in range(8):
            A(f"v_bfi_b32 {v(MMK+i)}, v250, {v(MM0+2*i)}, {v(MM0+2*i+1)}")
        for r in range(16):
            A(f"v_and_b32 {v(MM8+r)}, v249, {v(MM0+r)}")
        for r in range(16):
            A(f"v_xor_b32 {v(MM0+r)}, v249, {v(MM8+r)}")

    def sub_setup():
        A("L_sub_b:")
        A(f"s_lshr_b32 {s(S_HD)}, {s(S_WV)}, 2")
        A(f"s_lshl_b32 {s(S_T0)}, {s(S_RB)}, 2")
        A(f"s_add_u32 {s(S_T0)}, {s(S_T0)}, {s(S_LI)}")
        A(f"s_sub_i32 {s(S_J0)}, 8, {s(S_T0)}")
        A(f"s_max_i32 {s(S_J0)}, {s(S_J0)}, 0")
        A(f"v_lshlrev_b32 {v(PL16)}, 4, v1")
        A(f"s_lshl_b32 {s(S_T0)}, {s(S_HD)}, 12")
        A(f"s_lshl_b32 {s(S_T1)}, {s(S_LI)}, 10")
        A(f"s_add_u32 {s(S_T0)}, {s(S_T0)}, {s(S_T1)}")
        A(f"v_add_u32 {v(PAQ)}, {s(S_T0)}, {v(PL16)}")
        A(f"s_mul_i32 {s(S_T0)}, {s(S_HD)}, {KHS}")
        A(f"s_add_u32 {s(S_T0)}, {s(S_T0)}, {s(S_T1)}")
        A(f"v_add_u32 {v(PAK)}, {s(S_T0)}, {v(PL16)}")
        A(f"s_mul_i32 {s(S_T0)}, {s(S_HD)}, {VHS}")
        A(f"s_mul_i32 {s(S_T1)}, {s(S_LI)}, {VTS}")
        A(f"s_add_u32 {s(S_T0)}, {s(S_T0)}, {s(S_T1)}")
        A("v_and_b32 v248, 15, v1")
        A("v_lshlrev_b32 v248, 4, v248")
        A("v_lshrrev_b32 v249, 5, v1")
        A("v_lshl_add_u32 v248, v249, 8, v248")
        A("v_bfe_u32 v249, v1, 4, 1")
        A("v_cmp_eq_u32 vcc, 1, v249")
        A("v_mov_b32 v249, 1024")
        A("v_mov_b32 v250, 512")
        A(f"v_cndmask_b32 {v(PAV0)}, v248, v249, vcc")
        A(f"v_cndmask_b32 {v(PAV1)}, v248, v250, vcc")
        A(f"v_add_u32 {v(PAV0)}, {s(S_T0)}, {v(PAV0)}")
        A(f"v_add_u32 {v(PAV1)}, {s(S_T0)}, {v(PAV1)}")
        A(f"s_lshl_b32 {s(S_T0)}, {s(S_RB)}, 2")
        A(f"s_add_u32 {s(S_T0)}, {s(S_T0)}, {s(S_LI)}")
        A(f"s_lshl_b32 {s(S_T0)}, {s(S_T0)}, 5")
        A(f"s_lshl_b32 {s(S_T1)}, {s(S_HP)}, 1")
        A(f"s_add_u32 {s(S_T0)}, {s(S_T0)}, {s(S_T1)}")
        A(f"s_add_u32 {s(S_T0)}, {s(S_T0)}, {s(S_HD)}")
        A(f"s_lshl_b32 {s(S_T0)}, {s(S_T0)}, 10")
        A(f"s_add_u32 {s(S_T0)}, {s(S_T0)}, {OW}")
        A(f"v_add_u32 {v(PO)}, {s(S_T0)}, {v(PL16)}")
        A("v_and_b32 v248, 31, v1")
        A("v_lshrrev_b32 v249, 5, v1")
        A(f"s_lshl_b32 {s(S_T0)}, {s(S_WV)}, 1")
        A(f"v_add_u32 v249, {s(S_T0)}, v249")
        A(f"s_lshl_b32 {s(S_T0)}, {s(S_J)}, 6")
        A("v_lshlrev_b32 v250, 2, v249")
        A(f"v_add_u32 v250, {s(S_T0)}, v250")
        A(f"s_lshl_b32 {s(S_T0)}, {s(S_XCD)}, 7")
        A("v_lshlrev_b32 v251, 2, v248")
        A(f"v_add_u32 v251, {s(S_T0)}, v251")
        A(f"v_lshl_add_u32 {v(PQ3)}, v250, 10, v251")
        A(f"v_lshl_add_u32 {v(PB3)}, v250, 11, v251")
        A(f"v_add_u32 {v(PB3)}, 1024, {v(PB3)}")
        A(f"s_setpc_b64 {s(S_LINK,2)}")
    def c_setup():
        gen_masks()
        A(f"s_cmp_lg_u32 {s(S_WV)}, 0")
        A("s_cbranch_scc1 L_c_nomsk")
        A("v_lshlrev_b32 v248, 4, v1")
        A(f"v_add_u32 v248, {MSK}, v248")
        for k in range(10):
            A(f"ds_write_b128 v248, {v(MM0+4*k,4)} offset:{1024*k}")
        A("L_c_nomsk:")
        A("v_lshrrev_b32 v248, 3, v1")
        A("v_bfe_u32 v249, v248, 1, 1")
        A("v_lshlrev_b32 v249, 2, v249")
        A("v_and_b32 v250, 7, v1")
        A("v_xor_b32 v249, v249, v250")
        A("v_lshlrev_b32 v249, 4, v249")
        A(f"v_lshl_add_u32 {v(PWO)}, v248, 10, v249")
        A(f"s_lshr_b32 {s(S_T0)}, {s(S_J)}, 2")
        A(f"s_lshl_b32 {s(S_T0)}, {s(S_T0)}, 7")
        A(f"s_lshl_b32 {s(S_T1)}, {s(S_WV)}, 16")
        A(f"s_add_u32 {s(S_WOB)}, {s(S_T0)}, {s(S_T1)}")
        A(f"s_lshl_b32 {s(S_WOL)}, {s(S_WV)}, 13")
        srd(R_WO, S_WO, 512*1024)
        A(f"v_lshrrev_b32 {v(PFB2)}, 1, v1")
        A(f"v_lshlrev_b32 {v(PFB2)}, 10, {v(PFB2)}")
        A("v_and_b32 v248, 1, v1")
        A(f"v_lshl_add_u32 {v(PFB2)}, v248, 3, {v(PFB2)}")
        A(f"s_lshr_b32 {s(S_T0)}, {s(S_J)}, 4")
        A(f"s_add_u32 {s(S_T0)}, {s(S_T0)}, 4")
        A(f"s_lshl_b32 {s(S_T0)}, {s(S_T0)}, 2")
        A(f"s_lshl_b32 {s(S_T1)}, {s(S_XCD)}, 7")
        A(f"s_add_u32 {s(S_T0)}, {s(S_T0)}, {s(S_T1)}")
        A(f"s_add_u32 {s(S_T0)}, {s(S_T0)}, {FLG + F_B2}")
        A(f"v_add_u32 {v(PFB2)}, {s(S_T0)}, {v(PFB2)}")
    def tail_addr():
        A("v_and_b32 v248, 31, v1")
        A("v_lshrrev_b32 v249, 5, v1")
        A(f"s_lshl_b32 {s(S_T0)}, {s(S_WV)}, 1")
        A(f"v_add_u32 v249, {s(S_T0)}, v249")
        A("v_lshrrev_b32 v250, 1, v249")
        A("v_and_b32 v251, 7, v248")
        A("v_xor_b32 v250, v250, v251")
        A("v_lshlrev_b32 v250, 4, v250")
        A("v_and_b32 v251, 1, v249")
        A("v_lshl_add_u32 v250, v251, 3, v250")
        A("v_lshl_add_u32 v250, v248, 8, v250")
        A(f"v_add_u32 {v(PYR)}, {LYT}, v250")
        A(f"s_lshr_b32 {s(S_TB64)}, {s(S_RB)}, 2")
        A(f"s_lshl_b32 {s(S_TB64)}, {s(S_TB64)}, 1")
        A(f"s_and_b32 {s(S_T0)}, {s(S_XCD)}, 1")
        A(f"s_add_u32 {s(S_TB64)}, {s(S_TB64)}, {s(S_T0)}")
        A(f"s_lshl_b32 {s(S_TB64)}, {s(S_TB64)}, 2")
        A(f"s_and_b32 {s(S_T0)}, {s(S_J)}, 3")
        A(f"s_add_u32 {s(S_TB64)}, {s(S_TB64)}, {s(S_T0)}")
        A("v_and_b32 v248, 1, v1")
        A("v_bfe_u32 v249, v1, 1, 2")
        A(f"s_lshl_b32 {s(S_T0)}, {s(S_WV)}, 2")
        A(f"v_add_u32 v249, {s(S_T0)}, v249")
        A(f"s_lshl_b32 {s(S_T0)}, {s(S_TB64)}, 1")
        A(f"v_add_u32 v248, {s(S_T0)}, v248")
        A("v_lshrrev_b32 v250, 2, v248")
        A("v_lshrrev_b32 v251, 1, v249")
        A("v_and_b32 v252, 3, v250")
        A("v_and_b32 v253, 7, v251")
        A("v_lshl_add_u32 v252, v253, 2, v252")
        A("v_lshlrev_b32 v252, 3, v252")
        A("v_lshrrev_b32 v253, 2, v250")
        if opt.get("gray", 1):
            A("v_lshrrev_b32 v250, 1, v253")
            A("v_xor_b32 v253, v253, v250")
        A("v_lshl_add_u32 v252, v253, 1, v252")
        A("v_lshrrev_b32 v253, 3, v251")
        A("v_add_u32 v252, v252, v253")
        A("v_lshlrev_b32 v252, 7, v252")
        A("v_and_b32 v253, 3, v248")
        A("v_and_b32 v250, 1, v249")
        A("v_lshl_add_u32 v253, v250, 2, v253")
        A("v_lshl_add_u32 v252, v253, 2, v252")
        A(f"v_add_u32 {v(PFA2)}, {FLG + F_A2}, v252")
        A("v_lshrrev_b32 v248, 3, v1")
        A("v_and_b32 v249, 7, v1")
        A("v_lshrrev_b32 v250, 1, v248")
        A("v_xor_b32 v249, v249, v250")
        A("v_lshlrev_b32 v248, 12, v248")
        A(f"v_lshl_add_u32 {v(PY0)}, v249, 4, v248")
        A("v_xor_b32 v249, 4, v249")
        A(f"v_lshl_add_u32 {v(PY1)}, v249, 4, v248")
        A(f"s_and_b32 {s(S_T0)}, {s(S_WV)}, 1")
        A(f"s_lshl_b32 {s(S_T0)}, {s(S_T0)}, 15")
        A(f"s_lshl_b32 {s(S_T2)}, {s(S_HD)}, 14")
        A(f"s_add_u32 {s(S_T0)}, {s(S_T0)}, {s(S_T2)}")
        A(f"v_add_u32 {v(PAO)}, {s(S_T0)}, {v(PL16)}")
        A("v_and_b32 v248, 15, v1")
        A("v_lshrrev_b32 v248, 2, v248")
        A("v_lshrrev_b32 v249, 5, v1")
        A("v_lshl_add_u32 v249, v249, 2, v248")
        A("v_lshlrev_b32 v249, 7, v249")
        A("v_lshrrev_b32 v248, 1, v248")
        A(f"s_bfe_u32 {s(S_T0)}, {s(S_WV)}, 0x10001")
        A(f"v_xor_b32 v248, {s(S_T0)}, v248")
        A("v_lshl_add_u32 v249, v248, 6, v249")
        A("v_bfe_u32 v248, v1, 4, 1")
        A("v_lshl_add_u32 v249, v248, 5, v249")
        A("v_and_b32 v248, 3, v1")
        A("v_lshl_add_u32 v249, v248, 3, v249")
        A(f"s_lshl_b32 {s(S_T2)}, {s(S_HD)}, 15")
        A(f"s_add_u32 {s(S_T2)}, {s(S_T2)}, {LWO}")
        A(f"v_add_u32 {v(PAW)}, {s(S_T2)}, v249")
        A("v_and_b32 v248, 31, v1")
        A("v_lshrrev_b32 v249, 5, v1")
        A(f"s_lshl_b32 {s(S_T0)}, {s(S_T0)}, 3")
        A(f"v_add_u32 v249, {s(S_T0)}, v249")
        A("v_and_b32 v250, 15, v248")
        A("v_xor_b32 v249, v249, v250")
        A("v_lshlrev_b32 v249, 4, v249")
        A(f"s_and_b32 {s(S_T0)}, {s(S_WV)}, 1")
        A(f"s_lshl_b32 {s(S_T0)}, {s(S_T0)}, 13")
        A(f"s_mul_i32 {s(S_T2)}, {s(S_HD)}, {LS1 - LS0}")
        A(f"s_add_u32 {s(S_T0)}, {s(S_T0)}, {s(S_T2)}")
        A(f"s_add_u32 {s(S_T0)}, {s(S_T0)}, {LS0}")
        A("v_lshl_add_u32 v249, v248, 8, v249")
        A(f"v_add_u32 v249, {s(S_T0)}, v249")
        for m in range(4):
            A(f"v_xor_b32 {v(PPW[m])}, {m*32}, v249")
        A("v_lshrrev_b32 v248, 3, v0")
        A("v_and_b32 v249, 7, v0")
        A("v_lshlrev_b32 v250, 1, v249")
        A("v_and_b32 v251, 15, v248")
        A("v_xor_b32 v250, v250, v251")
        A("v_lshlrev_b32 v250, 4, v250")
        A("v_lshl_add_u32 v250, v248, 8, v250")
        A("v_xor_b32 v251, 16, v250")
        A(f"v_add_u32 {v(PPR[0])}, {LS0}, v250"); A(f"v_add_u32 {v(PPR[1])}, {LS0}, v251")
        A(f"v_add_u32 {v(PPR[2])}, {LS1}, v250"); A(f"v_add_u32 {v(PPR[3])}, {LS1}, v251")
        A(f"s_lshl_b32 {s(S_T0)}, {s(S_TB64)}, 17")
        A(f"s_lshr_b32 {s(S_T1)}, {s(S_J)}, 2")
        A(f"s_lshl_b32 {s(S_T1)}, {s(S_T1)}, 7")
        A(f"s_add_u32 {s(S_T0)}, {s(S_T0)}, {s(S_T1)}")
        A("v_lshlrev_b32 v250, 11, v248")
        A("v_lshl_add_u32 v250, v249, 4, v250")
        A(f"v_add_u32 {v(POUT)}, {s(S_T0)}, v250")
    def call(lab): A(f"s_call_b64 {s(S_LINK,2)}, {lab}")
    def wo_dma(n):
        A(f"s_add_u32 m0, {s(S_WOL)}, {LWO + (n & 7)*1024 + (n >> 3)*4*8192}")
        A(f"s_add_u32 {s(S_T1)}, {s(S_WOB)}, {(n & 7)*8192 + (n >> 3)*4*65536}")
        A(f"buffer_load_dwordx4 {v(PWO)}, {s(R_WO,4)}, {s(S_T1)} offen {NT_WO} lds")

    stamp(0)
    DBG = opt.get("dbg", 0)
    if DBG: A("s_memrealtime s[8:9]")
    A("s_load_dwordx16 s[16:31], s[0:1], 0")
    A("s_load_dwordx8 s[32:39], s[0:1], 64")
    A("s_cmp_ge_u32 s2, 256")
    A("s_cbranch_scc1 L_end")
    A("v_and_b32 v1, 63, v0")
    A("v_lshrrev_b32 v2, 6, v0")
    A(f"s_and_b32 {s(S_XCD)}, s2, 7")
    A(f"s_lshr_b32 {s(S_J)}, s2, 3")
    A(f"v_readfirstlane_b32 {s(S_WV)}, v2")
    GRAY = opt.get("gray", 1)
    A(f"s_lshr_b32 {s(S_T0)}, {s(S_XCD)}, 1")
    if GRAY:
        A(f"s_lshr_b32 {s(S_T1)}, {s(S_T0)}, 1")
        A(f"s_xor_b32 {s(S_T0)}, {s(S_T0)}, {s(S_T1)}")
    A(f"s_lshl_b32 {s(S_T0)}, {s(S_T0)}, 2")
    A(f"s_and_b32 {s(S_T1)}, {s(S_J)}, 3")
    A(f"s_add_u32 {s(S_RB)}, {s(S_T0)}, {s(S_T1)}")
    A(f"s_and_b32 {s(S_T0)}, {s(S_XCD)}, 1")
    A(f"s_lshl_b32 {s(S_T0)}, {s(S_T0)}, 3")
    A(f"s_lshr_b32 {s(S_T1)}, {s(S_J)}, 2")
    A(f"s_add_u32 {s(S_HP)}, {s(S_T0)}, {s(S_T1)}")
    A(f"s_and_b32 {s(S_LI)}, {s(S_WV)}, 3")
    A("v_and_b32 v3, 31, v1")
    A("v_lshrrev_b32 v4, 5, v1")
    A(f"s_cmp_ge_u32 {s(S_WV)}, 4")
    A("s_cbranch_scc1 L_lwave")
    A("v_lshrrev_b32 v5, 3, v1")
    A("v_and_b32 v6, 7, v1")
    A("v_lshlrev_b32 v6, 4, v6")
    A(f"s_lshl_b32 {s(S_T0)}, {s(S_J)}, 6")
    A(f"s_lshl_b32 {s(S_T1)}, {s(S_WV)}, 4")
    A(f"s_add_u32 {s(S_T0)}, {s(S_T0)}, {s(S_T1)}")
    A(f"v_add_u32 v5, {s(S_T0)}, v5")
    A("v_lshlrev_b32 v5, 10, v5")
    A(f"s_lshl_b32 {s(S_T1)}, {s(S_XCD)}, 7")
    A(f"v_add3_u32 v7, v5, v6, {s(S_T1)}")
    A("v_add_u32 v8, 0xffffe000, v7")
    A("v_add_u32 v9, 0x2000, v7")
    A(f"s_mul_i32 {s(S_T4)}, {s(S_WV)}, 5120")
    A(f"s_add_u32 {s(S_T4)}, {s(S_T4)}, {KVS}")
    A(f"s_lshl_b32 {s(S_T0)}, {s(S_XCD)}, 9")
    A("v_lshlrev_b32 v11, 4, v3")
    A(f"v_add_u32 v11, {s(S_T0)}, v11")
    A("s_waitcnt lgkmcnt(0)")
    if opt.get("wsoff", 0):
        A(f"s_add_u32 {s(S_WS)}, {s(S_WS)}, {opt['wsoff'] << 20}")
        A(f"s_addc_u32 {s(S_WS+1)}, {s(S_WS+1)}, 0")
    stamp(1)
    srd(R_BK, S_BK, 2048*1024)
    srd(R_X, S_BV, 2048*1024)
    A(f"s_load_dword {s(S_NONCE)}, {s(S_WS,2)}, {EP}")
    for n, vr in enumerate((8, 7, 9)):
        A(f"s_add_u32 m0, {s(S_T4)}, {n*1024}")
        A(f"buffer_load_dwordx4 {v(vr)}, {s(R_BK,4)}, 0 offen {NT_B} lds")
    for n, vr in enumerate((7, 9)):
        A(f"s_add_u32 m0, {s(S_T4)}, {3072 + n*1024}")
        A(f"buffer_load_dwordx4 {v(vr)}, {s(R_X,4)}, 0 offen {NT_B} lds")
    A(f"global_load_dwordx4 v[36:39], v11, {s(S_SK,2)}")
    NTOUCH = 0
    if opt.get("touch", 0):
        A("v_and_b32 v40, 7, v1")
        A("v_lshlrev_b32 v40, 21, v40")
        A("v_min_u32 v40, 0xa00000, v40")
        A(f"global_load_dword v200, v40, {s(S_WS,2)} offset:2048")
        A(f"s_lshl_b32 {s(S_T0)}, {s(S_J)}, 16")
        A(f"v_mov_b32 v42, {s(S_T0)}")
        A(f"global_load_dword v201, v42, {s(S_BQ,2)}")
        A(f"s_lshl_b32 {s(S_T0)}, {s(S_J)}, 17")
        A(f"v_mov_b32 v44, {s(S_T0)}")
        A(f"global_load_dword v202, v44, {s(S_OUT,2)}")
        A(f"s_lshl_b32 {s(S_T0)}, {s(S_XCD)}, 19")
        A(f"v_mov_b32 v46, {s(S_T0)}")
        A(f"global_load_dword v203, v46, {s(S_OUT,2)}")
        A("v_mov_b32 v48, 0")
        A(f"global_load_dword v204, v48, {s(S_WO,2)}")
        A(f"global_load_dword v205, v48, {s(S_SSMK,2)}")
        NTOUCH = 6
    XA, XB, WA, WB, WC = 144, 148, 152, 153, 154
    A(f"s_lshl_b32 {s(S_T0)}, {s(S_LI)}, 5")
    A(f"v_add_u32 v110, {s(S_T0)}, v3")
    A("v_lshrrev_b32 v111, 1, v110")
    A("v_and_b32 v111, 7, v111")
    A("v_xor_b32 v111, v111, v4")
    A("v_lshlrev_b32 v111, 4, v111")
    A("v_lshl_add_u32 v111, v110, 7, v111")
    for st in range(4):
        A(f"v_xor_b32 {v(XA+st)}, {st*32}, v111")
        A(f"v_add_u32 {v(XB+st)}, {2*STG}, {v(XA+st)}")
    A("v_and_b32 v110, 15, v1")
    A("v_lshrrev_b32 v110, 2, v110")
    A("v_lshl_add_u32 v110, v4, 3, v110")
    A("v_lshlrev_b32 v110, 6, v110")
    A("v_bfe_u32 v111, v1, 4, 1")
    A("v_lshl_add_u32 v110, v111, 5, v110")
    A("v_and_b32 v111, 3, v1")
    A("v_lshl_add_u32 v110, v111, 3, v110")
    A(f"v_add_u32 {v(WA)}, 16384, v110")
    A(f"v_add_u32 {v(WB)}, {2*STG}, {v(WA)}")
    A(f"v_add_u32 {v(WC)}, {4*STG}, {v(WA)}")
    ACC = 64
    FR = [160, 176, 128]
    def reads(n):
        c, st = n >> 2, n & 3
        stage = STAGE[c]
        xa = (XA if stage < 2 else XB) + st
        wa = WA if stage < 2 else WB if stage < 4 else WC
        so = (stage & 1) * STG
        xo = so if stage < 4 else 2*STG
        f = FR[n % 3]
        L = [f"ds_read_b128 {v(f,4)}, {v(xa)} offset:{xo}"]
        for p in range(3):
            L.append(f"ds_read_b64_tr_b16 {v(f+4+4*p,2)}, {v(wa)} offset:{so + p*4096 + st*1024}")
            L.append(f"ds_read_b64_tr_b16 {v(f+6+4*p,2)}, {v(wa)} offset:{so + p*4096 + st*1024 + 256}")
        return L
    def mfma(n, p):
        f = FR[n % 3]
        acc = v(ACC + 16*p, 16)
        cin = "0" if n == 0 else acc
        if p < 2: return f"{MF} {acc}, {v(f+4+4*p,4)}, {v(f,4)}, {cin}"
        else:     return f"{MF} {acc}, {v(f,4)}, {v(f+4+4*p,4)}, {cin}"
    def epi_addr():
        A("v_lshlrev_b32 v32, 4, v1")
        A(f"s_lshl_b32 {s(S_T0)}, {s(S_HP)}, 7")
        A(f"s_lshl_b32 {s(S_T1)}, {s(S_RB)}, 2")
        A(f"s_add_u32 {s(S_T0)}, {s(S_T0)}, {s(S_T1)}")
        A(f"s_add_u32 {s(S_T0)}, {s(S_T0)}, {s(S_LI)}")
        A(f"s_lshl_b32 {s(S_T0)}, {s(S_T0)}, 10")
        A(f"s_add_u32 {s(S_T1)}, {s(S_T0)}, {KW}")
        A(f"v_add_u32 v37, {s(S_T1)}, v32")
        A("v_add_u32 v38, 0x10000, v37")
        A("v_and_b32 v34, 15, v1")
        A("v_lshlrev_b32 v34, 4, v34")
        A("v_lshl_add_u32 v34, v4, 8, v34")
        A("v_bfe_u32 v35, v1, 4, 1")
        A(f"s_add_u32 {s(S_T1)}, {s(S_T0)}, {VW}")
        A("v_lshlrev_b32 v39, 16, v35")
        A(f"v_add3_u32 v39, v39, v34, {s(S_T1)}")
        A(f"s_lshl_b32 {s(S_T0)}, {s(S_LI)}, 10")
        A(f"v_add_u32 v33, {s(S_T0)}, v32")
        A(f"s_mul_i32 {s(S_T0)}, {s(S_LI)}, {VTS}")
        A(f"v_mov_b32 v36, {VHS}")
        A("v_mul_u32_u24 v36, v36, v35")
        A(f"v_add3_u32 v36, v36, v34, {s(S_T0)}")
    def halo_addr():
        srd(R_WS, S_WS, WS_BYTES)
        A(f"s_sub_u32 {s(S_T2)}, {s(S_RB)}, 1")
        A(f"s_sub_u32 {s(S_T3)}, {s(S_RB)}, 2")
        A(f"s_max_i32 {s(S_T3)}, {s(S_T3)}, 0")
        A(f"s_max_i32 {s(S_T2)}, {s(S_T2)}, 0")
        A("v_and_b32 v158, 1, v1")
        A("v_cmp_eq_u32 vcc, 1, v158")
        A(f"v_mov_b32 v158, {s(S_T2)}")
        A(f"v_mov_b32 v157, {s(S_T3)}")
        A("v_cndmask_b32 v158, v158, v157, vcc")
        A(f"s_and_b32 {s(S_T0)}, {s(S_HP)}, 7")
        A(f"s_lshl_b32 {s(S_T0)}, {s(S_T0)}, 5")
        A(f"s_lshr_b32 {s(S_T1)}, {s(S_HP)}, 3")
        A(f"s_add_u32 {s(S_T0)}, {s(S_T0)}, {s(S_T1)}")
        A("v_and_b32 v157, 3, v158")
        A("v_lshlrev_b32 v157, 3, v157")
        A("v_lshrrev_b32 v158, 2, v158")
        if opt.get("gray", 1):
            A("v_lshrrev_b32 v159, 1, v158")
            A("v_xor_b32 v158, v158, v159")
        A("v_lshl_add_u32 v157, v158, 1, v157")
        A(f"v_add_u32 v157, {s(S_T0)}, v157")
        A("v_lshlrev_b32 v157, 7, v157")
        A(f"s_lshl_b32 {s(S_T0)}, {s(S_LI)}, 2")
        A(f"s_add_u32 {s(S_T0)}, {s(S_T0)}, {FLG + F_A1}")
        A(f"v_add_u32 v157, {s(S_T0)}, v157")
    A("v_lshlrev_b32 v5, 10, v4")
    A("v_lshl_add_u32 v5, v3, 2, v5")
    A(f"v_add_u32 v5, {s(S_T4)}, v5")
    A(f"s_lshl_b32 {s(S_T0)}, {s(S_WV)}, 1")
    A(f"v_add_u32 v6, {s(S_T0)}, v4")
    A("v_sub_u32 v112, 7, v6")
    A("v_and_b32 v113, 7, v3")
    A("v_xor_b32 v112, v112, v113")
    A("v_lshlrev_b32 v112, 4, v112")
    A("v_lshl_add_u32 v112, v3, 8, v112")
    A(f"v_add_u32 v112, {T0}, v112")
    A("v_lshrrev_b32 v114, 3, v1")
    A(f"s_lshl_b32 {s(S_T0)}, {s(S_LI)}, 4")
    A(f"v_add_u32 v114, {s(S_T0)}, v114")
    A("v_and_b32 v115, 7, v1")
    A("v_lshrrev_b32 v116, 1, v114")
    A("v_and_b32 v116, 7, v116")
    A("v_xor_b32 v116, v116, v115")
    A("v_lshlrev_b32 v117, 7, v114")
    A("v_lshl_add_u32 v118, v116, 4, v117")
    A("v_xor_b32 v116, 4, v116")
    A("v_lshl_add_u32 v119, v116, 4, v117")
    A(f"v_add_u32 v118, {T0}, v118")
    A(f"v_add_u32 v119, {T0 + 1024}, v119")
    A(f"s_lshl_b32 {s(S_T0)}, {s(S_XCD)}, 18")
    A(f"s_lshl_b32 {s(S_T1)}, {s(S_J)}, 7")
    A(f"s_sub_u32 {s(S_T0)}, {s(S_T0)}, {s(S_T1)}")
    A(f"s_add_u32 {s(S_T0)}, {s(S_T0)}, {UR + 1984*2}")
    A("v_lshlrev_b32 v120, 12, v114")
    A("v_lshl_add_u32 v120, v115, 4, v120")
    A(f"v_add_u32 v120, {s(S_T0)}, v120")
    A("v_add_u32 v121, 0x8000, v120")
    A(f"s_waitcnt vmcnt({NTOUCH}) lgkmcnt(0)")
    stamp(2)
    for r in range(11):
        A(f"ds_read_b32 {v(16+r)}, v5 offset:{(5+r)*128}")
    for r in range(8):
        A(f"ds_read_b32 {v(28+r)}, v5 offset:{3072 + r*128}")
    A("v_lshlrev_b32 v78, 16, v36"); A("v_lshlrev_b32 v79, 16, v38")
    A("v_and_b32 v80, 0xffff0000, v36"); A("v_and_b32 v81, 0xffff0000, v38")
    A("v_lshlrev_b32 v82, 16, v37"); A("v_lshlrev_b32 v83, 16, v39")
    A("v_and_b32 v84, 0xffff0000, v37"); A("v_and_b32 v85, 0xffff0000, v39")
    A(f"s_add_u32 {s(S_NONCE)}, {s(S_NONCE)}, 1")
    A("s_waitcnt lgkmcnt(8)")
    for r in range(11):
        A(f"v_lshlrev_b32 {v(40+2*r)}, 16, {v(16+r)}")
        A(f"v_and_b32 {v(41+2*r)}, 0xffff0000, {v(16+r)}")
    for tau in range(8):
        A(f"v_pk_mul_f32 {v(86+2*tau,2)}, {v(40+2*(tau+3),2)}, {v(78,2)}")
    for jj in range(1, 4):
        for tau in range(8):
            d = 86 + 2*tau
            A(f"v_pk_fma_f32 {v(d,2)}, {v(40+2*(tau+3-jj),2)}, {v(78+2*jj,2)}, {v(d,2)}")
    A("s_waitcnt lgkmcnt(0)")
    for r in range(8):
        A(f"v_lshlrev_b32 {v(62+2*r)}, 16, {v(28+r)}")
        A(f"v_and_b32 {v(63+2*r)}, 0xffff0000, {v(28+r)}")
    for tau in range(8):
        d = 86 + 2*tau
        A(f"v_pk_mul_f32 {v(d,2)}, {v(d,2)}, {v(62+2*tau,2)}")
    for e in range(4):
        A(f"v_cvt_pk_bf16_f32 {v(104+e)}, {v(86+2*(7-2*e))}, {v(86+2*(6-2*e))}")
        A(f"v_cvt_pk_bf16_f32 {v(108+e)}, {v(87+2*(7-2*e))}, {v(87+2*(6-2*e))}")
    A("ds_write_b128 v112, v[104:107]")
    A("ds_write_b128 v112, v[108:111] offset:128")
    A("v_mov_b32 v156, 0")
    A(f"v_mov_b32 v16, {OK2}")
    A("ds_write_b32 v16, v156")
    A("s_waitcnt lgkmcnt(0)")
    stamp(3)
    A("s_barrier")
    stamp(4)
    A("ds_read_b128 v[24:27], v118")
    A("ds_read_b128 v[28:31], v119")
    for t in reads(0): A(t)
    A("s_waitcnt lgkmcnt(7)")
    A(f"global_store_dwordx4 v120, v[24:27], {s(S_WS,2)} {SCS}")
    A(f"global_store_dwordx4 v121, v[28:31], {s(S_WS,2)} {SCS}")
    for t in reads(1): A(t)
    for n in range(32):
        if (n & 3) == 2 and n + 2 < 32:
            A("s_waitcnt lgkmcnt(0)")
            if n == 2: epi_addr()
            if n == 6: halo_addr()
            if n == 10:
                A("s_waitcnt vmcnt(0)")
                publish(F_B1, 16, 17)

            if prof and n <= 14: A(f"s_memtime s[{8+2*(n>>2)}:{9+2*(n>>2)}]")
            A("s_barrier")
        elif n + 1 < 32:
            A("s_waitcnt lgkmcnt(7)")
        else:
            A("s_waitcnt lgkmcnt(0)")
        R = reads(n + 2) if n + 2 < 32 else []
        A(mfma(n, 0))
        for t in R[0:3]: A(t)
        A(mfma(n, 1))
        for t in R[3:5]: A(t)
        A(mfma(n, 2))
        for t in R[5:7]: A(t)
    if prof:
        A("s_waitcnt lgkmcnt(0)")
        for c in range(4): A(f"v_writelane_b32 v255, s{8+2*c}, {22+c}")
    stamp(5)
    PK = 112
    for i in range(8):
        A(f"v_cvt_pk_bf16_f32 {v(PK+8+i)}, {v(ACC+16+2*i)}, {v(ACC+17+2*i)}")
    A(f"global_store_dwordx4 v37, {v(PK+8,4)}, {s(S_WS,2)} {SCS}")
    A(f"global_store_dwordx4 v38, {v(PK+12,4)}, {s(S_WS,2)} {SCS}")
    for i in range(8):
        A(f"v_cvt_pk_bf16_f32 {v(PK+16+i)}, {v(ACC+32+2*i)}, {v(ACC+33+2*i)}")
    A(f"global_store_dwordx4 v39, {v(PK+16,4)}, {s(S_WS,2)} {SCS}")
    A(f"global_store_dwordx4 v39, {v(PK+20,4)}, {s(S_WS,2)} offset:512 {SCS}")
    A(f"s_mov_b32 {s(S_T0)}, {QSCALE}")
    for r in range(16):
        A(f"v_mul_f32 {v(ACC+r)}, {s(S_T0)}, {v(ACC+r)}")
    for i in range(8):
        A(f"v_cvt_pk_bf16_f32 {v(PK+i)}, {v(ACC+2*i)}, {v(ACC+2*i+1)}")
    A(f"ds_write_b128 v33, {v(PK+8,4)} offset:{LK + 8*1024}")
    A(f"ds_write_b128 v33, {v(PK+12,4)} offset:{LK + KHS + 8*1024}")
    A(f"ds_write_b128 v36, {v(PK+16,4)} offset:{LV + 8*VTS}")
    A(f"ds_write_b128 v36, {v(PK+20,4)} offset:{LV + 8*VTS + 512}")
    A(f"ds_write_b128 v33, {v(PK,4)} offset:{LQ}")
    A(f"ds_write_b128 v33, {v(PK+4,4)} offset:{LQ+4096}")
    A(f"s_cmp_lg_u32 {s(S_LI)}, 0")
    A("s_cbranch_scc1 L_c_nopad")
    A(f"v_mov_b32 v24, {ONES}"); A("v_mov_b32 v25, v24"); A("v_mov_b32 v26, v24"); A("v_mov_b32 v27, v24")
    A(f"v_mul_u32_u24 v28, {VTS}, v1")
    A("v_cmp_gt_u32 vcc, 24, v1")
    A(f"s_and_saveexec_b64 {s(S_EX,2)}, vcc")
    A(f"ds_write_b128 v28, v[24:27] offset:{LV + 1024}")
    A(f"s_mov_b64 exec, {s(S_EX,2)}")
    A("L_c_nopad:")
    A("s_waitcnt vmcnt(0)")
    publish(F_A1, 16, 17)
    stamp(6)
    flag_load(157, 158)
    A(f"s_mov_b32 {s(S_T4)}, {s(S_T2)}")
    A(f"s_mov_b32 {s(S_T5)}, {s(S_T3)}")
    c_setup()
    call("L_sub_b")
    A(f"s_mov_b32 {s(S_T2)}, {s(S_T4)}")
    A(f"s_mov_b32 {s(S_T3)}, {s(S_T5)}")
    A(f"s_cmp_eq_u32 {s(S_RB)}, 0")
    A("s_cbranch_scc1 L_c_halo_done")
    A("s_waitcnt vmcnt(0)")
    check_or_spin(157, 158, "L_poll_h")
    stamp(7)
    A("v_lshlrev_b32 v18, 4, v1")
    A(f"s_lshl_b32 {s(S_T4)}, {s(S_LI)}, 10")
    A(f"s_mul_i32 {s(S_T5)}, {s(S_LI)}, {VTS}")
    def halo(rbreg, toff):
        A(f"s_lshl_b32 {s(S_T0)}, {s(S_HP)}, 7")
        A(f"s_lshl_b32 {s(S_T1)}, {s(rbreg)}, 2")
        A(f"s_add_u32 {s(S_T0)}, {s(S_T0)}, {s(S_T1)}")
        A(f"s_add_u32 {s(S_T0)}, {s(S_T0)}, {s(S_LI)}")
        A(f"s_lshl_b32 {s(S_T0)}, {s(S_T0)}, 10")
        for hd in range(2):
            A(f"s_add_u32 m0, {s(S_T4)}, {LK + hd*KHS + toff*1024}")
            A(f"s_add_u32 {s(S_T1)}, {s(S_T0)}, {KW + hd*65536}")
            A(f"buffer_load_dwordx4 v18, {s(R_WS,4)}, {s(S_T1)} offen sc1 lds")
            A(f"s_add_u32 m0, {s(S_T5)}, {LV + hd*VHS + toff*VTS}")
            A(f"s_add_u32 {s(S_T1)}, {s(S_T0)}, {VW + hd*65536}")
            A(f"buffer_load_dwordx4 v18, {s(R_WS,4)}, {s(S_T1)} offen sc1 lds")
    halo(S_T2, 4)
    A(f"s_cmp_eq_u32 {s(S_RB)}, 1")
    A("s_cbranch_scc1 L_c_halo_done")
    halo(S_T3, 0)
    A("L_c_halo_done:")
    A(f"s_or_b32 {s(S_T0)}, s2, {s(S_WV)}")
    A(f"s_cmp_lg_u32 {s(S_T0)}, 0")
    A("s_cbranch_scc0 L_st_epoch")
    stubs.append("EPOCH")
    A("L_epdone:")
    A("s_waitcnt lgkmcnt(0)")
    A("s_barrier")
    A("s_waitcnt vmcnt(0) lgkmcnt(0)")
    stamp(8)
    A("s_barrier")
    stamp(9)
    A("s_branch L_a2")

    A("L_lwave:")
    if opt.get("lprio", 0): A(f"s_setprio {opt.get('lprio')}")
    A("v_lshrrev_b32 v220, 3, v1")
    A(f"s_lshl_b32 {s(S_T0)}, {s(S_RB)}, 7")
    A(f"s_lshl_b32 {s(S_T1)}, {s(S_LI)}, 5")
    A(f"s_add_u32 {s(S_T0)}, {s(S_T0)}, {s(S_T1)}")
    A(f"v_add_u32 v220, {s(S_T0)}, v220")
    A("v_lshlrev_b32 v220, 10, v220")
    A("v_and_b32 v221, 7, v1")
    A("v_lshrrev_b32 v222, 4, v1")
    A("v_xor_b32 v223, v221, v222")
    A("v_lshl_add_u32 v200, v223, 4, v220")
    A("v_xor_b32 v223, 4, v223")
    A("v_lshl_add_u32 v201, v223, 4, v220")
    A("v_lshrrev_b32 v220, 2, v1")
    A(f"s_lshl_b32 {s(S_T0)}, {s(S_LI)}, 4")
    A(f"v_add_u32 v220, {s(S_T0)}, v220")
    A(f"v_mul_u32_u24 v220, 3072, v220")
    A("v_and_b32 v221, 3, v1")
    A("v_lshlrev_b32 v221, 4, v221")
    A(f"s_lshl_b32 {s(S_T0)}, {s(S_HP)}, 6")
    A(f"v_add3_u32 v202, v220, v221, {s(S_T0)}")
    S_LX, S_LW = S_T4, S_T5
    A(f"s_lshl_b32 {s(S_LX)}, {s(S_LI)}, 12")
    A(f"s_lshl_b32 {s(S_LW)}, {s(S_LI)}, 10")
    A(f"s_lshl_b32 {s(S_CH)}, {s(S_XCD)}, 6")
    A(f"s_lshl_b32 {s(S_T1)}, {s(S_J)}, 1")
    A(f"s_add_u32 {s(S_CH)}, {s(S_CH)}, {s(S_T1)}")
    A(f"s_lshr_b32 {s(S_T1)}, {s(S_LI)}, 1")
    A(f"s_add_u32 {s(S_CH)}, {s(S_CH)}, {s(S_T1)}")
    A(f"s_mul_i32 {s(S_CBASE)}, {s(S_T1)}, {CB}")
    A(f"s_add_u32 {s(S_CBASE)}, {s(S_CBASE)}, {B2R}")
    A(f"s_and_b32 {s(S_T2)}, {s(S_LI)}, 1")
    A(f"s_lshl_b32 {s(S_T1)}, {s(S_CH)}, 12")
    A(f"s_lshl_b32 {s(S_T3)}, {s(S_T2)}, 11")
    A(f"s_add_u32 {s(S_T1)}, {s(S_T1)}, {s(S_T3)}")
    A("v_lshlrev_b32 v203, 4, v1")
    A(f"v_add_u32 v203, {s(S_T1)}, v203")
    A("v_add_u32 v204, 2, v203")
    A("s_waitcnt lgkmcnt(0)")
    if opt.get("wsoff", 0):
        A(f"s_add_u32 {s(S_WS)}, {s(S_WS)}, {opt['wsoff'] << 20}")
        A(f"s_addc_u32 {s(S_WS+1)}, {s(S_WS+1)}, 0")
    stamp(1)
    srd(R_X, S_X, 2048*1024)
    srd(R_W, S_WQKV, 512*3072)
    A(f"s_load_dword {s(S_NONCE)}, {s(S_WS,2)}, {EP}")
    if opt.get("rot", 1):
        A(f"s_and_b32 {s(S_T0)}, {s(S_RB)}, 3")
        A(f"s_lshl_b32 {s(S_T0)}, {s(S_T0)}, 1")
        A(f"s_add_u32 {s(S_ROT)}, {s(S_HP)}, {s(S_T0)}")
    else:
        A(f"s_mov_b32 {s(S_ROT)}, 0")
    def dma_chunk(c):
        st = STAGE[c] * STG
        A(f"s_add_u32 {s(S_T1)}, {s(S_ROT)}, {c}")
        A(f"s_and_b32 {s(S_T1)}, {s(S_T1)}, 7")
        A(f"s_mul_i32 {s(S_T2)}, {s(S_T1)}, {64*3072}")
        A(f"s_lshl_b32 {s(S_T1)}, {s(S_T1)}, 7")
        for n in range(4):
            A(f"s_add_u32 m0, {s(S_LX)}, {st + n*1024}")
            A(f"s_add_u32 {s(S_T0)}, {s(S_T1)}, {n*8192}")
            A(f"buffer_load_dwordx4 {v(200 + (n & 1))}, {s(R_X,4)}, {s(S_T0)} offen {NT_XW} lds")
        for p in range(3):
            A(f"s_add_u32 m0, {s(S_LW)}, {st + 16384 + p*4096}")
            A(f"s_add_u32 {s(S_T0)}, {s(S_T2)}, {p*1024}")
            A(f"buffer_load_dwordx4 v202, {s(R_W,4)}, {s(S_T0)} offen {NT_XW} lds")
    DIST = opt.get('dist', 3)
    for c in range(DIST): dma_chunk(c)
    def h_loads():
        srd(R_WO, S_SSMK, 512*4096)
        A(f"s_and_b32 {s(S_T2)}, {s(S_LI)}, 1")
        A(f"s_lshl_b32 {s(S_T2)}, {s(S_T2)}, 11")
        A(f"s_add_u32 {s(S_T2)}, {s(S_T2)}, {s(S_CBASE)}")
        for n in range(2):
            A(f"s_add_u32 m0, {s(S_T2)}, {O_OFF + 28 + n*1024}")
            A(f"s_mov_b32 {s(S_T0)}, {n*1024}")
            A(f"buffer_load_dwordx4 v203, {s(R_WO,4)}, {s(S_T0)} offen {NT_B} lds")
            A(f"s_add_u32 m0, {s(S_T2)}, {E_OFF + 32 + n*1024}")
            A(f"buffer_load_dwordx4 v204, {s(R_WO,4)}, {s(S_T0)} offen {NT_B} lds")
        A(f"s_lshl_b32 {s(S_T0)}, {s(S_CH)}, 12")
        A(f"v_mov_b32 v34, {s(S_T0)}")
        A(f"global_load_dword v32, v34, {s(S_SSMK,2)}")
        A(f"s_lshl_b32 {s(S_T0)}, {s(S_CH)}, 1")
        A(f"s_and_b32 {s(S_T0)}, {s(S_T0)}, 0xfffffffc")
        A(f"v_mov_b32 v35, {s(S_T0)}")
        A(f"global_load_dword v33, v35, {s(S_SD,2)}")
    stamp(2)
    AA, AB = 16, 24
    CA = [32, 64]
    CBf = [96, 128]
    CACC = 160
    def build_eo():
        A(f"s_and_b32 {s(S_T2)}, {s(S_LI)}, 1")
        A(f"s_cmp_lg_u32 {s(S_T2)}, 0")
        A("s_cbranch_scc1 L_l_nopad")
        A(f"s_lshr_b32 {s(S_T0)}, {s(S_LI)}, 1")
        A(f"s_lshl_b32 {s(S_T0)}, {s(S_T0)}, 4")
        A(f"v_lshrrev_b32 v33, {s(S_T0)}, v33")
        A("v_lshlrev_b32 v33, 16, v33")
        A("v_lshlrev_b32 v34, 16, v32")
        A("v_add_f32 v34, v33, v34")
        A("v_cvt_pk_bf16_f32 v34, v34, v34")
        A("v_and_b32 v34, 0xffff, v34")
        A("v_and_b32 v35, 0xffff0000, v32")
        A("v_or_b32 v35, v35, v34")
        A("v_lshlrev_b32 v34, 16, v34")
        A("v_mov_b32 v36, 0")
        A("v_lshlrev_b32 v37, 2, v1")
        A(f"v_add_u32 v37, {s(S_CBASE)}, v37")
        A("v_cmp_eq_u32 vcc, 7, v1")
        A("v_cndmask_b32 v34, v36, v34, vcc")
        A("v_cndmask_b32 v35, v36, v35, vcc")
        A("v_cmp_gt_u32 vcc, 8, v1")
        A(f"s_and_saveexec_b64 {s(S_EX,2)}, vcc")
        A(f"ds_write_b32 v37, v34 offset:{E_OFF}")
        A(f"ds_write_b32 v37, v35 offset:{O_OFF}")
        A(f"s_mov_b64 exec, {s(S_EX,2)}")
        A("v_mov_b32 v39, 0")
        A("v_mov_b32 v38, 0")
        A("v_lshlrev_b32 v37, 3, v1")
        A(f"v_add_u32 v37, {s(S_CBASE)}, v37")
        A("v_cmp_gt_u32 vcc, 60, v1")
        A(f"s_and_saveexec_b64 {s(S_EX,2)}, vcc")
        A(f"ds_write_b64 v37, v[38:39] offset:{U_OFF + 4096}")
        A(f"s_mov_b64 exec, {s(S_EX,2)}")
        A("L_l_nopad:")
        A("s_waitcnt lgkmcnt(0)")
    def conv_addr():
        A("v_and_b32 v25, 15, v1")
        A("v_lshrrev_b32 v26, 4, v1")
        A("v_lshrrev_b32 v27, 1, v25")
        A("v_lshl_add_u32 v27, v26, 2, v27")
        A("v_lshlrev_b32 v27, 2, v27")
        A("v_and_b32 v28, 1, v25")
        A(f"v_mul_u32_u24 v28, {O_OFF}, v28")
        A(f"s_and_b32 {s(S_T2)}, {s(S_LI)}, 1")
        A(f"s_lshl_b32 {s(S_T0)}, {s(S_T2)}, 8")
        A(f"s_add_u32 {s(S_T0)}, {s(S_T0)}, {s(S_CBASE)}")
        A(f"v_add3_u32 {v(AA)}, v27, v28, {s(S_T0)}")
        for jj in range(1, 8):
            A(f"v_add_u32 {v(AA+jj)}, {512*jj}, {v(AA)}")
        A("v_lshlrev_b32 v27, 4, v26")
        A("v_lshlrev_b32 v28, 5, v25")
        A("v_sub_u32 v27, v27, v28")
        A(f"s_add_u32 {s(S_T0)}, {s(S_T0)}, {U_OFF + 480}")
        A(f"v_add_u32 {v(AB)}, {s(S_T0)}, v27")
    def ur_dma():
        A(f"s_lshl_b32 {s(S_T0)}, {s(S_CH)}, 12")
        A(f"s_add_u32 {s(S_T0)}, {s(S_T0)}, {UR}")
        A("v_lshlrev_b32 v28, 4, v1")
        for cs in range(2):
            for n in range(4):
                A(f"s_mov_b32 m0, {B2R + cs*CB + U_OFF + n*1024}")
                A(f"s_add_u32 {s(S_T1)}, {s(S_T0)}, {cs*4096 + n*1024}")
                A(f"buffer_load_dwordx4 v28, {s(R_WS,4)}, {s(S_T1)} offen sc1 lds")
    def lbar(c, n):
        if n is not None: A(f"s_waitcnt vmcnt({n})")
        if prof:
            A("s_memtime s[98:99]"); A("s_waitcnt lgkmcnt(0)"); A(f"v_writelane_b32 v255, s98, {22+c}")
        A("s_barrier")
        if prof:
            A("s_memtime s[98:99]"); A("s_waitcnt lgkmcnt(0)"); A(f"v_writelane_b32 v255, s98, {54+c}")
    A("s_waitcnt lgkmcnt(0)")
    A(f"s_lshl_b32 {s(S_T0)}, {s(S_LI)}, 2")
    A(f"s_add_u32 {s(S_T0)}, {s(S_T0)}, {OKW}")
    A(f"v_mov_b32 v29, {s(S_T0)}")
    A("v_mov_b32 v26, 0")
    A("ds_write_b32 v29, v26")
    A("s_waitcnt lgkmcnt(0)")
    def b1_flag_sample():
        A("v_and_b32 v30, 31, v1")
        A("v_lshlrev_b32 v30, 10, v30")
        A(f"s_lshl_b32 {s(S_T0)}, {s(S_XCD)}, 7")
        A(f"s_lshr_b32 {s(S_T1)}, {s(S_J)}, 3")
        A(f"s_lshl_b32 {s(S_T1)}, {s(S_T1)}, 2")
        A(f"s_add_u32 {s(S_T0)}, {s(S_T0)}, {s(S_T1)}")
        A(f"s_add_u32 {s(S_T0)}, {s(S_T0)}, {FLG + F_B1}")
        A(f"v_add_u32 v30, {s(S_T0)}, v30")
        A(f"s_cmp_eq_u32 {s(S_LI)}, 0")
        A("s_cbranch_scc1 L_l_w4a")
        A(f"s_lshl_b32 {s(S_T0)}, s2, 7")
        A(f"s_add_u32 {s(S_T0)}, {s(S_T0)}, {FLG + F_B2}")
        A(f"v_mov_b32 v30, {s(S_T0)}")
        A("L_l_w4a:")
        flag_load(30, 31)
    if DIST == 3:
        lbar(0, 14)
        dma_chunk(3)
        A(f"s_add_u32 {s(S_NONCE)}, {s(S_NONCE)}, 1")
        srd(R_WS, S_WS, WS_BYTES)
        lbar(1, 14)
        dma_chunk(4)
        lbar(2, 14)
        dma_chunk(5)
        lbar(3, 14)
        dma_chunk(6)
        lbar(4, 14)
        dma_chunk(7)
        lbar(5, 14)
        b1_flag_sample()
        h_loads()
        lbar(6, 14)
        conv_addr()
    else:
        lbar(0, 7)
        dma_chunk(2)
        A(f"s_add_u32 {s(S_NONCE)}, {s(S_NONCE)}, 1")
        srd(R_WS, S_WS, WS_BYTES)
        lbar(1, 7)
        dma_chunk(3)
        h_loads()
        lbar(2, 12)
        dma_chunk(4)
        lbar(3, 12)
        dma_chunk(5)
        lbar(4, 7)
        dma_chunk(6)
        lbar(5, 7)
        dma_chunk(7)
        b1_flag_sample()
        build_eo()
        lbar(6, 8)
        conv_addr()
    A("s_waitcnt vmcnt(6)")
    A(f"s_mov_b32 {s(S_OK)}, 0")
    A(f"s_cmp_lg_u32 {s(S_LI)}, 0")
    A("s_cbranch_scc1 L_l_late")
    A(f"v_cmp_ne_u32 vcc, {s(S_NONCE)}, v31")
    A("s_cbranch_vccnz L_l_late")
    ur_dma()
    A(f"s_mov_b32 {s(S_OK)}, 1")
    A("L_l_late:")
    if prof:
        A("s_memtime s[98:99]"); A("s_waitcnt lgkmcnt(0)"); A(f"v_writelane_b32 v255, s98, 29")
    A("s_barrier")
    if opt.get("lprio", 0) != opt.get("cprio", 0): A(f"s_setprio {opt.get('cprio', 0)}")
    stamp(5)
    A(f"v_mov_b32 {v(PFB2)}, 0")
    call("L_sub_b")
    stamp(6)
    A(f"s_cmp_lg_u32 {s(S_LI)}, 0")
    A("s_cbranch_scc1 L_l_have")
    A(f"s_cmp_eq_u32 {s(S_OK)}, 1")
    A("s_cbranch_scc1 L_l_have")
    spin(30, 31, "L_poll_b1")
    ur_dma()
    A("L_l_have:")
    A("s_waitcnt vmcnt(0)")
    stamp(3)
    build_eo()
    stamp(4)
    A(f"v_mov_b32 v26, {s(S_NONCE)}")
    A("ds_write_b32 v29, v26")
    A(f"v_mov_b32 v25, {OKW}")
    A(f"s_mov_b32 {s(S_SPIN)}, {SPIN*8}")
    A("L_l_ospin:")
    A("ds_read_b128 v[32:35], v25")
    A("s_waitcnt lgkmcnt(0)")
    A(f"v_cmp_ne_u32 vcc, {s(S_NONCE)}, v32")
    A(f"v_cmp_ne_u32 {s(S_CMP,2)}, {s(S_NONCE)}, v33")
    A(f"v_cmp_ne_u32 {s(S_CMP+2,2)}, {s(S_NONCE)}, v34")
    A(f"v_cmp_ne_u32 {s(S_CMP+4,2)}, {s(S_NONCE)}, v35")
    A(f"s_or_b64 vcc, vcc, {s(S_CMP,2)}")
    A(f"s_or_b64 vcc, vcc, {s(S_CMP+2,2)}")
    A(f"s_or_b64 vcc, vcc, {s(S_CMP+4,2)}")
    A("s_cbranch_vccz L_l_go")
    A(f"s_sub_u32 {s(S_SPIN)}, {s(S_SPIN)}, 1")
    A(f"s_cmp_lg_u32 {s(S_SPIN)}, 0")
    A("s_cbranch_scc1 L_l_ospin")
    A("L_l_go:")
    A(f"s_and_b32 {s(S_T2)}, {s(S_LI)}, 1")
    stamp(7)
    def conv_reads(ii):
        st = ii & 1
        L = []
        for k in range(8):
            L.append(f"ds_read_b128 {v(CBf[st]+4*k,4)}, {v(AB)} offset:{512*(7-k) + 64*ii}")
            L.append(f"ds_read2_b32 {v(CA[st]+4*k,2)}, {v(AA+k)} offset0:{16*ii} offset1:{16*ii+1}")
            L.append(f"ds_read2_b32 {v(CA[st]+4*k+2,2)}, {v(AA+k)} offset0:{16*ii+2} offset1:{16*ii+3}")
        return L
    r0 = conv_reads(0)
    first = [r0[1], r0[2]] + [r0[3*k] for k in range(8)] + [x for k in range(1, 8) for x in (r0[3*k+1], r0[3*k+2])]
    for r in first: A(r)
    for ii in range(4):
        nxt = conv_reads(ii + 1) if ii < 3 else []
        st = ii & 1
        k = 0
        for jj in range(8):
            if ii == 0:
                if jj == 0: A("s_waitcnt lgkmcnt(14)")
                elif jj == 1: A("s_waitcnt lgkmcnt(0)")
            elif jj == 0:
                A("s_waitcnt lgkmcnt(0)")
            for cp in range(8 - jj):
                acc = v(CACC + 4*(cp + jj), 4)
                cin = "0" if (ii == 0 and jj == 0) else acc
                A(f"{MF16} {acc}, {v(CA[st]+4*jj,4)}, {v(CBf[st]+4*cp,4)}, {cin}")
                if k < len(nxt) and not (ii == 0 and jj == 0):
                    A(nxt[k]); k += 1
        while k < len(nxt):
            A(nxt[k]); k += 1
    stamp(8)
    if opt.get("cprio", 0): A("s_setprio 0")
    A("s_nop 7")
    A(f"s_and_b32 {s(S_T2)}, {s(S_LI)}, 1")
    A("v_lshlrev_b32 v25, 4, v1")
    A(f"s_lshl_b32 {s(S_T0)}, {s(S_LI)}, 12")
    A(f"v_add_u32 v26, {s(S_T0)}, v25")
    A(f"s_xor_b32 {s(S_T0)}, {s(S_T0)}, 4096")
    A(f"v_add_u32 v27, {s(S_T0)}, v25")
    A(f"s_cmp_lg_u32 {s(S_T2)}, 0")
    A("s_cbranch_scc1 L_l_x1")
    for k in range(4):
        A(f"ds_write_b128 v26, {v(CACC+16+4*k,4)} offset:{LR + 1024*k}")
    A("s_waitcnt lgkmcnt(0)")
    A("s_barrier")
    for k in range(4):
        A(f"ds_read_b128 {v(32+4*k,4)}, v27 offset:{LR + 1024*k}")
    A("s_waitcnt lgkmcnt(0)")
    for r in range(16):
        A(f"v_add_f32 {v(48+r)}, {v(32+r)}, {v(CACC+r)}")
    A("s_branch L_l_x2")
    A("L_l_x1:")
    A("s_nop 7")
    for k in range(4):
        A(f"ds_write_b128 v26, {v(CACC+4*k,4)} offset:{LR + 1024*k}")
    A("s_waitcnt lgkmcnt(0)")
    A("s_barrier")
    for k in range(4):
        A(f"ds_read_b128 {v(32+4*k,4)}, v27 offset:{LR + 1024*k}")
    A("s_waitcnt lgkmcnt(0)")
    for r in range(16):
        A(f"v_add_f32 {v(48+r)}, {v(32+r)}, {v(CACC+16+r)}")
    A("L_l_x2:")
    A("v_lshlrev_b32 v248, 4, v1")
    A(f"v_add_u32 v248, {MSK}, v248")
    for k in range(10):
        A(f"ds_read_b128 {v(MM0+4*k,4)}, v248 offset:{1024*k}")
    for k in range(4):
        A(f"v_cvt_pk_bf16_f32 {v(32+2*k)}, {v(48+4*k)}, {v(49+4*k)}")
        A(f"v_cvt_pk_bf16_f32 {v(33+2*k)}, {v(50+4*k)}, {v(51+4*k)}")
    A("v_and_b32 v25, 15, v1")
    A("v_lshlrev_b32 v25, 5, v25")
    A("v_bfe_u32 v26, v1, 4, 1")
    A("v_lshl_add_u32 v25, v26, 9, v25")
    A("v_lshrrev_b32 v26, 5, v1")
    A("v_lshl_add_u32 v25, v26, 4, v25")
    A(f"s_lshl_b32 {s(S_T0)}, {s(S_CH)}, 12")
    A(f"s_lshl_b32 {s(S_T1)}, {s(S_T2)}, 11")
    A(f"s_add_u32 {s(S_T0)}, {s(S_T0)}, {s(S_T1)}")
    A(f"s_add_u32 {s(S_T0)}, {s(S_T0)}, {YT}")
    A(f"v_add_u32 v25, {s(S_T0)}, v25")
    A("v_permlane16_swap_b32 v32, v34")
    A("v_permlane16_swap_b32 v33, v35")
    A("v_permlane16_swap_b32 v36, v38")
    A("v_permlane16_swap_b32 v37, v39")
    A(f"global_store_dwordx4 v25, v[32:35], {s(S_WS,2)} {SCS}")
    A(f"global_store_dwordx4 v25, v[36:39], {s(S_WS,2)} offset:1024 {SCS}")
    A("s_waitcnt lgkmcnt(0)")
    A("s_barrier")
    stamp(9)
    A("L_a2:")
    if DBG: A("s_memrealtime s[10:11]")
    if opt.get("prio", 0): A("s_setprio 1")
    Q, KF, SA, SB, CN, PP, VF, O = 16, 20, 56, 72, 88, 104, 120, 136
    AK, AV0, AV1, TM, TM2 = PAK, PAV0, PAV1, 155, 156
    TM3 = 169
    VQ3, VF2A, VF2 = 160, PFB2, 165
    A(f"ds_read_b128 {v(Q,4)}, {v(PAQ)} offset:{LQ}")
    order = [8, 0, 7, 6, 5, 4, 3, 2, 1]
    for jj in order:
        A(f"ds_read_b128 {v(KF+4*jj,4)}, {v(AK)} offset:{LK + jj*1024}")
    for r in range(4):
        A(f"global_load_dword {v(VQ3+r)}, {v(PQ3)}, {s(S_BQ,2)} offset:{1024*r} {NT_B}")
    buf = lambda jj: SA if (jj & 1) else SB
    A("s_waitcnt lgkmcnt(7)")
    A(f"{MF} {v(MM8,16)}, {v(KF+32,4)}, {v(Q,4)}, {v(MM8,16)}")
    A(f"{MF} {v(MM0,16)}, {v(KF+0,4)}, {v(Q,4)}, {v(MM0,16)}")
    A("s_waitcnt lgkmcnt(5)")
    A(f"{MF} {v(SA,16)}, {v(KF+28,4)}, {v(Q,4)}, 0")
    A(f"{MF} {v(SB,16)}, {v(KF+24,4)}, {v(Q,4)}, 0")
    A(f"s_cmp_gt_u32 {s(S_J0)}, 0")
    A("s_cbranch_scc1 L_st_nomerge")
    stubs.append(["L_st_nomerge:", "s_nop 15", "s_branch L_a2_nomerge"])
    for r in range(16):
        A(f"v_max_f32 {v(MM8+r)}, {v(MM0+r)}, {v(MM8+r)}")
    A("L_a2_nomerge:")
    A(f"v_max_f32 {v(TM)}, {v(MM8)}, {v(MM8+1)}")
    A(f"v_max_f32 {v(TM3)}, {v(MM8+2)}, {v(MM8+3)}")
    for r in range(4, 16, 2):
        t = TM if (r & 2) == 0 else TM3
        A(f"v_max3_f32 {v(t)}, {v(t)}, {v(MM8+r)}, {v(MM8+r+1)}")
    A("s_waitcnt lgkmcnt(0)")
    for jj in range(7, 0, -1):
        b = buf(jj)
        A(f"s_cmp_gt_u32 {s(S_J0)}, {jj}")
        A("s_cbranch_scc1 L_a2_p1done")
        for r in range(0, 16, 2):
            t = TM if (r & 2) == 0 else TM3
            A(f"v_max3_f32 {v(t)}, {v(t)}, {v(b+r)}, {v(b+r+1)}")
        if jj - 2 >= 1:
            A(f"{MF} {v(b,16)}, {v(KF+4*(jj-2),4)}, {v(Q,4)}, 0")
    A("L_a2_p1done:")
    A(f"v_max_f32 {v(TM)}, {v(TM)}, {v(TM3)}")
    A(f"v_mov_b32 {v(TM2)}, {v(TM)}")
    A(f"v_permlane32_swap_b32 {v(TM)}, {v(TM2)}")
    A(f"v_max_f32 {v(TM)}, {v(TM)}, {v(TM2)}")
    A(f"v_sub_f32 {v(TM2)}, 0, {v(TM)}")
    for r in range(16):
        A(f"v_mov_b32 {v(CN+r)}, {v(TM2)}")
    stamp(10)
    A(f"{MF} {v(SA,16)}, {v(KF+28,4)}, {v(Q,4)}, {v(CN,16)}")
    A(f"{MF} {v(SB,16)}, {v(KF+24,4)}, {v(Q,4)}, {v(CN,16)}")
    def vread(slot, jj, sidx):
        A(f"ds_read_b128 {v(VF+4*slot,4)}, {v(AV0 if sidx == 0 else AV1)} offset:{LV + jj*VTS + sidx*512}")
    vread(0, 8, 0); vread(1, 8, 1); vread(2, 0, 0); vread(3, 0, 1)
    def pub_b2(lab, n):
        A(f"s_waitcnt vmcnt({n})")
        A(f"s_cmp_lt_u32 {s(S_WV)}, 4")
        A(f"s_cbranch_scc1 {lab}")
        publish(F_B2, 157, 158)
        A(f"{lab}:")
    if opt.get("prio", 0): A("s_setprio 0")
    pub_b2("L_a2_nopub", 4)
    P0, P1 = PP, PP + 8
    for r in range(16):
        A(f"v_add_f32 {v(MM8+r)}, {v(TM2)}, {v(MM8+r)}")
    for r in range(16):
        A(f"v_exp_f32 {v(MM8+r)}, {v(MM8+r)}")
    for i in range(8):
        A(f"v_cvt_pk_bf16_f32 {v(P0+i)}, {v(MM8+2*i)}, {v(MM8+2*i+1)}")
    for i in range(8):
        A(f"v_and_b32 {v(P1+i)}, {v(MMK+i)}, {v(P0+i)}")
    for i in range(8):
        A(f"v_xor_b32 {v(P0+i)}, {v(P1+i)}, {v(P0+i)}")
    A("s_waitcnt lgkmcnt(0)")
    A(f"{MF} {v(O,16)}, {v(VF+0,4)}, {v(P0,4)}, 0")
    A(f"s_cmp_gt_u32 {s(S_J0)}, 0")
    A("s_cbranch_scc1 L_a2_nopv0")
    A(f"{MF} {v(O,16)}, {v(VF+8,4)}, {v(P1,4)}, {v(O,16)}")
    A(f"{MF} {v(O,16)}, {v(VF+12,4)}, {v(P1+4,4)}, {v(O,16)}")
    A("L_a2_nopv0:")
    pb = lambda jj: PP + 8*(jj & 1)
    sl = lambda jj: 2*(jj & 1)
    def pend(jj):
        if jj == 7: return [f"{MF} {v(O,16)}, {v(VF+4,4)}, {v(P0+4,4)}, {v(O,16)}"]
        p = jj + 1
        return [f"{MF} {v(O,16)}, {v(VF+4*sl(p),4)}, {v(pb(p),4)}, {v(O,16)}",
                f"{MF} {v(O,16)}, {v(VF+4*sl(p)+4,4)}, {v(pb(p)+4,4)}, {v(O,16)}"]
    for jj in range(7, 0, -1):
        b = buf(jj)
        A(f"s_cmp_gt_u32 {s(S_J0)}, {jj}")
        A(f"s_cbranch_scc1 L_st_p2_{jj}")
        def stub(jj=jj):
            A(f"L_st_p2_{jj}:")
            A("s_waitcnt lgkmcnt(0)")
            A("s_nop 1")
            for m in pend(jj): A(m)
            if jj >= 4:
                A(f"s_cmp_ge_u32 {s(S_WV)}, 4")
                A(f"s_cbranch_scc1 L_st_nowo{jj}")
                for n in range(4*(7 - jj), 16): wo_dma(n)
                A(f"L_st_nowo{jj}:")
            if jj >= 3:
                A(f"s_cmp_lg_u32 {s(S_WV)}, 0")
                A("s_cbranch_scc1 L_a2_p2done")
                flag_load(VF2A, VF2)
            A("s_branch L_a2_p2done")
        stubs.append(stub)
        pm = pend(jj)
        pass
        for r in range(16):
            A(f"v_exp_f32 {v(b+r)}, {v(b+r)}")
            if r == 1:
                A("s_waitcnt lgkmcnt(0)")
                A(pm[0])
            if r == 7 and len(pm) > 1: A(pm[1])
            if r == 9:
                vread(sl(jj), jj, 0); vread(sl(jj) + 1, jj, 1)
            if jj >= 4 and r == 11:
                A(f"s_cmp_ge_u32 {s(S_WV)}, 4")
                A(f"s_cbranch_scc1 L_a2_nowo{jj}")
                for n in range(4): wo_dma(4*(7 - jj) + n)
                A(f"L_a2_nowo{jj}:")
            if jj == 3 and r == 13:
                A(f"s_cmp_lg_u32 {s(S_WV)}, 0")
                A("s_cbranch_scc1 L_a2_nosample")
                flag_load(VF2A, VF2)
                A("L_a2_nosample:")
        for i in range(8):
            A(f"v_cvt_pk_bf16_f32 {v(pb(jj)+i)}, {v(b+2*i)}, {v(b+2*i+1)}")
        if jj - 2 >= 1:
            A(f"{MF} {v(b,16)}, {v(KF+4*(jj-2),4)}, {v(Q,4)}, {v(CN,16)}")
    A("s_waitcnt lgkmcnt(0)")
    for m in pend(0): A(m)
    A("L_a2_p2done:")

    A("s_nop 15")
    A(f"v_rcp_f32 {v(TM)}, {v(O+8)}")
    for r in range(8):
        A(f"v_mul_f32 {v(O+r)}, {v(TM)}, {v(O+r)}")
    for i in range(4):
        A(f"v_cvt_pk_bf16_f32 {v(PP+i)}, {v(O+2*i)}, {v(O+2*i+1)}")
    A(f"global_store_dwordx4 {v(PO)}, {v(PP,4)}, {s(S_WS,2)} {SCS}")
    stamp(11)
    tail_addr()
    A(f"s_cmp_ge_u32 {s(S_WV)}, 4")
    A("s_cbranch_scc1 L_noep")
    A("s_waitcnt vmcnt(0)")
    publish(F_A2, 157, 158)
    stamp(12)
    flag_load(PFA2, 31)
    A(f"s_cmp_lg_u32 {s(S_WV)}, 0")
    A("s_cbranch_scc1 L_nob2poll")
    check_or_spin(VF2A, VF2, "L_poll_b2")
    A(f"s_lshl_b32 {s(S_T0)}, {s(S_XCD)}, 18")
    A(f"s_lshl_b32 {s(S_T1)}, {s(S_J)}, 7")
    A(f"s_add_u32 {s(S_T0)}, {s(S_T0)}, {s(S_T1)}")
    A(f"s_add_u32 {s(S_T0)}, {s(S_T0)}, {YT}")
    for n in range(8):
        A(f"s_mov_b32 m0, {LYT + n*1024}")
        A(f"s_add_u32 {s(S_T1)}, {s(S_T0)}, {n*8*4096}")
        A(f"buffer_load_dwordx4 {v(PY0 + (n & 1))}, {s(R_WS,4)}, {s(S_T1)} offen sc1 lds")
    A("L_nob2poll:")
    A("L_noep:")
    A("s_barrier")
    stamp(13)
    WF = 32
    for hs in range(16):
        A(f"ds_read_b64_tr_b16 {v(WF+4*hs,2)}, {v(PAW)} offset:{hs*2048}")
        A(f"ds_read_b64_tr_b16 {v(WF+4*hs+2,2)}, {v(PAW)} offset:{hs*2048 + 1024}")
    A(f"s_cmp_lt_u32 {s(S_WV)}, 4")
    A("s_cbranch_scc1 L_cpub")
    A("s_waitcnt vmcnt(0)")
    publish(F_A2, 157, 158)
    stamp(12)
    flag_load(PFA2, 31)
    A("L_cpub:")
    A("s_waitcnt vmcnt(0)")
    A(f"v_mov_b32 v20, {OK2}")
    A(f"s_cmp_lg_u32 {s(S_WV)}, 0")
    A("s_cbranch_scc1 L_nosig")
    A(f"v_mov_b32 v21, {s(S_NONCE)}")
    A("ds_write_b32 v20, v21")
    A("L_nosig:")
    check_or_spin(PFA2, 31, "L_poll_a2")
    stamp(14)
    A(f"s_lshl_b32 {s(S_T0)}, {s(S_TB64)}, 16")
    A(f"s_lshl_b32 {s(S_T1)}, {s(S_WV)}, 12")
    A(f"s_add_u32 {s(S_T0)}, {s(S_T0)}, {s(S_T1)}")
    for hh in range(4):
        for ts in range(2):
            A(f"s_add_u32 m0, {s(S_T1)}, {LO + ts*32768 + hh*1024}")
            A(f"s_add_u32 {s(S_T2)}, {s(S_T0)}, {OW + ts*32768 + hh*1024}")
            A(f"buffer_load_dwordx4 {v(PL16)}, {s(R_WS,4)}, {s(S_T2)} offen sc1 lds")
    A(f"s_mov_b32 {s(S_SPIN)}, {SPIN*8}")
    A("L_y_spin:")
    A("ds_read_b32 v21, v20")
    A("s_waitcnt lgkmcnt(0)")
    A(f"v_cmp_ne_u32 vcc, {s(S_NONCE)}, v21")
    A("s_cbranch_vccz L_y_ok")
    A(f"s_sub_u32 {s(S_SPIN)}, {s(S_SPIN)}, 1")
    A(f"s_cmp_lg_u32 {s(S_SPIN)}, 0")
    A("s_cbranch_scc1 L_y_spin")
    A("L_y_ok:")
    A(f"ds_read_b64 v[22:23], {v(PYR)}")
    A(f"ds_read_b64 v[24:25], {v(PYR)} offset:128")
    for r in range(4):
        A(f"v_lshlrev_b32 {v(136+2*r)}, 16, {v(VQ3+r)}")
        A(f"v_and_b32 {v(137+2*r)}, 0xffff0000, {v(VQ3+r)}")
    A("s_waitcnt lgkmcnt(0)")
    A("v_lshlrev_b32 v144, 16, v22"); A("v_lshlrev_b32 v145, 16, v24")
    A("v_and_b32 v146, 0xffff0000, v22"); A("v_and_b32 v147, 0xffff0000, v24")
    A("v_lshlrev_b32 v148, 16, v23"); A("v_lshlrev_b32 v149, 16, v25")
    A("v_and_b32 v150, 0xffff0000, v23"); A("v_and_b32 v151, 0xffff0000, v25")
    for r in range(4):
        A(f"v_pk_mul_f32 {v(144+2*r,2)}, {v(144+2*r,2)}, {v(136+2*r,2)}")
    for r in range(4):
        A(f"v_cvt_pk_bf16_f32 {v(152+r)}, {v(144+2*r)}, {v(145+2*r)}")
    A(f"v_add_u32 v21, 0x1000, {v(PB3)}")
    A(f"global_store_dword {v(PB3)}, v152, {s(S_OUT,2)} {BST}")
    A(f"global_store_dword {v(PB3)}, v153, {s(S_OUT,2)} offset:2048 {BST}")
    A(f"global_store_dword v21, v154, {s(S_OUT,2)} {BST}")
    A(f"global_store_dword v21, v155, {s(S_OUT,2)} offset:2048 {BST}")
    A("s_waitcnt vmcnt(4)")
    stamp(15)
    A("s_barrier")
    stamp(16)
    OA = 160
    OF = 96
    for hs in range(16): A(f"ds_read_b128 {v(OF+4*hs,4)}, {v(PAO)} offset:{hs*1024}")
    for hs in range(16):
        if hs % 2 == 0: A(f"s_waitcnt lgkmcnt({min(15, 14 - hs)})" if hs < 14 else "s_waitcnt lgkmcnt(0)")
        cin = "0" if hs == 0 else v(OA,16)
        A(f"{MF} {v(OA,16)}, {v(WF+4*hs,4)}, {v(OF+4*hs,4)}, {cin}")
    if prof:
        A("s_nop 15")
        stamp(21)
    for m in range(4):
        A(f"ds_write_b128 {v(PPW[m])}, {v(OA+4*m,4)}")
    A("s_waitcnt lgkmcnt(0)")
    A("s_barrier")
    stamp(17)
    A(f"ds_read_b128 v[32:35], {v(PPR[0])}"); A(f"ds_read_b128 v[40:43], {v(PPR[2])}")
    A(f"ds_read_b128 v[36:39], {v(PPR[1])}"); A(f"ds_read_b128 v[44:47], {v(PPR[3])}")
    A("s_waitcnt lgkmcnt(0)")
    for r in range(8):
        A(f"v_add_f32 {v(32+r)}, {v(32+r)}, {v(40+r)}")
    for i in range(4):
        A(f"v_cvt_pk_bf16_f32 {v(48+i)}, {v(32+2*i)}, {v(33+2*i)}")
    A(f"global_store_dwordx4 {v(POUT)}, v[48:51], {s(S_OUT,2)} {FST}")
    if prof:
        stamp(18)
        A(f"s_lshl_b32 {s(S_T0)}, s2, 3")
        A(f"s_add_u32 {s(S_T0)}, {s(S_T0)}, {s(S_WV)}")
        A(f"s_lshl_b32 {s(S_T0)}, {s(S_T0)}, 8")
        A(f"s_add_u32 {s(S_T0)}, {s(S_T0)}, {PROF}")
        A("v_lshlrev_b32 v16, 2, v1")
        A(f"v_add_u32 v16, {s(S_T0)}, v16")
        A(f"global_store_dword v16, v255, {s(S_WS,2)}")
    if DBG:
        A("s_memrealtime s[12:13]")
        A("s_waitcnt lgkmcnt(0)")
        A("v_mov_b32 v16, 0")
        A("s_mov_b64 exec, 1")
        A("v_mov_b32 v17, s12"); A(f"global_atomic_umax v16, v17, {s(S_DBG,2)}")
        A("s_not_b32 s8, s8"); A("v_mov_b32 v17, s8"); A(f"global_atomic_umax v16, v17, {s(S_DBG,2)} offset:4")
        A("v_mov_b32 v17, s10"); A(f"global_atomic_umax v16, v17, {s(S_DBG,2)} offset:8")
        A("s_not_b32 s10, s10"); A("v_mov_b32 v17, s10"); A(f"global_atomic_umax v16, v17, {s(S_DBG,2)} offset:12")
        A("s_not_b32 s12, s12"); A("v_mov_b32 v17, s12"); A(f"global_atomic_umax v16, v17, {s(S_DBG,2)} offset:16")
    A("L_end:")
    A("s_endpgm")
    sub_setup()
    for st in stubs:
        if st == "EPOCH":
            A("L_st_epoch:")
            A(f"s_mov_b32 {s(S_SPIN)}, {SPIN}")
            A("v_lshlrev_b32 v20, 7, v1")
            A(f"v_add_u32 v20, {FLG + F_B1}, v20")
            for q in range(1, 4): A(f"v_add_u32 {v(20+q)}, {q*8192}, v20")
            A("L_ep_spin:")
            for q in range(4): A(f"global_load_dword {v(24+q)}, {v(20+q)}, {s(S_WS,2)} {SCP}")
            A("s_waitcnt vmcnt(0)")
            A(f"v_cmp_ne_u32 vcc, {s(S_NONCE)}, v24")
            for q in range(1, 4):
                A(f"v_cmp_ne_u32 {s(S_CMP+2*q,2)}, {s(S_NONCE)}, {v(24+q)}")
            for q in range(1, 4): A(f"s_or_b64 vcc, vcc, {s(S_CMP+2*q,2)}")
            A("s_cbranch_vccz L_ep_ok")
            A(f"s_sub_u32 {s(S_SPIN)}, {s(S_SPIN)}, 1")
            A(f"s_cmp_lg_u32 {s(S_SPIN)}, 0")
            A("s_cbranch_scc1 L_ep_spin")
            A("L_ep_ok:")
            A(f"v_mov_b32 v20, {EP}")
            A(f"v_mov_b32 v21, {s(S_NONCE)}")
            A(f"s_mov_b64 {s(S_EX,2)}, exec")
            A("s_mov_b64 exec, 1")
            A(f"global_store_dword v20, v21, {s(S_WS,2)} {SCS}")
            A(f"s_mov_b64 exec, {s(S_EX,2)}")
            A("s_branch L_epdone")
        elif callable(st):
            st()
        else:
            for line in st: A(line)
    n = a.fix_hazards()
    return a, n

HEAD = f"""; Fused sliding-window attention block + H3 SSM conv, one persistent launch (generated by gen/gen2.py)
; @launch grid=(256,1,1) block=(512,1,1) lds={LDS_BYTES}
.amdgcn_target "amdgcn-amd-amdhsa--gfx950"
.text
.globl {KN}
.p2align 8
.type {KN},@function
{KN}:
"""
TAIL = f""".section .rodata,"a"
.p2align 6
.amdhsa_kernel {KN}
  .amdhsa_next_free_vgpr 256
  .amdhsa_next_free_sgpr 102
  .amdhsa_accum_offset 256
  .amdhsa_group_segment_fixed_size 0
  .amdhsa_kernarg_size 96
  .amdhsa_user_sgpr_count 2
  .amdhsa_user_sgpr_kernarg_segment_ptr 1
  .amdhsa_system_sgpr_workgroup_id_x 1
.end_amdhsa_kernel
"""
if __name__ == "__main__":
    out = sys.argv[1] if len(sys.argv) > 1 else f"cdna_kernels/{NAME}.s"
    opt = {}
    for x in sys.argv[2:]:
        if "=" in x:
            k, val = x.split("="); opt[k] = int(val)
    a, n = build(prof=("prof" in sys.argv), opt=opt)
    open(out, "w").write(HEAD + a.text() + TAIL)
    print("instructions:", a.count(), "hazard pads:", n)
```

```python
import sys
from asmlib import Asm, v, s

NAME = "concat_heads__sliding_block__ssm_conv_h3__prompt"
KN = NAME + "_kernel"

FLG = 0x0
F_B1, F_A1, F_B2, F_A2 = 0, 32768, 65536, 98304
EP  = 0x20000
KW  = 0x100000
VW  = 0x300000
OW  = 0x500000
UR  = 0x700000
YT  = 0x900000
WS_BYTES = 0xB00000
PROF = 0xC00000

STG = 28672
B2R = 114688
CB  = 12864
T0  = B2R
KVS = 140416
E_OFF, O_OFF, U_OFF = 0, 4164, 8288
LK, LV, LQ = 0, 24576, 49536
KHS, VHS, VTS = 12288, 12480, 1040
LR  = 57728
LO  = 0
LWO = 81920
LS0, LS1 = 65536, 147456
LYT = 65536
CSW = 163808
MSK = 147456
OK2 = 163824
OKW = 163792
OKW_OLD = 163832
LDS_BYTES = 163840

S_X, S_WQKV, S_WO, S_BQ, S_BK, S_BV, S_SK, S_SSMK = 16, 18, 20, 22, 24, 26, 28, 30
S_SD, S_OUT, S_DBG, S_WS = 32, 34, 36, 38
R_X, R_W, R_BK, R_WS, R_WO = 40, 44, 48, 52, 56
S_NONCE, S_WV, S_J, S_XCD, S_RB, S_HP = 60, 61, 62, 63, 64, 65
S_T0, S_T1, S_T2, S_T3, S_T4, S_T5 = 66, 67, 68, 69, 70, 71
S_LI = 72
S_J0 = 73
S_SPIN = 74
S_OK = 75
S_EX = 76
S_CBASE, S_CH = 78, 79
S_CMP = 80
S_HD, S_TB64 = 96, 97
S_ROT = 75

PAK, PAV0, PAV1, PAQ = 192, 193, 194, 195
PFB2, PFA2, PY0, PY1, PYR, PO, PWO, PAO, PAW, POUT, PL16, PQ3 = 196, 197, 198, 199, 200, 201, 202, 203, 204, 205, 206, 207
PPW = [9, 10, 11, 12]
PPR = [13, 14, 15, 2]
PB3 = 8
S_LINK = 4
S_WOB, S_WOL = 6, 7
SPIN = 200000
NEGBIG = 0xF149F2CA
QSCALE = 0x3EB8AA3B
ONES = 0x3F803F80
STAGE = [0, 1, 2, 3, 0, 1, 2, 3]
MF = "v_mfma_f32_32x32x16_bf16"
MF16 = "v_mfma_f32_16x16x32_bf16"

def build(prof=False, opt=None):
    opt = opt or {}
    NT_B = "nt" if opt.get("nt_b", 0) else ""
    NT_XW = "nt" if opt.get("nt_xw", 0) else ""
    NT_WO = "nt" if opt.get("nt_wo", 0) else ""
    SCP = {0: "sc0 sc1", 1: "sc1"}[opt.get("sc_poll", 1)]
    SCS = {0: "sc0 sc1", 1: "sc1"}[opt.get("sc_store", 1)]
    SLEEP = opt.get("sleep", 0)
    FST = {0: "", 1: "sc0 sc1", 2: "nt", 3: "sc1"}[opt.get("fst", 2)]
    BST = {0: "", 1: "sc0 sc1", 2: "nt", 3: "sc1"}[opt.get("bst", 2)]
    a = Asm()
    A = a
    stubs = []
    def stamp(k):
        if not prof: return
        A("s_memrealtime s[100:101]")
        A("s_memtime s[98:99]")
        A("s_waitcnt lgkmcnt(0)")
        A(f"v_writelane_b32 v255, s100, {k}")
        A(f"v_writelane_b32 v255, s98, {k+32}")
    def srd(dst, base, nbytes):
        A(f"s_mov_b32 {s(dst)}, {s(base)}")
        A(f"s_and_b32 {s(dst+1)}, {s(base+1)}, 0xffff")
        A(f"s_mov_b32 {s(dst+2)}, {nbytes}")
        A(f"s_mov_b32 {s(dst+3)}, 0x00020000")
    def flag_load(vaddr, vtmp):
        A(f"global_load_dword {v(vtmp)}, {v(vaddr)}, {s(S_WS,2)} {SCP}")
    def spin(vaddr, vtmp, label):
        A(f"s_mov_b32 {s(S_SPIN)}, {SPIN}")
        A(f"{label}:")
        flag_load(vaddr, vtmp)
        A("s_waitcnt vmcnt(0)")
        A(f"v_cmp_ne_u32 vcc, {s(S_NONCE)}, {v(vtmp)}")
        A(f"s_cbranch_vccz {label}_done")
        if SLEEP: A(f"s_sleep {SLEEP}")
        A(f"s_sub_u32 {s(S_SPIN)}, {s(S_SPIN)}, 1")
        A(f"s_cmp_lg_u32 {s(S_SPIN)}, 0")
        A(f"s_cbranch_scc1 {label}")
        A(f"{label}_done:")
    def check_or_spin(vaddr, vtmp, label):
        A(f"v_cmp_ne_u32 vcc, {s(S_NONCE)}, {v(vtmp)}")
        A(f"s_cbranch_vccz {label}_done")
        spin(vaddr, vtmp, label)
    def publish(kind, vt0, vt1):
        A(f"s_lshl_b32 {s(S_T0)}, s2, 7")
        A(f"s_lshl_b32 {s(S_T1)}, {s(S_WV)}, 2")
        A(f"s_add_u32 {s(S_T0)}, {s(S_T0)}, {s(S_T1)}")
        A(f"s_add_u32 {s(S_T0)}, {s(S_T0)}, {FLG + kind}")
        A(f"v_mov_b32 {v(vt0)}, {s(S_T0)}")
        A(f"v_mov_b32 {v(vt1)}, {s(S_NONCE)}")
        A(f"s_mov_b64 {s(S_EX,2)}, exec")
        A(f"s_mov_b64 exec, 1")
        A(f"global_store_dword {v(vt0)}, {v(vt1)}, {s(S_WS,2)} {SCS}")
        A(f"s_mov_b64 exec, {s(S_EX,2)}")

    def record(fn):
        n0 = len(a.items)
        fn()
        out = [it.text for k, it in a.items[n0:]]
        assert all(k == "i" for k, it in a.items[n0:])
        del a.items[n0:]
        return out
    MM0, MM8, MMK = 208, 224, 240
    def gen_masks():
        A("v_and_b32 v248, 31, v1")
        A("v_lshrrev_b32 v249, 5, v1")
        A("v_lshlrev_b32 v249, 2, v249")
        A("v_sub_u32 v248, v248, v249")
        A(f"v_mov_b32 v249, {NEGBIG}")
        A("v_mov_b32 v250, 0xffff")
        for r in range(16):
            cst = (r & 3) + 8*(r >> 2)
            A(f"v_subrev_u32 {v(MM0+r)}, {cst}, v248")
        for r in range(16):
            A(f"v_ashrrev_i32 {v(MM0+r)}, 31, {v(MM0+r)}")
        for i in range(8):
            A(f"v_bfi_b32 {v(MMK+i)}, v250, {v(MM0+2*i)}, {v(MM0+2*i+1)}")
        for r in range(16):
            A(f"v_and_b32 {v(MM8+r)}, v249, {v(MM0+r)}")
        for r in range(16):
            A(f"v_xor_b32 {v(MM0+r)}, v249, {v(MM8+r)}")

    def sub_setup():
        A("L_sub_b:")
        A(f"s_lshr_b32 {s(S_HD)}, {s(S_WV)}, 2")
        A(f"s_lshl_b32 {s(S_T0)}, {s(S_RB)}, 2")
        A(f"s_add_u32 {s(S_T0)}, {s(S_T0)}, {s(S_LI)}")
        A(f"s_sub_i32 {s(S_J0)}, 8, {s(S_T0)}")
        A(f"s_max_i32 {s(S_J0)}, {s(S_J0)}, 0")
        A(f"v_lshlrev_b32 {v(PL16)}, 4, v1")
        A(f"s_lshl_b32 {s(S_T0)}, {s(S_HD)}, 12")
        A(f"s_lshl_b32 {s(S_T1)}, {s(S_LI)}, 10")
        A(f"s_add_u32 {s(S_T0)}, {s(S_T0)}, {s(S_T1)}")
        A(f"v_add_u32 {v(PAQ)}, {s(S_T0)}, {v(PL16)}")
        A(f"s_mul_i32 {s(S_T0)}, {s(S_HD)}, {KHS}")
        A(f"s_add_u32 {s(S_T0)}, {s(S_T0)}, {s(S_T1)}")
        A(f"v_add_u32 {v(PAK)}, {s(S_T0)}, {v(PL16)}")
        A(f"s_mul_i32 {s(S_T0)}, {s(S_HD)}, {VHS}")
        A(f"s_mul_i32 {s(S_T1)}, {s(S_LI)}, {VTS}")
        A(f"s_add_u32 {s(S_T0)}, {s(S_T0)}, {s(S_T1)}")
        A("v_and_b32 v248, 15, v1")
        A("v_lshlrev_b32 v248, 4, v248")
        A("v_lshrrev_b32 v249, 5, v1")
        A("v_lshl_add_u32 v248, v249, 8, v248")
        A("v_bfe_u32 v249, v1, 4, 1")
        A("v_cmp_eq_u32 vcc, 1, v249")
        A("v_mov_b32 v249, 1024")
        A("v_mov_b32 v250, 512")
        A(f"v_cndmask_b32 {v(PAV0)}, v248, v249, vcc")
        A(f"v_cndmask_b32 {v(PAV1)}, v248, v250, vcc")
        A(f"v_add_u32 {v(PAV0)}, {s(S_T0)}, {v(PAV0)}")
        A(f"v_add_u32 {v(PAV1)}, {s(S_T0)}, {v(PAV1)}")
        A(f"s_lshl_b32 {s(S_T0)}, {s(S_RB)}, 2")
        A(f"s_add_u32 {s(S_T0)}, {s(S_T0)}, {s(S_LI)}")
        A(f"s_lshl_b32 {s(S_T0)}, {s(S_T0)}, 5")
        A(f"s_lshl_b32 {s(S_T1)}, {s(S_HP)}, 1")
        A(f"s_add_u32 {s(S_T0)}, {s(S_T0)}, {s(S_T1)}")
        A(f"s_add_u32 {s(S_T0)}, {s(S_T0)}, {s(S_HD)}")
        A(f"s_lshl_b32 {s(S_T0)}, {s(S_T0)}, 10")
        A(f"s_add_u32 {s(S_T0)}, {s(S_T0)}, {OW}")
        A(f"v_add_u32 {v(PO)}, {s(S_T0)}, {v(PL16)}")
        A("v_and_b32 v248, 31, v1")
        A("v_lshrrev_b32 v249, 5, v1")
        A(f"s_lshl_b32 {s(S_T0)}, {s(S_WV)}, 1")
        A(f"v_add_u32 v249, {s(S_T0)}, v249")
        A(f"s_lshl_b32 {s(S_T0)}, {s(S_J)}, 6")
        A("v_lshlrev_b32 v250, 2, v249")
        A(f"v_add_u32 v250, {s(S_T0)}, v250")
        A(f"s_lshl_b32 {s(S_T0)}, {s(S_XCD)}, 7")
        A("v_lshlrev_b32 v251, 2, v248")
        A(f"v_add_u32 v251, {s(S_T0)}, v251")
        A(f"v_lshl_add_u32 {v(PQ3)}, v250, 10, v251")
        A(f"v_lshl_add_u32 {v(PB3)}, v250, 11, v251")
        A(f"v_add_u32 {v(PB3)}, 1024, {v(PB3)}")
        A(f"s_setpc_b64 {s(S_LINK,2)}")
    def c_setup():
        gen_masks()
        A(f"s_cmp_lg_u32 {s(S_WV)}, 0")
        A("s_cbranch_scc1 L_c_nomsk")
        A("v_lshlrev_b32 v248, 4, v1")
        A(f"v_add_u32 v248, {MSK}, v248")
        for k in range(10):
            A(f"ds_write_b128 v248, {v(MM0+4*k,4)} offset:{1024*k}")
        A("L_c_nomsk:")
        A("v_lshrrev_b32 v248, 3, v1")
        A("v_bfe_u32 v249, v248, 1, 1")
        A("v_lshlrev_b32 v249, 2, v249")
        A("v_and_b32 v250, 7, v1")
        A("v_xor_b32 v249, v249, v250")
        A("v_lshlrev_b32 v249, 4, v249")
        A(f"v_lshl_add_u32 {v(PWO)}, v248, 10, v249")
        A(f"s_lshr_b32 {s(S_T0)}, {s(S_J)}, 2")
        A(f"s_lshl_b32 {s(S_T0)}, {s(S_T0)}, 7")
        A(f"s_lshl_b32 {s(S_T1)}, {s(S_WV)}, 16")
        A(f"s_add_u32 {s(S_WOB)}, {s(S_T0)}, {s(S_T1)}")
        A(f"s_lshl_b32 {s(S_WOL)}, {s(S_WV)}, 13")
        srd(R_WO, S_WO, 512*1024)
        A(f"v_lshrrev_b32 {v(PFB2)}, 1, v1")
        A(f"v_lshlrev_b32 {v(PFB2)}, 10, {v(PFB2)}")
        A("v_and_b32 v248, 1, v1")
        A(f"v_lshl_add_u32 {v(PFB2)}, v248, 3, {v(PFB2)}")
        A(f"s_lshr_b32 {s(S_T0)}, {s(S_J)}, 4")
        A(f"s_add_u32 {s(S_T0)}, {s(S_T0)}, 4")
        A(f"s_lshl_b32 {s(S_T0)}, {s(S_T0)}, 2")
        A(f"s_lshl_b32 {s(S_T1)}, {s(S_XCD)}, 7")
        A(f"s_add_u32 {s(S_T0)}, {s(S_T0)}, {s(S_T1)}")
        A(f"s_add_u32 {s(S_T0)}, {s(S_T0)}, {FLG + F_B2}")
        A(f"v_add_u32 {v(PFB2)}, {s(S_T0)}, {v(PFB2)}")
    def tail_addr():
        A("v_and_b32 v248, 31, v1")
        A("v_lshrrev_b32 v249, 5, v1")
        A(f"s_lshl_b32 {s(S_T0)}, {s(S_WV)}, 1")
        A(f"v_add_u32 v249, {s(S_T0)}, v249")
        A("v_lshrrev_b32 v250, 1, v249")
        A("v_and_b32 v251, 7, v248")
        A("v_xor_b32 v250, v250, v251")
        A("v_lshlrev_b32 v250, 4, v250")
        A("v_and_b32 v251, 1, v249")
        A("v_lshl_add_u32 v250, v251, 3, v250")
        A("v_lshl_add_u32 v250, v248, 8, v250")
        A(f"v_add_u32 {v(PYR)}, {LYT}, v250")
        A(f"s_lshr_b32 {s(S_TB64)}, {s(S_RB)}, 2")
        A(f"s_lshl_b32 {s(S_TB64)}, {s(S_TB64)}, 1")
        A(f"s_and_b32 {s(S_T0)}, {s(S_XCD)}, 1")
        A(f"s_add_u32 {s(S_TB64)}, {s(S_TB64)}, {s(S_T0)}")
        A(f"s_lshl_b32 {s(S_TB64)}, {s(S_TB64)}, 2")
        A(f"s_and_b32 {s(S_T0)}, {s(S_J)}, 3")
        A(f"s_add_u32 {s(S_TB64)}, {s(S_TB64)}, {s(S_T0)}")
        A("v_and_b32 v248, 1, v1")
        A("v_bfe_u32 v249, v1, 1, 2")
        A(f"s_lshl_b32 {s(S_T0)}, {s(S_WV)}, 2")
        A(f"v_add_u32 v249, {s(S_T0)}, v249")
        A(f"s_lshl_b32 {s(S_T0)}, {s(S_TB64)}, 1")
        A(f"v_add_u32 v248, {s(S_T0)}, v248")
        A("v_lshrrev_b32 v250, 2, v248")
        A("v_lshrrev_b32 v251, 1, v249")
        A("v_and_b32 v252, 3, v250")
        A("v_and_b32 v253, 7, v251")
        A("v_lshl_add_u32 v252, v253, 2, v252")
        A("v_lshlrev_b32 v252, 3, v252")
        A("v_lshrrev_b32 v253, 2, v250")
        if opt.get("gray", 1):
            A("v_lshrrev_b32 v250, 1, v253")
            A("v_xor_b32 v253, v253, v250")
        A("v_lshl_add_u32 v252, v253, 1, v252")
        A("v_lshrrev_b32 v253, 3, v251")
        A("v_add_u32 v252, v252, v253")
        A("v_lshlrev_b32 v252, 7, v252")
        A("v_and_b32 v253, 3, v248")
        A("v_and_b32 v250, 1, v249")
        A("v_lshl_add_u32 v253, v250, 2, v253")
        A("v_lshl_add_u32 v252, v253, 2, v252")
        A(f"v_add_u32 {v(PFA2)}, {FLG + F_A2}, v252")
        A("v_lshrrev_b32 v248, 3, v1")
        A("v_and_b32 v249, 7, v1")
        A("v_lshrrev_b32 v250, 1, v248")
        A("v_xor_b32 v249, v249, v250")
        A("v_lshlrev_b32 v248, 12, v248")
        A(f"v_lshl_add_u32 {v(PY0)}, v249, 4, v248")
        A("v_xor_b32 v249, 4, v249")
        A(f"v_lshl_add_u32 {v(PY1)}, v249, 4, v248")
        A(f"s_and_b32 {s(S_T0)}, {s(S_WV)}, 1")
        A(f"s_lshl_b32 {s(S_T0)}, {s(S_T0)}, 15")
        A(f"s_lshl_b32 {s(S_T2)}, {s(S_HD)}, 14")
        A(f"s_add_u32 {s(S_T0)}, {s(S_T0)}, {s(S_T2)}")
        A(f"v_add_u32 {v(PAO)}, {s(S_T0)}, {v(PL16)}")
        A("v_and_b32 v248, 15, v1")
        A("v_lshrrev_b32 v248, 2, v248")
        A("v_lshrrev_b32 v249, 5, v1")
        A("v_lshl_add_u32 v249, v249, 2, v248")
        A("v_lshlrev_b32 v249, 7, v249")
        A("v_lshrrev_b32 v248, 1, v248")
        A(f"s_bfe_u32 {s(S_T0)}, {s(S_WV)}, 0x10001")
        A(f"v_xor_b32 v248, {s(S_T0)}, v248")
        A("v_lshl_add_u32 v249, v248, 6, v249")
        A("v_bfe_u32 v248, v1, 4, 1")
        A("v_lshl_add_u32 v249, v248, 5, v249")
        A("v_and_b32 v248, 3, v1")
        A("v_lshl_add_u32 v249, v248, 3, v249")
        A(f"s_lshl_b32 {s(S_T2)}, {s(S_HD)}, 15")
        A(f"s_add_u32 {s(S_T2)}, {s(S_T2)}, {LWO}")
        A(f"v_add_u32 {v(PAW)}, {s(S_T2)}, v249")
        A("v_and_b32 v248, 31, v1")
        A("v_lshrrev_b32 v249, 5, v1")
        A(f"s_lshl_b32 {s(S_T0)}, {s(S_T0)}, 3")
        A(f"v_add_u32 v249, {s(S_T0)}, v249")
        A("v_and_b32 v250, 15, v248")
        A("v_xor_b32 v249, v249, v250")
        A("v_lshlrev_b32 v249, 4, v249")
        A(f"s_and_b32 {s(S_T0)}, {s(S_WV)}, 1")
        A(f"s_lshl_b32 {s(S_T0)}, {s(S_T0)}, 13")
        A(f"s_mul_i32 {s(S_T2)}, {s(S_HD)}, {LS1 - LS0}")
        A(f"s_add_u32 {s(S_T0)}, {s(S_T0)}, {s(S_T2)}")
        A(f"s_add_u32 {s(S_T0)}, {s(S_T0)}, {LS0}")
        A("v_lshl_add_u32 v249, v248, 8, v249")
        A(f"v_add_u32 v249, {s(S_T0)}, v249")
        for m in range(4):
            A(f"v_xor_b32 {v(PPW[m])}, {m*32}, v249")
        A("v_lshrrev_b32 v248, 3, v0")
        A("v_and_b32 v249, 7, v0")
        A("v_lshlrev_b32 v250, 1, v249")
        A("v_and_b32 v251, 15, v248")
        A("v_xor_b32 v250, v250, v251")
        A("v_lshlrev_b32 v250, 4, v250")
        A("v_lshl_add_u32 v250, v248, 8, v250")
        A("v_xor_b32 v251, 16, v250")
        A(f"v_add_u32 {v(PPR[0])}, {LS0}, v250"); A(f"v_add_u32 {v(PPR[1])}, {LS0}, v251")
        A(f"v_add_u32 {v(PPR[2])}, {LS1}, v250"); A(f"v_add_u32 {v(PPR[3])}, {LS1}, v251")
        A(f"s_lshl_b32 {s(S_T0)}, {s(S_TB64)}, 17")
        A(f"s_lshr_b32 {s(S_T1)}, {s(S_J)}, 2")
        A(f"s_lshl_b32 {s(S_T1)}, {s(S_T1)}, 7")
        A(f"s_add_u32 {s(S_T0)}, {s(S_T0)}, {s(S_T1)}")
        A("v_lshlrev_b32 v250, 11, v248")
        A("v_lshl_add_u32 v250, v249, 4, v250")
        A(f"v_add_u32 {v(POUT)}, {s(S_T0)}, v250")
    def call(lab): A(f"s_call_b64 {s(S_LINK,2)}, {lab}")
    def wo_dma(n):
        A(f"s_add_u32 m0, {s(S_WOL)}, {LWO + (n & 7)*1024 + (n >> 3)*4*8192}")
        A(f"s_add_u32 {s(S_T1)}, {s(S_WOB)}, {(n & 7)*8192 + (n >> 3)*4*65536}")
        A(f"buffer_load_dwordx4 {v(PWO)}, {s(R_WO,4)}, {s(S_T1)} offen {NT_WO} lds")

    stamp(0)
    DBG = opt.get("dbg", 0)
    if DBG: A("s_memrealtime s[8:9]")
    A("s_load_dwordx16 s[16:31], s[0:1], 0")
    A("s_load_dwordx8 s[32:39], s[0:1], 64")
    A("s_cmp_ge_u32 s2, 256")
    A("s_cbranch_scc1 L_end")
    A("v_and_b32 v1, 63, v0")
    A("v_lshrrev_b32 v2, 6, v0")
    A(f"s_and_b32 {s(S_XCD)}, s2, 7")
    A(f"s_lshr_b32 {s(S_J)}, s2, 3")
    A(f"v_readfirstlane_b32 {s(S_WV)}, v2")
    GRAY = opt.get("gray", 1)
    A(f"s_lshr_b32 {s(S_T0)}, {s(S_XCD)}, 1")
    if GRAY:
        A(f"s_lshr_b32 {s(S_T1)}, {s(S_T0)}, 1")
        A(f"s_xor_b32 {s(S_T0)}, {s(S_T0)}, {s(S_T1)}")
    A(f"s_lshl_b32 {s(S_T0)}, {s(S_T0)}, 2")
    A(f"s_and_b32 {s(S_T1)}, {s(S_J)}, 3")
    A(f"s_add_u32 {s(S_RB)}, {s(S_T0)}, {s(S_T1)}")
    A(f"s_and_b32 {s(S_T0)}, {s(S_XCD)}, 1")
    A(f"s_lshl_b32 {s(S_T0)}, {s(S_T0)}, 3")
    A(f"s_lshr_b32 {s(S_T1)}, {s(S_J)}, 2")
    A(f"s_add_u32 {s(S_HP)}, {s(S_T0)}, {s(S_T1)}")
    A(f"s_and_b32 {s(S_LI)}, {s(S_WV)}, 3")
    A("v_and_b32 v3, 31, v1")
    A("v_lshrrev_b32 v4, 5, v1")
    A(f"s_cmp_ge_u32 {s(S_WV)}, 4")
    A("s_cbranch_scc1 L_lwave")
    A("v_lshrrev_b32 v5, 3, v1")
    A("v_and_b32 v6, 7, v1")
    A("v_lshlrev_b32 v6, 4, v6")
    A(f"s_lshl_b32 {s(S_T0)}, {s(S_J)}, 6")
    A(f"s_lshl_b32 {s(S_T1)}, {s(S_WV)}, 4")
    A(f"s_add_u32 {s(S_T0)}, {s(S_T0)}, {s(S_T1)}")
    A(f"v_add_u32 v5, {s(S_T0)}, v5")
    A("v_lshlrev_b32 v5, 10, v5")
    A(f"s_lshl_b32 {s(S_T1)}, {s(S_XCD)}, 7")
    A(f"v_add3_u32 v7, v5, v6, {s(S_T1)}")
    A("v_add_u32 v8, 0xffffe000, v7")
    A("v_add_u32 v9, 0x2000, v7")
    A(f"s_mul_i32 {s(S_T4)}, {s(S_WV)}, 5120")
    A(f"s_add_u32 {s(S_T4)}, {s(S_T4)}, {KVS}")
    A(f"s_lshl_b32 {s(S_T0)}, {s(S_XCD)}, 9")
    A("v_lshlrev_b32 v11, 4, v3")
    A(f"v_add_u32 v11, {s(S_T0)}, v11")
    A("s_waitcnt lgkmcnt(0)")
    if opt.get("wsoff", 0):
        A(f"s_add_u32 {s(S_WS)}, {s(S_WS)}, {opt['wsoff'] << 20}")
        A(f"s_addc_u32 {s(S_WS+1)}, {s(S_WS+1)}, 0")
    stamp(1)
    srd(R_BK, S_BK, 2048*1024)
    srd(R_X, S_BV, 2048*1024)
    A(f"s_load_dword {s(S_NONCE)}, {s(S_WS,2)}, {EP}")
    for n, vr in enumerate((8, 7, 9)):
        A(f"s_add_u32 m0, {s(S_T4)}, {n*1024}")
        A(f"buffer_load_dwordx4 {v(vr)}, {s(R_BK,4)}, 0 offen {NT_B} lds")
    for n, vr in enumerate((7, 9)):
        A(f"s_add_u32 m0, {s(S_T4)}, {3072 + n*1024}")
        A(f"buffer_load_dwordx4 {v(vr)}, {s(R_X,4)}, 0 offen {NT_B} lds")
    A(f"global_load_dwordx4 v[36:39], v11, {s(S_SK,2)}")
    NTOUCH = 0
    if opt.get("cpf", 0):
        NCP = opt.get("cpf")
        A(f"s_cmp_ge_u32 {s(S_J)}, 2")
        A("s_cbranch_scc1 L_nocpf")
        A("s_getpc_b64 s[98:99]")
        A("s_and_b32 s98, s98, 0xffffff00")
        A(f"s_mul_i32 {s(S_T0)}, {s(S_LI)}, {NCP*1024}")
        A("v_lshlrev_b32 v40, 4, v1")
        A(f"v_add_u32 v40, {s(S_T0)}, v40")
        for k in range(NCP):
            A(f"global_load_dwordx4 v[200:203], v40, s[98:99] offset:{(k % 4)*1024}")
            if k % 4 == 3: A("v_add_u32 v40, 0x1000, v40")
        A("L_nocpf:")
    if opt.get("touch", 0):
        A("v_and_b32 v40, 7, v1")
        A("v_lshlrev_b32 v40, 21, v40")
        A("v_min_u32 v40, 0xa00000, v40")
        A(f"global_load_dword v200, v40, {s(S_WS,2)} offset:2048")
        A(f"s_lshl_b32 {s(S_T0)}, {s(S_J)}, 16")
        A(f"v_mov_b32 v42, {s(S_T0)}")
        A(f"global_load_dword v201, v42, {s(S_BQ,2)}")
        A(f"s_lshl_b32 {s(S_T0)}, {s(S_J)}, 17")
        A(f"v_mov_b32 v44, {s(S_T0)}")
        A(f"global_load_dword v202, v44, {s(S_OUT,2)}")
        A(f"s_lshl_b32 {s(S_T0)}, {s(S_XCD)}, 19")
        A(f"v_mov_b32 v46, {s(S_T0)}")
        A(f"global_load_dword v203, v46, {s(S_OUT,2)}")
        A("v_mov_b32 v48, 0")
        A(f"global_load_dword v204, v48, {s(S_WO,2)}")
        A(f"global_load_dword v205, v48, {s(S_SSMK,2)}")
        NTOUCH = 6
    XA, XB, WA, WB, WC = 144, 148, 152, 153, 154
    A(f"s_lshl_b32 {s(S_T0)}, {s(S_LI)}, 5")
    A(f"v_add_u32 v110, {s(S_T0)}, v3")
    A("v_lshrrev_b32 v111, 1, v110")
    A("v_and_b32 v111, 7, v111")
    A("v_xor_b32 v111, v111, v4")
    A("v_lshlrev_b32 v111, 4, v111")
    A("v_lshl_add_u32 v111, v110, 7, v111")
    for st in range(4):
        A(f"v_xor_b32 {v(XA+st)}, {st*32}, v111")
        A(f"v_add_u32 {v(XB+st)}, {2*STG}, {v(XA+st)}")
    A("v_and_b32 v110, 15, v1")
    A("v_lshrrev_b32 v110, 2, v110")
    A("v_lshl_add_u32 v110, v4, 3, v110")
    A("v_lshlrev_b32 v110, 6, v110")
    A("v_bfe_u32 v111, v1, 4, 1")
    A("v_lshl_add_u32 v110, v111, 5, v110")
    A("v_and_b32 v111, 3, v1")
    A("v_lshl_add_u32 v110, v111, 3, v110")
    A(f"v_add_u32 {v(WA)}, 16384, v110")
    A(f"v_add_u32 {v(WB)}, {2*STG}, {v(WA)}")
    A(f"v_add_u32 {v(WC)}, {4*STG}, {v(WA)}")
    ACC = 64
    FR = [160, 176, 128]
    def reads(n):
        c, st = n >> 2, n & 3
        stage = STAGE[c]
        xa = (XA if stage < 2 else XB) + st
        wa = WA if stage < 2 else WB if stage < 4 else WC
        so = (stage & 1) * STG
        xo = so if stage < 4 else 2*STG
        f = FR[n % 3]
        L = [f"ds_read_b128 {v(f,4)}, {v(xa)} offset:{xo}"]
        for p in range(3):
            L.append(f"ds_read_b64_tr_b16 {v(f+4+4*p,2)}, {v(wa)} offset:{so + p*4096 + st*1024}")
            L.append(f"ds_read_b64_tr_b16 {v(f+6+4*p,2)}, {v(wa)} offset:{so + p*4096 + st*1024 + 256}")
        return L
    def mfma(n, p):
        f = FR[n % 3]
        acc = v(ACC + 16*p, 16)
        cin = "0" if n == 0 else acc
        if p < 2: return f"{MF} {acc}, {v(f+4+4*p,4)}, {v(f,4)}, {cin}"
        else:     return f"{MF} {acc}, {v(f,4)}, {v(f+4+4*p,4)}, {cin}"
    def epi_addr():
        A("v_lshlrev_b32 v32, 4, v1")
        A(f"s_lshl_b32 {s(S_T0)}, {s(S_HP)}, 7")
        A(f"s_lshl_b32 {s(S_T1)}, {s(S_RB)}, 2")
        A(f"s_add_u32 {s(S_T0)}, {s(S_T0)}, {s(S_T1)}")
        A(f"s_add_u32 {s(S_T0)}, {s(S_T0)}, {s(S_LI)}")
        A(f"s_lshl_b32 {s(S_T0)}, {s(S_T0)}, 10")
        A(f"s_add_u32 {s(S_T1)}, {s(S_T0)}, {KW}")
        A(f"v_add_u32 v37, {s(S_T1)}, v32")
        A("v_add_u32 v38, 0x10000, v37")
        A("v_and_b32 v34, 15, v1")
        A("v_lshlrev_b32 v34, 4, v34")
        A("v_lshl_add_u32 v34, v4, 8, v34")
        A("v_bfe_u32 v35, v1, 4, 1")
        A(f"s_add_u32 {s(S_T1)}, {s(S_T0)}, {VW}")
        A("v_lshlrev_b32 v39, 16, v35")
        A(f"v_add3_u32 v39, v39, v34, {s(S_T1)}")
        A(f"s_lshl_b32 {s(S_T0)}, {s(S_LI)}, 10")
        A(f"v_add_u32 v33, {s(S_T0)}, v32")
        A(f"s_mul_i32 {s(S_T0)}, {s(S_LI)}, {VTS}")
        A(f"v_mov_b32 v36, {VHS}")
        A("v_mul_u32_u24 v36, v36, v35")
        A(f"v_add3_u32 v36, v36, v34, {s(S_T0)}")
    def halo_addr():
        srd(R_WS, S_WS, WS_BYTES)
        A(f"s_sub_u32 {s(S_T2)}, {s(S_RB)}, 1")
        A(f"s_sub_u32 {s(S_T3)}, {s(S_RB)}, 2")
        A(f"s_max_i32 {s(S_T3)}, {s(S_T3)}, 0")
        A(f"s_max_i32 {s(S_T2)}, {s(S_T2)}, 0")
        A("v_and_b32 v158, 1, v1")
        A("v_cmp_eq_u32 vcc, 1, v158")
        A(f"v_mov_b32 v158, {s(S_T2)}")
        A(f"v_mov_b32 v157, {s(S_T3)}")
        A("v_cndmask_b32 v158, v158, v157, vcc")
        A(f"s_and_b32 {s(S_T0)}, {s(S_HP)}, 7")
        A(f"s_lshl_b32 {s(S_T0)}, {s(S_T0)}, 5")
        A(f"s_lshr_b32 {s(S_T1)}, {s(S_HP)}, 3")
        A(f"s_add_u32 {s(S_T0)}, {s(S_T0)}, {s(S_T1)}")
        A("v_and_b32 v157, 3, v158")
        A("v_lshlrev_b32 v157, 3, v157")
        A("v_lshrrev_b32 v158, 2, v158")
        if opt.get("gray", 1):
            A("v_lshrrev_b32 v159, 1, v158")
            A("v_xor_b32 v158, v158, v159")
        A("v_lshl_add_u32 v157, v158, 1, v157")
        A(f"v_add_u32 v157, {s(S_T0)}, v157")
        A("v_lshlrev_b32 v157, 7, v157")
        A(f"s_lshl_b32 {s(S_T0)}, {s(S_LI)}, 2")
        A(f"s_add_u32 {s(S_T0)}, {s(S_T0)}, {FLG + F_A1}")
        A(f"v_add_u32 v157, {s(S_T0)}, v157")
    A("v_lshlrev_b32 v5, 10, v4")
    A("v_lshl_add_u32 v5, v3, 2, v5")
    A(f"v_add_u32 v5, {s(S_T4)}, v5")
    A(f"s_lshl_b32 {s(S_T0)}, {s(S_WV)}, 1")
    A(f"v_add_u32 v6, {s(S_T0)}, v4")
    A("v_sub_u32 v112, 7, v6")
    A("v_and_b32 v113, 7, v3")
    A("v_xor_b32 v112, v112, v113")
    A("v_lshlrev_b32 v112, 4, v112")
    A("v_lshl_add_u32 v112, v3, 8, v112")
    A(f"v_add_u32 v112, {T0}, v112")
    A("v_lshrrev_b32 v114, 3, v1")
    A(f"s_lshl_b32 {s(S_T0)}, {s(S_LI)}, 4")
    A(f"v_add_u32 v114, {s(S_T0)}, v114")
    A("v_and_b32 v115, 7, v1")
    A("v_lshrrev_b32 v116, 1, v114")
    A("v_and_b32 v116, 7, v116")
    A("v_xor_b32 v116, v116, v115")
    A("v_lshlrev_b32 v117, 7, v114")
    A("v_lshl_add_u32 v118, v116, 4, v117")
    A("v_xor_b32 v116, 4, v116")
    A("v_lshl_add_u32 v119, v116, 4, v117")
    A(f"v_add_u32 v118, {T0}, v118")
    A(f"v_add_u32 v119, {T0 + 1024}, v119")
    A(f"s_lshl_b32 {s(S_T0)}, {s(S_XCD)}, 18")
    A(f"s_lshl_b32 {s(S_T1)}, {s(S_J)}, 7")
    A(f"s_sub_u32 {s(S_T0)}, {s(S_T0)}, {s(S_T1)}")
    A(f"s_add_u32 {s(S_T0)}, {s(S_T0)}, {UR + 1984*2}")
    A("v_lshlrev_b32 v120, 12, v114")
    A("v_lshl_add_u32 v120, v115, 4, v120")
    A(f"v_add_u32 v120, {s(S_T0)}, v120")
    A("v_add_u32 v121, 0x8000, v120")
    A(f"s_waitcnt vmcnt({NTOUCH}) lgkmcnt(0)")
    stamp(2)
    for r in range(11):
        A(f"ds_read_b32 {v(16+r)}, v5 offset:{(5+r)*128}")
    for r in range(8):
        A(f"ds_read_b32 {v(28+r)}, v5 offset:{3072 + r*128}")
    A("v_lshlrev_b32 v78, 16, v36"); A("v_lshlrev_b32 v79, 16, v38")
    A("v_and_b32 v80, 0xffff0000, v36"); A("v_and_b32 v81, 0xffff0000, v38")
    A("v_lshlrev_b32 v82, 16, v37"); A("v_lshlrev_b32 v83, 16, v39")
    A("v_and_b32 v84, 0xffff0000, v37"); A("v_and_b32 v85, 0xffff0000, v39")
    A(f"s_add_u32 {s(S_NONCE)}, {s(S_NONCE)}, 1")
    A("s_waitcnt lgkmcnt(8)")
    for r in range(11):
        A(f"v_lshlrev_b32 {v(40+2*r)}, 16, {v(16+r)}")
        A(f"v_and_b32 {v(41+2*r)}, 0xffff0000, {v(16+r)}")
    for tau in range(8):
        A(f"v_pk_mul_f32 {v(86+2*tau,2)}, {v(40+2*(tau+3),2)}, {v(78,2)}")
    for jj in range(1, 4):
        for tau in range(8):
            d = 86 + 2*tau
            A(f"v_pk_fma_f32 {v(d,2)}, {v(40+2*(tau+3-jj),2)}, {v(78+2*jj,2)}, {v(d,2)}")
    A("s_waitcnt lgkmcnt(0)")
    for r in range(8):
        A(f"v_lshlrev_b32 {v(62+2*r)}, 16, {v(28+r)}")
        A(f"v_and_b32 {v(63+2*r)}, 0xffff0000, {v(28+r)}")
    for tau in range(8):
        d = 86 + 2*tau
        A(f"v_pk_mul_f32 {v(d,2)}, {v(d,2)}, {v(62+2*tau,2)}")
    for e in range(4):
        A(f"v_cvt_pk_bf16_f32 {v(104+e)}, {v(86+2*(7-2*e))}, {v(86+2*(6-2*e))}")
        A(f"v_cvt_pk_bf16_f32 {v(108+e)}, {v(87+2*(7-2*e))}, {v(87+2*(6-2*e))}")
    A("ds_write_b128 v112, v[104:107]")
    A("ds_write_b128 v112, v[108:111] offset:128")
    A("v_mov_b32 v156, 0")
    A(f"v_mov_b32 v16, {OK2}")
    A("ds_write_b32 v16, v156")
    A("s_waitcnt lgkmcnt(0)")
    stamp(3)
    A("s_barrier")
    stamp(4)
    A("ds_read_b128 v[24:27], v118")
    A("ds_read_b128 v[28:31], v119")
    for t in reads(0): A(t)
    A("s_waitcnt lgkmcnt(7)")
    A(f"global_store_dwordx4 v120, v[24:27], {s(S_WS,2)} {SCS}")
    A(f"global_store_dwordx4 v121, v[28:31], {s(S_WS,2)} {SCS}")
    for t in reads(1): A(t)
    for n in range(32):
        if (n & 3) == 2 and n + 2 < 32:
            A("s_waitcnt lgkmcnt(0)")
            if n == 2: epi_addr()
            if n == 6: halo_addr()
            if n == 10:
                A("s_waitcnt vmcnt(0)")
                publish(F_B1, 16, 17)

            if prof and n <= 14: A(f"s_memtime s[{8+2*(n>>2)}:{9+2*(n>>2)}]")
            A("s_barrier")
        elif n + 1 < 32:
            A("s_waitcnt lgkmcnt(7)")
        else:
            A("s_waitcnt lgkmcnt(0)")
        R = reads(n + 2) if n + 2 < 32 else []
        A(mfma(n, 0))
        for t in R[0:3]: A(t)
        A(mfma(n, 1))
        for t in R[3:5]: A(t)
        A(mfma(n, 2))
        for t in R[5:7]: A(t)
    if prof:
        A("s_waitcnt lgkmcnt(0)")
        for c in range(4): A(f"v_writelane_b32 v255, s{8+2*c}, {22+c}")
    stamp(5)
    PK = 112
    for i in range(8):
        A(f"v_cvt_pk_bf16_f32 {v(PK+8+i)}, {v(ACC+16+2*i)}, {v(ACC+17+2*i)}")
    A(f"global_store_dwordx4 v37, {v(PK+8,4)}, {s(S_WS,2)} {SCS}")
    A(f"global_store_dwordx4 v38, {v(PK+12,4)}, {s(S_WS,2)} {SCS}")
    for i in range(8):
        A(f"v_cvt_pk_bf16_f32 {v(PK+16+i)}, {v(ACC+32+2*i)}, {v(ACC+33+2*i)}")
    A(f"global_store_dwordx4 v39, {v(PK+16,4)}, {s(S_WS,2)} {SCS}")
    A(f"global_store_dwordx4 v39, {v(PK+20,4)}, {s(S_WS,2)} offset:512 {SCS}")
    A(f"s_mov_b32 {s(S_T0)}, {QSCALE}")
    for r in range(16):
        A(f"v_mul_f32 {v(ACC+r)}, {s(S_T0)}, {v(ACC+r)}")
    for i in range(8):
        A(f"v_cvt_pk_bf16_f32 {v(PK+i)}, {v(ACC+2*i)}, {v(ACC+2*i+1)}")
    A(f"ds_write_b128 v33, {v(PK+8,4)} offset:{LK + 8*1024}")
    A(f"ds_write_b128 v33, {v(PK+12,4)} offset:{LK + KHS + 8*1024}")
    A(f"ds_write_b128 v36, {v(PK+16,4)} offset:{LV + 8*VTS}")
    A(f"ds_write_b128 v36, {v(PK+20,4)} offset:{LV + 8*VTS + 512}")
    A(f"ds_write_b128 v33, {v(PK,4)} offset:{LQ}")
    A(f"ds_write_b128 v33, {v(PK+4,4)} offset:{LQ+4096}")
    A(f"s_cmp_lg_u32 {s(S_LI)}, 0")
    A("s_cbranch_scc1 L_c_nopad")
    A(f"v_mov_b32 v24, {ONES}"); A("v_mov_b32 v25, v24"); A("v_mov_b32 v26, v24"); A("v_mov_b32 v27, v24")
    A(f"v_mul_u32_u24 v28, {VTS}, v1")
    A("v_cmp_gt_u32 vcc, 24, v1")
    A(f"s_and_saveexec_b64 {s(S_EX,2)}, vcc")
    A(f"ds_write_b128 v28, v[24:27] offset:{LV + 1024}")
    A(f"s_mov_b64 exec, {s(S_EX,2)}")
    A("L_c_nopad:")
    A("s_waitcnt vmcnt(0)")
    publish(F_A1, 16, 17)
    stamp(6)
    flag_load(157, 158)
    A(f"s_mov_b32 {s(S_T4)}, {s(S_T2)}")
    A(f"s_mov_b32 {s(S_T5)}, {s(S_T3)}")
    c_setup()
    call("L_sub_b")
    A(f"s_mov_b32 {s(S_T2)}, {s(S_T4)}")
    A(f"s_mov_b32 {s(S_T3)}, {s(S_T5)}")
    A(f"s_cmp_eq_u32 {s(S_RB)}, 0")
    A("s_cbranch_scc1 L_c_halo_done")
    A("s_waitcnt vmcnt(0)")
    check_or_spin(157, 158, "L_poll_h")
    stamp(7)
    A("v_lshlrev_b32 v18, 4, v1")
    A(f"s_lshl_b32 {s(S_T4)}, {s(S_LI)}, 10")
    A(f"s_mul_i32 {s(S_T5)}, {s(S_LI)}, {VTS}")
    def halo(rbreg, toff):
        A(f"s_lshl_b32 {s(S_T0)}, {s(S_HP)}, 7")
        A(f"s_lshl_b32 {s(S_T1)}, {s(rbreg)}, 2")
        A(f"s_add_u32 {s(S_T0)}, {s(S_T0)}, {s(S_T1)}")
        A(f"s_add_u32 {s(S_T0)}, {s(S_T0)}, {s(S_LI)}")
        A(f"s_lshl_b32 {s(S_T0)}, {s(S_T0)}, 10")
        for hd in range(2):
            A(f"s_add_u32 m0, {s(S_T4)}, {LK + hd*KHS + toff*1024}")
            A(f"s_add_u32 {s(S_T1)}, {s(S_T0)}, {KW + hd*65536}")
            A(f"buffer_load_dwordx4 v18, {s(R_WS,4)}, {s(S_T1)} offen sc1 lds")
            A(f"s_add_u32 m0, {s(S_T5)}, {LV + hd*VHS + toff*VTS}")
            A(f"s_add_u32 {s(S_T1)}, {s(S_T0)}, {VW + hd*65536}")
            A(f"buffer_load_dwordx4 v18, {s(R_WS,4)}, {s(S_T1)} offen sc1 lds")
    halo(S_T2, 4)
    A(f"s_cmp_eq_u32 {s(S_RB)}, 1")
    A("s_cbranch_scc1 L_c_halo_done")
    halo(S_T3, 0)
    A("L_c_halo_done:")
    A(f"s_or_b32 {s(S_T0)}, s2, {s(S_WV)}")
    A(f"s_cmp_lg_u32 {s(S_T0)}, 0")
    A("s_cbranch_scc0 L_st_epoch")
    stubs.append("EPOCH")
    A("L_epdone:")
    A("s_waitcnt lgkmcnt(0)")
    A("s_barrier")
    A("s_waitcnt vmcnt(0) lgkmcnt(0)")
    stamp(8)
    A("s_barrier")
    stamp(9)
    A("s_branch L_a2")

    A("L_lwave:")
    if opt.get("lprio", 0): A(f"s_setprio {opt.get('lprio')}")
    A("v_lshrrev_b32 v220, 3, v1")
    A(f"s_lshl_b32 {s(S_T0)}, {s(S_RB)}, 7")
    A(f"s_lshl_b32 {s(S_T1)}, {s(S_LI)}, 5")
    A(f"s_add_u32 {s(S_T0)}, {s(S_T0)}, {s(S_T1)}")
    A(f"v_add_u32 v220, {s(S_T0)}, v220")
    A("v_lshlrev_b32 v220, 10, v220")
    A("v_and_b32 v221, 7, v1")
    A("v_lshrrev_b32 v222, 4, v1")
    A("v_xor_b32 v223, v221, v222")
    A("v_lshl_add_u32 v200, v223, 4, v220")
    A("v_xor_b32 v223, 4, v223")
    A("v_lshl_add_u32 v201, v223, 4, v220")
    A("v_lshrrev_b32 v220, 2, v1")
    A(f"s_lshl_b32 {s(S_T0)}, {s(S_LI)}, 4")
    A(f"v_add_u32 v220, {s(S_T0)}, v220")
    A(f"v_mul_u32_u24 v220, 3072, v220")
    A("v_and_b32 v221, 3, v1")
    A("v_lshlrev_b32 v221, 4, v221")
    A(f"s_lshl_b32 {s(S_T0)}, {s(S_HP)}, 6")
    A(f"v_add3_u32 v202, v220, v221, {s(S_T0)}")
    S_LX, S_LW = S_T4, S_T5
    A(f"s_lshl_b32 {s(S_LX)}, {s(S_LI)}, 12")
    A(f"s_lshl_b32 {s(S_LW)}, {s(S_LI)}, 10")
    A(f"s_lshl_b32 {s(S_CH)}, {s(S_XCD)}, 6")
    A(f"s_lshl_b32 {s(S_T1)}, {s(S_J)}, 1")
    A(f"s_add_u32 {s(S_CH)}, {s(S_CH)}, {s(S_T1)}")
    A(f"s_lshr_b32 {s(S_T1)}, {s(S_LI)}, 1")
    A(f"s_add_u32 {s(S_CH)}, {s(S_CH)}, {s(S_T1)}")
    A(f"s_mul_i32 {s(S_CBASE)}, {s(S_T1)}, {CB}")
    A(f"s_add_u32 {s(S_CBASE)}, {s(S_CBASE)}, {B2R}")
    A(f"s_and_b32 {s(S_T2)}, {s(S_LI)}, 1")
    A(f"s_lshl_b32 {s(S_T1)}, {s(S_CH)}, 12")
    A(f"s_lshl_b32 {s(S_T3)}, {s(S_T2)}, 11")
    A(f"s_add_u32 {s(S_T1)}, {s(S_T1)}, {s(S_T3)}")
    A("v_lshlrev_b32 v203, 4, v1")
    A(f"v_add_u32 v203, {s(S_T1)}, v203")
    A("v_add_u32 v204, 2, v203")
    A("s_waitcnt lgkmcnt(0)")
    if opt.get("wsoff", 0):
        A(f"s_add_u32 {s(S_WS)}, {s(S_WS)}, {opt['wsoff'] << 20}")
        A(f"s_addc_u32 {s(S_WS+1)}, {s(S_WS+1)}, 0")
    stamp(1)
    srd(R_X, S_X, 2048*1024)
    srd(R_W, S_WQKV, 512*3072)
    A(f"s_load_dword {s(S_NONCE)}, {s(S_WS,2)}, {EP}")
    if opt.get("rot", 1):
        A(f"s_and_b32 {s(S_T0)}, {s(S_RB)}, 3")
        A(f"s_lshl_b32 {s(S_T0)}, {s(S_T0)}, 1")
        A(f"s_add_u32 {s(S_ROT)}, {s(S_HP)}, {s(S_T0)}")
        if opt.get("rotmask", 7) != 7: A(f"s_and_b32 {s(S_ROT)}, {s(S_ROT)}, {opt['rotmask']}")
    else:
        A(f"s_mov_b32 {s(S_ROT)}, 0")
    def dma_chunk(c):
        st = STAGE[c] * STG
        A(f"s_add_u32 {s(S_T1)}, {s(S_ROT)}, {c}")
        A(f"s_and_b32 {s(S_T1)}, {s(S_T1)}, 7")
        A(f"s_mul_i32 {s(S_T2)}, {s(S_T1)}, {64*3072}")
        A(f"s_lshl_b32 {s(S_T1)}, {s(S_T1)}, 7")
        for n in range(4):
            A(f"s_add_u32 m0, {s(S_LX)}, {st + n*1024}")
            A(f"s_add_u32 {s(S_T0)}, {s(S_T1)}, {n*8192}")
            A(f"buffer_load_dwordx4 {v(200 + (n & 1))}, {s(R_X,4)}, {s(S_T0)} offen {NT_XW} lds")
        for p in range(3):
            A(f"s_add_u32 m0, {s(S_LW)}, {st + 16384 + p*4096}")
            A(f"s_add_u32 {s(S_T0)}, {s(S_T2)}, {p*1024}")
            A(f"buffer_load_dwordx4 v202, {s(R_W,4)}, {s(S_T0)} offen {NT_XW} lds")
    DIST = opt.get('dist', 3)
    for c in range(DIST): dma_chunk(c)
    def h_loads():
        srd(R_WO, S_SSMK, 512*4096)
        A(f"s_and_b32 {s(S_T2)}, {s(S_LI)}, 1")
        A(f"s_lshl_b32 {s(S_T2)}, {s(S_T2)}, 11")
        A(f"s_add_u32 {s(S_T2)}, {s(S_T2)}, {s(S_CBASE)}")
        for n in range(2):
            A(f"s_add_u32 m0, {s(S_T2)}, {O_OFF + 28 + n*1024}")
            A(f"s_mov_b32 {s(S_T0)}, {n*1024}")
            A(f"buffer_load_dwordx4 v203, {s(R_WO,4)}, {s(S_T0)} offen {NT_B} lds")
            A(f"s_add_u32 m0, {s(S_T2)}, {E_OFF + 32 + n*1024}")
            A(f"buffer_load_dwordx4 v204, {s(R_WO,4)}, {s(S_T0)} offen {NT_B} lds")
        A(f"s_lshl_b32 {s(S_T0)}, {s(S_CH)}, 12")
        A(f"v_mov_b32 v34, {s(S_T0)}")
        A(f"global_load_dword v32, v34, {s(S_SSMK,2)}")
        A(f"s_lshl_b32 {s(S_T0)}, {s(S_CH)}, 1")
        A(f"s_and_b32 {s(S_T0)}, {s(S_T0)}, 0xfffffffc")
        A(f"v_mov_b32 v35, {s(S_T0)}")
        A(f"global_load_dword v33, v35, {s(S_SD,2)}")
    stamp(2)
    AA, AB = 16, 24
    CA = [32, 64]
    CBf = [96, 128]
    CACC = 160
    def build_eo():
        A(f"s_and_b32 {s(S_T2)}, {s(S_LI)}, 1")
        A(f"s_cmp_lg_u32 {s(S_T2)}, 0")
        A("s_cbranch_scc1 L_l_nopad")
        A(f"s_lshr_b32 {s(S_T0)}, {s(S_LI)}, 1")
        A(f"s_lshl_b32 {s(S_T0)}, {s(S_T0)}, 4")
        A(f"v_lshrrev_b32 v33, {s(S_T0)}, v33")
        A("v_lshlrev_b32 v33, 16, v33")
        A("v_lshlrev_b32 v34, 16, v32")
        A("v_add_f32 v34, v33, v34")
        A("v_cvt_pk_bf16_f32 v34, v34, v34")
        A("v_and_b32 v34, 0xffff, v34")
        A("v_and_b32 v35, 0xffff0000, v32")
        A("v_or_b32 v35, v35, v34")
        A("v_lshlrev_b32 v34, 16, v34")
        A("v_mov_b32 v36, 0")
        A("v_lshlrev_b32 v37, 2, v1")
        A(f"v_add_u32 v37, {s(S_CBASE)}, v37")
        A("v_cmp_eq_u32 vcc, 7, v1")
        A("v_cndmask_b32 v34, v36, v34, vcc")
        A("v_cndmask_b32 v35, v36, v35, vcc")
        A("v_cmp_gt_u32 vcc, 8, v1")
        A(f"s_and_saveexec_b64 {s(S_EX,2)}, vcc")
        A(f"ds_write_b32 v37, v34 offset:{E_OFF}")
        A(f"ds_write_b32 v37, v35 offset:{O_OFF}")
        A(f"s_mov_b64 exec, {s(S_EX,2)}")
        A("v_mov_b32 v39, 0")
        A("v_mov_b32 v38, 0")
        A("v_lshlrev_b32 v37, 3, v1")
        A(f"v_add_u32 v37, {s(S_CBASE)}, v37")
        A("v_cmp_gt_u32 vcc, 60, v1")
        A(f"s_and_saveexec_b64 {s(S_EX,2)}, vcc")
        A(f"ds_write_b64 v37, v[38:39] offset:{U_OFF + 4096}")
        A(f"s_mov_b64 exec, {s(S_EX,2)}")
        A("L_l_nopad:")
        A("s_waitcnt lgkmcnt(0)")
    def conv_addr():
        A("v_and_b32 v25, 15, v1")
        A("v_lshrrev_b32 v26, 4, v1")
        A("v_lshrrev_b32 v27, 1, v25")
        A("v_lshl_add_u32 v27, v26, 2, v27")
        A("v_lshlrev_b32 v27, 2, v27")
        A("v_and_b32 v28, 1, v25")
        A(f"v_mul_u32_u24 v28, {O_OFF}, v28")
        A(f"s_and_b32 {s(S_T2)}, {s(S_LI)}, 1")
        A(f"s_lshl_b32 {s(S_T0)}, {s(S_T2)}, 8")
        A(f"s_add_u32 {s(S_T0)}, {s(S_T0)}, {s(S_CBASE)}")
        A(f"v_add3_u32 {v(AA)}, v27, v28, {s(S_T0)}")
        for jj in range(1, 8):
            A(f"v_add_u32 {v(AA+jj)}, {512*jj}, {v(AA)}")
        A("v_lshlrev_b32 v27, 4, v26")
        A("v_lshlrev_b32 v28, 5, v25")
        A("v_sub_u32 v27, v27, v28")
        A(f"s_add_u32 {s(S_T0)}, {s(S_T0)}, {U_OFF + 480}")
        A(f"v_add_u32 {v(AB)}, {s(S_T0)}, v27")
    def ur_dma():
        A(f"s_lshl_b32 {s(S_T0)}, {s(S_CH)}, 12")
        A(f"s_add_u32 {s(S_T0)}, {s(S_T0)}, {UR}")
        A("v_lshlrev_b32 v28, 4, v1")
        for cs in range(2):
            for n in range(4):
                A(f"s_mov_b32 m0, {B2R + cs*CB + U_OFF + n*1024}")
                A(f"s_add_u32 {s(S_T1)}, {s(S_T0)}, {cs*4096 + n*1024}")
                A(f"buffer_load_dwordx4 v28, {s(R_WS,4)}, {s(S_T1)} offen sc1 lds")
    def lbar(c, n):
        if n is not None: A(f"s_waitcnt vmcnt({n})")
        if prof:
            A("s_memtime s[98:99]"); A("s_waitcnt lgkmcnt(0)"); A(f"v_writelane_b32 v255, s98, {22+c}")
        A("s_barrier")
        if prof:
            A("s_memtime s[98:99]"); A("s_waitcnt lgkmcnt(0)"); A(f"v_writelane_b32 v255, s98, {54+c}")
    A("s_waitcnt lgkmcnt(0)")
    A(f"s_lshl_b32 {s(S_T0)}, {s(S_LI)}, 2")
    A(f"s_add_u32 {s(S_T0)}, {s(S_T0)}, {OKW}")
    A(f"v_mov_b32 v29, {s(S_T0)}")
    A("v_mov_b32 v26, 0")
    A("ds_write_b32 v29, v26")
    A("s_waitcnt lgkmcnt(0)")
    def b1_flag_sample():
        A("v_and_b32 v30, 31, v1")
        A("v_lshlrev_b32 v30, 10, v30")
        A(f"s_lshl_b32 {s(S_T0)}, {s(S_XCD)}, 7")
        A(f"s_lshr_b32 {s(S_T1)}, {s(S_J)}, 3")
        A(f"s_lshl_b32 {s(S_T1)}, {s(S_T1)}, 2")
        A(f"s_add_u32 {s(S_T0)}, {s(S_T0)}, {s(S_T1)}")
        A(f"s_add_u32 {s(S_T0)}, {s(S_T0)}, {FLG + F_B1}")
        A(f"v_add_u32 v30, {s(S_T0)}, v30")
        A(f"s_cmp_eq_u32 {s(S_LI)}, 0")
        A("s_cbranch_scc1 L_l_w4a")
        A(f"s_lshl_b32 {s(S_T0)}, s2, 7")
        A(f"s_add_u32 {s(S_T0)}, {s(S_T0)}, {FLG + F_B2}")
        A(f"v_mov_b32 v30, {s(S_T0)}")
        A("L_l_w4a:")
        flag_load(30, 31)
    if DIST == 3:
        lbar(0, 14)
        dma_chunk(3)
        A(f"s_add_u32 {s(S_NONCE)}, {s(S_NONCE)}, 1")
        srd(R_WS, S_WS, WS_BYTES)
        lbar(1, 14)
        dma_chunk(4)
        lbar(2, 14)
        dma_chunk(5)
        lbar(3, 14)
        dma_chunk(6)
        lbar(4, 14)
        dma_chunk(7)
        lbar(5, 14)
        b1_flag_sample()
        h_loads()
        lbar(6, 14)
        conv_addr()
    else:
        lbar(0, 7)
        dma_chunk(2)
        A(f"s_add_u32 {s(S_NONCE)}, {s(S_NONCE)}, 1")
        srd(R_WS, S_WS, WS_BYTES)
        lbar(1, 7)
        dma_chunk(3)
        h_loads()
        lbar(2, 12)
        dma_chunk(4)
        lbar(3, 12)
        dma_chunk(5)
        lbar(4, 7)
        dma_chunk(6)
        lbar(5, 7)
        dma_chunk(7)
        b1_flag_sample()
        build_eo()
        lbar(6, 8)
        conv_addr()
    A("s_waitcnt vmcnt(6)")
    A(f"s_mov_b32 {s(S_OK)}, 0")
    A(f"s_cmp_lg_u32 {s(S_LI)}, 0")
    A("s_cbranch_scc1 L_l_late")
    A(f"v_cmp_ne_u32 vcc, {s(S_NONCE)}, v31")
    A("s_cbranch_vccnz L_l_late")
    ur_dma()
    A(f"s_mov_b32 {s(S_OK)}, 1")
    A("L_l_late:")
    if prof:
        A("s_memtime s[98:99]"); A("s_waitcnt lgkmcnt(0)"); A(f"v_writelane_b32 v255, s98, 29")
    A("s_barrier")
    if opt.get("lprio", 0) != opt.get("cprio", 0): A(f"s_setprio {opt.get('cprio', 0)}")
    stamp(5)
    A(f"v_mov_b32 {v(PFB2)}, 0")
    call("L_sub_b")
    stamp(6)
    A(f"s_cmp_lg_u32 {s(S_LI)}, 0")
    A("s_cbranch_scc1 L_l_have")
    A(f"s_cmp_eq_u32 {s(S_OK)}, 1")
    A("s_cbranch_scc1 L_l_have")
    spin(30, 31, "L_poll_b1")
    ur_dma()
    A("L_l_have:")
    A("s_waitcnt vmcnt(0)")
    stamp(3)
    build_eo()
    stamp(4)
    A(f"v_mov_b32 v26, {s(S_NONCE)}")
    A("ds_write_b32 v29, v26")
    A(f"v_mov_b32 v25, {OKW}")
    A(f"s_mov_b32 {s(S_SPIN)}, {SPIN*8}")
    A("L_l_ospin:")
    A("ds_read_b128 v[32:35], v25")
    A("s_waitcnt lgkmcnt(0)")
    A(f"v_cmp_ne_u32 vcc, {s(S_NONCE)}, v32")
    A(f"v_cmp_ne_u32 {s(S_CMP,2)}, {s(S_NONCE)}, v33")
    A(f"v_cmp_ne_u32 {s(S_CMP+2,2)}, {s(S_NONCE)}, v34")
    A(f"v_cmp_ne_u32 {s(S_CMP+4,2)}, {s(S_NONCE)}, v35")
    A(f"s_or_b64 vcc, vcc, {s(S_CMP,2)}")
    A(f"s_or_b64 vcc, vcc, {s(S_CMP+2,2)}")
    A(f"s_or_b64 vcc, vcc, {s(S_CMP+4,2)}")
    A("s_cbranch_vccz L_l_go")
    A(f"s_sub_u32 {s(S_SPIN)}, {s(S_SPIN)}, 1")
    A(f"s_cmp_lg_u32 {s(S_SPIN)}, 0")
    A("s_cbranch_scc1 L_l_ospin")
    A("L_l_go:")
    A(f"s_and_b32 {s(S_T2)}, {s(S_LI)}, 1")
    stamp(7)
    def conv_reads(ii):
        st = ii & 1
        L = []
        for k in range(8):
            L.append(f"ds_read_b128 {v(CBf[st]+4*k,4)}, {v(AB)} offset:{512*(7-k) + 64*ii}")
            L.append(f"ds_read2_b32 {v(CA[st]+4*k,2)}, {v(AA+k)} offset0:{16*ii} offset1:{16*ii+1}")
            L.append(f"ds_read2_b32 {v(CA[st]+4*k+2,2)}, {v(AA+k)} offset0:{16*ii+2} offset1:{16*ii+3}")
        return L
    r0 = conv_reads(0)
    first = [r0[1], r0[2]] + [r0[3*k] for k in range(8)] + [x for k in range(1, 8) for x in (r0[3*k+1], r0[3*k+2])]
    for r in first: A(r)
    for ii in range(4):
        nxt = conv_reads(ii + 1) if ii < 3 else []
        st = ii & 1
        k = 0
        for jj in range(8):
            if ii == 0:
                if jj == 0: A("s_waitcnt lgkmcnt(14)")
                elif jj == 1: A("s_waitcnt lgkmcnt(0)")
            elif jj == 0:
                A("s_waitcnt lgkmcnt(0)")
            for cp in range(8 - jj):
                acc = v(CACC + 4*(cp + jj), 4)
                cin = "0" if (ii == 0 and jj == 0) else acc
                A(f"{MF16} {acc}, {v(CA[st]+4*jj,4)}, {v(CBf[st]+4*cp,4)}, {cin}")
                if k < len(nxt) and not (ii == 0 and jj == 0):
                    A(nxt[k]); k += 1
        while k < len(nxt):
            A(nxt[k]); k += 1
    stamp(8)
    if opt.get("cprio", 0): A("s_setprio 0")
    A("s_nop 7")
    A(f"s_and_b32 {s(S_T2)}, {s(S_LI)}, 1")
    A("v_lshlrev_b32 v25, 4, v1")
    A(f"s_lshl_b32 {s(S_T0)}, {s(S_LI)}, 12")
    A(f"v_add_u32 v26, {s(S_T0)}, v25")
    A(f"s_xor_b32 {s(S_T0)}, {s(S_T0)}, 4096")
    A(f"v_add_u32 v27, {s(S_T0)}, v25")
    A(f"s_cmp_lg_u32 {s(S_T2)}, 0")
    A("s_cbranch_scc1 L_l_x1")
    for k in range(4):
        A(f"ds_write_b128 v26, {v(CACC+16+4*k,4)} offset:{LR + 1024*k}")
    A("s_waitcnt lgkmcnt(0)")
    A("s_barrier")
    for k in range(4):
        A(f"ds_read_b128 {v(32+4*k,4)}, v27 offset:{LR + 1024*k}")
    A("s_waitcnt lgkmcnt(0)")
    for r in range(16):
        A(f"v_add_f32 {v(48+r)}, {v(32+r)}, {v(CACC+r)}")
    A("s_branch L_l_x2")
    A("L_l_x1:")
    A("s_nop 7")
    for k in range(4):
        A(f"ds_write_b128 v26, {v(CACC+4*k,4)} offset:{LR + 1024*k}")
    A("s_waitcnt lgkmcnt(0)")
    A("s_barrier")
    for k in range(4):
        A(f"ds_read_b128 {v(32+4*k,4)}, v27 offset:{LR + 1024*k}")
    A("s_waitcnt lgkmcnt(0)")
    for r in range(16):
        A(f"v_add_f32 {v(48+r)}, {v(32+r)}, {v(CACC+16+r)}")
    A("L_l_x2:")
    A("v_lshlrev_b32 v248, 4, v1")
    A(f"v_add_u32 v248, {MSK}, v248")
    for k in range(10):
        A(f"ds_read_b128 {v(MM0+4*k,4)}, v248 offset:{1024*k}")
    for k in range(4):
        A(f"v_cvt_pk_bf16_f32 {v(32+2*k)}, {v(48+4*k)}, {v(49+4*k)}")
        A(f"v_cvt_pk_bf16_f32 {v(33+2*k)}, {v(50+4*k)}, {v(51+4*k)}")
    A("v_and_b32 v25, 15, v1")
    A("v_lshlrev_b32 v25, 5, v25")
    A("v_bfe_u32 v26, v1, 4, 1")
    A("v_lshl_add_u32 v25, v26, 9, v25")
    A("v_lshrrev_b32 v26, 5, v1")
    A("v_lshl_add_u32 v25, v26, 4, v25")
    A(f"s_lshl_b32 {s(S_T0)}, {s(S_CH)}, 12")
    A(f"s_lshl_b32 {s(S_T1)}, {s(S_T2)}, 11")
    A(f"s_add_u32 {s(S_T0)}, {s(S_T0)}, {s(S_T1)}")
    A(f"s_add_u32 {s(S_T0)}, {s(S_T0)}, {YT}")
    A(f"v_add_u32 v25, {s(S_T0)}, v25")
    A("v_permlane16_swap_b32 v32, v34")
    A("v_permlane16_swap_b32 v33, v35")
    A("v_permlane16_swap_b32 v36, v38")
    A("v_permlane16_swap_b32 v37, v39")
    A(f"global_store_dwordx4 v25, v[32:35], {s(S_WS,2)} {SCS}")
    A(f"global_store_dwordx4 v25, v[36:39], {s(S_WS,2)} offset:1024 {SCS}")
    A("s_waitcnt lgkmcnt(0)")
    A("s_barrier")
    stamp(9)
    A("L_a2:")
    if DBG: A("s_memrealtime s[10:11]")
    if opt.get("prio", 0): A("s_setprio 1")
    Q, KF, SA, SB, CN, PP, VF, O = 16, 20, 56, 72, 88, 104, 120, 136
    AK, AV0, AV1, TM, TM2 = PAK, PAV0, PAV1, 155, 156
    TM3 = 169
    VQ3, VF2A, VF2 = 160, PFB2, 165
    A(f"ds_read_b128 {v(Q,4)}, {v(PAQ)} offset:{LQ}")
    order = [8, 0, 7, 6, 5, 4, 3, 2, 1]
    for jj in order:
        A(f"ds_read_b128 {v(KF+4*jj,4)}, {v(AK)} offset:{LK + jj*1024}")
    for r in range(4):
        A(f"global_load_dword {v(VQ3+r)}, {v(PQ3)}, {s(S_BQ,2)} offset:{1024*r} {NT_B}")
    buf = lambda jj: SA if (jj & 1) else SB
    A("s_waitcnt lgkmcnt(7)")
    A(f"{MF} {v(MM8,16)}, {v(KF+32,4)}, {v(Q,4)}, {v(MM8,16)}")
    A(f"{MF} {v(MM0,16)}, {v(KF+0,4)}, {v(Q,4)}, {v(MM0,16)}")
    A("s_waitcnt lgkmcnt(5)")
    A(f"{MF} {v(SA,16)}, {v(KF+28,4)}, {v(Q,4)}, 0")
    A(f"{MF} {v(SB,16)}, {v(KF+24,4)}, {v(Q,4)}, 0")
    A(f"s_cmp_gt_u32 {s(S_J0)}, 0")
    A("s_cbranch_scc1 L_st_nomerge")
    stubs.append(["L_st_nomerge:", "s_nop 15", "s_branch L_a2_nomerge"])
    for r in range(16):
        A(f"v_max_f32 {v(MM8+r)}, {v(MM0+r)}, {v(MM8+r)}")
    A("L_a2_nomerge:")
    A(f"v_max_f32 {v(TM)}, {v(MM8)}, {v(MM8+1)}")
    A(f"v_max_f32 {v(TM3)}, {v(MM8+2)}, {v(MM8+3)}")
    for r in range(4, 16, 2):
        t = TM if (r & 2) == 0 else TM3
        A(f"v_max3_f32 {v(t)}, {v(t)}, {v(MM8+r)}, {v(MM8+r+1)}")
    A("s_waitcnt lgkmcnt(0)")
    for jj in range(7, 0, -1):
        b = buf(jj)
        A(f"s_cmp_gt_u32 {s(S_J0)}, {jj}")
        A("s_cbranch_scc1 L_a2_p1done")
        for r in range(0, 16, 2):
            t = TM if (r & 2) == 0 else TM3
            A(f"v_max3_f32 {v(t)}, {v(t)}, {v(b+r)}, {v(b+r+1)}")
        if jj - 2 >= 1:
            A(f"{MF} {v(b,16)}, {v(KF+4*(jj-2),4)}, {v(Q,4)}, 0")
    A("L_a2_p1done:")
    A(f"v_max_f32 {v(TM)}, {v(TM)}, {v(TM3)}")
    A(f"v_mov_b32 {v(TM2)}, {v(TM)}")
    A(f"v_permlane32_swap_b32 {v(TM)}, {v(TM2)}")
    A(f"v_max_f32 {v(TM)}, {v(TM)}, {v(TM2)}")
    A(f"v_sub_f32 {v(TM2)}, 0, {v(TM)}")
    for r in range(16):
        A(f"v_mov_b32 {v(CN+r)}, {v(TM2)}")
    stamp(10)
    A(f"{MF} {v(SA,16)}, {v(KF+28,4)}, {v(Q,4)}, {v(CN,16)}")
    A(f"{MF} {v(SB,16)}, {v(KF+24,4)}, {v(Q,4)}, {v(CN,16)}")
    def vread(slot, jj, sidx):
        A(f"ds_read_b128 {v(VF+4*slot,4)}, {v(AV0 if sidx == 0 else AV1)} offset:{LV + jj*VTS + sidx*512}")
    vread(0, 8, 0); vread(1, 8, 1); vread(2, 0, 0); vread(3, 0, 1)
    def pub_b2(lab, n):
        A(f"s_waitcnt vmcnt({n})")
        A(f"s_cmp_lt_u32 {s(S_WV)}, 4")
        A(f"s_cbranch_scc1 {lab}")
        publish(F_B2, 157, 158)
        A(f"{lab}:")
    if opt.get("prio", 0): A("s_setprio 0")
    pub_b2("L_a2_nopub", 4)
    P0, P1 = PP, PP + 8
    for r in range(16):
        A(f"v_add_f32 {v(MM8+r)}, {v(TM2)}, {v(MM8+r)}")
    for r in range(16):
        A(f"v_exp_f32 {v(MM8+r)}, {v(MM8+r)}")
    for i in range(8):
        A(f"v_cvt_pk_bf16_f32 {v(P0+i)}, {v(MM8+2*i)}, {v(MM8+2*i+1)}")
    for i in range(8):
        A(f"v_and_b32 {v(P1+i)}, {v(MMK+i)}, {v(P0+i)}")
    for i in range(8):
        A(f"v_xor_b32 {v(P0+i)}, {v(P1+i)}, {v(P0+i)}")
    A("s_waitcnt lgkmcnt(0)")
    A(f"{MF} {v(O,16)}, {v(VF+0,4)}, {v(P0,4)}, 0")
    A(f"s_cmp_gt_u32 {s(S_J0)}, 0")
    A("s_cbranch_scc1 L_a2_nopv0")
    A(f"{MF} {v(O,16)}, {v(VF+8,4)}, {v(P1,4)}, {v(O,16)}")
    A(f"{MF} {v(O,16)}, {v(VF+12,4)}, {v(P1+4,4)}, {v(O,16)}")
    A("L_a2_nopv0:")
    pb = lambda jj: PP + 8*(jj & 1)
    sl = lambda jj: 2*(jj & 1)
    def pend(jj):
        if jj == 7: return [f"{MF} {v(O,16)}, {v(VF+4,4)}, {v(P0+4,4)}, {v(O,16)}"]
        p = jj + 1
        return [f"{MF} {v(O,16)}, {v(VF+4*sl(p),4)}, {v(pb(p),4)}, {v(O,16)}",
                f"{MF} {v(O,16)}, {v(VF+4*sl(p)+4,4)}, {v(pb(p)+4,4)}, {v(O,16)}"]
    for jj in range(7, 0, -1):
        b = buf(jj)
        A(f"s_cmp_gt_u32 {s(S_J0)}, {jj}")
        A(f"s_cbranch_scc1 L_st_p2_{jj}")
        def stub(jj=jj):
            A(f"L_st_p2_{jj}:")
            A("s_waitcnt lgkmcnt(0)")
            A("s_nop 1")
            for m in pend(jj): A(m)
            if jj >= 4:
                A(f"s_cmp_ge_u32 {s(S_WV)}, 4")
                A(f"s_cbranch_scc1 L_st_nowo{jj}")
                for n in range(4*(7 - jj), 16): wo_dma(n)
                A(f"L_st_nowo{jj}:")
            if jj >= 3:
                A(f"s_cmp_lg_u32 {s(S_WV)}, 0")
                A("s_cbranch_scc1 L_a2_p2done")
                flag_load(VF2A, VF2)
            A("s_branch L_a2_p2done")
        stubs.append(stub)
        pm = pend(jj)
        pass
        for r in range(16):
            A(f"v_exp_f32 {v(b+r)}, {v(b+r)}")
            if r == 1:
                A("s_waitcnt lgkmcnt(0)")
                A(pm[0])
            if r == 7 and len(pm) > 1: A(pm[1])
            if r == 9:
                vread(sl(jj), jj, 0); vread(sl(jj) + 1, jj, 1)
            if jj >= 4 and r == 11:
                A(f"s_cmp_ge_u32 {s(S_WV)}, 4")
                A(f"s_cbranch_scc1 L_a2_nowo{jj}")
                for n in range(4): wo_dma(4*(7 - jj) + n)
                A(f"L_a2_nowo{jj}:")
            if jj == 3 and r == 13:
                A(f"s_cmp_lg_u32 {s(S_WV)}, 0")
                A("s_cbranch_scc1 L_a2_nosample")
                flag_load(VF2A, VF2)
                A("L_a2_nosample:")
        for i in range(8):
            A(f"v_cvt_pk_bf16_f32 {v(pb(jj)+i)}, {v(b+2*i)}, {v(b+2*i+1)}")
        if jj - 2 >= 1:
            A(f"{MF} {v(b,16)}, {v(KF+4*(jj-2),4)}, {v(Q,4)}, {v(CN,16)}")
    A("s_waitcnt lgkmcnt(0)")
    for m in pend(0): A(m)
    A("L_a2_p2done:")

    A("s_nop 15")
    A(f"v_rcp_f32 {v(TM)}, {v(O+8)}")
    for r in range(8):
        A(f"v_mul_f32 {v(O+r)}, {v(TM)}, {v(O+r)}")
    for i in range(4):
        A(f"v_cvt_pk_bf16_f32 {v(PP+i)}, {v(O+2*i)}, {v(O+2*i+1)}")
    A(f"global_store_dwordx4 {v(PO)}, {v(PP,4)}, {s(S_WS,2)} {SCS}")
    stamp(11)
    tail_addr()
    A(f"s_cmp_ge_u32 {s(S_WV)}, 4")
    A("s_cbranch_scc1 L_noep")
    A("s_waitcnt vmcnt(0)")
    publish(F_A2, 157, 158)
    stamp(12)
    flag_load(PFA2, 31)
    A(f"s_cmp_lg_u32 {s(S_WV)}, 0")
    A("s_cbranch_scc1 L_nob2poll")
    check_or_spin(VF2A, VF2, "L_poll_b2")
    A(f"s_lshl_b32 {s(S_T0)}, {s(S_XCD)}, 18")
    A(f"s_lshl_b32 {s(S_T1)}, {s(S_J)}, 7")
    A(f"s_add_u32 {s(S_T0)}, {s(S_T0)}, {s(S_T1)}")
    A(f"s_add_u32 {s(S_T0)}, {s(S_T0)}, {YT}")
    for n in range(8):
        A(f"s_mov_b32 m0, {LYT + n*1024}")
        A(f"s_add_u32 {s(S_T1)}, {s(S_T0)}, {n*8*4096}")
        A(f"buffer_load_dwordx4 {v(PY0 + (n & 1))}, {s(R_WS,4)}, {s(S_T1)} offen sc1 lds")
    A("L_nob2poll:")
    A("L_noep:")
    A("s_barrier")
    stamp(13)
    WF = 32
    for hs in range(16):
        A(f"ds_read_b64_tr_b16 {v(WF+4*hs,2)}, {v(PAW)} offset:{hs*2048}")
        A(f"ds_read_b64_tr_b16 {v(WF+4*hs+2,2)}, {v(PAW)} offset:{hs*2048 + 1024}")
    A(f"s_cmp_lt_u32 {s(S_WV)}, 4")
    A("s_cbranch_scc1 L_cpub")
    A("s_waitcnt vmcnt(0)")
    publish(F_A2, 157, 158)
    stamp(12)
    flag_load(PFA2, 31)
    A("L_cpub:")
    A("s_waitcnt vmcnt(0)")
    A(f"v_mov_b32 v20, {OK2}")
    A(f"s_cmp_lg_u32 {s(S_WV)}, 0")
    A("s_cbranch_scc1 L_nosig")
    A(f"v_mov_b32 v21, {s(S_NONCE)}")
    A("ds_write_b32 v20, v21")
    A("L_nosig:")
    check_or_spin(PFA2, 31, "L_poll_a2")
    stamp(14)
    A(f"s_lshl_b32 {s(S_T0)}, {s(S_TB64)}, 16")
    A(f"s_lshl_b32 {s(S_T1)}, {s(S_WV)}, 12")
    A(f"s_add_u32 {s(S_T0)}, {s(S_T0)}, {s(S_T1)}")
    for hh in range(4):
        for ts in range(2):
            A(f"s_add_u32 m0, {s(S_T1)}, {LO + ts*32768 + hh*1024}")
            A(f"s_add_u32 {s(S_T2)}, {s(S_T0)}, {OW + ts*32768 + hh*1024}")
            A(f"buffer_load_dwordx4 {v(PL16)}, {s(R_WS,4)}, {s(S_T2)} offen sc1 lds")
    A(f"s_mov_b32 {s(S_SPIN)}, {SPIN*8}")
    A("L_y_spin:")
    A("ds_read_b32 v21, v20")
    A("s_waitcnt lgkmcnt(0)")
    A(f"v_cmp_ne_u32 vcc, {s(S_NONCE)}, v21")
    A("s_cbranch_vccz L_y_ok")
    A(f"s_sub_u32 {s(S_SPIN)}, {s(S_SPIN)}, 1")
    A(f"s_cmp_lg_u32 {s(S_SPIN)}, 0")
    A("s_cbranch_scc1 L_y_spin")
    A("L_y_ok:")
    A(f"ds_read_b64 v[22:23], {v(PYR)}")
    A(f"ds_read_b64 v[24:25], {v(PYR)} offset:128")
    for r in range(4):
        A(f"v_lshlrev_b32 {v(136+2*r)}, 16, {v(VQ3+r)}")
        A(f"v_and_b32 {v(137+2*r)}, 0xffff0000, {v(VQ3+r)}")
    A("s_waitcnt lgkmcnt(0)")
    A("v_lshlrev_b32 v144, 16, v22"); A("v_lshlrev_b32 v145, 16, v24")
    A("v_and_b32 v146, 0xffff0000, v22"); A("v_and_b32 v147, 0xffff0000, v24")
    A("v_lshlrev_b32 v148, 16, v23"); A("v_lshlrev_b32 v149, 16, v25")
    A("v_and_b32 v150, 0xffff0000, v23"); A("v_and_b32 v151, 0xffff0000, v25")
    for r in range(4):
        A(f"v_pk_mul_f32 {v(144+2*r,2)}, {v(144+2*r,2)}, {v(136+2*r,2)}")
    for r in range(4):
        A(f"v_cvt_pk_bf16_f32 {v(152+r)}, {v(144+2*r)}, {v(145+2*r)}")
    A(f"v_add_u32 v21, 0x1000, {v(PB3)}")
    A(f"global_store_dword {v(PB3)}, v152, {s(S_OUT,2)} {BST}")
    A(f"global_store_dword {v(PB3)}, v153, {s(S_OUT,2)} offset:2048 {BST}")
    A(f"global_store_dword v21, v154, {s(S_OUT,2)} {BST}")
    A(f"global_store_dword v21, v155, {s(S_OUT,2)} offset:2048 {BST}")
    A("s_waitcnt vmcnt(4)")
    stamp(15)
    A("s_barrier")
    stamp(16)
    OA = 160
    OF = 96
    for hs in range(16): A(f"ds_read_b128 {v(OF+4*hs,4)}, {v(PAO)} offset:{hs*1024}")
    for hs in range(16):
        if hs % 2 == 0: A(f"s_waitcnt lgkmcnt({min(15, 14 - hs)})" if hs < 14 else "s_waitcnt lgkmcnt(0)")
        cin = "0" if hs == 0 else v(OA,16)
        A(f"{MF} {v(OA,16)}, {v(WF+4*hs,4)}, {v(OF+4*hs,4)}, {cin}")
    if prof:
        A("s_nop 15")
        stamp(21)
    for m in range(4):
        A(f"ds_write_b128 {v(PPW[m])}, {v(OA+4*m,4)}")
    A("s_waitcnt lgkmcnt(0)")
    A("s_barrier")
    stamp(17)
    A(f"ds_read_b128 v[32:35], {v(PPR[0])}"); A(f"ds_read_b128 v[40:43], {v(PPR[2])}")
    A(f"ds_read_b128 v[36:39], {v(PPR[1])}"); A(f"ds_read_b128 v[44:47], {v(PPR[3])}")
    A("s_waitcnt lgkmcnt(0)")
    for r in range(8):
        A(f"v_add_f32 {v(32+r)}, {v(32+r)}, {v(40+r)}")
    for i in range(4):
        A(f"v_cvt_pk_bf16_f32 {v(48+i)}, {v(32+2*i)}, {v(33+2*i)}")
    A(f"global_store_dwordx4 {v(POUT)}, v[48:51], {s(S_OUT,2)} {FST}")
    if prof:
        stamp(18)
        A(f"s_lshl_b32 {s(S_T0)}, s2, 3")
        A(f"s_add_u32 {s(S_T0)}, {s(S_T0)}, {s(S_WV)}")
        A(f"s_lshl_b32 {s(S_T0)}, {s(S_T0)}, 8")
        A(f"s_add_u32 {s(S_T0)}, {s(S_T0)}, {PROF}")
        A("v_lshlrev_b32 v16, 2, v1")
        A(f"v_add_u32 v16, {s(S_T0)}, v16")
        A(f"global_store_dword v16, v255, {s(S_WS,2)}")
    if DBG:
        A("s_memrealtime s[12:13]")
        A("s_waitcnt lgkmcnt(0)")
        A("v_mov_b32 v16, 0")
        A("s_mov_b64 exec, 1")
        A("v_mov_b32 v17, s12"); A(f"global_atomic_umax v16, v17, {s(S_DBG,2)}")
        A("s_not_b32 s8, s8"); A("v_mov_b32 v17, s8"); A(f"global_atomic_umax v16, v17, {s(S_DBG,2)} offset:4")
        A("v_mov_b32 v17, s10"); A(f"global_atomic_umax v16, v17, {s(S_DBG,2)} offset:8")
        A("s_not_b32 s10, s10"); A("v_mov_b32 v17, s10"); A(f"global_atomic_umax v16, v17, {s(S_DBG,2)} offset:12")
        A("s_not_b32 s12, s12"); A("v_mov_b32 v17, s12"); A(f"global_atomic_umax v16, v17, {s(S_DBG,2)} offset:16")
    A("L_end:")
    A("s_endpgm")
    sub_setup()
    for st in stubs:
        if st == "EPOCH":
            A("L_st_epoch:")
            A(f"s_mov_b32 {s(S_SPIN)}, {SPIN}")
            A("v_lshlrev_b32 v20, 7, v1")
            A(f"v_add_u32 v20, {FLG + F_B1}, v20")
            for q in range(1, 4): A(f"v_add_u32 {v(20+q)}, {q*8192}, v20")
            A("L_ep_spin:")
            for q in range(4): A(f"global_load_dword {v(24+q)}, {v(20+q)}, {s(S_WS,2)} {SCP}")
            A("s_waitcnt vmcnt(0)")
            A(f"v_cmp_ne_u32 vcc, {s(S_NONCE)}, v24")
            for q in range(1, 4):
                A(f"v_cmp_ne_u32 {s(S_CMP+2*q,2)}, {s(S_NONCE)}, {v(24+q)}")
            for q in range(1, 4): A(f"s_or_b64 vcc, vcc, {s(S_CMP+2*q,2)}")
            A("s_cbranch_vccz L_ep_ok")
            A(f"s_sub_u32 {s(S_SPIN)}, {s(S_SPIN)}, 1")
            A(f"s_cmp_lg_u32 {s(S_SPIN)}, 0")
            A("s_cbranch_scc1 L_ep_spin")
            A("L_ep_ok:")
            A(f"v_mov_b32 v20, {EP}")
            A(f"v_mov_b32 v21, {s(S_NONCE)}")
            A(f"s_mov_b64 {s(S_EX,2)}, exec")
            A("s_mov_b64 exec, 1")
            A(f"global_store_dword v20, v21, {s(S_WS,2)} {SCS}")
            A(f"s_mov_b64 exec, {s(S_EX,2)}")
            A("s_branch L_epdone")
        elif callable(st):
            st()
        else:
            for line in st: A(line)
    n = a.fix_hazards()
    return a, n

HEAD = f"""; Fused sliding-window attention block + H3 SSM conv, one persistent launch (generated by gen/gen2.py)
; @launch grid=(256,1,1) block=(512,1,1) lds={LDS_BYTES}
.amdgcn_target "amdgcn-amd-amdhsa--gfx950"
.text
.globl {KN}
.p2align 8
.type {KN},@function
{KN}:
"""
TAIL = f""".section .rodata,"a"
.p2align 6
.amdhsa_kernel {KN}
  .amdhsa_next_free_vgpr 256
  .amdhsa_next_free_sgpr 102
  .amdhsa_accum_offset 256
  .amdhsa_group_segment_fixed_size 0
  .amdhsa_kernarg_size 96
  .amdhsa_user_sgpr_count 2
  .amdhsa_user_sgpr_kernarg_segment_ptr 1
  .amdhsa_system_sgpr_workgroup_id_x 1
.end_amdhsa_kernel
"""
if __name__ == "__main__":
    out = sys.argv[1] if len(sys.argv) > 1 else f"cdna_kernels/{NAME}.s"
    opt = {}
    for x in sys.argv[2:]:
        if "=" in x:
            k, val = x.split("="); opt[k] = int(val)
    a, n = build(prof=("prof" in sys.argv), opt=opt)
    open(out, "w").write(HEAD + a.text() + TAIL)
    print("instructions:", a.count(), "hazard pads:", n)
```

```python
import sys
from asmlib import Asm, v, s

NAME = "concat_heads__sliding_block__ssm_conv_h3__prompt"
KN = NAME + "_kernel"

FLG = 0x0
F_B1, F_A1, F_B2, F_A2 = 0, 32768, 65536, 98304
F_A1W, F_A2W = 0x40000, 0x80000
EP  = 0x20000
KW  = 0x100000
VW  = 0x300000
OW  = 0x500000
UR  = 0x700000
YT  = 0x900000
WS_BYTES = 0xB00000
PROF = 0xC00000

STG = 28672
B2R = 114688
CB  = 12864
T0  = B2R
KVS = 140416
E_OFF, O_OFF, U_OFF = 0, 4164, 8288
LK, LV, LQ = 0, 24576, 49536
KHS, VHS, VTS = 12288, 12480, 1040
LR  = 57728
LO  = 0
LWO = 81920
LS0, LS1 = 65536, 147456
LYT = 65536
CSW = 163808
MSK = 147456
OK2 = 163824
OKW = 163792
OKW_OLD = 163832
LDS_BYTES = 163840

S_X, S_WQKV, S_WO, S_BQ, S_BK, S_BV, S_SK, S_SSMK = 16, 18, 20, 22, 24, 26, 28, 30
S_SD, S_OUT, S_DBG, S_WS = 32, 34, 36, 38
R_X, R_W, R_BK, R_WS, R_WO = 40, 44, 48, 52, 56
S_NONCE, S_WV, S_J, S_XCD, S_RB, S_HP = 60, 61, 62, 63, 64, 65
S_T0, S_T1, S_T2, S_T3, S_T4, S_T5 = 66, 67, 68, 69, 70, 71
S_LI = 72
S_J0 = 73
S_SPIN = 74
S_OK = 75
S_EX = 76
S_CBASE, S_CH = 78, 79
S_CMP = 80
S_HD, S_TB64 = 96, 97
S_ROT = 75

PAK, PAV0, PAV1, PAQ = 192, 193, 194, 195
PFB2, PFA2, PY0, PY1, PYR, PO, PWO, PAO, PAW, POUT, PL16, PQ3 = 196, 197, 198, 199, 200, 201, 202, 203, 204, 205, 206, 207
PPW = [9, 10, 11, 12]
PPR = [13, 14, 15, 2]
PB3 = 8
S_LINK = 4
S_WOB, S_WOL = 6, 7
SPIN = 200000
NEGBIG = 0xF149F2CA
QSCALE = 0x3EB8AA3B
ONES = 0x3F803F80
STAGE = [0, 1, 2, 3, 0, 1, 2, 3]
MF = "v_mfma_f32_32x32x16_bf16"
MF16 = "v_mfma_f32_16x16x32_bf16"

def build(prof=False, opt=None):
    opt = opt or {}
    NT_B = "nt" if opt.get("nt_b", 0) else ""
    NT_XW = "nt" if opt.get("nt_xw", 0) else ""
    NT_WO = "nt" if opt.get("nt_wo", 0) else ""
    SCP = {0: "sc0 sc1", 1: "sc1"}[opt.get("sc_poll", 1)]
    SCS = {0: "sc0 sc1", 1: "sc1"}[opt.get("sc_store", 1)]
    SLEEP = opt.get("sleep", 0)
    FST = {0: "", 1: "sc0 sc1", 2: "nt", 3: "sc1"}[opt.get("fst", 2)]
    BST = {0: "", 1: "sc0 sc1", 2: "nt", 3: "sc1"}[opt.get("bst", 2)]
    a = Asm()
    A = a
    stubs = []
    def stamp(k):
        if not prof: return
        A("s_memrealtime s[100:101]")
        A("s_memtime s[98:99]")
        A("s_waitcnt lgkmcnt(0)")
        A(f"v_writelane_b32 v255, s100, {k}")
        A(f"v_writelane_b32 v255, s98, {k+32}")
    def srd(dst, base, nbytes):
        A(f"s_mov_b32 {s(dst)}, {s(base)}")
        A(f"s_and_b32 {s(dst+1)}, {s(base+1)}, 0xffff")
        A(f"s_mov_b32 {s(dst+2)}, {nbytes}")
        A(f"s_mov_b32 {s(dst+3)}, 0x00020000")
    def flag_load(vaddr, vtmp):
        A(f"global_load_dword {v(vtmp)}, {v(vaddr)}, {s(S_WS,2)} {SCP}")
    def spin(vaddr, vtmp, label):
        A(f"s_mov_b32 {s(S_SPIN)}, {SPIN}")
        A(f"{label}:")
        flag_load(vaddr, vtmp)
        A("s_waitcnt vmcnt(0)")
        A(f"v_cmp_ne_u32 vcc, {s(S_NONCE)}, {v(vtmp)}")
        A(f"s_cbranch_vccz {label}_done")
        if SLEEP: A(f"s_sleep {SLEEP}")
        A(f"s_sub_u32 {s(S_SPIN)}, {s(S_SPIN)}, 1")
        A(f"s_cmp_lg_u32 {s(S_SPIN)}, 0")
        A(f"s_cbranch_scc1 {label}")
        A(f"{label}_done:")
    def check_or_spin(vaddr, vtmp, label):
        A(f"v_cmp_ne_u32 vcc, {s(S_NONCE)}, {v(vtmp)}")
        A(f"s_cbranch_vccz {label}_done")
        spin(vaddr, vtmp, label)
    WL = opt.get("wline", 1)
    def publish(kind, vt0, vt1):
        if WL and kind in (F_A1, F_A2):
            A(f"s_lshl_b32 {s(S_T0)}, s2, 3")
            A(f"s_add_u32 {s(S_T0)}, {s(S_T0)}, {s(S_WV)}")
            A(f"s_lshl_b32 {s(S_T0)}, {s(S_T0)}, 7")
            A(f"s_add_u32 {s(S_T0)}, {s(S_T0)}, {FLG + (F_A1W if kind == F_A1 else F_A2W)}")
        else:
            A(f"s_lshl_b32 {s(S_T0)}, s2, 7")
            A(f"s_lshl_b32 {s(S_T1)}, {s(S_WV)}, 2")
            A(f"s_add_u32 {s(S_T0)}, {s(S_T0)}, {s(S_T1)}")
            A(f"s_add_u32 {s(S_T0)}, {s(S_T0)}, {FLG + kind}")
        A(f"v_mov_b32 {v(vt0)}, {s(S_T0)}")
        A(f"v_mov_b32 {v(vt1)}, {s(S_NONCE)}")
        A(f"s_mov_b64 {s(S_EX,2)}, exec")
        A(f"s_mov_b64 exec, 1")
        A(f"global_store_dword {v(vt0)}, {v(vt1)}, {s(S_WS,2)} {SCS}")
        A(f"s_mov_b64 exec, {s(S_EX,2)}")

    def record(fn):
        n0 = len(a.items)
        fn()
        out = [it.text for k, it in a.items[n0:]]
        assert all(k == "i" for k, it in a.items[n0:])
        del a.items[n0:]
        return out
    MM0, MM8, MMK = 208, 224, 240
    def gen_masks():
        A("v_and_b32 v248, 31, v1")
        A("v_lshrrev_b32 v249, 5, v1")
        A("v_lshlrev_b32 v249, 2, v249")
        A("v_sub_u32 v248, v248, v249")
        A(f"v_mov_b32 v249, {NEGBIG}")
        A("v_mov_b32 v250, 0xffff")
        for r in range(16):
            cst = (r & 3) + 8*(r >> 2)
            A(f"v_subrev_u32 {v(MM0+r)}, {cst}, v248")
        for r in range(16):
            A(f"v_ashrrev_i32 {v(MM0+r)}, 31, {v(MM0+r)}")
        for i in range(8):
            A(f"v_bfi_b32 {v(MMK+i)}, v250, {v(MM0+2*i)}, {v(MM0+2*i+1)}")
        for r in range(16):
            A(f"v_and_b32 {v(MM8+r)}, v249, {v(MM0+r)}")
        for r in range(16):
            A(f"v_xor_b32 {v(MM0+r)}, v249, {v(MM8+r)}")

    def sub_setup():
        A("L_sub_b:")
        A(f"s_lshr_b32 {s(S_HD)}, {s(S_WV)}, 2")
        A(f"s_lshl_b32 {s(S_T0)}, {s(S_RB)}, 2")
        A(f"s_add_u32 {s(S_T0)}, {s(S_T0)}, {s(S_LI)}")
        A(f"s_sub_i32 {s(S_J0)}, 8, {s(S_T0)}")
        A(f"s_max_i32 {s(S_J0)}, {s(S_J0)}, 0")
        A(f"v_lshlrev_b32 {v(PL16)}, 4, v1")
        A(f"s_lshl_b32 {s(S_T0)}, {s(S_HD)}, 12")
        A(f"s_lshl_b32 {s(S_T1)}, {s(S_LI)}, 10")
        A(f"s_add_u32 {s(S_T0)}, {s(S_T0)}, {s(S_T1)}")
        A(f"v_add_u32 {v(PAQ)}, {s(S_T0)}, {v(PL16)}")
        A(f"s_mul_i32 {s(S_T0)}, {s(S_HD)}, {KHS}")
        A(f"s_add_u32 {s(S_T0)}, {s(S_T0)}, {s(S_T1)}")
        A(f"v_add_u32 {v(PAK)}, {s(S_T0)}, {v(PL16)}")
        A(f"s_mul_i32 {s(S_T0)}, {s(S_HD)}, {VHS}")
        A(f"s_mul_i32 {s(S_T1)}, {s(S_LI)}, {VTS}")
        A(f"s_add_u32 {s(S_T0)}, {s(S_T0)}, {s(S_T1)}")
        A("v_and_b32 v248, 15, v1")
        A("v_lshlrev_b32 v248, 4, v248")
        A("v_lshrrev_b32 v249, 5, v1")
        A("v_lshl_add_u32 v248, v249, 8, v248")
        A("v_bfe_u32 v249, v1, 4, 1")
        A("v_cmp_eq_u32 vcc, 1, v249")
        A("v_mov_b32 v249, 1024")
        A("v_mov_b32 v250, 512")
        A(f"v_cndmask_b32 {v(PAV0)}, v248, v249, vcc")
        A(f"v_cndmask_b32 {v(PAV1)}, v248, v250, vcc")
        A(f"v_add_u32 {v(PAV0)}, {s(S_T0)}, {v(PAV0)}")
        A(f"v_add_u32 {v(PAV1)}, {s(S_T0)}, {v(PAV1)}")
        A(f"s_lshl_b32 {s(S_T0)}, {s(S_RB)}, 2")
        A(f"s_add_u32 {s(S_T0)}, {s(S_T0)}, {s(S_LI)}")
        A(f"s_lshl_b32 {s(S_T0)}, {s(S_T0)}, 5")
        A(f"s_lshl_b32 {s(S_T1)}, {s(S_HP)}, 1")
        A(f"s_add_u32 {s(S_T0)}, {s(S_T0)}, {s(S_T1)}")
        A(f"s_add_u32 {s(S_T0)}, {s(S_T0)}, {s(S_HD)}")
        A(f"s_lshl_b32 {s(S_T0)}, {s(S_T0)}, 10")
        A(f"s_add_u32 {s(S_T0)}, {s(S_T0)}, {OW}")
        A(f"v_add_u32 {v(PO)}, {s(S_T0)}, {v(PL16)}")
        A("v_and_b32 v248, 31, v1")
        A("v_lshrrev_b32 v249, 5, v1")
        A(f"s_lshl_b32 {s(S_T0)}, {s(S_WV)}, 1")
        A(f"v_add_u32 v249, {s(S_T0)}, v249")
        A(f"s_lshl_b32 {s(S_T0)}, {s(S_J)}, 6")
        A("v_lshlrev_b32 v250, 2, v249")
        A(f"v_add_u32 v250, {s(S_T0)}, v250")
        A(f"s_lshl_b32 {s(S_T0)}, {s(S_XCD)}, 7")
        A("v_lshlrev_b32 v251, 2, v248")
        A(f"v_add_u32 v251, {s(S_T0)}, v251")
        A(f"v_lshl_add_u32 {v(PQ3)}, v250, 10, v251")
        A(f"v_lshl_add_u32 {v(PB3)}, v250, 11, v251")
        A(f"v_add_u32 {v(PB3)}, 1024, {v(PB3)}")
        A(f"s_setpc_b64 {s(S_LINK,2)}")
    def c_setup():
        gen_masks()
        A(f"s_cmp_lg_u32 {s(S_WV)}, 0")
        A("s_cbranch_scc1 L_c_nomsk")
        A("v_lshlrev_b32 v248, 4, v1")
        A(f"v_add_u32 v248, {MSK}, v248")
        for k in range(10):
            A(f"ds_write_b128 v248, {v(MM0+4*k,4)} offset:{1024*k}")
        A("L_c_nomsk:")
        A("v_lshrrev_b32 v248, 3, v1")
        A("v_bfe_u32 v249, v248, 1, 1")
        A("v_lshlrev_b32 v249, 2, v249")
        A("v_and_b32 v250, 7, v1")
        A("v_xor_b32 v249, v249, v250")
        A("v_lshlrev_b32 v249, 4, v249")
        A(f"v_lshl_add_u32 {v(PWO)}, v248, 10, v249")
        A(f"s_lshr_b32 {s(S_T0)}, {s(S_J)}, 2")
        A(f"s_lshl_b32 {s(S_T0)}, {s(S_T0)}, 7")
        A(f"s_lshl_b32 {s(S_T1)}, {s(S_WV)}, 16")
        A(f"s_add_u32 {s(S_WOB)}, {s(S_T0)}, {s(S_T1)}")
        A(f"s_lshl_b32 {s(S_WOL)}, {s(S_WV)}, 13")
        srd(R_WO, S_WO, 512*1024)
        A(f"v_lshrrev_b32 {v(PFB2)}, 1, v1")
        A(f"v_lshlrev_b32 {v(PFB2)}, 10, {v(PFB2)}")
        A("v_and_b32 v248, 1, v1")
        A(f"v_lshl_add_u32 {v(PFB2)}, v248, 3, {v(PFB2)}")
        A(f"s_lshr_b32 {s(S_T0)}, {s(S_J)}, 4")
        A(f"s_add_u32 {s(S_T0)}, {s(S_T0)}, 4")
        A(f"s_lshl_b32 {s(S_T0)}, {s(S_T0)}, 2")
        A(f"s_lshl_b32 {s(S_T1)}, {s(S_XCD)}, 7")
        A(f"s_add_u32 {s(S_T0)}, {s(S_T0)}, {s(S_T1)}")
        A(f"s_add_u32 {s(S_T0)}, {s(S_T0)}, {FLG + F_B2}")
        A(f"v_add_u32 {v(PFB2)}, {s(S_T0)}, {v(PFB2)}")
    def tail_addr():
        A("v_and_b32 v248, 31, v1")
        A("v_lshrrev_b32 v249, 5, v1")
        A(f"s_lshl_b32 {s(S_T0)}, {s(S_WV)}, 1")
        A(f"v_add_u32 v249, {s(S_T0)}, v249")
        A("v_lshrrev_b32 v250, 1, v249")
        A("v_and_b32 v251, 7, v248")
        A("v_xor_b32 v250, v250, v251")
        A("v_lshlrev_b32 v250, 4, v250")
        A("v_and_b32 v251, 1, v249")
        A("v_lshl_add_u32 v250, v251, 3, v250")
        A("v_lshl_add_u32 v250, v248, 8, v250")
        A(f"v_add_u32 {v(PYR)}, {LYT}, v250")
        A(f"s_lshr_b32 {s(S_TB64)}, {s(S_RB)}, 2")
        A(f"s_lshl_b32 {s(S_TB64)}, {s(S_TB64)}, 1")
        A(f"s_and_b32 {s(S_T0)}, {s(S_XCD)}, 1")
        A(f"s_add_u32 {s(S_TB64)}, {s(S_TB64)}, {s(S_T0)}")
        A(f"s_lshl_b32 {s(S_TB64)}, {s(S_TB64)}, 2")
        A(f"s_and_b32 {s(S_T0)}, {s(S_J)}, 3")
        A(f"s_add_u32 {s(S_TB64)}, {s(S_TB64)}, {s(S_T0)}")
        A("v_and_b32 v248, 1, v1")
        A("v_bfe_u32 v249, v1, 1, 2")
        A(f"s_lshl_b32 {s(S_T0)}, {s(S_WV)}, 2")
        A(f"v_add_u32 v249, {s(S_T0)}, v249")
        A(f"s_lshl_b32 {s(S_T0)}, {s(S_TB64)}, 1")
        A(f"v_add_u32 v248, {s(S_T0)}, v248")
        A("v_lshrrev_b32 v250, 2, v248")
        A("v_lshrrev_b32 v251, 1, v249")
        A("v_and_b32 v252, 3, v250")
        A("v_and_b32 v253, 7, v251")
        A("v_lshl_add_u32 v252, v253, 2, v252")
        A("v_lshlrev_b32 v252, 3, v252")
        A("v_lshrrev_b32 v253, 2, v250")
        if opt.get("gray", 1):
            A("v_lshrrev_b32 v250, 1, v253")
            A("v_xor_b32 v253, v253, v250")
        A("v_lshl_add_u32 v252, v253, 1, v252")
        A("v_lshrrev_b32 v253, 3, v251")
        A("v_add_u32 v252, v252, v253")
        A("v_and_b32 v253, 3, v248")
        A("v_and_b32 v250, 1, v249")
        A("v_lshl_add_u32 v253, v250, 2, v253")
        if WL:
            A("v_lshl_add_u32 v252, v252, 3, v253")
            A("v_lshlrev_b32 v252, 7, v252")
            A(f"v_add_u32 {v(PFA2)}, {FLG + F_A2W}, v252")
        else:
            A("v_lshlrev_b32 v252, 7, v252")
            A("v_lshl_add_u32 v252, v253, 2, v252")
            A(f"v_add_u32 {v(PFA2)}, {FLG + F_A2}, v252")
        A("v_lshrrev_b32 v248, 3, v1")
        A("v_and_b32 v249, 7, v1")
        A("v_lshrrev_b32 v250, 1, v248")
        A("v_xor_b32 v249, v249, v250")
        A("v_lshlrev_b32 v248, 12, v248")
        A(f"v_lshl_add_u32 {v(PY0)}, v249, 4, v248")
        A("v_xor_b32 v249, 4, v249")
        A(f"v_lshl_add_u32 {v(PY1)}, v249, 4, v248")
        A(f"s_and_b32 {s(S_T0)}, {s(S_WV)}, 1")
        A(f"s_lshl_b32 {s(S_T0)}, {s(S_T0)}, 15")
        A(f"s_lshl_b32 {s(S_T2)}, {s(S_HD)}, 14")
        A(f"s_add_u32 {s(S_T0)}, {s(S_T0)}, {s(S_T2)}")
        A(f"v_add_u32 {v(PAO)}, {s(S_T0)}, {v(PL16)}")
        A("v_and_b32 v248, 15, v1")
        A("v_lshrrev_b32 v248, 2, v248")
        A("v_lshrrev_b32 v249, 5, v1")
        A("v_lshl_add_u32 v249, v249, 2, v248")
        A("v_lshlrev_b32 v249, 7, v249")
        A("v_lshrrev_b32 v248, 1, v248")
        A(f"s_bfe_u32 {s(S_T0)}, {s(S_WV)}, 0x10001")
        A(f"v_xor_b32 v248, {s(S_T0)}, v248")
        A("v_lshl_add_u32 v249, v248, 6, v249")
        A("v_bfe_u32 v248, v1, 4, 1")
        A("v_lshl_add_u32 v249, v248, 5, v249")
        A("v_and_b32 v248, 3, v1")
        A("v_lshl_add_u32 v249, v248, 3, v249")
        A(f"s_lshl_b32 {s(S_T2)}, {s(S_HD)}, 15")
        A(f"s_add_u32 {s(S_T2)}, {s(S_T2)}, {LWO}")
        A(f"v_add_u32 {v(PAW)}, {s(S_T2)}, v249")
        A("v_and_b32 v248, 31, v1")
        A("v_lshrrev_b32 v249, 5, v1")
        A(f"s_lshl_b32 {s(S_T0)}, {s(S_T0)}, 3")
        A(f"v_add_u32 v249, {s(S_T0)}, v249")
        A("v_and_b32 v250, 15, v248")
        A("v_xor_b32 v249, v249, v250")
        A("v_lshlrev_b32 v249, 4, v249")
        A(f"s_and_b32 {s(S_T0)}, {s(S_WV)}, 1")
        A(f"s_lshl_b32 {s(S_T0)}, {s(S_T0)}, 13")
        A(f"s_mul_i32 {s(S_T2)}, {s(S_HD)}, {LS1 - LS0}")
        A(f"s_add_u32 {s(S_T0)}, {s(S_T0)}, {s(S_T2)}")
        A(f"s_add_u32 {s(S_T0)}, {s(S_T0)}, {LS0}")
        A("v_lshl_add_u32 v249, v248, 8, v249")
        A(f"v_add_u32 v249, {s(S_T0)}, v249")
        for m in range(4):
            A(f"v_xor_b32 {v(PPW[m])}, {m*32}, v249")
        A("v_lshrrev_b32 v248, 3, v0")
        A("v_and_b32 v249, 7, v0")
        A("v_lshlrev_b32 v250, 1, v249")
        A("v_and_b32 v251, 15, v248")
        A("v_xor_b32 v250, v250, v251")
        A("v_lshlrev_b32 v250, 4, v250")
        A("v_lshl_add_u32 v250, v248, 8, v250")
        A("v_xor_b32 v251, 16, v250")
        A(f"v_add_u32 {v(PPR[0])}, {LS0}, v250"); A(f"v_add_u32 {v(PPR[1])}, {LS0}, v251")
        A(f"v_add_u32 {v(PPR[2])}, {LS1}, v250"); A(f"v_add_u32 {v(PPR[3])}, {LS1}, v251")
        A(f"s_lshl_b32 {s(S_T0)}, {s(S_TB64)}, 17")
        A(f"s_lshr_b32 {s(S_T1)}, {s(S_J)}, 2")
        A(f"s_lshl_b32 {s(S_T1)}, {s(S_T1)}, 7")
        A(f"s_add_u32 {s(S_T0)}, {s(S_T0)}, {s(S_T1)}")
        A("v_lshlrev_b32 v250, 11, v248")
        A("v_lshl_add_u32 v250, v249, 4, v250")
        A(f"v_add_u32 {v(POUT)}, {s(S_T0)}, v250")
    def call(lab): A(f"s_call_b64 {s(S_LINK,2)}, {lab}")
    def wo_dma(n):
        A(f"s_add_u32 m0, {s(S_WOL)}, {LWO + (n & 7)*1024 + (n >> 3)*4*8192}")
        A(f"s_add_u32 {s(S_T1)}, {s(S_WOB)}, {(n & 7)*8192 + (n >> 3)*4*65536}")
        A(f"buffer_load_dwordx4 {v(PWO)}, {s(R_WO,4)}, {s(S_T1)} offen {NT_WO} lds")

    stamp(0)
    DBG = opt.get("dbg", 0)
    if DBG: A("s_memrealtime s[8:9]")
    A("s_load_dwordx16 s[16:31], s[0:1], 0")
    A("s_load_dwordx8 s[32:39], s[0:1], 64")
    A("s_cmp_ge_u32 s2, 256")
    A("s_cbranch_scc1 L_end")
    A("v_and_b32 v1, 63, v0")
    A("v_lshrrev_b32 v2, 6, v0")
    A(f"s_and_b32 {s(S_XCD)}, s2, 7")
    A(f"s_lshr_b32 {s(S_J)}, s2, 3")
    A(f"v_readfirstlane_b32 {s(S_WV)}, v2")
    GRAY = opt.get("gray", 1)
    A(f"s_lshr_b32 {s(S_T0)}, {s(S_XCD)}, 1")
    if GRAY:
        A(f"s_lshr_b32 {s(S_T1)}, {s(S_T0)}, 1")
        A(f"s_xor_b32 {s(S_T0)}, {s(S_T0)}, {s(S_T1)}")
    A(f"s_lshl_b32 {s(S_T0)}, {s(S_T0)}, 2")
    A(f"s_and_b32 {s(S_T1)}, {s(S_J)}, 3")
    A(f"s_add_u32 {s(S_RB)}, {s(S_T0)}, {s(S_T1)}")
    A(f"s_and_b32 {s(S_T0)}, {s(S_XCD)}, 1")
    A(f"s_lshl_b32 {s(S_T0)}, {s(S_T0)}, 3")
    A(f"s_lshr_b32 {s(S_T1)}, {s(S_J)}, 2")
    A(f"s_add_u32 {s(S_HP)}, {s(S_T0)}, {s(S_T1)}")
    A(f"s_and_b32 {s(S_LI)}, {s(S_WV)}, 3")
    A("v_and_b32 v3, 31, v1")
    A("v_lshrrev_b32 v4, 5, v1")
    A(f"s_cmp_ge_u32 {s(S_WV)}, 4")
    A("s_cbranch_scc1 L_lwave")
    A("v_lshrrev_b32 v5, 3, v1")
    A("v_and_b32 v6, 7, v1")
    A("v_lshlrev_b32 v6, 4, v6")
    A(f"s_lshl_b32 {s(S_T0)}, {s(S_J)}, 6")
    A(f"s_lshl_b32 {s(S_T1)}, {s(S_WV)}, 4")
    A(f"s_add_u32 {s(S_T0)}, {s(S_T0)}, {s(S_T1)}")
    A(f"v_add_u32 v5, {s(S_T0)}, v5")
    A("v_lshlrev_b32 v5, 10, v5")
    A(f"s_lshl_b32 {s(S_T1)}, {s(S_XCD)}, 7")
    A(f"v_add3_u32 v7, v5, v6, {s(S_T1)}")
    A("v_add_u32 v8, 0xffffe000, v7")
    A("v_add_u32 v9, 0x2000, v7")
    A(f"s_mul_i32 {s(S_T4)}, {s(S_WV)}, 5120")
    A(f"s_add_u32 {s(S_T4)}, {s(S_T4)}, {KVS}")
    A(f"s_lshl_b32 {s(S_T0)}, {s(S_XCD)}, 9")
    A("v_lshlrev_b32 v11, 4, v3")
    A(f"v_add_u32 v11, {s(S_T0)}, v11")
    A("s_waitcnt lgkmcnt(0)")
    if opt.get("wsoff", 0):
        A(f"s_add_u32 {s(S_WS)}, {s(S_WS)}, {opt['wsoff'] << 20}")
        A(f"s_addc_u32 {s(S_WS+1)}, {s(S_WS+1)}, 0")
    stamp(1)
    srd(R_BK, S_BK, 2048*1024)
    srd(R_X, S_BV, 2048*1024)
    A(f"s_load_dword {s(S_NONCE)}, {s(S_WS,2)}, {EP}")
    for n, vr in enumerate((8, 7, 9)):
        A(f"s_add_u32 m0, {s(S_T4)}, {n*1024}")
        A(f"buffer_load_dwordx4 {v(vr)}, {s(R_BK,4)}, 0 offen {NT_B} lds")
    for n, vr in enumerate((7, 9)):
        A(f"s_add_u32 m0, {s(S_T4)}, {3072 + n*1024}")
        A(f"buffer_load_dwordx4 {v(vr)}, {s(R_X,4)}, 0 offen {NT_B} lds")
    A(f"global_load_dwordx4 v[36:39], v11, {s(S_SK,2)}")
    NTOUCH = 0
    if opt.get("cpf", 0):
        NCP = opt.get("cpf")
        A(f"s_cmp_ge_u32 {s(S_J)}, 2")
        A("s_cbranch_scc1 L_nocpf")
        A("s_getpc_b64 s[98:99]")
        A("s_and_b32 s98, s98, 0xffffff00")
        A(f"s_mul_i32 {s(S_T0)}, {s(S_LI)}, {NCP*1024}")
        A("v_lshlrev_b32 v40, 4, v1")
        A(f"v_add_u32 v40, {s(S_T0)}, v40")
        for k in range(NCP):
            A(f"global_load_dwordx4 v[200:203], v40, s[98:99] offset:{(k % 4)*1024}")
            if k % 4 == 3: A("v_add_u32 v40, 0x1000, v40")
        A("L_nocpf:")
    if opt.get("touch", 0):
        A("v_and_b32 v40, 7, v1")
        A("v_lshlrev_b32 v40, 21, v40")
        A("v_min_u32 v40, 0xa00000, v40")
        A(f"global_load_dword v200, v40, {s(S_WS,2)} offset:2048")
        A(f"s_lshl_b32 {s(S_T0)}, {s(S_J)}, 16")
        A(f"v_mov_b32 v42, {s(S_T0)}")
        A(f"global_load_dword v201, v42, {s(S_BQ,2)}")
        A(f"s_lshl_b32 {s(S_T0)}, {s(S_J)}, 17")
        A(f"v_mov_b32 v44, {s(S_T0)}")
        A(f"global_load_dword v202, v44, {s(S_OUT,2)}")
        A(f"s_lshl_b32 {s(S_T0)}, {s(S_XCD)}, 19")
        A(f"v_mov_b32 v46, {s(S_T0)}")
        A(f"global_load_dword v203, v46, {s(S_OUT,2)}")
        A("v_mov_b32 v48, 0")
        A(f"global_load_dword v204, v48, {s(S_WO,2)}")
        A(f"global_load_dword v205, v48, {s(S_SSMK,2)}")
        NTOUCH = 6
    XA, XB, WA, WB, WC = 144, 148, 152, 153, 154
    A(f"s_lshl_b32 {s(S_T0)}, {s(S_LI)}, 5")
    A(f"v_add_u32 v110, {s(S_T0)}, v3")
    A("v_lshrrev_b32 v111, 1, v110")
    A("v_and_b32 v111, 7, v111")
    A("v_xor_b32 v111, v111, v4")
    A("v_lshlrev_b32 v111, 4, v111")
    A("v_lshl_add_u32 v111, v110, 7, v111")
    for st in range(4):
        A(f"v_xor_b32 {v(XA+st)}, {st*32}, v111")
        A(f"v_add_u32 {v(XB+st)}, {2*STG}, {v(XA+st)}")
    A("v_and_b32 v110, 15, v1")
    A("v_lshrrev_b32 v110, 2, v110")
    A("v_lshl_add_u32 v110, v4, 3, v110")
    A("v_lshlrev_b32 v110, 6, v110")
    A("v_bfe_u32 v111, v1, 4, 1")
    A("v_lshl_add_u32 v110, v111, 5, v110")
    A("v_and_b32 v111, 3, v1")
    A("v_lshl_add_u32 v110, v111, 3, v110")
    A(f"v_add_u32 {v(WA)}, 16384, v110")
    A(f"v_add_u32 {v(WB)}, {2*STG}, {v(WA)}")
    A(f"v_add_u32 {v(WC)}, {4*STG}, {v(WA)}")
    ACC = 64
    FR = [160, 176, 128]
    def reads(n):
        c, st = n >> 2, n & 3
        stage = STAGE[c]
        xa = (XA if stage < 2 else XB) + st
        wa = WA if stage < 2 else WB if stage < 4 else WC
        so = (stage & 1) * STG
        xo = so if stage < 4 else 2*STG
        f = FR[n % 3]
        L = [f"ds_read_b128 {v(f,4)}, {v(xa)} offset:{xo}"]
        for p in range(3):
            L.append(f"ds_read_b64_tr_b16 {v(f+4+4*p,2)}, {v(wa)} offset:{so + p*4096 + st*1024}")
            L.append(f"ds_read_b64_tr_b16 {v(f+6+4*p,2)}, {v(wa)} offset:{so + p*4096 + st*1024 + 256}")
        return L
    def mfma(n, p):
        f = FR[n % 3]
        acc = v(ACC + 16*p, 16)
        cin = "0" if n == 0 else acc
        if p < 2: return f"{MF} {acc}, {v(f+4+4*p,4)}, {v(f,4)}, {cin}"
        else:     return f"{MF} {acc}, {v(f,4)}, {v(f+4+4*p,4)}, {cin}"
    def epi_addr():
        A("v_lshlrev_b32 v32, 4, v1")
        A(f"s_lshl_b32 {s(S_T0)}, {s(S_HP)}, 7")
        A(f"s_lshl_b32 {s(S_T1)}, {s(S_RB)}, 2")
        A(f"s_add_u32 {s(S_T0)}, {s(S_T0)}, {s(S_T1)}")
        A(f"s_add_u32 {s(S_T0)}, {s(S_T0)}, {s(S_LI)}")
        A(f"s_lshl_b32 {s(S_T0)}, {s(S_T0)}, 10")
        A(f"s_add_u32 {s(S_T1)}, {s(S_T0)}, {KW}")
        A(f"v_add_u32 v37, {s(S_T1)}, v32")
        A("v_add_u32 v38, 0x10000, v37")
        A("v_and_b32 v34, 15, v1")
        A("v_lshlrev_b32 v34, 4, v34")
        A("v_lshl_add_u32 v34, v4, 8, v34")
        A("v_bfe_u32 v35, v1, 4, 1")
        A(f"s_add_u32 {s(S_T1)}, {s(S_T0)}, {VW}")
        A("v_lshlrev_b32 v39, 16, v35")
        A(f"v_add3_u32 v39, v39, v34, {s(S_T1)}")
        A(f"s_lshl_b32 {s(S_T0)}, {s(S_LI)}, 10")
        A(f"v_add_u32 v33, {s(S_T0)}, v32")
        A(f"s_mul_i32 {s(S_T0)}, {s(S_LI)}, {VTS}")
        A(f"v_mov_b32 v36, {VHS}")
        A("v_mul_u32_u24 v36, v36, v35")
        A(f"v_add3_u32 v36, v36, v34, {s(S_T0)}")
    def halo_addr():
        srd(R_WS, S_WS, WS_BYTES)
        A(f"s_sub_u32 {s(S_T2)}, {s(S_RB)}, 1")
        A(f"s_sub_u32 {s(S_T3)}, {s(S_RB)}, 2")
        A(f"s_max_i32 {s(S_T3)}, {s(S_T3)}, 0")
        A(f"s_max_i32 {s(S_T2)}, {s(S_T2)}, 0")
        A("v_and_b32 v158, 1, v1")
        A("v_cmp_eq_u32 vcc, 1, v158")
        A(f"v_mov_b32 v158, {s(S_T2)}")
        A(f"v_mov_b32 v157, {s(S_T3)}")
        A("v_cndmask_b32 v158, v158, v157, vcc")
        A(f"s_and_b32 {s(S_T0)}, {s(S_HP)}, 7")
        A(f"s_lshl_b32 {s(S_T0)}, {s(S_T0)}, 5")
        A(f"s_lshr_b32 {s(S_T1)}, {s(S_HP)}, 3")
        A(f"s_add_u32 {s(S_T0)}, {s(S_T0)}, {s(S_T1)}")
        A("v_and_b32 v157, 3, v158")
        A("v_lshlrev_b32 v157, 3, v157")
        A("v_lshrrev_b32 v158, 2, v158")
        if opt.get("gray", 1):
            A("v_lshrrev_b32 v159, 1, v158")
            A("v_xor_b32 v158, v158, v159")
        A("v_lshl_add_u32 v157, v158, 1, v157")
        A(f"v_add_u32 v157, {s(S_T0)}, v157")
        if WL:
            A("v_lshlrev_b32 v157, 10, v157")
            A(f"s_lshl_b32 {s(S_T0)}, {s(S_LI)}, 7")
            A(f"s_add_u32 {s(S_T0)}, {s(S_T0)}, {FLG + F_A1W}")
        else:
            A("v_lshlrev_b32 v157, 7, v157")
            A(f"s_lshl_b32 {s(S_T0)}, {s(S_LI)}, 2")
            A(f"s_add_u32 {s(S_T0)}, {s(S_T0)}, {FLG + F_A1}")
        A(f"v_add_u32 v157, {s(S_T0)}, v157")
    A("v_lshlrev_b32 v5, 10, v4")
    A("v_lshl_add_u32 v5, v3, 2, v5")
    A(f"v_add_u32 v5, {s(S_T4)}, v5")
    A(f"s_lshl_b32 {s(S_T0)}, {s(S_WV)}, 1")
    A(f"v_add_u32 v6, {s(S_T0)}, v4")
    A("v_sub_u32 v112, 7, v6")
    A("v_and_b32 v113, 7, v3")
    A("v_xor_b32 v112, v112, v113")
    A("v_lshlrev_b32 v112, 4, v112")
    A("v_lshl_add_u32 v112, v3, 8, v112")
    A(f"v_add_u32 v112, {T0}, v112")
    A("v_lshrrev_b32 v114, 3, v1")
    A(f"s_lshl_b32 {s(S_T0)}, {s(S_LI)}, 4")
    A(f"v_add_u32 v114, {s(S_T0)}, v114")
    A("v_and_b32 v115, 7, v1")
    A("v_lshrrev_b32 v116, 1, v114")
    A("v_and_b32 v116, 7, v116")
    A("v_xor_b32 v116, v116, v115")
    A("v_lshlrev_b32 v117, 7, v114")
    A("v_lshl_add_u32 v118, v116, 4, v117")
    A("v_xor_b32 v116, 4, v116")
    A("v_lshl_add_u32 v119, v116, 4, v117")
    A(f"v_add_u32 v118, {T0}, v118")
    A(f"v_add_u32 v119, {T0 + 1024}, v119")
    A(f"s_lshl_b32 {s(S_T0)}, {s(S_XCD)}, 18")
    A(f"s_lshl_b32 {s(S_T1)}, {s(S_J)}, 7")
    A(f"s_sub_u32 {s(S_T0)}, {s(S_T0)}, {s(S_T1)}")
    A(f"s_add_u32 {s(S_T0)}, {s(S_T0)}, {UR + 1984*2}")
    A("v_lshlrev_b32 v120, 12, v114")
    A("v_lshl_add_u32 v120, v115, 4, v120")
    A(f"v_add_u32 v120, {s(S_T0)}, v120")
    A("v_add_u32 v121, 0x8000, v120")
    A(f"s_waitcnt vmcnt({NTOUCH}) lgkmcnt(0)")
    stamp(2)
    for r in range(11):
        A(f"ds_read_b32 {v(16+r)}, v5 offset:{(5+r)*128}")
    for r in range(8):
        A(f"ds_read_b32 {v(28+r)}, v5 offset:{3072 + r*128}")
    A("v_lshlrev_b32 v78, 16, v36"); A("v_lshlrev_b32 v79, 16, v38")
    A("v_and_b32 v80, 0xffff0000, v36"); A("v_and_b32 v81, 0xffff0000, v38")
    A("v_lshlrev_b32 v82, 16, v37"); A("v_lshlrev_b32 v83, 16, v39")
    A("v_and_b32 v84, 0xffff0000, v37"); A("v_and_b32 v85, 0xffff0000, v39")
    A(f"s_add_u32 {s(S_NONCE)}, {s(S_NONCE)}, 1")
    A("s_waitcnt lgkmcnt(8)")
    for r in range(11):
        A(f"v_lshlrev_b32 {v(40+2*r)}, 16, {v(16+r)}")
        A(f"v_and_b32 {v(41+2*r)}, 0xffff0000, {v(16+r)}")
    for tau in range(8):
        A(f"v_pk_mul_f32 {v(86+2*tau,2)}, {v(40+2*(tau+3),2)}, {v(78,2)}")
    for jj in range(1, 4):
        for tau in range(8):
            d = 86 + 2*tau
            A(f"v_pk_fma_f32 {v(d,2)}, {v(40+2*(tau+3-jj),2)}, {v(78+2*jj,2)}, {v(d,2)}")
    A("s_waitcnt lgkmcnt(0)")
    for r in range(8):
        A(f"v_lshlrev_b32 {v(62+2*r)}, 16, {v(28+r)}")
        A(f"v_and_b32 {v(63+2*r)}, 0xffff0000, {v(28+r)}")
    for tau in range(8):
        d = 86 + 2*tau
        A(f"v_pk_mul_f32 {v(d,2)}, {v(d,2)}, {v(62+2*tau,2)}")
    for e in range(4):
        A(f"v_cvt_pk_bf16_f32 {v(104+e)}, {v(86+2*(7-2*e))}, {v(86+2*(6-2*e))}")
        A(f"v_cvt_pk_bf16_f32 {v(108+e)}, {v(87+2*(7-2*e))}, {v(87+2*(6-2*e))}")
    A("ds_write_b128 v112, v[104:107]")
    A("ds_write_b128 v112, v[108:111] offset:128")
    A(f"s_sub_u32 {s(S_T0)}, {s(S_NONCE)}, 1")
    A(f"v_mov_b32 v156, {s(S_T0)}")
    A(f"v_mov_b32 v16, {OK2}")
    A("ds_write_b32 v16, v156")
    A("s_waitcnt lgkmcnt(0)")
    stamp(3)
    A("s_barrier")
    stamp(4)
    A("ds_read_b128 v[24:27], v118")
    A("ds_read_b128 v[28:31], v119")
    for t in reads(0): A(t)
    A("s_waitcnt lgkmcnt(7)")
    A(f"global_store_dwordx4 v120, v[24:27], {s(S_WS,2)} {SCS}")
    A(f"global_store_dwordx4 v121, v[28:31], {s(S_WS,2)} {SCS}")
    for t in reads(1): A(t)
    for n in range(32):
        if (n & 3) == 2 and n + 2 < 32:
            A("s_waitcnt lgkmcnt(0)")
            if n == 2: epi_addr()
            if n == 6: halo_addr()
            if n == 10:
                A("s_waitcnt vmcnt(0)")
                publish(F_B1, 16, 17)

            if prof and n <= 14: A(f"s_memtime s[{8+2*(n>>2)}:{9+2*(n>>2)}]")
            A("s_barrier")
        elif n + 1 < 32:
            A("s_waitcnt lgkmcnt(7)")
        else:
            A("s_waitcnt lgkmcnt(0)")
        R = reads(n + 2) if n + 2 < 32 else []
        A(mfma(n, 0))
        for t in R[0:3]: A(t)
        A(mfma(n, 1))
        for t in R[3:5]: A(t)
        A(mfma(n, 2))
        for t in R[5:7]: A(t)
    if prof:
        A("s_waitcnt lgkmcnt(0)")
        for c in range(4): A(f"v_writelane_b32 v255, s{8+2*c}, {22+c}")
    stamp(5)
    PK = 112
    for i in range(8):
        A(f"v_cvt_pk_bf16_f32 {v(PK+8+i)}, {v(ACC+16+2*i)}, {v(ACC+17+2*i)}")
    A(f"global_store_dwordx4 v37, {v(PK+8,4)}, {s(S_WS,2)} {SCS}")
    A(f"global_store_dwordx4 v38, {v(PK+12,4)}, {s(S_WS,2)} {SCS}")
    for i in range(8):
        A(f"v_cvt_pk_bf16_f32 {v(PK+16+i)}, {v(ACC+32+2*i)}, {v(ACC+33+2*i)}")
    A(f"global_store_dwordx4 v39, {v(PK+16,4)}, {s(S_WS,2)} {SCS}")
    A(f"global_store_dwordx4 v39, {v(PK+20,4)}, {s(S_WS,2)} offset:512 {SCS}")
    A(f"s_mov_b32 {s(S_T0)}, {QSCALE}")
    for r in range(16):
        A(f"v_mul_f32 {v(ACC+r)}, {s(S_T0)}, {v(ACC+r)}")
    for i in range(8):
        A(f"v_cvt_pk_bf16_f32 {v(PK+i)}, {v(ACC+2*i)}, {v(ACC+2*i+1)}")
    A(f"ds_write_b128 v33, {v(PK+8,4)} offset:{LK + 8*1024}")
    A(f"ds_write_b128 v33, {v(PK+12,4)} offset:{LK + KHS + 8*1024}")
    A(f"ds_write_b128 v36, {v(PK+16,4)} offset:{LV + 8*VTS}")
    A(f"ds_write_b128 v36, {v(PK+20,4)} offset:{LV + 8*VTS + 512}")
    A(f"ds_write_b128 v33, {v(PK,4)} offset:{LQ}")
    A(f"ds_write_b128 v33, {v(PK+4,4)} offset:{LQ+4096}")
    A(f"s_cmp_lg_u32 {s(S_LI)}, 0")
    A("s_cbranch_scc1 L_c_nopad")
    A(f"v_mov_b32 v24, {ONES}"); A("v_mov_b32 v25, v24"); A("v_mov_b32 v26, v24"); A("v_mov_b32 v27, v24")
    A(f"v_mul_u32_u24 v28, {VTS}, v1")
    A("v_cmp_gt_u32 vcc, 24, v1")
    A(f"s_and_saveexec_b64 {s(S_EX,2)}, vcc")
    A(f"ds_write_b128 v28, v[24:27] offset:{LV + 1024}")
    A(f"s_mov_b64 exec, {s(S_EX,2)}")
    A("L_c_nopad:")
    A("s_waitcnt vmcnt(0)")
    publish(F_A1, 16, 17)
    stamp(6)
    if not opt.get("lateh", 1): flag_load(157, 158)
    A(f"s_mov_b32 {s(S_T4)}, {s(S_T2)}")
    A(f"s_mov_b32 {s(S_T5)}, {s(S_T3)}")
    c_setup()
    call("L_sub_b")
    A(f"s_mov_b32 {s(S_T2)}, {s(S_T4)}")
    A(f"s_mov_b32 {s(S_T3)}, {s(S_T5)}")
    A(f"s_cmp_eq_u32 {s(S_RB)}, 0")
    A("s_cbranch_scc1 L_c_halo_done")
    if opt.get("lateh", 1):
        spin(157, 158, "L_poll_h")
    else:
        A("s_waitcnt vmcnt(0)")
        check_or_spin(157, 158, "L_poll_h")
    stamp(7)
    A("v_lshlrev_b32 v18, 4, v1")
    A(f"s_lshl_b32 {s(S_T4)}, {s(S_LI)}, 10")
    A(f"s_mul_i32 {s(S_T5)}, {s(S_LI)}, {VTS}")
    def halo(rbreg, toff):
        A(f"s_lshl_b32 {s(S_T0)}, {s(S_HP)}, 7")
        A(f"s_lshl_b32 {s(S_T1)}, {s(rbreg)}, 2")
        A(f"s_add_u32 {s(S_T0)}, {s(S_T0)}, {s(S_T1)}")
        A(f"s_add_u32 {s(S_T0)}, {s(S_T0)}, {s(S_LI)}")
        A(f"s_lshl_b32 {s(S_T0)}, {s(S_T0)}, 10")
        for hd in range(2):
            A(f"s_add_u32 m0, {s(S_T4)}, {LK + hd*KHS + toff*1024}")
            A(f"s_add_u32 {s(S_T1)}, {s(S_T0)}, {KW + hd*65536}")
            A(f"buffer_load_dwordx4 v18, {s(R_WS,4)}, {s(S_T1)} offen sc1 lds")
            A(f"s_add_u32 m0, {s(S_T5)}, {LV + hd*VHS + toff*VTS}")
            A(f"s_add_u32 {s(S_T1)}, {s(S_T0)}, {VW + hd*65536}")
            A(f"buffer_load_dwordx4 v18, {s(R_WS,4)}, {s(S_T1)} offen sc1 lds")
    halo(S_T2, 4)
    A(f"s_cmp_eq_u32 {s(S_RB)}, 1")
    A("s_cbranch_scc1 L_c_halo_done")
    halo(S_T3, 0)
    A("L_c_halo_done:")
    A(f"s_or_b32 {s(S_T0)}, s2, {s(S_WV)}")
    A(f"s_cmp_lg_u32 {s(S_T0)}, 0")
    A("s_cbranch_scc0 L_st_epoch")
    stubs.append("EPOCH")
    A("L_epdone:")
    A("s_waitcnt lgkmcnt(0)")
    A("s_barrier")
    A("s_waitcnt vmcnt(0) lgkmcnt(0)")
    stamp(8)
    A("s_barrier")
    stamp(9)
    A("s_branch L_a2")

    A("L_lwave:")
    if opt.get("lprio", 0): A(f"s_setprio {opt.get('lprio')}")
    A("v_lshrrev_b32 v220, 3, v1")
    A(f"s_lshl_b32 {s(S_T0)}, {s(S_RB)}, 7")
    A(f"s_lshl_b32 {s(S_T1)}, {s(S_LI)}, 5")
    A(f"s_add_u32 {s(S_T0)}, {s(S_T0)}, {s(S_T1)}")
    A(f"v_add_u32 v220, {s(S_T0)}, v220")
    A("v_lshlrev_b32 v220, 10, v220")
    A("v_and_b32 v221, 7, v1")
    A("v_lshrrev_b32 v222, 4, v1")
    A("v_xor_b32 v223, v221, v222")
    A("v_lshl_add_u32 v200, v223, 4, v220")
    A("v_xor_b32 v223, 4, v223")
    A("v_lshl_add_u32 v201, v223, 4, v220")
    A("v_lshrrev_b32 v220, 2, v1")
    A(f"s_lshl_b32 {s(S_T0)}, {s(S_LI)}, 4")
    A(f"v_add_u32 v220, {s(S_T0)}, v220")
    A(f"v_mul_u32_u24 v220, 3072, v220")
    A("v_and_b32 v221, 3, v1")
    A("v_lshlrev_b32 v221, 4, v221")
    A(f"s_lshl_b32 {s(S_T0)}, {s(S_HP)}, 6")
    A(f"v_add3_u32 v202, v220, v221, {s(S_T0)}")
    S_LX, S_LW = S_T4, S_T5
    A(f"s_lshl_b32 {s(S_LX)}, {s(S_LI)}, 12")
    A(f"s_lshl_b32 {s(S_LW)}, {s(S_LI)}, 10")
    A(f"s_lshl_b32 {s(S_CH)}, {s(S_XCD)}, 6")
    A(f"s_lshl_b32 {s(S_T1)}, {s(S_J)}, 1")
    A(f"s_add_u32 {s(S_CH)}, {s(S_CH)}, {s(S_T1)}")
    A(f"s_lshr_b32 {s(S_T1)}, {s(S_LI)}, 1")
    A(f"s_add_u32 {s(S_CH)}, {s(S_CH)}, {s(S_T1)}")
    A(f"s_mul_i32 {s(S_CBASE)}, {s(S_T1)}, {CB}")
    A(f"s_add_u32 {s(S_CBASE)}, {s(S_CBASE)}, {B2R}")
    A(f"s_and_b32 {s(S_T2)}, {s(S_LI)}, 1")
    A(f"s_lshl_b32 {s(S_T1)}, {s(S_CH)}, 12")
    A(f"s_lshl_b32 {s(S_T3)}, {s(S_T2)}, 11")
    A(f"s_add_u32 {s(S_T1)}, {s(S_T1)}, {s(S_T3)}")
    A("v_lshlrev_b32 v203, 4, v1")
    A(f"v_add_u32 v203, {s(S_T1)}, v203")
    A("v_add_u32 v204, 2, v203")
    A("s_waitcnt lgkmcnt(0)")
    if opt.get("wsoff", 0):
        A(f"s_add_u32 {s(S_WS)}, {s(S_WS)}, {opt['wsoff'] << 20}")
        A(f"s_addc_u32 {s(S_WS+1)}, {s(S_WS+1)}, 0")
    stamp(1)
    srd(R_X, S_X, 2048*1024)
    srd(R_W, S_WQKV, 512*3072)
    A(f"s_load_dword {s(S_NONCE)}, {s(S_WS,2)}, {EP}")
    if opt.get("rot", 1):
        A(f"s_and_b32 {s(S_T0)}, {s(S_RB)}, 3")
        A(f"s_lshl_b32 {s(S_T0)}, {s(S_T0)}, 1")
        A(f"s_add_u32 {s(S_ROT)}, {s(S_HP)}, {s(S_T0)}")
        if opt.get("rotmask", 7) != 7: A(f"s_and_b32 {s(S_ROT)}, {s(S_ROT)}, {opt['rotmask']}")
    else:
        A(f"s_mov_b32 {s(S_ROT)}, 0")
    def dma_chunk(c):
        st = STAGE[c] * STG
        A(f"s_add_u32 {s(S_T1)}, {s(S_ROT)}, {c}")
        A(f"s_and_b32 {s(S_T1)}, {s(S_T1)}, 7")
        A(f"s_mul_i32 {s(S_T2)}, {s(S_T1)}, {64*3072}")
        A(f"s_lshl_b32 {s(S_T1)}, {s(S_T1)}, 7")
        for n in range(4):
            A(f"s_add_u32 m0, {s(S_LX)}, {st + n*1024}")
            A(f"s_add_u32 {s(S_T0)}, {s(S_T1)}, {n*8192}")
            A(f"buffer_load_dwordx4 {v(200 + (n & 1))}, {s(R_X,4)}, {s(S_T0)} offen {NT_XW} lds")
        for p in range(3):
            A(f"s_add_u32 m0, {s(S_LW)}, {st + 16384 + p*4096}")
            A(f"s_add_u32 {s(S_T0)}, {s(S_T2)}, {p*1024}")
            A(f"buffer_load_dwordx4 v202, {s(R_W,4)}, {s(S_T0)} offen {NT_XW} lds")
    DIST = opt.get('dist', 3)
    for c in range(DIST): dma_chunk(c)
    def h_loads():
        srd(R_WO, S_SSMK, 512*4096)
        A(f"s_and_b32 {s(S_T2)}, {s(S_LI)}, 1")
        A(f"s_lshl_b32 {s(S_T2)}, {s(S_T2)}, 11")
        A(f"s_add_u32 {s(S_T2)}, {s(S_T2)}, {s(S_CBASE)}")
        for n in range(2):
            A(f"s_add_u32 m0, {s(S_T2)}, {O_OFF + 28 + n*1024}")
            A(f"s_mov_b32 {s(S_T0)}, {n*1024}")
            A(f"buffer_load_dwordx4 v203, {s(R_WO,4)}, {s(S_T0)} offen {NT_B} lds")
            A(f"s_add_u32 m0, {s(S_T2)}, {E_OFF + 32 + n*1024}")
            A(f"buffer_load_dwordx4 v204, {s(R_WO,4)}, {s(S_T0)} offen {NT_B} lds")
        A(f"s_lshl_b32 {s(S_T0)}, {s(S_CH)}, 12")
        A(f"v_mov_b32 v34, {s(S_T0)}")
        A(f"global_load_dword v32, v34, {s(S_SSMK,2)}")
        A(f"s_lshl_b32 {s(S_T0)}, {s(S_CH)}, 1")
        A(f"s_and_b32 {s(S_T0)}, {s(S_T0)}, 0xfffffffc")
        A(f"v_mov_b32 v35, {s(S_T0)}")
        A(f"global_load_dword v33, v35, {s(S_SD,2)}")
    stamp(2)
    AA, AB = 16, 24
    CA = [32, 64]
    CBf = [96, 128]
    CACC = 160
    def build_eo():
        A(f"s_and_b32 {s(S_T2)}, {s(S_LI)}, 1")
        A(f"s_cmp_lg_u32 {s(S_T2)}, 0")
        A("s_cbranch_scc1 L_l_nopad")
        A(f"s_lshr_b32 {s(S_T0)}, {s(S_LI)}, 1")
        A(f"s_lshl_b32 {s(S_T0)}, {s(S_T0)}, 4")
        A(f"v_lshrrev_b32 v33, {s(S_T0)}, v33")
        A("v_lshlrev_b32 v33, 16, v33")
        A("v_lshlrev_b32 v34, 16, v32")
        A("v_add_f32 v34, v33, v34")
        A("v_cvt_pk_bf16_f32 v34, v34, v34")
        A("v_and_b32 v34, 0xffff, v34")
        A("v_and_b32 v35, 0xffff0000, v32")
        A("v_or_b32 v35, v35, v34")
        A("v_lshlrev_b32 v34, 16, v34")
        A("v_mov_b32 v36, 0")
        A("v_lshlrev_b32 v37, 2, v1")
        A(f"v_add_u32 v37, {s(S_CBASE)}, v37")
        A("v_cmp_eq_u32 vcc, 7, v1")
        A("v_cndmask_b32 v34, v36, v34, vcc")
        A("v_cndmask_b32 v35, v36, v35, vcc")
        A("v_cmp_gt_u32 vcc, 8, v1")
        A(f"s_and_saveexec_b64 {s(S_EX,2)}, vcc")
        A(f"ds_write_b32 v37, v34 offset:{E_OFF}")
        A(f"ds_write_b32 v37, v35 offset:{O_OFF}")
        A(f"s_mov_b64 exec, {s(S_EX,2)}")
        A("v_mov_b32 v39, 0")
        A("v_mov_b32 v38, 0")
        A("v_lshlrev_b32 v37, 3, v1")
        A(f"v_add_u32 v37, {s(S_CBASE)}, v37")
        A("v_cmp_gt_u32 vcc, 60, v1")
        A(f"s_and_saveexec_b64 {s(S_EX,2)}, vcc")
        A(f"ds_write_b64 v37, v[38:39] offset:{U_OFF + 4096}")
        A(f"s_mov_b64 exec, {s(S_EX,2)}")
        A("L_l_nopad:")
        A("s_waitcnt lgkmcnt(0)")
    def conv_addr():
        A("v_and_b32 v25, 15, v1")
        A("v_lshrrev_b32 v26, 4, v1")
        A("v_lshrrev_b32 v27, 1, v25")
        A("v_lshl_add_u32 v27, v26, 2, v27")
        A("v_lshlrev_b32 v27, 2, v27")
        A("v_and_b32 v28, 1, v25")
        A(f"v_mul_u32_u24 v28, {O_OFF}, v28")
        A(f"s_and_b32 {s(S_T2)}, {s(S_LI)}, 1")
        A(f"s_lshl_b32 {s(S_T0)}, {s(S_T2)}, 8")
        A(f"s_add_u32 {s(S_T0)}, {s(S_T0)}, {s(S_CBASE)}")
        A(f"v_add3_u32 {v(AA)}, v27, v28, {s(S_T0)}")
        for jj in range(1, 8):
            A(f"v_add_u32 {v(AA+jj)}, {512*jj}, {v(AA)}")
        A("v_lshlrev_b32 v27, 4, v26")
        A("v_lshlrev_b32 v28, 5, v25")
        A("v_sub_u32 v27, v27, v28")
        A(f"s_add_u32 {s(S_T0)}, {s(S_T0)}, {U_OFF + 480}")
        A(f"v_add_u32 {v(AB)}, {s(S_T0)}, v27")
    def ur_dma():
        A(f"s_lshl_b32 {s(S_T0)}, {s(S_CH)}, 12")
        A(f"s_add_u32 {s(S_T0)}, {s(S_T0)}, {UR}")
        A("v_lshlrev_b32 v28, 4, v1")
        for cs in range(2):
            for n in range(4):
                A(f"s_mov_b32 m0, {B2R + cs*CB + U_OFF + n*1024}")
                A(f"s_add_u32 {s(S_T1)}, {s(S_T0)}, {cs*4096 + n*1024}")
                A(f"buffer_load_dwordx4 v28, {s(R_WS,4)}, {s(S_T1)} offen sc1 lds")
    def lbar(c, n):
        if n is not None: A(f"s_waitcnt vmcnt({n})")
        if prof:
            A("s_memtime s[98:99]"); A("s_waitcnt lgkmcnt(0)"); A(f"v_writelane_b32 v255, s98, {22+c}")
        A("s_barrier")
        if prof:
            A("s_memtime s[98:99]"); A("s_waitcnt lgkmcnt(0)"); A(f"v_writelane_b32 v255, s98, {54+c}")
    A("s_waitcnt lgkmcnt(0)")
    A(f"s_lshl_b32 {s(S_T0)}, {s(S_LI)}, 2")
    A(f"s_add_u32 {s(S_T0)}, {s(S_T0)}, {OKW}")
    A(f"v_mov_b32 v29, {s(S_T0)}")
    A(f"v_mov_b32 v26, {s(S_NONCE)}")
    A("ds_write_b32 v29, v26")
    A("s_waitcnt lgkmcnt(0)")
    def b1_flag_sample():
        A("v_and_b32 v30, 31, v1")
        A("v_lshlrev_b32 v30, 10, v30")
        A(f"s_lshl_b32 {s(S_T0)}, {s(S_XCD)}, 7")
        A(f"s_lshr_b32 {s(S_T1)}, {s(S_J)}, 3")
        A(f"s_lshl_b32 {s(S_T1)}, {s(S_T1)}, 2")
        A(f"s_add_u32 {s(S_T0)}, {s(S_T0)}, {s(S_T1)}")
        A(f"s_add_u32 {s(S_T0)}, {s(S_T0)}, {FLG + F_B1}")
        A(f"v_add_u32 v30, {s(S_T0)}, v30")
        A(f"s_cmp_eq_u32 {s(S_LI)}, 0")
        A("s_cbranch_scc1 L_l_w4a")
        A(f"s_lshl_b32 {s(S_T0)}, s2, 7")
        A(f"s_add_u32 {s(S_T0)}, {s(S_T0)}, {FLG + F_B1}")
        A(f"v_mov_b32 v30, {s(S_T0)}")
        A("L_l_w4a:")
        flag_load(30, 31)
    if DIST == 3:
        lbar(0, 14)
        dma_chunk(3)
        A(f"s_add_u32 {s(S_NONCE)}, {s(S_NONCE)}, 1")
        srd(R_WS, S_WS, WS_BYTES)
        lbar(1, 14)
        dma_chunk(4)
        lbar(2, 14)
        dma_chunk(5)
        lbar(3, 14)
        dma_chunk(6)
        lbar(4, 14)
        dma_chunk(7)
        lbar(5, 14)
        b1_flag_sample()
        h_loads()
        lbar(6, 14)
        conv_addr()
    else:
        lbar(0, 7)
        dma_chunk(2)
        A(f"s_add_u32 {s(S_NONCE)}, {s(S_NONCE)}, 1")
        srd(R_WS, S_WS, WS_BYTES)
        lbar(1, 7)
        dma_chunk(3)
        h_loads()
        lbar(2, 12)
        dma_chunk(4)
        lbar(3, 12)
        dma_chunk(5)
        lbar(4, 7)
        dma_chunk(6)
        lbar(5, 7)
        dma_chunk(7)
        b1_flag_sample()
        build_eo()
        lbar(6, 8)
        conv_addr()
    A("s_waitcnt vmcnt(6)")
    A(f"s_mov_b32 {s(S_OK)}, 0")
    A(f"s_cmp_lg_u32 {s(S_LI)}, 0")
    A("s_cbranch_scc1 L_l_late")
    A(f"v_cmp_ne_u32 vcc, {s(S_NONCE)}, v31")
    A("s_cbranch_vccnz L_l_late")
    ur_dma()
    A(f"s_mov_b32 {s(S_OK)}, 1")
    A("L_l_late:")
    if prof:
        A("s_memtime s[98:99]"); A("s_waitcnt lgkmcnt(0)"); A(f"v_writelane_b32 v255, s98, 29")
    A("s_barrier")
    if opt.get("lprio", 0) != opt.get("cprio", 0): A(f"s_setprio {opt.get('cprio', 0)}")
    stamp(5)
    A(f"v_mov_b32 {v(PFB2)}, 0")
    call("L_sub_b")
    stamp(6)
    A(f"s_cmp_lg_u32 {s(S_LI)}, 0")
    A("s_cbranch_scc1 L_l_have")
    A(f"s_cmp_eq_u32 {s(S_OK)}, 1")
    A("s_cbranch_scc1 L_l_have")
    spin(30, 31, "L_poll_b1")
    ur_dma()
    A("L_l_have:")
    A("s_waitcnt vmcnt(0)")
    stamp(3)
    build_eo()
    stamp(4)
    A(f"v_mov_b32 v26, {s(S_NONCE)}")
    A("ds_write_b32 v29, v26")
    A(f"v_mov_b32 v25, {OKW}")
    A(f"s_mov_b32 {s(S_SPIN)}, {SPIN*8}")
    A("L_l_ospin:")
    A("ds_read_b128 v[32:35], v25")
    A("s_waitcnt lgkmcnt(0)")
    A(f"v_cmp_ne_u32 vcc, {s(S_NONCE)}, v32")
    A(f"v_cmp_ne_u32 {s(S_CMP,2)}, {s(S_NONCE)}, v33")
    A(f"v_cmp_ne_u32 {s(S_CMP+2,2)}, {s(S_NONCE)}, v34")
    A(f"v_cmp_ne_u32 {s(S_CMP+4,2)}, {s(S_NONCE)}, v35")
    A(f"s_or_b64 vcc, vcc, {s(S_CMP,2)}")
    A(f"s_or_b64 vcc, vcc, {s(S_CMP+2,2)}")
    A(f"s_or_b64 vcc, vcc, {s(S_CMP+4,2)}")
    A("s_cbranch_vccz L_l_go")
    A(f"s_sub_u32 {s(S_SPIN)}, {s(S_SPIN)}, 1")
    A(f"s_cmp_lg_u32 {s(S_SPIN)}, 0")
    A("s_cbranch_scc1 L_l_ospin")
    A("L_l_go:")
    A(f"s_and_b32 {s(S_T2)}, {s(S_LI)}, 1")
    stamp(7)
    def conv_reads(ii):
        st = ii & 1
        L = []
        for k in range(8):
            L.append(f"ds_read_b128 {v(CBf[st]+4*k,4)}, {v(AB)} offset:{512*(7-k) + 64*ii}")
            L.append(f"ds_read2_b32 {v(CA[st]+4*k,2)}, {v(AA+k)} offset0:{16*ii} offset1:{16*ii+1}")
            L.append(f"ds_read2_b32 {v(CA[st]+4*k+2,2)}, {v(AA+k)} offset0:{16*ii+2} offset1:{16*ii+3}")
        return L
    r0 = conv_reads(0)
    first = [r0[1], r0[2]] + [r0[3*k] for k in range(8)] + [x for k in range(1, 8) for x in (r0[3*k+1], r0[3*k+2])]
    for r in first: A(r)
    for ii in range(4):
        nxt = conv_reads(ii + 1) if ii < 3 else []
        st = ii & 1
        k = 0
        for jj in range(8):
            if ii == 0:
                if jj == 0: A("s_waitcnt lgkmcnt(14)")
                elif jj == 1: A("s_waitcnt lgkmcnt(0)")
            elif jj == 0:
                A("s_waitcnt lgkmcnt(0)")
            for cp in range(8 - jj):
                acc = v(CACC + 4*(cp + jj), 4)
                cin = "0" if (ii == 0 and jj == 0) else acc
                A(f"{MF16} {acc}, {v(CA[st]+4*jj,4)}, {v(CBf[st]+4*cp,4)}, {cin}")
                if k < len(nxt) and not (ii == 0 and jj == 0):
                    A(nxt[k]); k += 1
        while k < len(nxt):
            A(nxt[k]); k += 1
    stamp(8)
    if opt.get("cprio", 0): A("s_setprio 0")
    A("s_nop 7")
    A(f"s_and_b32 {s(S_T2)}, {s(S_LI)}, 1")
    A("v_lshlrev_b32 v25, 4, v1")
    A(f"s_lshl_b32 {s(S_T0)}, {s(S_LI)}, 12")
    A(f"v_add_u32 v26, {s(S_T0)}, v25")
    A(f"s_xor_b32 {s(S_T0)}, {s(S_T0)}, 4096")
    A(f"v_add_u32 v27, {s(S_T0)}, v25")
    A(f"s_cmp_lg_u32 {s(S_T2)}, 0")
    A("s_cbranch_scc1 L_l_x1")
    for k in range(4):
        A(f"ds_write_b128 v26, {v(CACC+16+4*k,4)} offset:{LR + 1024*k}")
    A("s_waitcnt lgkmcnt(0)")
    A("s_barrier")
    for k in range(4):
        A(f"ds_read_b128 {v(32+4*k,4)}, v27 offset:{LR + 1024*k}")
    A("s_waitcnt lgkmcnt(0)")
    for r in range(16):
        A(f"v_add_f32 {v(48+r)}, {v(32+r)}, {v(CACC+r)}")
    A("s_branch L_l_x2")
    A("L_l_x1:")
    A("s_nop 7")
    for k in range(4):
        A(f"ds_write_b128 v26, {v(CACC+4*k,4)} offset:{LR + 1024*k}")
    A("s_waitcnt lgkmcnt(0)")
    A("s_barrier")
    for k in range(4):
        A(f"ds_read_b128 {v(32+4*k,4)}, v27 offset:{LR + 1024*k}")
    A("s_waitcnt lgkmcnt(0)")
    for r in range(16):
        A(f"v_add_f32 {v(48+r)}, {v(32+r)}, {v(CACC+16+r)}")
    A("L_l_x2:")
    A("v_lshlrev_b32 v248, 4, v1")
    A(f"v_add_u32 v248, {MSK}, v248")
    for k in range(10):
        A(f"ds_read_b128 {v(MM0+4*k,4)}, v248 offset:{1024*k}")
    for k in range(4):
        A(f"v_cvt_pk_bf16_f32 {v(32+2*k)}, {v(48+4*k)}, {v(49+4*k)}")
        A(f"v_cvt_pk_bf16_f32 {v(33+2*k)}, {v(50+4*k)}, {v(51+4*k)}")
    A("v_and_b32 v25, 15, v1")
    A("v_lshlrev_b32 v25, 5, v25")
    A("v_bfe_u32 v26, v1, 4, 1")
    A("v_lshl_add_u32 v25, v26, 9, v25")
    A("v_lshrrev_b32 v26, 5, v1")
    A("v_lshl_add_u32 v25, v26, 4, v25")
    A(f"s_lshl_b32 {s(S_T0)}, {s(S_CH)}, 12")
    A(f"s_lshl_b32 {s(S_T1)}, {s(S_T2)}, 11")
    A(f"s_add_u32 {s(S_T0)}, {s(S_T0)}, {s(S_T1)}")
    A(f"s_add_u32 {s(S_T0)}, {s(S_T0)}, {YT}")
    A(f"v_add_u32 v25, {s(S_T0)}, v25")
    A("v_permlane16_swap_b32 v32, v34")
    A("v_permlane16_swap_b32 v33, v35")
    A("v_permlane16_swap_b32 v36, v38")
    A("v_permlane16_swap_b32 v37, v39")
    A(f"global_store_dwordx4 v25, v[32:35], {s(S_WS,2)} {SCS}")
    A(f"global_store_dwordx4 v25, v[36:39], {s(S_WS,2)} offset:1024 {SCS}")
    A("s_waitcnt lgkmcnt(0)")
    A("s_barrier")
    stamp(9)
    A("L_a2:")
    if DBG: A("s_memrealtime s[10:11]")
    if opt.get("prio", 0) == 1: A("s_setprio 1")
    if opt.get("prio", 0) == 2:
        A(f"s_cmp_lt_u32 {s(S_WV)}, 4")
        A("s_cbranch_scc1 L_a2_np")
        A("s_setprio 1")
        A("L_a2_np:")
    Q, KF, SA, SB, CN, PP, VF, O = 16, 20, 56, 72, 88, 104, 120, 136
    AK, AV0, AV1, TM, TM2 = PAK, PAV0, PAV1, 155, 156
    TM3 = 169
    VQ3, VF2A, VF2 = 160, PFB2, 165
    A(f"ds_read_b128 {v(Q,4)}, {v(PAQ)} offset:{LQ}")
    order = [8, 0, 7, 6, 5, 4, 3, 2, 1]
    for jj in order:
        A(f"ds_read_b128 {v(KF+4*jj,4)}, {v(AK)} offset:{LK + jj*1024}")
    for r in range(4):
        A(f"global_load_dword {v(VQ3+r)}, {v(PQ3)}, {s(S_BQ,2)} offset:{1024*r} {NT_B}")
    buf = lambda jj: SA if (jj & 1) else SB
    A("s_waitcnt lgkmcnt(7)")
    A(f"{MF} {v(MM8,16)}, {v(KF+32,4)}, {v(Q,4)}, {v(MM8,16)}")
    A(f"{MF} {v(MM0,16)}, {v(KF+0,4)}, {v(Q,4)}, {v(MM0,16)}")
    A("s_waitcnt lgkmcnt(5)")
    A(f"{MF} {v(SA,16)}, {v(KF+28,4)}, {v(Q,4)}, 0")
    A(f"{MF} {v(SB,16)}, {v(KF+24,4)}, {v(Q,4)}, 0")
    A(f"s_cmp_gt_u32 {s(S_J0)}, 0")
    A("s_cbranch_scc1 L_st_nomerge")
    stubs.append(["L_st_nomerge:", "s_nop 15", "s_branch L_a2_nomerge"])
    for r in range(16):
        A(f"v_max_f32 {v(MM8+r)}, {v(MM0+r)}, {v(MM8+r)}")
    A("L_a2_nomerge:")
    A(f"v_max_f32 {v(TM)}, {v(MM8)}, {v(MM8+1)}")
    A(f"v_max_f32 {v(TM3)}, {v(MM8+2)}, {v(MM8+3)}")
    for r in range(4, 16, 2):
        t = TM if (r & 2) == 0 else TM3
        A(f"v_max3_f32 {v(t)}, {v(t)}, {v(MM8+r)}, {v(MM8+r+1)}")
    A("s_waitcnt lgkmcnt(0)")
    for jj in range(7, 0, -1):
        b = buf(jj)
        A(f"s_cmp_gt_u32 {s(S_J0)}, {jj}")
        A("s_cbranch_scc1 L_a2_p1done")
        for r in range(0, 16, 2):
            t = TM if (r & 2) == 0 else TM3
            A(f"v_max3_f32 {v(t)}, {v(t)}, {v(b+r)}, {v(b+r+1)}")
        if jj - 2 >= 1:
            A(f"{MF} {v(b,16)}, {v(KF+4*(jj-2),4)}, {v(Q,4)}, 0")
    A("L_a2_p1done:")
    A(f"v_max_f32 {v(TM)}, {v(TM)}, {v(TM3)}")
    A(f"v_mov_b32 {v(TM2)}, {v(TM)}")
    A(f"v_permlane32_swap_b32 {v(TM)}, {v(TM2)}")
    A(f"v_max_f32 {v(TM)}, {v(TM)}, {v(TM2)}")
    A(f"v_sub_f32 {v(TM2)}, 0, {v(TM)}")
    for r in range(16):
        A(f"v_mov_b32 {v(CN+r)}, {v(TM2)}")
    stamp(10)
    A(f"{MF} {v(SA,16)}, {v(KF+28,4)}, {v(Q,4)}, {v(CN,16)}")
    A(f"{MF} {v(SB,16)}, {v(KF+24,4)}, {v(Q,4)}, {v(CN,16)}")
    def vread(slot, jj, sidx):
        A(f"ds_read_b128 {v(VF+4*slot,4)}, {v(AV0 if sidx == 0 else AV1)} offset:{LV + jj*VTS + sidx*512}")
    vread(0, 8, 0); vread(1, 8, 1); vread(2, 0, 0); vread(3, 0, 1)
    def pub_b2(lab, n):
        A(f"s_waitcnt vmcnt({n})")
        A(f"s_cmp_lt_u32 {s(S_WV)}, 4")
        A(f"s_cbranch_scc1 {lab}")
        publish(F_B2, 157, 158)
        A(f"{lab}:")
    if opt.get("prio", 0) == 1: A("s_setprio 0")
    pub_b2("L_a2_nopub", 4)
    P0, P1 = PP, PP + 8
    for r in range(16):
        A(f"v_add_f32 {v(MM8+r)}, {v(TM2)}, {v(MM8+r)}")
    for r in range(16):
        A(f"v_exp_f32 {v(MM8+r)}, {v(MM8+r)}")
    for i in range(8):
        A(f"v_cvt_pk_bf16_f32 {v(P0+i)}, {v(MM8+2*i)}, {v(MM8+2*i+1)}")
    for i in range(8):
        A(f"v_and_b32 {v(P1+i)}, {v(MMK+i)}, {v(P0+i)}")
    for i in range(8):
        A(f"v_xor_b32 {v(P0+i)}, {v(P1+i)}, {v(P0+i)}")
    A("s_waitcnt lgkmcnt(0)")
    A(f"{MF} {v(O,16)}, {v(VF+0,4)}, {v(P0,4)}, 0")
    A(f"s_cmp_gt_u32 {s(S_J0)}, 0")
    A("s_cbranch_scc1 L_a2_nopv0")
    A(f"{MF} {v(O,16)}, {v(VF+8,4)}, {v(P1,4)}, {v(O,16)}")
    A(f"{MF} {v(O,16)}, {v(VF+12,4)}, {v(P1+4,4)}, {v(O,16)}")
    A("L_a2_nopv0:")
    pb = lambda jj: PP + 8*(jj & 1)
    sl = lambda jj: 2*(jj & 1)
    def pend(jj):
        if jj == 7: return [f"{MF} {v(O,16)}, {v(VF+4,4)}, {v(P0+4,4)}, {v(O,16)}"]
        p = jj + 1
        return [f"{MF} {v(O,16)}, {v(VF+4*sl(p),4)}, {v(pb(p),4)}, {v(O,16)}",
                f"{MF} {v(O,16)}, {v(VF+4*sl(p)+4,4)}, {v(pb(p)+4,4)}, {v(O,16)}"]
    for jj in range(7, 0, -1):
        b = buf(jj)
        A(f"s_cmp_gt_u32 {s(S_J0)}, {jj}")
        A(f"s_cbranch_scc1 L_st_p2_{jj}")
        def stub(jj=jj):
            A(f"L_st_p2_{jj}:")
            A("s_waitcnt lgkmcnt(0)")
            A("s_nop 1")
            for m in pend(jj): A(m)
            if jj >= 4:
                A(f"s_cmp_ge_u32 {s(S_WV)}, 4")
                A(f"s_cbranch_scc1 L_st_nowo{jj}")
                for n in range(4*(7 - jj), 16): wo_dma(n)
                A(f"L_st_nowo{jj}:")
            if jj >= 3:
                A(f"s_cmp_lg_u32 {s(S_WV)}, 0")
                A("s_cbranch_scc1 L_a2_p2done")
                flag_load(VF2A, VF2)
            A("s_branch L_a2_p2done")
        stubs.append(stub)
        pm = pend(jj)
        pass
        for r in range(16):
            A(f"v_exp_f32 {v(b+r)}, {v(b+r)}")
            if r == 1:
                A("s_waitcnt lgkmcnt(0)")
                A(pm[0])
            if r == 7 and len(pm) > 1: A(pm[1])
            if r == 9:
                vread(sl(jj), jj, 0); vread(sl(jj) + 1, jj, 1)
            if jj >= 4 and r == 11:
                A(f"s_cmp_ge_u32 {s(S_WV)}, 4")
                A(f"s_cbranch_scc1 L_a2_nowo{jj}")
                for n in range(4): wo_dma(4*(7 - jj) + n)
                A(f"L_a2_nowo{jj}:")
            if jj == 3 and r == 13:
                A(f"s_cmp_lg_u32 {s(S_WV)}, 0")
                A("s_cbranch_scc1 L_a2_nosample")
                flag_load(VF2A, VF2)
                A("L_a2_nosample:")
        for i in range(8):
            A(f"v_cvt_pk_bf16_f32 {v(pb(jj)+i)}, {v(b+2*i)}, {v(b+2*i+1)}")
        if jj - 2 >= 1:
            A(f"{MF} {v(b,16)}, {v(KF+4*(jj-2),4)}, {v(Q,4)}, {v(CN,16)}")
    A("s_waitcnt lgkmcnt(0)")
    for m in pend(0): A(m)
    A("L_a2_p2done:")
    if opt.get("prio", 0) == 2: A("s_setprio 0")

    A("s_nop 15")
    A(f"v_rcp_f32 {v(TM)}, {v(O+8)}")
    for r in range(8):
        A(f"v_mul_f32 {v(O+r)}, {v(TM)}, {v(O+r)}")
    for i in range(4):
        A(f"v_cvt_pk_bf16_f32 {v(PP+i)}, {v(O+2*i)}, {v(O+2*i+1)}")
    A(f"global_store_dwordx4 {v(PO)}, {v(PP,4)}, {s(S_WS,2)} {SCS}")
    stamp(11)
    tail_addr()
    A("s_waitcnt vmcnt(0)")
    publish(F_A2, 157, 158)
    stamp(12)
    if not opt.get("latep", 1): flag_load(PFA2, 31)
    A(f"s_cmp_lg_u32 {s(S_WV)}, 0")
    A("s_cbranch_scc1 L_nob2poll")
    check_or_spin(VF2A, VF2, "L_poll_b2")
    A(f"s_lshl_b32 {s(S_T0)}, {s(S_XCD)}, 18")
    A(f"s_lshl_b32 {s(S_T1)}, {s(S_J)}, 7")
    A(f"s_add_u32 {s(S_T0)}, {s(S_T0)}, {s(S_T1)}")
    A(f"s_add_u32 {s(S_T0)}, {s(S_T0)}, {YT}")
    for n in range(8):
        A(f"s_mov_b32 m0, {LYT + n*1024}")
        A(f"s_add_u32 {s(S_T1)}, {s(S_T0)}, {n*8*4096}")
        A(f"buffer_load_dwordx4 {v(PY0 + (n & 1))}, {s(R_WS,4)}, {s(S_T1)} offen sc1 lds")
    A("L_nob2poll:")
    A("L_noep:")
    A("s_barrier")
    stamp(13)
    WF = 32
    for hs in range(16):
        A(f"ds_read_b64_tr_b16 {v(WF+4*hs,2)}, {v(PAW)} offset:{hs*2048}")
        A(f"ds_read_b64_tr_b16 {v(WF+4*hs+2,2)}, {v(PAW)} offset:{hs*2048 + 1024}")
    if opt.get("latep", 1): flag_load(PFA2, 31)
    A("s_waitcnt vmcnt(0)")
    A(f"v_mov_b32 v20, {OK2}")
    A(f"s_cmp_lg_u32 {s(S_WV)}, 0")
    A("s_cbranch_scc1 L_nosig")
    A(f"v_mov_b32 v21, {s(S_NONCE)}")
    A("ds_write_b32 v20, v21")
    A("L_nosig:")
    check_or_spin(PFA2, 31, "L_poll_a2")
    stamp(14)
    A(f"s_lshl_b32 {s(S_T0)}, {s(S_TB64)}, 16")
    A(f"s_lshl_b32 {s(S_T1)}, {s(S_WV)}, 12")
    A(f"s_add_u32 {s(S_T0)}, {s(S_T0)}, {s(S_T1)}")
    for hh in range(4):
        for ts in range(2):
            A(f"s_add_u32 m0, {s(S_T1)}, {LO + ts*32768 + hh*1024}")
            A(f"s_add_u32 {s(S_T2)}, {s(S_T0)}, {OW + ts*32768 + hh*1024}")
            A(f"buffer_load_dwordx4 {v(PL16)}, {s(R_WS,4)}, {s(S_T2)} offen sc1 lds")
    A(f"s_mov_b32 {s(S_SPIN)}, {SPIN*8}")
    A("L_y_spin:")
    A("ds_read_b32 v21, v20")
    A("s_waitcnt lgkmcnt(0)")
    A(f"v_cmp_ne_u32 vcc, {s(S_NONCE)}, v21")
    A("s_cbranch_vccz L_y_ok")
    A(f"s_sub_u32 {s(S_SPIN)}, {s(S_SPIN)}, 1")
    A(f"s_cmp_lg_u32 {s(S_SPIN)}, 0")
    A("s_cbranch_scc1 L_y_spin")
    A("L_y_ok:")
    A(f"ds_read_b64 v[22:23], {v(PYR)}")
    A(f"ds_read_b64 v[24:25], {v(PYR)} offset:128")
    for r in range(4):
        A(f"v_lshlrev_b32 {v(136+2*r)}, 16, {v(VQ3+r)}")
        A(f"v_and_b32 {v(137+2*r)}, 0xffff0000, {v(VQ3+r)}")
    A("s_waitcnt lgkmcnt(0)")
    A("v_lshlrev_b32 v144, 16, v22"); A("v_lshlrev_b32 v145, 16, v24")
    A("v_and_b32 v146, 0xffff0000, v22"); A("v_and_b32 v147, 0xffff0000, v24")
    A("v_lshlrev_b32 v148, 16, v23"); A("v_lshlrev_b32 v149, 16, v25")
    A("v_and_b32 v150, 0xffff0000, v23"); A("v_and_b32 v151, 0xffff0000, v25")
    for r in range(4):
        A(f"v_pk_mul_f32 {v(144+2*r,2)}, {v(144+2*r,2)}, {v(136+2*r,2)}")
    for r in range(4):
        A(f"v_cvt_pk_bf16_f32 {v(152+r)}, {v(144+2*r)}, {v(145+2*r)}")
    A(f"v_add_u32 v21, 0x1000, {v(PB3)}")
    A(f"global_store_dword {v(PB3)}, v152, {s(S_OUT,2)} {BST}")
    A(f"global_store_dword {v(PB3)}, v153, {s(S_OUT,2)} offset:2048 {BST}")
    A(f"global_store_dword v21, v154, {s(S_OUT,2)} {BST}")
    A(f"global_store_dword v21, v155, {s(S_OUT,2)} offset:2048 {BST}")
    A("s_waitcnt vmcnt(4)")
    stamp(15)
    A("s_barrier")
    stamp(16)
    OA = 160
    OF = 96
    for hs in range(16): A(f"ds_read_b128 {v(OF+4*hs,4)}, {v(PAO)} offset:{hs*1024}")
    for hs in range(16):
        if hs % 2 == 0: A(f"s_waitcnt lgkmcnt({min(15, 14 - hs)})" if hs < 14 else "s_waitcnt lgkmcnt(0)")
        cin = "0" if hs == 0 else v(OA,16)
        A(f"{MF} {v(OA,16)}, {v(WF+4*hs,4)}, {v(OF+4*hs,4)}, {cin}")
    if prof:
        A("s_nop 15")
        stamp(21)
    for m in range(4):
        A(f"ds_write_b128 {v(PPW[m])}, {v(OA+4*m,4)}")
    A("s_waitcnt lgkmcnt(0)")
    A("s_barrier")
    stamp(17)
    A(f"ds_read_b128 v[32:35], {v(PPR[0])}"); A(f"ds_read_b128 v[40:43], {v(PPR[2])}")
    A(f"ds_read_b128 v[36:39], {v(PPR[1])}"); A(f"ds_read_b128 v[44:47], {v(PPR[3])}")
    A("s_waitcnt lgkmcnt(0)")
    for r in range(8):
        A(f"v_add_f32 {v(32+r)}, {v(32+r)}, {v(40+r)}")
    for i in range(4):
        A(f"v_cvt_pk_bf16_f32 {v(48+i)}, {v(32+2*i)}, {v(33+2*i)}")
    A(f"global_store_dwordx4 {v(POUT)}, v[48:51], {s(S_OUT,2)} {FST}")
    if prof:
        stamp(18)
        A(f"s_lshl_b32 {s(S_T0)}, s2, 3")
        A(f"s_add_u32 {s(S_T0)}, {s(S_T0)}, {s(S_WV)}")
        A(f"s_lshl_b32 {s(S_T0)}, {s(S_T0)}, 8")
        A(f"s_add_u32 {s(S_T0)}, {s(S_T0)}, {PROF}")
        A("v_lshlrev_b32 v16, 2, v1")
        A(f"v_add_u32 v16, {s(S_T0)}, v16")
        A(f"global_store_dword v16, v255, {s(S_WS,2)}")
    if DBG:
        A("s_memrealtime s[12:13]")
        A("s_waitcnt lgkmcnt(0)")
        A("v_mov_b32 v16, 0")
        A("s_mov_b64 exec, 1")
        A("v_mov_b32 v17, s12"); A(f"global_atomic_umax v16, v17, {s(S_DBG,2)}")
        A("s_not_b32 s8, s8"); A("v_mov_b32 v17, s8"); A(f"global_atomic_umax v16, v17, {s(S_DBG,2)} offset:4")
        A("v_mov_b32 v17, s10"); A(f"global_atomic_umax v16, v17, {s(S_DBG,2)} offset:8")
        A("s_not_b32 s10, s10"); A("v_mov_b32 v17, s10"); A(f"global_atomic_umax v16, v17, {s(S_DBG,2)} offset:12")
        A("s_not_b32 s12, s12"); A("v_mov_b32 v17, s12"); A(f"global_atomic_umax v16, v17, {s(S_DBG,2)} offset:16")
    A("L_end:")
    A("s_endpgm")
    sub_setup()
    for st in stubs:
        if st == "EPOCH":
            A("L_st_epoch:")
            A(f"s_mov_b32 {s(S_SPIN)}, {SPIN}")
            A("v_lshlrev_b32 v20, 7, v1")
            A(f"v_add_u32 v20, {FLG + F_B1}, v20")
            for q in range(1, 4): A(f"v_add_u32 {v(20+q)}, {q*8192}, v20")
            A("L_ep_spin:")
            for q in range(4): A(f"global_load_dword {v(24+q)}, {v(20+q)}, {s(S_WS,2)} {SCP}")
            A("s_waitcnt vmcnt(0)")
            A(f"v_cmp_ne_u32 vcc, {s(S_NONCE)}, v24")
            for q in range(1, 4):
                A(f"v_cmp_ne_u32 {s(S_CMP+2*q,2)}, {s(S_NONCE)}, {v(24+q)}")
            for q in range(1, 4): A(f"s_or_b64 vcc, vcc, {s(S_CMP+2*q,2)}")
            A("s_cbranch_vccz L_ep_ok")
            A(f"s_sub_u32 {s(S_SPIN)}, {s(S_SPIN)}, 1")
            A(f"s_cmp_lg_u32 {s(S_SPIN)}, 0")
            A("s_cbranch_scc1 L_ep_spin")
            A("L_ep_ok:")
            A(f"v_mov_b32 v20, {EP}")
            A(f"v_mov_b32 v21, {s(S_NONCE)}")
            A(f"s_mov_b64 {s(S_EX,2)}, exec")
            A("s_mov_b64 exec, 1")
            A(f"global_store_dword v20, v21, {s(S_WS,2)} {SCS}")
            A(f"s_mov_b64 exec, {s(S_EX,2)}")
            A("s_branch L_epdone")
        elif callable(st):
            st()
        else:
            for line in st: A(line)
    n = a.fix_hazards()
    return a, n

HEAD = f"""; Fused sliding-window attention block + H3 SSM conv, one persistent launch (generated by gen/gen2.py)
; @launch grid=(256,1,1) block=(512,1,1) lds={LDS_BYTES}
.amdgcn_target "amdgcn-amd-amdhsa--gfx950"
.text
.globl {KN}
.p2align 8
.type {KN},@function
{KN}:
"""
TAIL = f""".section .rodata,"a"
.p2align 6
.amdhsa_kernel {KN}
  .amdhsa_next_free_vgpr 256
  .amdhsa_next_free_sgpr 102
  .amdhsa_accum_offset 256
  .amdhsa_group_segment_fixed_size 0
  .amdhsa_kernarg_size 96
  .amdhsa_user_sgpr_count 2
  .amdhsa_user_sgpr_kernarg_segment_ptr 1
  .amdhsa_system_sgpr_workgroup_id_x 1
.end_amdhsa_kernel
"""
if __name__ == "__main__":
    out = sys.argv[1] if len(sys.argv) > 1 else f"cdna_kernels/{NAME}.s"
    opt = {}
    for x in sys.argv[2:]:
        if "=" in x:
            k, val = x.split("="); opt[k] = int(val)
    a, n = build(prof=("prof" in sys.argv), opt=opt)
    open(out, "w").write(HEAD + a.text() + TAIL)
    print("instructions:", a.count(), "hazard pads:", n)
```

```python
import sys
from asmlib import Asm, v, s

NAME = "concat_heads__sliding_block__ssm_conv_h3__prompt"
KN = NAME + "_kernel"

FLG = 0x0
F_B1, F_A1, F_B2, F_A2 = 0, 32768, 65536, 98304
F_A1W, F_A2W = 0x40000, 0x80000
EP  = 0x20000
KW  = 0x100000
VW  = 0x300000
OW  = 0x500000
UR  = 0x700000
YT  = 0x900000
WS_BYTES = 0xB00000
PROF = 0xC00000

STG = 28672
B2R = 114688
CB  = 12864
T0  = B2R
KVS = 140416
E_OFF, O_OFF, U_OFF = 0, 4164, 8288
LK, LV, LQ = 0, 24576, 49536
KHS, VHS, VTS = 12288, 12480, 1040
LR  = 57728
LO  = 0
LWO = 81920
LS0, LS1 = 65536, 147456
LYT = 65536
CSW = 163808
MSK = 147456
LP = 0
OK2 = 163824
OKW = 163792
OKW_OLD = 163832
LDS_BYTES = 163840

S_X, S_WQKV, S_WO, S_BQ, S_BK, S_BV, S_SK, S_SSMK = 16, 18, 20, 22, 24, 26, 28, 30
S_SD, S_OUT, S_DBG, S_WS = 32, 34, 36, 38
R_X, R_W, R_BK, R_WS, R_WO = 40, 44, 48, 52, 56
S_NONCE, S_WV, S_J, S_XCD, S_RB, S_HP = 60, 61, 62, 63, 64, 65
S_T0, S_T1, S_T2, S_T3, S_T4, S_T5 = 66, 67, 68, 69, 70, 71
S_LI = 72
S_J0 = 73
S_SPIN = 74
S_OK = 75
S_EX = 76
S_CBASE, S_CH = 78, 79
S_CMP = 80
S_HD, S_TB64 = 96, 97
S_ROT = 75

PAK, PAV0, PAV1, PAQ = 192, 193, 194, 195
PFB2, PFA2, PY0, PY1, PYR, PO, PWO, PAO, PAW, POUT, PL16, PQ3 = 196, 197, 198, 199, 200, 201, 202, 203, 204, 205, 206, 207
PPW = [9, 10, 11, 12]
PPR = [13, 14, 15, 2]
PB3 = 8
S_LINK = 4
S_WOB, S_WOL = 6, 7
SPIN = 200000
NEGBIG = 0xF149F2CA
QSCALE = 0x3EB8AA3B
ONES = 0x3F803F80
STAGE = [0, 1, 2, 3, 0, 1, 2, 3]
MF = "v_mfma_f32_32x32x16_bf16"
MF16 = "v_mfma_f32_16x16x32_bf16"

def build(prof=False, opt=None):
    opt = opt or {}
    NT_B = "nt" if opt.get("nt_b", 0) else ""
    NT_XW = "nt" if opt.get("nt_xw", 0) else ""
    NT_WO = "nt" if opt.get("nt_wo", 0) else ""
    SCP = {0: "sc0 sc1", 1: "sc1", 2: "sc1 nt", 3: "sc0 sc1 nt"}[opt.get("sc_poll", 1)]
    SCS = {0: "sc0 sc1", 1: "sc1", 2: "sc1 nt"}[opt.get("sc_store", 1)]
    SLEEP = opt.get("sleep", 0)
    FST = {0: "", 1: "sc0 sc1", 2: "nt", 3: "sc1"}[opt.get("fst", 2)]
    BST = {0: "", 1: "sc0 sc1", 2: "nt", 3: "sc1"}[opt.get("bst", 2)]
    a = Asm()
    A = a
    stubs = []
    def stamp(k):
        if not prof: return
        A("s_memrealtime s[100:101]")
        A("s_memtime s[98:99]")
        A("s_waitcnt lgkmcnt(0)")
        A(f"v_writelane_b32 v255, s100, {k}")
        A(f"v_writelane_b32 v255, s98, {k+32}")
    def srd(dst, base, nbytes):
        A(f"s_mov_b32 {s(dst)}, {s(base)}")
        A(f"s_and_b32 {s(dst+1)}, {s(base+1)}, 0xffff")
        A(f"s_mov_b32 {s(dst+2)}, {nbytes}")
        A(f"s_mov_b32 {s(dst+3)}, 0x00020000")
    def flag_load(vaddr, vtmp):
        A(f"global_load_dword {v(vtmp)}, {v(vaddr)}, {s(S_WS,2)} {SCP}")
    def spin(vaddr, vtmp, label):
        A(f"s_mov_b32 {s(S_SPIN)}, {SPIN}")
        A(f"{label}:")
        flag_load(vaddr, vtmp)
        A("s_waitcnt vmcnt(0)")
        A(f"v_cmp_ne_u32 vcc, {s(S_NONCE)}, {v(vtmp)}")
        A(f"s_cbranch_vccz {label}_done")
        if SLEEP: A(f"s_sleep {SLEEP}")
        A(f"s_sub_u32 {s(S_SPIN)}, {s(S_SPIN)}, 1")
        A(f"s_cmp_lg_u32 {s(S_SPIN)}, 0")
        A(f"s_cbranch_scc1 {label}")
        A(f"{label}_done:")
    def check_or_spin(vaddr, vtmp, label):
        A(f"v_cmp_ne_u32 vcc, {s(S_NONCE)}, {v(vtmp)}")
        A(f"s_cbranch_vccz {label}_done")
        spin(vaddr, vtmp, label)
    WL = opt.get("wline", 1)
    def publish(kind, vt0, vt1):
        if WL and kind in (F_A1, F_A2):
            A(f"s_lshl_b32 {s(S_T0)}, s2, 3")
            A(f"s_add_u32 {s(S_T0)}, {s(S_T0)}, {s(S_WV)}")
            A(f"s_lshl_b32 {s(S_T0)}, {s(S_T0)}, 7")
            A(f"s_add_u32 {s(S_T0)}, {s(S_T0)}, {FLG + (F_A1W if kind == F_A1 else F_A2W)}")
        else:
            A(f"s_lshl_b32 {s(S_T0)}, s2, 7")
            A(f"s_lshl_b32 {s(S_T1)}, {s(S_WV)}, 2")
            A(f"s_add_u32 {s(S_T0)}, {s(S_T0)}, {s(S_T1)}")
            A(f"s_add_u32 {s(S_T0)}, {s(S_T0)}, {FLG + kind}")
        A(f"v_mov_b32 {v(vt0)}, {s(S_T0)}")
        A(f"v_mov_b32 {v(vt1)}, {s(S_NONCE)}")
        A(f"s_mov_b64 {s(S_EX,2)}, exec")
        A(f"s_mov_b64 exec, 1")
        A(f"global_store_dword {v(vt0)}, {v(vt1)}, {s(S_WS,2)} {SCS}")
        A(f"s_mov_b64 exec, {s(S_EX,2)}")

    def record(fn):
        n0 = len(a.items)
        fn()
        out = [it.text for k, it in a.items[n0:]]
        assert all(k == "i" for k, it in a.items[n0:])
        del a.items[n0:]
        return out
    MM0, MM8, MMK = 208, 224, 240
    def gen_masks():
        A("v_and_b32 v248, 31, v1")
        A("v_lshrrev_b32 v249, 5, v1")
        A("v_lshlrev_b32 v249, 2, v249")
        A("v_sub_u32 v248, v248, v249")
        A(f"v_mov_b32 v249, {NEGBIG}")
        A("v_mov_b32 v250, 0xffff")
        for r in range(16):
            cst = (r & 3) + 8*(r >> 2)
            A(f"v_subrev_u32 {v(MM0+r)}, {cst}, v248")
        for r in range(16):
            A(f"v_ashrrev_i32 {v(MM0+r)}, 31, {v(MM0+r)}")
        for i in range(8):
            A(f"v_bfi_b32 {v(MMK+i)}, v250, {v(MM0+2*i)}, {v(MM0+2*i+1)}")
        for r in range(16):
            A(f"v_and_b32 {v(MM8+r)}, v249, {v(MM0+r)}")
        for r in range(16):
            A(f"v_xor_b32 {v(MM0+r)}, v249, {v(MM8+r)}")

    def sub_setup():
        A("L_sub_b:")
        A(f"s_lshr_b32 {s(S_HD)}, {s(S_WV)}, 2")
        A(f"s_lshl_b32 {s(S_T0)}, {s(S_RB)}, 2")
        A(f"s_add_u32 {s(S_T0)}, {s(S_T0)}, {s(S_LI)}")
        A(f"s_sub_i32 {s(S_J0)}, 8, {s(S_T0)}")
        A(f"s_max_i32 {s(S_J0)}, {s(S_J0)}, 0")
        A(f"v_lshlrev_b32 {v(PL16)}, 4, v1")
        A(f"s_lshl_b32 {s(S_T0)}, {s(S_HD)}, 12")
        A(f"s_lshl_b32 {s(S_T1)}, {s(S_LI)}, 10")
        A(f"s_add_u32 {s(S_T0)}, {s(S_T0)}, {s(S_T1)}")
        A(f"v_add_u32 {v(PAQ)}, {s(S_T0)}, {v(PL16)}")
        A(f"s_mul_i32 {s(S_T0)}, {s(S_HD)}, {KHS}")
        A(f"s_add_u32 {s(S_T0)}, {s(S_T0)}, {s(S_T1)}")
        A(f"v_add_u32 {v(PAK)}, {s(S_T0)}, {v(PL16)}")
        A(f"s_mul_i32 {s(S_T0)}, {s(S_HD)}, {VHS}")
        A(f"s_mul_i32 {s(S_T1)}, {s(S_LI)}, {VTS}")
        A(f"s_add_u32 {s(S_T0)}, {s(S_T0)}, {s(S_T1)}")
        A("v_and_b32 v248, 15, v1")
        A("v_lshlrev_b32 v248, 4, v248")
        A("v_lshrrev_b32 v249, 5, v1")
        A("v_lshl_add_u32 v248, v249, 8, v248")
        A("v_bfe_u32 v249, v1, 4, 1")
        A("v_cmp_eq_u32 vcc, 1, v249")
        A("v_mov_b32 v249, 1024")
        A("v_mov_b32 v250, 512")
        A(f"v_cndmask_b32 {v(PAV0)}, v248, v249, vcc")
        A(f"v_cndmask_b32 {v(PAV1)}, v248, v250, vcc")
        A(f"v_add_u32 {v(PAV0)}, {s(S_T0)}, {v(PAV0)}")
        A(f"v_add_u32 {v(PAV1)}, {s(S_T0)}, {v(PAV1)}")
        A(f"s_lshl_b32 {s(S_T0)}, {s(S_RB)}, 2")
        A(f"s_add_u32 {s(S_T0)}, {s(S_T0)}, {s(S_LI)}")
        A(f"s_lshl_b32 {s(S_T0)}, {s(S_T0)}, 5")
        A(f"s_lshl_b32 {s(S_T1)}, {s(S_HP)}, 1")
        A(f"s_add_u32 {s(S_T0)}, {s(S_T0)}, {s(S_T1)}")
        A(f"s_add_u32 {s(S_T0)}, {s(S_T0)}, {s(S_HD)}")
        A(f"s_lshl_b32 {s(S_T0)}, {s(S_T0)}, 10")
        A(f"s_add_u32 {s(S_T0)}, {s(S_T0)}, {OW}")
        A(f"v_add_u32 {v(PO)}, {s(S_T0)}, {v(PL16)}")
        A("v_and_b32 v248, 31, v1")
        A("v_lshrrev_b32 v249, 5, v1")
        A(f"s_lshl_b32 {s(S_T0)}, {s(S_WV)}, 1")
        A(f"v_add_u32 v249, {s(S_T0)}, v249")
        A(f"s_lshl_b32 {s(S_T0)}, {s(S_J)}, 6")
        A("v_lshlrev_b32 v250, 2, v249")
        A(f"v_add_u32 v250, {s(S_T0)}, v250")
        A(f"s_lshl_b32 {s(S_T0)}, {s(S_XCD)}, 7")
        A("v_lshlrev_b32 v251, 2, v248")
        A(f"v_add_u32 v251, {s(S_T0)}, v251")
        A(f"v_lshl_add_u32 {v(PQ3)}, v250, 10, v251")
        A(f"v_lshl_add_u32 {v(PB3)}, v250, 11, v251")
        A(f"v_add_u32 {v(PB3)}, 1024, {v(PB3)}")
        A(f"s_setpc_b64 {s(S_LINK,2)}")
    def c_setup():
        gen_masks()
        A(f"s_cmp_lg_u32 {s(S_WV)}, 0")
        A("s_cbranch_scc1 L_c_nomsk")
        A("v_lshlrev_b32 v248, 4, v1")
        A(f"v_add_u32 v248, {MSK}, v248")
        for k in range(10):
            A(f"ds_write_b128 v248, {v(MM0+4*k,4)} offset:{1024*k}")
        A("L_c_nomsk:")
        A("v_lshrrev_b32 v248, 3, v1")
        A("v_bfe_u32 v249, v248, 1, 1")
        A("v_lshlrev_b32 v249, 2, v249")
        A("v_and_b32 v250, 7, v1")
        A("v_xor_b32 v249, v249, v250")
        A("v_lshlrev_b32 v249, 4, v249")
        A(f"v_lshl_add_u32 {v(PWO)}, v248, 10, v249")
        A(f"s_lshr_b32 {s(S_T0)}, {s(S_J)}, 2")
        A(f"s_lshl_b32 {s(S_T0)}, {s(S_T0)}, 7")
        A(f"s_lshl_b32 {s(S_T1)}, {s(S_WV)}, 16")
        A(f"s_add_u32 {s(S_WOB)}, {s(S_T0)}, {s(S_T1)}")
        A(f"s_lshl_b32 {s(S_WOL)}, {s(S_WV)}, 13")
        srd(R_WO, S_WO, 512*1024)
        A(f"v_lshrrev_b32 {v(PFB2)}, 1, v1")
        A(f"v_lshlrev_b32 {v(PFB2)}, 10, {v(PFB2)}")
        A("v_and_b32 v248, 1, v1")
        A(f"v_lshl_add_u32 {v(PFB2)}, v248, 3, {v(PFB2)}")
        A(f"s_lshr_b32 {s(S_T0)}, {s(S_J)}, 4")
        A(f"s_add_u32 {s(S_T0)}, {s(S_T0)}, 4")
        A(f"s_lshl_b32 {s(S_T0)}, {s(S_T0)}, 2")
        A(f"s_lshl_b32 {s(S_T1)}, {s(S_XCD)}, 7")
        A(f"s_add_u32 {s(S_T0)}, {s(S_T0)}, {s(S_T1)}")
        A(f"s_add_u32 {s(S_T0)}, {s(S_T0)}, {FLG + F_B2}")
        A(f"v_add_u32 {v(PFB2)}, {s(S_T0)}, {v(PFB2)}")
    def tail_addr():
        A("v_and_b32 v248, 31, v1")
        A("v_lshrrev_b32 v249, 5, v1")
        A(f"s_lshl_b32 {s(S_T0)}, {s(S_WV)}, 1")
        A(f"v_add_u32 v249, {s(S_T0)}, v249")
        A("v_lshrrev_b32 v250, 1, v249")
        A("v_and_b32 v251, 7, v248")
        A("v_xor_b32 v250, v250, v251")
        A("v_lshlrev_b32 v250, 4, v250")
        A("v_and_b32 v251, 1, v249")
        A("v_lshl_add_u32 v250, v251, 3, v250")
        A("v_lshl_add_u32 v250, v248, 8, v250")
        A(f"v_add_u32 {v(PYR)}, {LYT}, v250")
        A(f"s_lshr_b32 {s(S_TB64)}, {s(S_RB)}, 2")
        A(f"s_lshl_b32 {s(S_TB64)}, {s(S_TB64)}, 1")
        A(f"s_and_b32 {s(S_T0)}, {s(S_XCD)}, 1")
        A(f"s_add_u32 {s(S_TB64)}, {s(S_TB64)}, {s(S_T0)}")
        A(f"s_lshl_b32 {s(S_TB64)}, {s(S_TB64)}, 2")
        A(f"s_and_b32 {s(S_T0)}, {s(S_J)}, 3")
        A(f"s_add_u32 {s(S_TB64)}, {s(S_TB64)}, {s(S_T0)}")
        A(f"s_and_b32 {s(S_T2)}, {s(S_WV)}, 1")
        A(f"s_lshl_b32 {s(S_T0)}, {s(S_TB64)}, 1")
        A(f"s_add_u32 {s(S_T2)}, {s(S_T2)}, {s(S_T0)}")
        A(f"v_mov_b32 v248, {s(S_T2)}")
        A(f"s_lshr_b32 {s(S_T0)}, {s(S_WV)}, 1")
        A(f"s_lshl_b32 {s(S_T0)}, {s(S_T0)}, 3")
        A("v_and_b32 v249, 7, v1")
        A(f"v_add_u32 v249, {s(S_T0)}, v249")
        A(f"s_lshl_b32 {s(S_WOB)}, {s(S_T2)}, 5")
        A(f"s_add_u32 {s(S_WOB)}, {s(S_WOB)}, {s(S_T0)}")
        A(f"s_lshl_b32 {s(S_WOB)}, {s(S_WOB)}, 10")
        A(f"s_add_u32 {s(S_WOB)}, {s(S_WOB)}, {OW}")
        A("v_lshrrev_b32 v250, 2, v248")
        A("v_lshrrev_b32 v251, 1, v249")
        A("v_and_b32 v252, 3, v250")
        A("v_and_b32 v253, 7, v251")
        A("v_lshl_add_u32 v252, v253, 2, v252")
        A("v_lshlrev_b32 v252, 3, v252")
        A("v_lshrrev_b32 v253, 2, v250")
        if opt.get("gray", 1):
            A("v_lshrrev_b32 v250, 1, v253")
            A("v_xor_b32 v253, v253, v250")
        A("v_lshl_add_u32 v252, v253, 1, v252")
        A("v_lshrrev_b32 v253, 3, v251")
        A("v_add_u32 v252, v252, v253")
        A("v_and_b32 v253, 3, v248")
        A("v_and_b32 v250, 1, v249")
        A("v_lshl_add_u32 v253, v250, 2, v253")
        if WL:
            A("v_lshl_add_u32 v252, v252, 3, v253")
            A("v_lshlrev_b32 v252, 7, v252")
            A(f"v_add_u32 {v(PFA2)}, {FLG + F_A2W}, v252")
        else:
            A("v_lshlrev_b32 v252, 7, v252")
            A("v_lshl_add_u32 v252, v253, 2, v252")
            A(f"v_add_u32 {v(PFA2)}, {FLG + F_A2}, v252")
        A("v_lshrrev_b32 v248, 3, v1")
        A("v_and_b32 v249, 7, v1")
        A("v_lshrrev_b32 v250, 1, v248")
        A("v_xor_b32 v249, v249, v250")
        A("v_lshlrev_b32 v248, 12, v248")
        A(f"v_lshl_add_u32 {v(PY0)}, v249, 4, v248")
        A("v_xor_b32 v249, 4, v249")
        A(f"v_lshl_add_u32 {v(PY1)}, v249, 4, v248")
        A("v_and_b32 v248, 15, v1")
        A("v_lshrrev_b32 v248, 2, v248")
        A("v_lshrrev_b32 v249, 5, v1")
        A("v_lshl_add_u32 v249, v249, 2, v248")
        A("v_lshlrev_b32 v249, 7, v249")
        A("v_lshrrev_b32 v248, 1, v248")
        A("v_lshl_add_u32 v249, v248, 6, v249")
        A("v_bfe_u32 v248, v1, 4, 1")
        A("v_lshl_add_u32 v249, v248, 5, v249")
        A("v_and_b32 v248, 3, v1")
        A("v_lshl_add_u32 v249, v248, 3, v249")
        A(f"s_lshr_b32 {s(S_T1)}, {s(S_WV)}, 1")
        A(f"s_lshl_b32 {s(S_T2)}, {s(S_T1)}, 14")
        A(f"s_add_u32 {s(S_T0)}, {s(S_T2)}, {LWO}")
        A(f"v_add_u32 {v(PAW)}, {s(S_T0)}, v249")
        A(f"v_xor_b32 {v(PAO)}, 64, {v(PAW)}")
        A("v_and_b32 v248, 31, v1")
        A("v_lshrrev_b32 v249, 5, v1")
        A("v_and_b32 v250, 15, v248")
        A("v_xor_b32 v249, v249, v250")
        A("v_lshlrev_b32 v249, 4, v249")
        A(f"s_and_b32 {s(S_T0)}, {s(S_WV)}, 1")
        A(f"s_lshl_b32 {s(S_T0)}, {s(S_T0)}, 13")
        A(f"s_add_u32 {s(S_T0)}, {s(S_T0)}, {s(S_T2)}")
        A(f"s_add_u32 {s(S_T0)}, {s(S_T0)}, {LP}")
        A("v_lshl_add_u32 v249, v248, 8, v249")
        A(f"v_add_u32 v249, {s(S_T0)}, v249")
        for m in range(4):
            A(f"v_xor_b32 {v(PPW[m])}, {m*32}, v249")
        A("v_lshrrev_b32 v248, 3, v0")
        A("v_and_b32 v249, 7, v0")
        A("v_lshlrev_b32 v250, 1, v249")
        A("v_and_b32 v251, 15, v248")
        A("v_xor_b32 v250, v250, v251")
        A("v_lshlrev_b32 v250, 4, v250")
        A("v_lshl_add_u32 v250, v248, 8, v250")
        A(f"v_add_u32 {v(PPR[0])}, {LP}, v250")
        A(f"v_xor_b32 {v(PPR[1])}, 16, {v(PPR[0])}")
        A(f"s_lshl_b32 {s(S_T0)}, {s(S_TB64)}, 17")
        A(f"s_lshr_b32 {s(S_T1)}, {s(S_J)}, 2")
        A(f"s_lshl_b32 {s(S_T1)}, {s(S_T1)}, 7")
        A(f"s_add_u32 {s(S_T0)}, {s(S_T0)}, {s(S_T1)}")
        A("v_lshlrev_b32 v250, 11, v248")
        A("v_lshl_add_u32 v250, v249, 4, v250")
        A(f"v_add_u32 {v(POUT)}, {s(S_T0)}, v250")
    def call(lab): A(f"s_call_b64 {s(S_LINK,2)}, {lab}")
    def wo_dma(n):
        A(f"s_add_u32 m0, {s(S_WOL)}, {LWO + (n & 7)*1024 + (n >> 3)*4*8192}")
        A(f"s_add_u32 {s(S_T1)}, {s(S_WOB)}, {(n & 7)*8192 + (n >> 3)*4*65536}")
        A(f"buffer_load_dwordx4 {v(PWO)}, {s(R_WO,4)}, {s(S_T1)} offen {NT_WO} lds")

    stamp(0)
    DBG = opt.get("dbg", 0)
    if DBG: A("s_memrealtime s[8:9]")
    A("s_load_dwordx16 s[16:31], s[0:1], 0")
    A("s_load_dwordx8 s[32:39], s[0:1], 64")
    A("s_cmp_ge_u32 s2, 256")
    A("s_cbranch_scc1 L_end")
    A("v_and_b32 v1, 63, v0")
    A("v_lshrrev_b32 v2, 6, v0")
    A(f"s_and_b32 {s(S_XCD)}, s2, 7")
    A(f"s_lshr_b32 {s(S_J)}, s2, 3")
    A(f"v_readfirstlane_b32 {s(S_WV)}, v2")
    GRAY = opt.get("gray", 1)
    A(f"s_lshr_b32 {s(S_T0)}, {s(S_XCD)}, 1")
    if GRAY:
        A(f"s_lshr_b32 {s(S_T1)}, {s(S_T0)}, 1")
        A(f"s_xor_b32 {s(S_T0)}, {s(S_T0)}, {s(S_T1)}")
    A(f"s_lshl_b32 {s(S_T0)}, {s(S_T0)}, 2")
    A(f"s_and_b32 {s(S_T1)}, {s(S_J)}, 3")
    A(f"s_add_u32 {s(S_RB)}, {s(S_T0)}, {s(S_T1)}")
    A(f"s_and_b32 {s(S_T0)}, {s(S_XCD)}, 1")
    A(f"s_lshl_b32 {s(S_T0)}, {s(S_T0)}, 3")
    A(f"s_lshr_b32 {s(S_T1)}, {s(S_J)}, 2")
    A(f"s_add_u32 {s(S_HP)}, {s(S_T0)}, {s(S_T1)}")
    A(f"s_and_b32 {s(S_LI)}, {s(S_WV)}, 3")
    A("v_and_b32 v3, 31, v1")
    A("v_lshrrev_b32 v4, 5, v1")
    A(f"s_cmp_ge_u32 {s(S_WV)}, 4")
    A("s_cbranch_scc1 L_lwave")
    A("v_lshrrev_b32 v5, 3, v1")
    A("v_and_b32 v6, 7, v1")
    A("v_lshlrev_b32 v6, 4, v6")
    A(f"s_lshl_b32 {s(S_T0)}, {s(S_J)}, 6")
    A(f"s_lshl_b32 {s(S_T1)}, {s(S_WV)}, 4")
    A(f"s_add_u32 {s(S_T0)}, {s(S_T0)}, {s(S_T1)}")
    A(f"v_add_u32 v5, {s(S_T0)}, v5")
    A("v_lshlrev_b32 v5, 10, v5")
    A(f"s_lshl_b32 {s(S_T1)}, {s(S_XCD)}, 7")
    A(f"v_add3_u32 v7, v5, v6, {s(S_T1)}")
    A("v_add_u32 v8, 0xffffe000, v7")
    A("v_add_u32 v9, 0x2000, v7")
    A(f"s_mul_i32 {s(S_T4)}, {s(S_WV)}, 5120")
    A(f"s_add_u32 {s(S_T4)}, {s(S_T4)}, {KVS}")
    A(f"s_lshl_b32 {s(S_T0)}, {s(S_XCD)}, 9")
    A("v_lshlrev_b32 v11, 4, v3")
    A(f"v_add_u32 v11, {s(S_T0)}, v11")
    A("s_waitcnt lgkmcnt(0)")
    if opt.get("wsoff", 0):
        A(f"s_add_u32 {s(S_WS)}, {s(S_WS)}, {opt['wsoff'] << 20}")
        A(f"s_addc_u32 {s(S_WS+1)}, {s(S_WS+1)}, 0")
    stamp(1)
    srd(R_BK, S_BK, 2048*1024)
    srd(R_X, S_BV, 2048*1024)
    A(f"s_load_dword {s(S_NONCE)}, {s(S_WS,2)}, {EP}")
    for n, vr in enumerate((8, 7, 9)):
        A(f"s_add_u32 m0, {s(S_T4)}, {n*1024}")
        A(f"buffer_load_dwordx4 {v(vr)}, {s(R_BK,4)}, 0 offen {NT_B} lds")
    for n, vr in enumerate((7, 9)):
        A(f"s_add_u32 m0, {s(S_T4)}, {3072 + n*1024}")
        A(f"buffer_load_dwordx4 {v(vr)}, {s(R_X,4)}, 0 offen {NT_B} lds")
    A(f"global_load_dwordx4 v[36:39], v11, {s(S_SK,2)}")
    NTOUCH = 0
    if opt.get("cpf", 0):
        NCP = opt.get("cpf")
        A(f"s_cmp_ge_u32 {s(S_J)}, 2")
        A("s_cbranch_scc1 L_nocpf")
        A("s_getpc_b64 s[98:99]")
        A("s_and_b32 s98, s98, 0xffffff00")
        A(f"s_mul_i32 {s(S_T0)}, {s(S_LI)}, {NCP*1024}")
        A("v_lshlrev_b32 v40, 4, v1")
        A(f"v_add_u32 v40, {s(S_T0)}, v40")
        for k in range(NCP):
            A(f"global_load_dwordx4 v[200:203], v40, s[98:99] offset:{(k % 4)*1024}")
            if k % 4 == 3: A("v_add_u32 v40, 0x1000, v40")
        A("L_nocpf:")
    if opt.get("touch", 0):
        A("v_and_b32 v40, 7, v1")
        A("v_lshlrev_b32 v40, 21, v40")
        A("v_min_u32 v40, 0xa00000, v40")
        A(f"global_load_dword v200, v40, {s(S_WS,2)} offset:2048")
        A(f"s_lshl_b32 {s(S_T0)}, {s(S_J)}, 16")
        A(f"v_mov_b32 v42, {s(S_T0)}")
        A(f"global_load_dword v201, v42, {s(S_BQ,2)}")
        A(f"s_lshl_b32 {s(S_T0)}, {s(S_J)}, 17")
        A(f"v_mov_b32 v44, {s(S_T0)}")
        A(f"global_load_dword v202, v44, {s(S_OUT,2)}")
        A(f"s_lshl_b32 {s(S_T0)}, {s(S_XCD)}, 19")
        A(f"v_mov_b32 v46, {s(S_T0)}")
        A(f"global_load_dword v203, v46, {s(S_OUT,2)}")
        A("v_mov_b32 v48, 0")
        A(f"global_load_dword v204, v48, {s(S_WO,2)}")
        A(f"global_load_dword v205, v48, {s(S_SSMK,2)}")
        NTOUCH = 6
    XA, XB, WA, WB, WC = 144, 148, 152, 153, 154
    A(f"s_lshl_b32 {s(S_T0)}, {s(S_LI)}, 5")
    A(f"v_add_u32 v110, {s(S_T0)}, v3")
    A("v_lshrrev_b32 v111, 1, v110")
    A("v_and_b32 v111, 7, v111")
    A("v_xor_b32 v111, v111, v4")
    A("v_lshlrev_b32 v111, 4, v111")
    A("v_lshl_add_u32 v111, v110, 7, v111")
    for st in range(4):
        A(f"v_xor_b32 {v(XA+st)}, {st*32}, v111")
        A(f"v_add_u32 {v(XB+st)}, {2*STG}, {v(XA+st)}")
    A("v_and_b32 v110, 15, v1")
    A("v_lshrrev_b32 v110, 2, v110")
    A("v_lshl_add_u32 v110, v4, 3, v110")
    A("v_lshlrev_b32 v110, 6, v110")
    A("v_bfe_u32 v111, v1, 4, 1")
    A("v_lshl_add_u32 v110, v111, 5, v110")
    A("v_and_b32 v111, 3, v1")
    A("v_lshl_add_u32 v110, v111, 3, v110")
    A(f"v_add_u32 {v(WA)}, 16384, v110")
    A(f"v_add_u32 {v(WB)}, {2*STG}, {v(WA)}")
    A(f"v_add_u32 {v(WC)}, {4*STG}, {v(WA)}")
    ACC = 64
    FR = [160, 176, 128]
    def reads(n):
        c, st = n >> 2, n & 3
        stage = STAGE[c]
        xa = (XA if stage < 2 else XB) + st
        wa = WA if stage < 2 else WB if stage < 4 else WC
        so = (stage & 1) * STG
        xo = so if stage < 4 else 2*STG
        f = FR[n % 3]
        L = [f"ds_read_b128 {v(f,4)}, {v(xa)} offset:{xo}"]
        for p in range(3):
            L.append(f"ds_read_b64_tr_b16 {v(f+4+4*p,2)}, {v(wa)} offset:{so + p*4096 + st*1024}")
            L.append(f"ds_read_b64_tr_b16 {v(f+6+4*p,2)}, {v(wa)} offset:{so + p*4096 + st*1024 + 256}")
        return L
    def mfma(n, p):
        f = FR[n % 3]
        acc = v(ACC + 16*p, 16)
        cin = "0" if n == 0 else acc
        if p < 2: return f"{MF} {acc}, {v(f+4+4*p,4)}, {v(f,4)}, {cin}"
        else:     return f"{MF} {acc}, {v(f,4)}, {v(f+4+4*p,4)}, {cin}"
    def epi_addr():
        A("v_lshlrev_b32 v32, 4, v1")
        A(f"s_lshl_b32 {s(S_T0)}, {s(S_HP)}, 7")
        A(f"s_lshl_b32 {s(S_T1)}, {s(S_RB)}, 2")
        A(f"s_add_u32 {s(S_T0)}, {s(S_T0)}, {s(S_T1)}")
        A(f"s_add_u32 {s(S_T0)}, {s(S_T0)}, {s(S_LI)}")
        A(f"s_lshl_b32 {s(S_T0)}, {s(S_T0)}, 10")
        A(f"s_add_u32 {s(S_T1)}, {s(S_T0)}, {KW}")
        A(f"v_add_u32 v37, {s(S_T1)}, v32")
        A("v_add_u32 v38, 0x10000, v37")
        A("v_and_b32 v34, 15, v1")
        A("v_lshlrev_b32 v34, 4, v34")
        A("v_lshl_add_u32 v34, v4, 8, v34")
        A("v_bfe_u32 v35, v1, 4, 1")
        A(f"s_add_u32 {s(S_T1)}, {s(S_T0)}, {VW}")
        A("v_lshlrev_b32 v39, 16, v35")
        A(f"v_add3_u32 v39, v39, v34, {s(S_T1)}")
        A(f"s_lshl_b32 {s(S_T0)}, {s(S_LI)}, 10")
        A(f"v_add_u32 v33, {s(S_T0)}, v32")
        A(f"s_mul_i32 {s(S_T0)}, {s(S_LI)}, {VTS}")
        A(f"v_mov_b32 v36, {VHS}")
        A("v_mul_u32_u24 v36, v36, v35")
        A(f"v_add3_u32 v36, v36, v34, {s(S_T0)}")
    def halo_addr():
        srd(R_WS, S_WS, WS_BYTES)
        A(f"s_sub_u32 {s(S_T2)}, {s(S_RB)}, 1")
        A(f"s_sub_u32 {s(S_T3)}, {s(S_RB)}, 2")
        A(f"s_max_i32 {s(S_T3)}, {s(S_T3)}, 0")
        A(f"s_max_i32 {s(S_T2)}, {s(S_T2)}, 0")
        A("v_and_b32 v158, 1, v1")
        A("v_cmp_eq_u32 vcc, 1, v158")
        A(f"v_mov_b32 v158, {s(S_T2)}")
        A(f"v_mov_b32 v157, {s(S_T3)}")
        A("v_cndmask_b32 v158, v158, v157, vcc")
        A(f"s_and_b32 {s(S_T0)}, {s(S_HP)}, 7")
        A(f"s_lshl_b32 {s(S_T0)}, {s(S_T0)}, 5")
        A(f"s_lshr_b32 {s(S_T1)}, {s(S_HP)}, 3")
        A(f"s_add_u32 {s(S_T0)}, {s(S_T0)}, {s(S_T1)}")
        A("v_and_b32 v157, 3, v158")
        A("v_lshlrev_b32 v157, 3, v157")
        A("v_lshrrev_b32 v158, 2, v158")
        if opt.get("gray", 1):
            A("v_lshrrev_b32 v159, 1, v158")
            A("v_xor_b32 v158, v158, v159")
        A("v_lshl_add_u32 v157, v158, 1, v157")
        A(f"v_add_u32 v157, {s(S_T0)}, v157")
        if WL:
            A("v_lshlrev_b32 v157, 10, v157")
            A(f"s_lshl_b32 {s(S_T0)}, {s(S_LI)}, 7")
            A(f"s_add_u32 {s(S_T0)}, {s(S_T0)}, {FLG + F_A1W}")
        else:
            A("v_lshlrev_b32 v157, 7, v157")
            A(f"s_lshl_b32 {s(S_T0)}, {s(S_LI)}, 2")
            A(f"s_add_u32 {s(S_T0)}, {s(S_T0)}, {FLG + F_A1}")
        A(f"v_add_u32 v157, {s(S_T0)}, v157")
    A("v_lshlrev_b32 v5, 10, v4")
    A("v_lshl_add_u32 v5, v3, 2, v5")
    A(f"v_add_u32 v5, {s(S_T4)}, v5")
    A(f"s_lshl_b32 {s(S_T0)}, {s(S_WV)}, 1")
    A(f"v_add_u32 v6, {s(S_T0)}, v4")
    A("v_sub_u32 v112, 7, v6")
    A("v_and_b32 v113, 7, v3")
    A("v_xor_b32 v112, v112, v113")
    A("v_lshlrev_b32 v112, 4, v112")
    A("v_lshl_add_u32 v112, v3, 8, v112")
    A(f"v_add_u32 v112, {T0}, v112")
    A("v_lshrrev_b32 v114, 3, v1")
    A(f"s_lshl_b32 {s(S_T0)}, {s(S_LI)}, 4")
    A(f"v_add_u32 v114, {s(S_T0)}, v114")
    A("v_and_b32 v115, 7, v1")
    A("v_lshrrev_b32 v116, 1, v114")
    A("v_and_b32 v116, 7, v116")
    A("v_xor_b32 v116, v116, v115")
    A("v_lshlrev_b32 v117, 7, v114")
    A("v_lshl_add_u32 v118, v116, 4, v117")
    A("v_xor_b32 v116, 4, v116")
    A("v_lshl_add_u32 v119, v116, 4, v117")
    A(f"v_add_u32 v118, {T0}, v118")
    A(f"v_add_u32 v119, {T0 + 1024}, v119")
    A(f"s_lshl_b32 {s(S_T0)}, {s(S_XCD)}, 18")
    A(f"s_lshl_b32 {s(S_T1)}, {s(S_J)}, 7")
    A(f"s_sub_u32 {s(S_T0)}, {s(S_T0)}, {s(S_T1)}")
    A(f"s_add_u32 {s(S_T0)}, {s(S_T0)}, {UR + 1984*2}")
    A("v_lshlrev_b32 v120, 12, v114")
    A("v_lshl_add_u32 v120, v115, 4, v120")
    A(f"v_add_u32 v120, {s(S_T0)}, v120")
    A("v_add_u32 v121, 0x8000, v120")
    A(f"s_waitcnt vmcnt({NTOUCH}) lgkmcnt(0)")
    stamp(2)
    for r in range(11):
        A(f"ds_read_b32 {v(16+r)}, v5 offset:{(5+r)*128}")
    for r in range(8):
        A(f"ds_read_b32 {v(28+r)}, v5 offset:{3072 + r*128}")
    A("v_lshlrev_b32 v78, 16, v36"); A("v_lshlrev_b32 v79, 16, v38")
    A("v_and_b32 v80, 0xffff0000, v36"); A("v_and_b32 v81, 0xffff0000, v38")
    A("v_lshlrev_b32 v82, 16, v37"); A("v_lshlrev_b32 v83, 16, v39")
    A("v_and_b32 v84, 0xffff0000, v37"); A("v_and_b32 v85, 0xffff0000, v39")
    A(f"s_add_u32 {s(S_NONCE)}, {s(S_NONCE)}, 1")
    A("s_waitcnt lgkmcnt(8)")
    for r in range(11):
        A(f"v_lshlrev_b32 {v(40+2*r)}, 16, {v(16+r)}")
        A(f"v_and_b32 {v(41+2*r)}, 0xffff0000, {v(16+r)}")
    for tau in range(8):
        A(f"v_pk_mul_f32 {v(86+2*tau,2)}, {v(40+2*(tau+3),2)}, {v(78,2)}")
    for jj in range(1, 4):
        for tau in range(8):
            d = 86 + 2*tau
            A(f"v_pk_fma_f32 {v(d,2)}, {v(40+2*(tau+3-jj),2)}, {v(78+2*jj,2)}, {v(d,2)}")
    A("s_waitcnt lgkmcnt(0)")
    for r in range(8):
        A(f"v_lshlrev_b32 {v(62+2*r)}, 16, {v(28+r)}")
        A(f"v_and_b32 {v(63+2*r)}, 0xffff0000, {v(28+r)}")
    for tau in range(8):
        d = 86 + 2*tau
        A(f"v_pk_mul_f32 {v(d,2)}, {v(d,2)}, {v(62+2*tau,2)}")
    for e in range(4):
        A(f"v_cvt_pk_bf16_f32 {v(104+e)}, {v(86+2*(7-2*e))}, {v(86+2*(6-2*e))}")
        A(f"v_cvt_pk_bf16_f32 {v(108+e)}, {v(87+2*(7-2*e))}, {v(87+2*(6-2*e))}")
    A("ds_write_b128 v112, v[104:107]")
    A("ds_write_b128 v112, v[108:111] offset:128")
    A(f"s_sub_u32 {s(S_T0)}, {s(S_NONCE)}, 1")
    A(f"v_mov_b32 v156, {s(S_T0)}")
    A(f"v_mov_b32 v16, {OK2}")
    A("ds_write_b32 v16, v156")
    A("s_waitcnt lgkmcnt(0)")
    stamp(3)
    A("s_barrier")
    stamp(4)
    A("ds_read_b128 v[24:27], v118")
    A("ds_read_b128 v[28:31], v119")
    for t in reads(0): A(t)
    A("s_waitcnt lgkmcnt(7)")
    A(f"global_store_dwordx4 v120, v[24:27], {s(S_WS,2)} {SCS}")
    A(f"global_store_dwordx4 v121, v[28:31], {s(S_WS,2)} {SCS}")
    for t in reads(1): A(t)
    for n in range(32):
        if (n & 3) == 2 and n + 2 < 32:
            A("s_waitcnt lgkmcnt(0)")
            if n == 2: epi_addr()
            if n == 6: halo_addr()
            if n == 10:
                A("s_waitcnt vmcnt(0)")
                publish(F_B1, 16, 17)

            if prof and n <= 14: A(f"s_memtime s[{8+2*(n>>2)}:{9+2*(n>>2)}]")
            A("s_barrier")
        elif n + 1 < 32:
            A("s_waitcnt lgkmcnt(7)")
        else:
            A("s_waitcnt lgkmcnt(0)")
        R = reads(n + 2) if n + 2 < 32 else []
        A(mfma(n, 0))
        for t in R[0:3]: A(t)
        A(mfma(n, 1))
        for t in R[3:5]: A(t)
        A(mfma(n, 2))
        for t in R[5:7]: A(t)
    if prof:
        A("s_waitcnt lgkmcnt(0)")
        for c in range(4): A(f"v_writelane_b32 v255, s{8+2*c}, {22+c}")
    stamp(5)
    PK = 112
    for i in range(8):
        A(f"v_cvt_pk_bf16_f32 {v(PK+8+i)}, {v(ACC+16+2*i)}, {v(ACC+17+2*i)}")
    A(f"global_store_dwordx4 v37, {v(PK+8,4)}, {s(S_WS,2)} {SCS}")
    A(f"global_store_dwordx4 v38, {v(PK+12,4)}, {s(S_WS,2)} {SCS}")
    for i in range(8):
        A(f"v_cvt_pk_bf16_f32 {v(PK+16+i)}, {v(ACC+32+2*i)}, {v(ACC+33+2*i)}")
    A(f"global_store_dwordx4 v39, {v(PK+16,4)}, {s(S_WS,2)} {SCS}")
    A(f"global_store_dwordx4 v39, {v(PK+20,4)}, {s(S_WS,2)} offset:512 {SCS}")
    A(f"s_mov_b32 {s(S_T0)}, {QSCALE}")
    for r in range(16):
        A(f"v_mul_f32 {v(ACC+r)}, {s(S_T0)}, {v(ACC+r)}")
    for i in range(8):
        A(f"v_cvt_pk_bf16_f32 {v(PK+i)}, {v(ACC+2*i)}, {v(ACC+2*i+1)}")
    A(f"ds_write_b128 v33, {v(PK+8,4)} offset:{LK + 8*1024}")
    A(f"ds_write_b128 v33, {v(PK+12,4)} offset:{LK + KHS + 8*1024}")
    A(f"ds_write_b128 v36, {v(PK+16,4)} offset:{LV + 8*VTS}")
    A(f"ds_write_b128 v36, {v(PK+20,4)} offset:{LV + 8*VTS + 512}")
    A(f"ds_write_b128 v33, {v(PK,4)} offset:{LQ}")
    A(f"ds_write_b128 v33, {v(PK+4,4)} offset:{LQ+4096}")
    A(f"s_cmp_lg_u32 {s(S_LI)}, 0")
    A("s_cbranch_scc1 L_c_nopad")
    A(f"v_mov_b32 v24, {ONES}"); A("v_mov_b32 v25, v24"); A("v_mov_b32 v26, v24"); A("v_mov_b32 v27, v24")
    A(f"v_mul_u32_u24 v28, {VTS}, v1")
    A("v_cmp_gt_u32 vcc, 24, v1")
    A(f"s_and_saveexec_b64 {s(S_EX,2)}, vcc")
    A(f"ds_write_b128 v28, v[24:27] offset:{LV + 1024}")
    A(f"s_mov_b64 exec, {s(S_EX,2)}")
    A("L_c_nopad:")
    A("s_waitcnt vmcnt(0)")
    publish(F_A1, 16, 17)
    stamp(6)
    if not opt.get("lateh", 1): flag_load(157, 158)
    A(f"s_mov_b32 {s(S_T4)}, {s(S_T2)}")
    A(f"s_mov_b32 {s(S_T5)}, {s(S_T3)}")
    c_setup()
    call("L_sub_b")
    A(f"s_mov_b32 {s(S_T2)}, {s(S_T4)}")
    A(f"s_mov_b32 {s(S_T3)}, {s(S_T5)}")
    A(f"s_cmp_eq_u32 {s(S_RB)}, 0")
    A("s_cbranch_scc1 L_c_halo_done")
    if opt.get("lateh", 1):
        spin(157, 158, "L_poll_h")
    else:
        A("s_waitcnt vmcnt(0)")
        check_or_spin(157, 158, "L_poll_h")
    stamp(7)
    A("v_lshlrev_b32 v18, 4, v1")
    A(f"s_lshl_b32 {s(S_T4)}, {s(S_LI)}, 10")
    A(f"s_mul_i32 {s(S_T5)}, {s(S_LI)}, {VTS}")
    def halo(rbreg, toff):
        A(f"s_lshl_b32 {s(S_T0)}, {s(S_HP)}, 7")
        A(f"s_lshl_b32 {s(S_T1)}, {s(rbreg)}, 2")
        A(f"s_add_u32 {s(S_T0)}, {s(S_T0)}, {s(S_T1)}")
        A(f"s_add_u32 {s(S_T0)}, {s(S_T0)}, {s(S_LI)}")
        A(f"s_lshl_b32 {s(S_T0)}, {s(S_T0)}, 10")
        for hd in range(2):
            A(f"s_add_u32 m0, {s(S_T4)}, {LK + hd*KHS + toff*1024}")
            A(f"s_add_u32 {s(S_T1)}, {s(S_T0)}, {KW + hd*65536}")
            A(f"buffer_load_dwordx4 v18, {s(R_WS,4)}, {s(S_T1)} offen sc1 lds")
            A(f"s_add_u32 m0, {s(S_T5)}, {LV + hd*VHS + toff*VTS}")
            A(f"s_add_u32 {s(S_T1)}, {s(S_T0)}, {VW + hd*65536}")
            A(f"buffer_load_dwordx4 v18, {s(R_WS,4)}, {s(S_T1)} offen sc1 lds")
    halo(S_T2, 4)
    A(f"s_cmp_eq_u32 {s(S_RB)}, 1")
    A("s_cbranch_scc1 L_c_halo_done")
    halo(S_T3, 0)
    A("L_c_halo_done:")
    A(f"s_or_b32 {s(S_T0)}, s2, {s(S_WV)}")
    A(f"s_cmp_lg_u32 {s(S_T0)}, 0")
    A("s_cbranch_scc0 L_st_epoch")
    stubs.append("EPOCH")
    A("L_epdone:")
    A("s_waitcnt lgkmcnt(0)")
    A("s_barrier")
    A("s_waitcnt vmcnt(0) lgkmcnt(0)")
    stamp(8)
    A("s_barrier")
    stamp(9)
    A("s_branch L_a2")

    A("L_lwave:")
    if opt.get("lprio", 0): A(f"s_setprio {opt.get('lprio')}")
    A("v_lshrrev_b32 v220, 3, v1")
    A(f"s_lshl_b32 {s(S_T0)}, {s(S_RB)}, 7")
    A(f"s_lshl_b32 {s(S_T1)}, {s(S_LI)}, 5")
    A(f"s_add_u32 {s(S_T0)}, {s(S_T0)}, {s(S_T1)}")
    A(f"v_add_u32 v220, {s(S_T0)}, v220")
    A("v_lshlrev_b32 v220, 10, v220")
    A("v_and_b32 v221, 7, v1")
    A("v_lshrrev_b32 v222, 4, v1")
    A("v_xor_b32 v223, v221, v222")
    A("v_lshl_add_u32 v200, v223, 4, v220")
    A("v_xor_b32 v223, 4, v223")
    A("v_lshl_add_u32 v201, v223, 4, v220")
    A("v_lshrrev_b32 v220, 2, v1")
    A(f"s_lshl_b32 {s(S_T0)}, {s(S_LI)}, 4")
    A(f"v_add_u32 v220, {s(S_T0)}, v220")
    A(f"v_mul_u32_u24 v220, 3072, v220")
    A("v_and_b32 v221, 3, v1")
    A("v_lshlrev_b32 v221, 4, v221")
    A(f"s_lshl_b32 {s(S_T0)}, {s(S_HP)}, 6")
    A(f"v_add3_u32 v202, v220, v221, {s(S_T0)}")
    S_LX, S_LW = S_T4, S_T5
    A(f"s_lshl_b32 {s(S_LX)}, {s(S_LI)}, 12")
    A(f"s_lshl_b32 {s(S_LW)}, {s(S_LI)}, 10")
    A(f"s_lshl_b32 {s(S_CH)}, {s(S_XCD)}, 6")
    A(f"s_lshl_b32 {s(S_T1)}, {s(S_J)}, 1")
    A(f"s_add_u32 {s(S_CH)}, {s(S_CH)}, {s(S_T1)}")
    A(f"s_lshr_b32 {s(S_T1)}, {s(S_LI)}, 1")
    A(f"s_add_u32 {s(S_CH)}, {s(S_CH)}, {s(S_T1)}")
    A(f"s_mul_i32 {s(S_CBASE)}, {s(S_T1)}, {CB}")
    A(f"s_add_u32 {s(S_CBASE)}, {s(S_CBASE)}, {B2R}")
    A(f"s_and_b32 {s(S_T2)}, {s(S_LI)}, 1")
    A(f"s_lshl_b32 {s(S_T1)}, {s(S_CH)}, 12")
    A(f"s_lshl_b32 {s(S_T3)}, {s(S_T2)}, 11")
    A(f"s_add_u32 {s(S_T1)}, {s(S_T1)}, {s(S_T3)}")
    A("v_lshlrev_b32 v203, 4, v1")
    A(f"v_add_u32 v203, {s(S_T1)}, v203")
    A("v_add_u32 v204, 2, v203")
    A("s_waitcnt lgkmcnt(0)")
    if opt.get("wsoff", 0):
        A(f"s_add_u32 {s(S_WS)}, {s(S_WS)}, {opt['wsoff'] << 20}")
        A(f"s_addc_u32 {s(S_WS+1)}, {s(S_WS+1)}, 0")
    stamp(1)
    srd(R_X, S_X, 2048*1024)
    srd(R_W, S_WQKV, 512*3072)
    A(f"s_load_dword {s(S_NONCE)}, {s(S_WS,2)}, {EP}")
    if opt.get("rot", 1):
        A(f"s_and_b32 {s(S_T0)}, {s(S_RB)}, 3")
        A(f"s_lshl_b32 {s(S_T0)}, {s(S_T0)}, 1")
        A(f"s_add_u32 {s(S_ROT)}, {s(S_HP)}, {s(S_T0)}")
        if opt.get("rotmask", 7) != 7: A(f"s_and_b32 {s(S_ROT)}, {s(S_ROT)}, {opt['rotmask']}")
    else:
        A(f"s_mov_b32 {s(S_ROT)}, 0")
    def dma_chunk(c):
        st = STAGE[c] * STG
        A(f"s_add_u32 {s(S_T1)}, {s(S_ROT)}, {c}")
        A(f"s_and_b32 {s(S_T1)}, {s(S_T1)}, 7")
        A(f"s_mul_i32 {s(S_T2)}, {s(S_T1)}, {64*3072}")
        A(f"s_lshl_b32 {s(S_T1)}, {s(S_T1)}, 7")
        for n in range(4):
            A(f"s_add_u32 m0, {s(S_LX)}, {st + n*1024}")
            A(f"s_add_u32 {s(S_T0)}, {s(S_T1)}, {n*8192}")
            A(f"buffer_load_dwordx4 {v(200 + (n & 1))}, {s(R_X,4)}, {s(S_T0)} offen {NT_XW} lds")
        for p in range(3):
            A(f"s_add_u32 m0, {s(S_LW)}, {st + 16384 + p*4096}")
            A(f"s_add_u32 {s(S_T0)}, {s(S_T2)}, {p*1024}")
            A(f"buffer_load_dwordx4 v202, {s(R_W,4)}, {s(S_T0)} offen {NT_XW} lds")
    DIST = opt.get('dist', 3)
    for c in range(DIST): dma_chunk(c)
    def h_loads():
        srd(R_WO, S_SSMK, 512*4096)
        A(f"s_and_b32 {s(S_T2)}, {s(S_LI)}, 1")
        A(f"s_lshl_b32 {s(S_T2)}, {s(S_T2)}, 11")
        A(f"s_add_u32 {s(S_T2)}, {s(S_T2)}, {s(S_CBASE)}")
        for n in range(2):
            A(f"s_add_u32 m0, {s(S_T2)}, {O_OFF + 28 + n*1024}")
            A(f"s_mov_b32 {s(S_T0)}, {n*1024}")
            A(f"buffer_load_dwordx4 v203, {s(R_WO,4)}, {s(S_T0)} offen {NT_B} lds")
            A(f"s_add_u32 m0, {s(S_T2)}, {E_OFF + 32 + n*1024}")
            A(f"buffer_load_dwordx4 v204, {s(R_WO,4)}, {s(S_T0)} offen {NT_B} lds")
        A(f"s_lshl_b32 {s(S_T0)}, {s(S_CH)}, 12")
        A(f"v_mov_b32 v34, {s(S_T0)}")
        A(f"global_load_dword v32, v34, {s(S_SSMK,2)}")
        A(f"s_lshl_b32 {s(S_T0)}, {s(S_CH)}, 1")
        A(f"s_and_b32 {s(S_T0)}, {s(S_T0)}, 0xfffffffc")
        A(f"v_mov_b32 v35, {s(S_T0)}")
        A(f"global_load_dword v33, v35, {s(S_SD,2)}")
    stamp(2)
    AA, AB = 16, 24
    CA = [32, 64]
    CBf = [96, 128]
    CACC = 160
    def build_eo():
        A(f"s_and_b32 {s(S_T2)}, {s(S_LI)}, 1")
        A(f"s_cmp_lg_u32 {s(S_T2)}, 0")
        A("s_cbranch_scc1 L_l_nopad")
        A(f"s_lshr_b32 {s(S_T0)}, {s(S_LI)}, 1")
        A(f"s_lshl_b32 {s(S_T0)}, {s(S_T0)}, 4")
        A(f"v_lshrrev_b32 v33, {s(S_T0)}, v33")
        A("v_lshlrev_b32 v33, 16, v33")
        A("v_lshlrev_b32 v34, 16, v32")
        A("v_add_f32 v34, v33, v34")
        A("v_cvt_pk_bf16_f32 v34, v34, v34")
        A("v_and_b32 v34, 0xffff, v34")
        A("v_and_b32 v35, 0xffff0000, v32")
        A("v_or_b32 v35, v35, v34")
        A("v_lshlrev_b32 v34, 16, v34")
        A("v_mov_b32 v36, 0")
        A("v_lshlrev_b32 v37, 2, v1")
        A(f"v_add_u32 v37, {s(S_CBASE)}, v37")
        A("v_cmp_eq_u32 vcc, 7, v1")
        A("v_cndmask_b32 v34, v36, v34, vcc")
        A("v_cndmask_b32 v35, v36, v35, vcc")
        A("v_cmp_gt_u32 vcc, 8, v1")
        A(f"s_and_saveexec_b64 {s(S_EX,2)}, vcc")
        A(f"ds_write_b32 v37, v34 offset:{E_OFF}")
        A(f"ds_write_b32 v37, v35 offset:{O_OFF}")
        A(f"s_mov_b64 exec, {s(S_EX,2)}")
        A("v_mov_b32 v39, 0")
        A("v_mov_b32 v38, 0")
        A("v_lshlrev_b32 v37, 3, v1")
        A(f"v_add_u32 v37, {s(S_CBASE)}, v37")
        A("v_cmp_gt_u32 vcc, 60, v1")
        A(f"s_and_saveexec_b64 {s(S_EX,2)}, vcc")
        A(f"ds_write_b64 v37, v[38:39] offset:{U_OFF + 4096}")
        A(f"s_mov_b64 exec, {s(S_EX,2)}")
        A("L_l_nopad:")
        A("s_waitcnt lgkmcnt(0)")
    def conv_addr():
        A("v_and_b32 v25, 15, v1")
        A("v_lshrrev_b32 v26, 4, v1")
        A("v_lshrrev_b32 v27, 1, v25")
        A("v_lshl_add_u32 v27, v26, 2, v27")
        A("v_lshlrev_b32 v27, 2, v27")
        A("v_and_b32 v28, 1, v25")
        A(f"v_mul_u32_u24 v28, {O_OFF}, v28")
        A(f"s_and_b32 {s(S_T2)}, {s(S_LI)}, 1")
        A(f"s_lshl_b32 {s(S_T0)}, {s(S_T2)}, 8")
        A(f"s_add_u32 {s(S_T0)}, {s(S_T0)}, {s(S_CBASE)}")
        A(f"v_add3_u32 {v(AA)}, v27, v28, {s(S_T0)}")
        for jj in range(1, 8):
            A(f"v_add_u32 {v(AA+jj)}, {512*jj}, {v(AA)}")
        A("v_lshlrev_b32 v27, 4, v26")
        A("v_lshlrev_b32 v28, 5, v25")
        A("v_sub_u32 v27, v27, v28")
        A(f"s_add_u32 {s(S_T0)}, {s(S_T0)}, {U_OFF + 480}")
        A(f"v_add_u32 {v(AB)}, {s(S_T0)}, v27")
    def ur_dma():
        A(f"s_lshl_b32 {s(S_T0)}, {s(S_CH)}, 12")
        A(f"s_add_u32 {s(S_T0)}, {s(S_T0)}, {UR}")
        A("v_lshlrev_b32 v28, 4, v1")
        for cs in range(2):
            for n in range(4):
                A(f"s_mov_b32 m0, {B2R + cs*CB + U_OFF + n*1024}")
                A(f"s_add_u32 {s(S_T1)}, {s(S_T0)}, {cs*4096 + n*1024}")
                A(f"buffer_load_dwordx4 v28, {s(R_WS,4)}, {s(S_T1)} offen sc1 lds")
    def lbar(c, n):
        if n is not None: A(f"s_waitcnt vmcnt({n})")
        if prof:
            A("s_memtime s[98:99]"); A("s_waitcnt lgkmcnt(0)"); A(f"v_writelane_b32 v255, s98, {22+c}")
        A("s_barrier")
        if prof:
            A("s_memtime s[98:99]"); A("s_waitcnt lgkmcnt(0)"); A(f"v_writelane_b32 v255, s98, {54+c}")
    A("s_waitcnt lgkmcnt(0)")
    A(f"s_lshl_b32 {s(S_T0)}, {s(S_LI)}, 2")
    A(f"s_add_u32 {s(S_T0)}, {s(S_T0)}, {OKW}")
    A(f"v_mov_b32 v29, {s(S_T0)}")
    A(f"v_mov_b32 v26, {s(S_NONCE)}")
    A("ds_write_b32 v29, v26")
    A("s_waitcnt lgkmcnt(0)")
    def b1_flag_sample():
        A("v_and_b32 v30, 31, v1")
        A("v_lshlrev_b32 v30, 10, v30")
        A(f"s_lshl_b32 {s(S_T0)}, {s(S_XCD)}, 7")
        A(f"s_lshr_b32 {s(S_T1)}, {s(S_J)}, 3")
        A(f"s_lshl_b32 {s(S_T1)}, {s(S_T1)}, 2")
        A(f"s_add_u32 {s(S_T0)}, {s(S_T0)}, {s(S_T1)}")
        A(f"s_add_u32 {s(S_T0)}, {s(S_T0)}, {FLG + F_B1}")
        A(f"v_add_u32 v30, {s(S_T0)}, v30")
        A(f"s_cmp_eq_u32 {s(S_LI)}, 0")
        A("s_cbranch_scc1 L_l_w4a")
        A(f"s_lshl_b32 {s(S_T0)}, s2, 7")
        A(f"s_add_u32 {s(S_T0)}, {s(S_T0)}, {FLG + F_B1}")
        A(f"v_mov_b32 v30, {s(S_T0)}")
        A("L_l_w4a:")
        flag_load(30, 31)
    if DIST == 3:
        lbar(0, 14)
        dma_chunk(3)
        A(f"s_add_u32 {s(S_NONCE)}, {s(S_NONCE)}, 1")
        srd(R_WS, S_WS, WS_BYTES)
        lbar(1, 14)
        dma_chunk(4)
        lbar(2, 14)
        dma_chunk(5)
        lbar(3, 14)
        dma_chunk(6)
        lbar(4, 14)
        dma_chunk(7)
        lbar(5, 14)
        b1_flag_sample()
        h_loads()
        lbar(6, 14)
        conv_addr()
    else:
        lbar(0, 7)
        dma_chunk(2)
        A(f"s_add_u32 {s(S_NONCE)}, {s(S_NONCE)}, 1")
        srd(R_WS, S_WS, WS_BYTES)
        lbar(1, 7)
        dma_chunk(3)
        h_loads()
        lbar(2, 12)
        dma_chunk(4)
        lbar(3, 12)
        dma_chunk(5)
        lbar(4, 7)
        dma_chunk(6)
        lbar(5, 7)
        dma_chunk(7)
        b1_flag_sample()
        build_eo()
        lbar(6, 8)
        conv_addr()
    A("s_waitcnt vmcnt(6)")
    A(f"s_mov_b32 {s(S_OK)}, 0")
    A(f"s_cmp_lg_u32 {s(S_LI)}, 0")
    A("s_cbranch_scc1 L_l_late")
    A(f"v_cmp_ne_u32 vcc, {s(S_NONCE)}, v31")
    A("s_cbranch_vccnz L_l_late")
    ur_dma()
    A(f"s_mov_b32 {s(S_OK)}, 1")
    A("L_l_late:")
    if prof:
        A("s_memtime s[98:99]"); A("s_waitcnt lgkmcnt(0)"); A(f"v_writelane_b32 v255, s98, 29")
    A("s_barrier")
    if opt.get("lprio", 0) != opt.get("cprio", 0): A(f"s_setprio {opt.get('cprio', 0)}")
    stamp(5)
    A(f"v_mov_b32 {v(PFB2)}, 0")
    call("L_sub_b")
    stamp(6)
    A(f"s_cmp_lg_u32 {s(S_LI)}, 0")
    A("s_cbranch_scc1 L_l_have")
    A(f"s_cmp_eq_u32 {s(S_OK)}, 1")
    A("s_cbranch_scc1 L_l_have")
    spin(30, 31, "L_poll_b1")
    ur_dma()
    A("L_l_have:")
    A("s_waitcnt vmcnt(0)")
    stamp(3)
    build_eo()
    stamp(4)
    A(f"v_mov_b32 v26, {s(S_NONCE)}")
    A("ds_write_b32 v29, v26")
    A(f"v_mov_b32 v25, {OKW}")
    A(f"s_mov_b32 {s(S_SPIN)}, {SPIN*8}")
    A("L_l_ospin:")
    A("ds_read_b128 v[32:35], v25")
    A("s_waitcnt lgkmcnt(0)")
    A(f"v_cmp_ne_u32 vcc, {s(S_NONCE)}, v32")
    A(f"v_cmp_ne_u32 {s(S_CMP,2)}, {s(S_NONCE)}, v33")
    A(f"v_cmp_ne_u32 {s(S_CMP+2,2)}, {s(S_NONCE)}, v34")
    A(f"v_cmp_ne_u32 {s(S_CMP+4,2)}, {s(S_NONCE)}, v35")
    A(f"s_or_b64 vcc, vcc, {s(S_CMP,2)}")
    A(f"s_or_b64 vcc, vcc, {s(S_CMP+2,2)}")
    A(f"s_or_b64 vcc, vcc, {s(S_CMP+4,2)}")
    A("s_cbranch_vccz L_l_go")
    A(f"s_sub_u32 {s(S_SPIN)}, {s(S_SPIN)}, 1")
    A(f"s_cmp_lg_u32 {s(S_SPIN)}, 0")
    A("s_cbranch_scc1 L_l_ospin")
    A("L_l_go:")
    A(f"s_and_b32 {s(S_T2)}, {s(S_LI)}, 1")
    stamp(7)
    def conv_reads(ii):
        st = ii & 1
        L = []
        for k in range(8):
            L.append(f"ds_read_b128 {v(CBf[st]+4*k,4)}, {v(AB)} offset:{512*(7-k) + 64*ii}")
            L.append(f"ds_read2_b32 {v(CA[st]+4*k,2)}, {v(AA+k)} offset0:{16*ii} offset1:{16*ii+1}")
            L.append(f"ds_read2_b32 {v(CA[st]+4*k+2,2)}, {v(AA+k)} offset0:{16*ii+2} offset1:{16*ii+3}")
        return L
    r0 = conv_reads(0)
    first = [r0[1], r0[2]] + [r0[3*k] for k in range(8)] + [x for k in range(1, 8) for x in (r0[3*k+1], r0[3*k+2])]
    for r in first: A(r)
    for ii in range(4):
        nxt = conv_reads(ii + 1) if ii < 3 else []
        st = ii & 1
        k = 0
        for jj in range(8):
            if ii == 0:
                if jj == 0: A("s_waitcnt lgkmcnt(14)")
                elif jj == 1: A("s_waitcnt lgkmcnt(0)")
            elif jj == 0:
                A("s_waitcnt lgkmcnt(0)")
            for cp in range(8 - jj):
                acc = v(CACC + 4*(cp + jj), 4)
                cin = "0" if (ii == 0 and jj == 0) else acc
                A(f"{MF16} {acc}, {v(CA[st]+4*jj,4)}, {v(CBf[st]+4*cp,4)}, {cin}")
                if k < len(nxt) and not (ii == 0 and jj == 0):
                    A(nxt[k]); k += 1
        while k < len(nxt):
            A(nxt[k]); k += 1
    stamp(8)
    if opt.get("cprio", 0): A("s_setprio 0")
    A("s_nop 7")
    A(f"s_and_b32 {s(S_T2)}, {s(S_LI)}, 1")
    A("v_lshlrev_b32 v25, 4, v1")
    A(f"s_lshl_b32 {s(S_T0)}, {s(S_LI)}, 12")
    A(f"v_add_u32 v26, {s(S_T0)}, v25")
    A(f"s_xor_b32 {s(S_T0)}, {s(S_T0)}, 4096")
    A(f"v_add_u32 v27, {s(S_T0)}, v25")
    A(f"s_cmp_lg_u32 {s(S_T2)}, 0")
    A("s_cbranch_scc1 L_l_x1")
    for k in range(4):
        A(f"ds_write_b128 v26, {v(CACC+16+4*k,4)} offset:{LR + 1024*k}")
    A("s_waitcnt lgkmcnt(0)")
    A("s_barrier")
    for k in range(4):
        A(f"ds_read_b128 {v(32+4*k,4)}, v27 offset:{LR + 1024*k}")
    A("s_waitcnt lgkmcnt(0)")
    for r in range(16):
        A(f"v_add_f32 {v(48+r)}, {v(32+r)}, {v(CACC+r)}")
    A("s_branch L_l_x2")
    A("L_l_x1:")
    A("s_nop 7")
    for k in range(4):
        A(f"ds_write_b128 v26, {v(CACC+4*k,4)} offset:{LR + 1024*k}")
    A("s_waitcnt lgkmcnt(0)")
    A("s_barrier")
    for k in range(4):
        A(f"ds_read_b128 {v(32+4*k,4)}, v27 offset:{LR + 1024*k}")
    A("s_waitcnt lgkmcnt(0)")
    for r in range(16):
        A(f"v_add_f32 {v(48+r)}, {v(32+r)}, {v(CACC+16+r)}")
    A("L_l_x2:")
    A("v_lshlrev_b32 v248, 4, v1")
    A(f"v_add_u32 v248, {MSK}, v248")
    for k in range(10):
        A(f"ds_read_b128 {v(MM0+4*k,4)}, v248 offset:{1024*k}")
    for k in range(4):
        A(f"v_cvt_pk_bf16_f32 {v(32+2*k)}, {v(48+4*k)}, {v(49+4*k)}")
        A(f"v_cvt_pk_bf16_f32 {v(33+2*k)}, {v(50+4*k)}, {v(51+4*k)}")
    A("v_and_b32 v25, 15, v1")
    A("v_lshlrev_b32 v25, 5, v25")
    A("v_bfe_u32 v26, v1, 4, 1")
    A("v_lshl_add_u32 v25, v26, 9, v25")
    A("v_lshrrev_b32 v26, 5, v1")
    A("v_lshl_add_u32 v25, v26, 4, v25")
    A(f"s_lshl_b32 {s(S_T0)}, {s(S_CH)}, 12")
    A(f"s_lshl_b32 {s(S_T1)}, {s(S_T2)}, 11")
    A(f"s_add_u32 {s(S_T0)}, {s(S_T0)}, {s(S_T1)}")
    A(f"s_add_u32 {s(S_T0)}, {s(S_T0)}, {YT}")
    A(f"v_add_u32 v25, {s(S_T0)}, v25")
    A("v_permlane16_swap_b32 v32, v34")
    A("v_permlane16_swap_b32 v33, v35")
    A("v_permlane16_swap_b32 v36, v38")
    A("v_permlane16_swap_b32 v37, v39")
    A(f"global_store_dwordx4 v25, v[32:35], {s(S_WS,2)} {SCS}")
    A(f"global_store_dwordx4 v25, v[36:39], {s(S_WS,2)} offset:1024 {SCS}")
    A("s_waitcnt lgkmcnt(0)")
    A("s_barrier")
    stamp(9)
    A("L_a2:")
    if DBG: A("s_memrealtime s[10:11]")
    if opt.get("prio", 0) == 1: A("s_setprio 1")
    if opt.get("prio", 0) == 2:
        A(f"s_cmp_lt_u32 {s(S_WV)}, 4")
        A("s_cbranch_scc1 L_a2_np")
        A("s_setprio 1")
        A("L_a2_np:")
    Q, KF, SA, SB, CN, PP, VF, O = 16, 20, 56, 72, 88, 104, 120, 136
    AK, AV0, AV1, TM, TM2 = PAK, PAV0, PAV1, 155, 156
    TM3 = 169
    VQ3, VF2A, VF2 = 160, PFB2, 165
    A(f"ds_read_b128 {v(Q,4)}, {v(PAQ)} offset:{LQ}")
    order = [8, 0, 7, 6, 5, 4, 3, 2, 1]
    for jj in order:
        A(f"ds_read_b128 {v(KF+4*jj,4)}, {v(AK)} offset:{LK + jj*1024}")
    for r in range(4):
        A(f"global_load_dword {v(VQ3+r)}, {v(PQ3)}, {s(S_BQ,2)} offset:{1024*r} {NT_B}")
    buf = lambda jj: SA if (jj & 1) else SB
    A("s_waitcnt lgkmcnt(7)")
    A(f"{MF} {v(MM8,16)}, {v(KF+32,4)}, {v(Q,4)}, {v(MM8,16)}")
    A(f"{MF} {v(MM0,16)}, {v(KF+0,4)}, {v(Q,4)}, {v(MM0,16)}")
    A("s_waitcnt lgkmcnt(5)")
    A(f"{MF} {v(SA,16)}, {v(KF+28,4)}, {v(Q,4)}, 0")
    A(f"{MF} {v(SB,16)}, {v(KF+24,4)}, {v(Q,4)}, 0")
    A(f"s_cmp_gt_u32 {s(S_J0)}, 0")
    A("s_cbranch_scc1 L_st_nomerge")
    stubs.append(["L_st_nomerge:", "s_nop 15", "s_branch L_a2_nomerge"])
    for r in range(16):
        A(f"v_max_f32 {v(MM8+r)}, {v(MM0+r)}, {v(MM8+r)}")
    A("L_a2_nomerge:")
    A(f"v_max_f32 {v(TM)}, {v(MM8)}, {v(MM8+1)}")
    A(f"v_max_f32 {v(TM3)}, {v(MM8+2)}, {v(MM8+3)}")
    for r in range(4, 16, 2):
        t = TM if (r & 2) == 0 else TM3
        A(f"v_max3_f32 {v(t)}, {v(t)}, {v(MM8+r)}, {v(MM8+r+1)}")
    A("s_waitcnt lgkmcnt(0)")
    for jj in range(7, 0, -1):
        b = buf(jj)
        A(f"s_cmp_gt_u32 {s(S_J0)}, {jj}")
        A("s_cbranch_scc1 L_a2_p1done")
        for r in range(0, 16, 2):
            t = TM if (r & 2) == 0 else TM3
            A(f"v_max3_f32 {v(t)}, {v(t)}, {v(b+r)}, {v(b+r+1)}")
        if jj - 2 >= 1:
            A(f"{MF} {v(b,16)}, {v(KF+4*(jj-2),4)}, {v(Q,4)}, 0")
    A("L_a2_p1done:")
    A(f"v_max_f32 {v(TM)}, {v(TM)}, {v(TM3)}")
    A(f"v_mov_b32 {v(TM2)}, {v(TM)}")
    A(f"v_permlane32_swap_b32 {v(TM)}, {v(TM2)}")
    A(f"v_max_f32 {v(TM)}, {v(TM)}, {v(TM2)}")
    A(f"v_sub_f32 {v(TM2)}, 0, {v(TM)}")
    for r in range(16):
        A(f"v_mov_b32 {v(CN+r)}, {v(TM2)}")
    stamp(10)
    A(f"{MF} {v(SA,16)}, {v(KF+28,4)}, {v(Q,4)}, {v(CN,16)}")
    A(f"{MF} {v(SB,16)}, {v(KF+24,4)}, {v(Q,4)}, {v(CN,16)}")
    def vread(slot, jj, sidx):
        A(f"ds_read_b128 {v(VF+4*slot,4)}, {v(AV0 if sidx == 0 else AV1)} offset:{LV + jj*VTS + sidx*512}")
    vread(0, 8, 0); vread(1, 8, 1); vread(2, 0, 0); vread(3, 0, 1)
    def pub_b2(lab, n):
        A(f"s_waitcnt vmcnt({n})")
        A(f"s_cmp_lt_u32 {s(S_WV)}, 4")
        A(f"s_cbranch_scc1 {lab}")
        publish(F_B2, 157, 158)
        A(f"{lab}:")
    if opt.get("prio", 0) == 1: A("s_setprio 0")
    pub_b2("L_a2_nopub", 4)
    P0, P1 = PP, PP + 8
    for r in range(16):
        A(f"v_add_f32 {v(MM8+r)}, {v(TM2)}, {v(MM8+r)}")
    for r in range(16):
        A(f"v_exp_f32 {v(MM8+r)}, {v(MM8+r)}")
    for i in range(8):
        A(f"v_cvt_pk_bf16_f32 {v(P0+i)}, {v(MM8+2*i)}, {v(MM8+2*i+1)}")
    for i in range(8):
        A(f"v_and_b32 {v(P1+i)}, {v(MMK+i)}, {v(P0+i)}")
    for i in range(8):
        A(f"v_xor_b32 {v(P0+i)}, {v(P1+i)}, {v(P0+i)}")
    A("s_waitcnt lgkmcnt(0)")
    A(f"{MF} {v(O,16)}, {v(VF+0,4)}, {v(P0,4)}, 0")
    A(f"s_cmp_gt_u32 {s(S_J0)}, 0")
    A("s_cbranch_scc1 L_a2_nopv0")
    A(f"{MF} {v(O,16)}, {v(VF+8,4)}, {v(P1,4)}, {v(O,16)}")
    A(f"{MF} {v(O,16)}, {v(VF+12,4)}, {v(P1+4,4)}, {v(O,16)}")
    A("L_a2_nopv0:")
    pb = lambda jj: PP + 8*(jj & 1)
    sl = lambda jj: 2*(jj & 1)
    def pend(jj):
        if jj == 7: return [f"{MF} {v(O,16)}, {v(VF+4,4)}, {v(P0+4,4)}, {v(O,16)}"]
        p = jj + 1
        return [f"{MF} {v(O,16)}, {v(VF+4*sl(p),4)}, {v(pb(p),4)}, {v(O,16)}",
                f"{MF} {v(O,16)}, {v(VF+4*sl(p)+4,4)}, {v(pb(p)+4,4)}, {v(O,16)}"]
    for jj in range(7, 0, -1):
        b = buf(jj)
        A(f"s_cmp_gt_u32 {s(S_J0)}, {jj}")
        A(f"s_cbranch_scc1 L_st_p2_{jj}")
        def stub(jj=jj):
            A(f"L_st_p2_{jj}:")
            A("s_waitcnt lgkmcnt(0)")
            A("s_nop 1")
            for m in pend(jj): A(m)
            if jj >= 4:
                A(f"s_cmp_ge_u32 {s(S_WV)}, 4")
                A(f"s_cbranch_scc1 L_st_nowo{jj}")
                for n in range(4*(7 - jj), 16): wo_dma(n)
                A(f"L_st_nowo{jj}:")
            if jj >= 3:
                A(f"s_cmp_lg_u32 {s(S_WV)}, 0")
                A("s_cbranch_scc1 L_a2_p2done")
                flag_load(VF2A, VF2)
            A("s_branch L_a2_p2done")
        stubs.append(stub)
        pm = pend(jj)
        pass
        for r in range(16):
            A(f"v_exp_f32 {v(b+r)}, {v(b+r)}")
            if r == 1:
                A("s_waitcnt lgkmcnt(0)")
                A(pm[0])
            if r == 7 and len(pm) > 1: A(pm[1])
            if r == 9:
                vread(sl(jj), jj, 0); vread(sl(jj) + 1, jj, 1)
            if jj >= 4 and r == 11:
                A(f"s_cmp_ge_u32 {s(S_WV)}, 4")
                A(f"s_cbranch_scc1 L_a2_nowo{jj}")
                for n in range(4): wo_dma(4*(7 - jj) + n)
                A(f"L_a2_nowo{jj}:")
            if jj == 3 and r == 13:
                A(f"s_cmp_lg_u32 {s(S_WV)}, 0")
                A("s_cbranch_scc1 L_a2_nosample")
                flag_load(VF2A, VF2)
                A("L_a2_nosample:")
        for i in range(8):
            A(f"v_cvt_pk_bf16_f32 {v(pb(jj)+i)}, {v(b+2*i)}, {v(b+2*i+1)}")
        if jj - 2 >= 1:
            A(f"{MF} {v(b,16)}, {v(KF+4*(jj-2),4)}, {v(Q,4)}, {v(CN,16)}")
    A("s_waitcnt lgkmcnt(0)")
    for m in pend(0): A(m)
    A("L_a2_p2done:")
    if opt.get("prio", 0) == 2: A("s_setprio 0")

    A("s_nop 15")
    A(f"v_rcp_f32 {v(TM)}, {v(O+8)}")
    for r in range(8):
        A(f"v_mul_f32 {v(O+r)}, {v(TM)}, {v(O+r)}")
    for i in range(4):
        A(f"v_cvt_pk_bf16_f32 {v(PP+i)}, {v(O+2*i)}, {v(O+2*i+1)}")
    A(f"global_store_dwordx4 {v(PO)}, {v(PP,4)}, {s(S_WS,2)} {SCS}")
    stamp(11)
    tail_addr()
    A("s_waitcnt vmcnt(0)")
    publish(F_A2, 157, 158)
    stamp(12)
    if not opt.get("latep", 1): flag_load(PFA2, 31)
    A(f"s_cmp_lg_u32 {s(S_WV)}, 0")
    A("s_cbranch_scc1 L_nob2poll")
    check_or_spin(VF2A, VF2, "L_poll_b2")
    A(f"s_lshl_b32 {s(S_T0)}, {s(S_XCD)}, 18")
    A(f"s_lshl_b32 {s(S_T1)}, {s(S_J)}, 7")
    A(f"s_add_u32 {s(S_T0)}, {s(S_T0)}, {s(S_T1)}")
    A(f"s_add_u32 {s(S_T0)}, {s(S_T0)}, {YT}")
    for n in range(8):
        A(f"s_mov_b32 m0, {LYT + n*1024}")
        A(f"s_add_u32 {s(S_T1)}, {s(S_T0)}, {n*8*4096}")
        A(f"buffer_load_dwordx4 {v(PY0 + (n & 1))}, {s(R_WS,4)}, {s(S_T1)} offen sc1 lds")
    A("L_nob2poll:")
    A("L_noep:")
    A("s_barrier")
    stamp(13)
    WF = 32
    for hs in range(8):
        for ft in range(2):
            ad = PAW if ft == 0 else PAO
            A(f"ds_read_b64_tr_b16 {v(WF+8*hs+4*ft,2)}, {v(ad)} offset:{hs*2048}")
            A(f"ds_read_b64_tr_b16 {v(WF+8*hs+4*ft+2,2)}, {v(ad)} offset:{hs*2048 + 1024}")
    A(f"v_mov_b32 v20, {OK2}")
    A(f"s_cmp_lg_u32 {s(S_WV)}, 0")
    A("s_cbranch_scc1 L_nosig")
    A("s_waitcnt vmcnt(0)")
    A(f"v_mov_b32 v21, {s(S_NONCE)}")
    A("ds_write_b32 v20, v21")
    A("L_nosig:")
    A(f"s_mov_b32 {s(S_SPIN)}, {SPIN*8}")
    A("L_y_spin:")
    A("ds_read_b32 v21, v20")
    A("s_waitcnt lgkmcnt(0)")
    A(f"v_cmp_ne_u32 vcc, {s(S_NONCE)}, v21")
    A("s_cbranch_vccz L_y_ok")
    A(f"s_sub_u32 {s(S_SPIN)}, {s(S_SPIN)}, 1")
    A(f"s_cmp_lg_u32 {s(S_SPIN)}, 0")
    A("s_cbranch_scc1 L_y_spin")
    A("L_y_ok:")
    A(f"ds_read_b64 v[22:23], {v(PYR)}")
    A(f"ds_read_b64 v[24:25], {v(PYR)} offset:128")
    for r in range(4):
        A(f"v_lshlrev_b32 {v(136+2*r)}, 16, {v(VQ3+r)}")
        A(f"v_and_b32 {v(137+2*r)}, 0xffff0000, {v(VQ3+r)}")
    A("s_waitcnt lgkmcnt(0)")
    A("v_lshlrev_b32 v144, 16, v22"); A("v_lshlrev_b32 v145, 16, v24")
    A("v_and_b32 v146, 0xffff0000, v22"); A("v_and_b32 v147, 0xffff0000, v24")
    A("v_lshlrev_b32 v148, 16, v23"); A("v_lshlrev_b32 v149, 16, v25")
    A("v_and_b32 v150, 0xffff0000, v23"); A("v_and_b32 v151, 0xffff0000, v25")
    for r in range(4):
        A(f"v_pk_mul_f32 {v(144+2*r,2)}, {v(144+2*r,2)}, {v(136+2*r,2)}")
    for r in range(4):
        A(f"v_cvt_pk_bf16_f32 {v(152+r)}, {v(144+2*r)}, {v(145+2*r)}")
    A(f"v_add_u32 v21, 0x1000, {v(PB3)}")
    A(f"global_store_dword {v(PB3)}, v152, {s(S_OUT,2)} {BST}")
    A(f"global_store_dword {v(PB3)}, v153, {s(S_OUT,2)} offset:2048 {BST}")
    A(f"global_store_dword v21, v154, {s(S_OUT,2)} {BST}")
    A(f"global_store_dword v21, v155, {s(S_OUT,2)} offset:2048 {BST}")
    for m in range(4):
        A(f"v_xor_b32 {v(248+m)}, 128, {v(PPW[m])}")
    spin(PFA2, 31, "L_poll_a2")
    stamp(14)
    OF, AC0, AC1 = 96, 128, 144
    for hs in range(8):
        A(f"s_add_u32 {s(S_T2)}, {s(S_WOB)}, {hs*1024}")
        A(f"buffer_load_dwordx4 {v(OF+4*hs,4)}, {v(PL16)}, {s(R_WS,4)}, {s(S_T2)} offen sc1")
    for hs in range(8):
        A(f"s_waitcnt vmcnt({7 - hs})")
        A(f"{MF} {v(AC0,16)}, {v(WF+8*hs,4)}, {v(OF+4*hs,4)}, {'0' if hs == 0 else v(AC0,16)}")
        A(f"{MF} {v(AC1,16)}, {v(WF+8*hs+4,4)}, {v(OF+4*hs,4)}, {'0' if hs == 0 else v(AC1,16)}")
    stamp(15)
    for m in range(4):
        A(f"ds_write_b128 {v(PPW[m])}, {v(AC0+4*m,4)}")
    for m in range(4):
        A(f"ds_write_b128 {v(248+m)}, {v(AC1+4*m,4)}")
    A("s_waitcnt lgkmcnt(0)")
    stamp(16)
    A("s_barrier")
    stamp(17)
    for kq in range(4):
        A(f"ds_read_b128 {v(32+8*kq,4)}, {v(PPR[0])} offset:{kq*16384}")
        A(f"ds_read_b128 {v(36+8*kq,4)}, {v(PPR[1])} offset:{kq*16384}")
    A("s_waitcnt lgkmcnt(4)")
    for r in range(8):
        A(f"v_add_f32 {v(32+r)}, {v(32+r)}, {v(40+r)}")
    A("s_waitcnt lgkmcnt(0)")
    for r in range(8):
        A(f"v_add_f32 {v(48+r)}, {v(48+r)}, {v(56+r)}")
    for r in range(8):
        A(f"v_add_f32 {v(32+r)}, {v(32+r)}, {v(48+r)}")
    for i in range(4):
        A(f"v_cvt_pk_bf16_f32 {v(64+i)}, {v(32+2*i)}, {v(33+2*i)}")
    A(f"global_store_dwordx4 {v(POUT)}, v[64:67], {s(S_OUT,2)} {FST}")
    if prof:
        stamp(18)
        A(f"s_lshl_b32 {s(S_T0)}, s2, 3")
        A(f"s_add_u32 {s(S_T0)}, {s(S_T0)}, {s(S_WV)}")
        A(f"s_lshl_b32 {s(S_T0)}, {s(S_T0)}, 8")
        A(f"s_add_u32 {s(S_T0)}, {s(S_T0)}, {PROF}")
        A("v_lshlrev_b32 v16, 2, v1")
        A(f"v_add_u32 v16, {s(S_T0)}, v16")
        A(f"global_store_dword v16, v255, {s(S_WS,2)}")
    if DBG:
        A("s_memrealtime s[12:13]")
        A("s_waitcnt lgkmcnt(0)")
        A("v_mov_b32 v16, 0")
        A("s_mov_b64 exec, 1")
        A("v_mov_b32 v17, s12"); A(f"global_atomic_umax v16, v17, {s(S_DBG,2)}")
        A("s_not_b32 s8, s8"); A("v_mov_b32 v17, s8"); A(f"global_atomic_umax v16, v17, {s(S_DBG,2)} offset:4")
        A("v_mov_b32 v17, s10"); A(f"global_atomic_umax v16, v17, {s(S_DBG,2)} offset:8")
        A("s_not_b32 s10, s10"); A("v_mov_b32 v17, s10"); A(f"global_atomic_umax v16, v17, {s(S_DBG,2)} offset:12")
        A("s_not_b32 s12, s12"); A("v_mov_b32 v17, s12"); A(f"global_atomic_umax v16, v17, {s(S_DBG,2)} offset:16")
    A("L_end:")
    A("s_endpgm")
    sub_setup()
    for st in stubs:
        if st == "EPOCH":
            A("L_st_epoch:")
            A(f"s_mov_b32 {s(S_SPIN)}, {SPIN}")
            A("v_lshlrev_b32 v20, 7, v1")
            A(f"v_add_u32 v20, {FLG + F_B1}, v20")
            for q in range(1, 4): A(f"v_add_u32 {v(20+q)}, {q*8192}, v20")
            A("L_ep_spin:")
            for q in range(4): A(f"global_load_dword {v(24+q)}, {v(20+q)}, {s(S_WS,2)} {SCP}")
            A("s_waitcnt vmcnt(0)")
            A(f"v_cmp_ne_u32 vcc, {s(S_NONCE)}, v24")
            for q in range(1, 4):
                A(f"v_cmp_ne_u32 {s(S_CMP+2*q,2)}, {s(S_NONCE)}, {v(24+q)}")
            for q in range(1, 4): A(f"s_or_b64 vcc, vcc, {s(S_CMP+2*q,2)}")
            A("s_cbranch_vccz L_ep_ok")
            A(f"s_sub_u32 {s(S_SPIN)}, {s(S_SPIN)}, 1")
            A(f"s_cmp_lg_u32 {s(S_SPIN)}, 0")
            A("s_cbranch_scc1 L_ep_spin")
            A("L_ep_ok:")
            A(f"v_mov_b32 v20, {EP}")
            A(f"v_mov_b32 v21, {s(S_NONCE)}")
            A(f"s_mov_b64 {s(S_EX,2)}, exec")
            A("s_mov_b64 exec, 1")
            A(f"global_store_dword v20, v21, {s(S_WS,2)} {SCS}")
            A(f"s_mov_b64 exec, {s(S_EX,2)}")
            A("s_branch L_epdone")
        elif callable(st):
            st()
        else:
            for line in st: A(line)
    n = a.fix_hazards()
    return a, n

HEAD = f"""; Fused sliding-window attention block + H3 SSM conv, one persistent launch (generated by gen/gen2.py)
; @launch grid=(256,1,1) block=(512,1,1) lds={LDS_BYTES}
.amdgcn_target "amdgcn-amd-amdhsa--gfx950"
.text
.globl {KN}
.p2align 8
.type {KN},@function
{KN}:
"""
TAIL = f""".section .rodata,"a"
.p2align 6
.amdhsa_kernel {KN}
  .amdhsa_next_free_vgpr 256
  .amdhsa_next_free_sgpr 102
  .amdhsa_accum_offset 256
  .amdhsa_group_segment_fixed_size 0
  .amdhsa_kernarg_size 96
  .amdhsa_user_sgpr_count 2
  .amdhsa_user_sgpr_kernarg_segment_ptr 1
  .amdhsa_system_sgpr_workgroup_id_x 1
.end_amdhsa_kernel
"""
if __name__ == "__main__":
    out = sys.argv[1] if len(sys.argv) > 1 else f"cdna_kernels/{NAME}.s"
    opt = {}
    for x in sys.argv[2:]:
        if "=" in x:
            k, val = x.split("="); opt[k] = int(val)
    a, n = build(prof=("prof" in sys.argv), opt=opt)
    open(out, "w").write(HEAD + a.text() + TAIL)
    print("instructions:", a.count(), "hazard pads:", n)
```

```python
import sys
from asmlib import Asm, v, s

NAME = "concat_heads__sliding_block__ssm_conv_h3__prompt"
KN = NAME + "_kernel"

FLG = 0x0
F_B1, F_A1, F_B2, F_A2 = 0, 32768, 65536, 98304
F_A1W, F_A2W = 0x40000, 0x80000
EP  = 0x20000
KW  = 0x100000
VW  = 0x300000
OW  = 0x500000
UR  = 0x700000
YT  = 0x900000
WS_BYTES = 0xB00000
PROF = 0xC00000

STG = 28672
B2R = 114688
CB  = 12864
T0  = B2R
KVS = 140416
E_OFF, O_OFF, U_OFF = 0, 4160, 8288
LK, LV, LQ = 0, 24576, 49536
KHS, VHS, VTS = 12288, 12480, 1040
LR  = 57728
LO  = 0
LWO = 81920
LS0, LS1 = 65536, 147456
LYT = 65536
CSW = 163808
MSK = 147456
LP = 0
OK2 = 163824
OKW = 163792
OKW_OLD = 163832
LDS_BYTES = 163840

S_X, S_WQKV, S_WO, S_BQ, S_BK, S_BV, S_SK, S_SSMK = 16, 18, 20, 22, 24, 26, 28, 30
S_SD, S_OUT, S_DBG, S_WS = 32, 34, 36, 38
R_X, R_W, R_BK, R_WS, R_WO = 40, 44, 48, 52, 56
S_NONCE, S_WV, S_J, S_XCD, S_RB, S_HP = 60, 61, 62, 63, 64, 65
S_T0, S_T1, S_T2, S_T3, S_T4, S_T5 = 66, 67, 68, 69, 70, 71
S_LI = 72
S_J0 = 73
S_SPIN = 74
S_OK = 75
S_EX = 76
S_CBASE, S_CH = 78, 79
S_CMP = 80
S_HD, S_TB64 = 96, 97
S_ROT = 75

PAK, PAV0, PAV1, PAQ = 192, 193, 194, 195
PFB2, PFA2, PY0, PY1, PYR, PO, PWO, PAO, PAW, POUT, PL16, PQ3 = 196, 197, 198, 199, 200, 201, 202, 203, 204, 205, 206, 207
PPW = [9, 10, 11, 12]
PPR = [13, 14, 15, 2]
PB3 = 8
S_LINK = 4
S_WOB, S_WOL = 6, 7
SPIN = 200000
NEGBIG = 0xF149F2CA
QSCALE = 0x3EB8AA3B
ONES = 0x3F803F80
STAGE = [0, 1, 2, 3, 0, 1, 2, 3]
MF = "v_mfma_f32_32x32x16_bf16"
MF16 = "v_mfma_f32_16x16x32_bf16"

def build(prof=False, opt=None):
    opt = opt or {}
    NT_B = "nt" if opt.get("nt_b", 0) else ""
    NT_XW = "nt" if opt.get("nt_xw", 0) else ""
    NT_WO = "nt" if opt.get("nt_wo", 0) else ""
    SCP = {0: "sc0 sc1", 1: "sc1", 2: "sc1 nt", 3: "sc0 sc1 nt"}[opt.get("sc_poll", 1)]
    SCS = {0: "sc0 sc1", 1: "sc1", 2: "sc1 nt"}[opt.get("sc_store", 1)]
    SLEEP = opt.get("sleep", 0)
    FST = {0: "", 1: "sc0 sc1", 2: "nt", 3: "sc1"}[opt.get("fst", 2)]
    BST = {0: "", 1: "sc0 sc1", 2: "nt", 3: "sc1"}[opt.get("bst", 2)]
    a = Asm()
    A = a
    stubs = []
    def stamp(k):
        if not prof: return
        A("s_memrealtime s[100:101]")
        A("s_memtime s[98:99]")
        A("s_waitcnt lgkmcnt(0)")
        A(f"v_writelane_b32 v255, s100, {k}")
        A(f"v_writelane_b32 v255, s98, {k+32}")
    def srd(dst, base, nbytes):
        A(f"s_mov_b32 {s(dst)}, {s(base)}")
        A(f"s_and_b32 {s(dst+1)}, {s(base+1)}, 0xffff")
        A(f"s_mov_b32 {s(dst+2)}, {nbytes}")
        A(f"s_mov_b32 {s(dst+3)}, 0x00020000")
    def flag_load(vaddr, vtmp):
        A(f"global_load_dword {v(vtmp)}, {v(vaddr)}, {s(S_WS,2)} {SCP}")
    def spin(vaddr, vtmp, label):
        A(f"s_mov_b32 {s(S_SPIN)}, {SPIN}")
        A(f"{label}:")
        flag_load(vaddr, vtmp)
        A("s_waitcnt vmcnt(0)")
        A(f"v_cmp_ne_u32 vcc, {s(S_NONCE)}, {v(vtmp)}")
        A(f"s_cbranch_vccz {label}_done")
        if SLEEP: A(f"s_sleep {SLEEP}")
        A(f"s_sub_u32 {s(S_SPIN)}, {s(S_SPIN)}, 1")
        A(f"s_cmp_lg_u32 {s(S_SPIN)}, 0")
        A(f"s_cbranch_scc1 {label}")
        A(f"{label}_done:")
    def check_or_spin(vaddr, vtmp, label):
        A(f"v_cmp_ne_u32 vcc, {s(S_NONCE)}, {v(vtmp)}")
        A(f"s_cbranch_vccz {label}_done")
        spin(vaddr, vtmp, label)
    WL = opt.get("wline", 1)
    def publish(kind, vt0, vt1):
        if WL and kind in (F_A1, F_A2):
            A(f"s_lshl_b32 {s(S_T0)}, s2, 3")
            A(f"s_add_u32 {s(S_T0)}, {s(S_T0)}, {s(S_WV)}")
            A(f"s_lshl_b32 {s(S_T0)}, {s(S_T0)}, 7")
            A(f"s_add_u32 {s(S_T0)}, {s(S_T0)}, {FLG + (F_A1W if kind == F_A1 else F_A2W)}")
        else:
            A(f"s_lshl_b32 {s(S_T0)}, s2, 7")
            A(f"s_lshl_b32 {s(S_T1)}, {s(S_WV)}, 2")
            A(f"s_add_u32 {s(S_T0)}, {s(S_T0)}, {s(S_T1)}")
            A(f"s_add_u32 {s(S_T0)}, {s(S_T0)}, {FLG + kind}")
        A(f"v_mov_b32 {v(vt0)}, {s(S_T0)}")
        A(f"v_mov_b32 {v(vt1)}, {s(S_NONCE)}")
        A(f"s_mov_b64 {s(S_EX,2)}, exec")
        A(f"s_mov_b64 exec, 1")
        A(f"global_store_dword {v(vt0)}, {v(vt1)}, {s(S_WS,2)} {SCS}")
        A(f"s_mov_b64 exec, {s(S_EX,2)}")

    def record(fn):
        n0 = len(a.items)
        fn()
        out = [it.text for k, it in a.items[n0:]]
        assert all(k == "i" for k, it in a.items[n0:])
        del a.items[n0:]
        return out
    MM0, MM8, MMK = 208, 224, 240
    def gen_masks():
        A("v_and_b32 v248, 31, v1")
        A("v_lshrrev_b32 v249, 5, v1")
        A("v_lshlrev_b32 v249, 2, v249")
        A("v_sub_u32 v248, v248, v249")
        A(f"v_mov_b32 v249, {NEGBIG}")
        A("v_mov_b32 v250, 0xffff")
        for r in range(16):
            cst = (r & 3) + 8*(r >> 2)
            A(f"v_subrev_u32 {v(MM0+r)}, {cst}, v248")
        for r in range(16):
            A(f"v_ashrrev_i32 {v(MM0+r)}, 31, {v(MM0+r)}")
        for i in range(8):
            A(f"v_bfi_b32 {v(MMK+i)}, v250, {v(MM0+2*i)}, {v(MM0+2*i+1)}")
        for r in range(16):
            A(f"v_and_b32 {v(MM8+r)}, v249, {v(MM0+r)}")
        for r in range(16):
            A(f"v_xor_b32 {v(MM0+r)}, v249, {v(MM8+r)}")

    def sub_setup():
        A("L_sub_b:")
        A(f"s_lshr_b32 {s(S_HD)}, {s(S_WV)}, 2")
        A(f"s_lshl_b32 {s(S_T0)}, {s(S_RB)}, 2")
        A(f"s_add_u32 {s(S_T0)}, {s(S_T0)}, {s(S_LI)}")
        A(f"s_sub_i32 {s(S_J0)}, 8, {s(S_T0)}")
        A(f"s_max_i32 {s(S_J0)}, {s(S_J0)}, 0")
        A(f"v_lshlrev_b32 {v(PL16)}, 4, v1")
        A(f"s_lshl_b32 {s(S_T0)}, {s(S_HD)}, 12")
        A(f"s_lshl_b32 {s(S_T1)}, {s(S_LI)}, 10")
        A(f"s_add_u32 {s(S_T0)}, {s(S_T0)}, {s(S_T1)}")
        A(f"v_add_u32 {v(PAQ)}, {s(S_T0)}, {v(PL16)}")
        A(f"s_mul_i32 {s(S_T0)}, {s(S_HD)}, {KHS}")
        A(f"s_add_u32 {s(S_T0)}, {s(S_T0)}, {s(S_T1)}")
        A(f"v_add_u32 {v(PAK)}, {s(S_T0)}, {v(PL16)}")
        A(f"s_mul_i32 {s(S_T0)}, {s(S_HD)}, {VHS}")
        A(f"s_mul_i32 {s(S_T1)}, {s(S_LI)}, {VTS}")
        A(f"s_add_u32 {s(S_T0)}, {s(S_T0)}, {s(S_T1)}")
        A("v_and_b32 v248, 15, v1")
        A("v_lshlrev_b32 v248, 4, v248")
        A("v_lshrrev_b32 v249, 5, v1")
        A("v_lshl_add_u32 v248, v249, 8, v248")
        A("v_bfe_u32 v249, v1, 4, 1")
        A("v_cmp_eq_u32 vcc, 1, v249")
        A("v_mov_b32 v249, 1024")
        A("v_mov_b32 v250, 512")
        A(f"v_cndmask_b32 {v(PAV0)}, v248, v249, vcc")
        A(f"v_cndmask_b32 {v(PAV1)}, v248, v250, vcc")
        A(f"v_add_u32 {v(PAV0)}, {s(S_T0)}, {v(PAV0)}")
        A(f"v_add_u32 {v(PAV1)}, {s(S_T0)}, {v(PAV1)}")
        A(f"s_lshl_b32 {s(S_T0)}, {s(S_RB)}, 2")
        A(f"s_add_u32 {s(S_T0)}, {s(S_T0)}, {s(S_LI)}")
        A(f"s_lshl_b32 {s(S_T0)}, {s(S_T0)}, 5")
        A(f"s_lshl_b32 {s(S_T1)}, {s(S_HP)}, 1")
        A(f"s_add_u32 {s(S_T0)}, {s(S_T0)}, {s(S_T1)}")
        A(f"s_add_u32 {s(S_T0)}, {s(S_T0)}, {s(S_HD)}")
        A(f"s_lshl_b32 {s(S_T0)}, {s(S_T0)}, 10")
        A(f"s_add_u32 {s(S_T0)}, {s(S_T0)}, {OW}")
        A(f"v_add_u32 {v(PO)}, {s(S_T0)}, {v(PL16)}")
        A("v_and_b32 v248, 31, v1")
        A("v_lshrrev_b32 v249, 5, v1")
        A(f"s_lshl_b32 {s(S_T0)}, {s(S_WV)}, 1")
        A(f"v_add_u32 v249, {s(S_T0)}, v249")
        A(f"s_lshl_b32 {s(S_T0)}, {s(S_J)}, 6")
        A("v_lshlrev_b32 v250, 2, v249")
        A(f"v_add_u32 v250, {s(S_T0)}, v250")
        A(f"s_lshl_b32 {s(S_T0)}, {s(S_XCD)}, 7")
        A("v_lshlrev_b32 v251, 2, v248")
        A(f"v_add_u32 v251, {s(S_T0)}, v251")
        A(f"v_lshl_add_u32 {v(PQ3)}, v250, 10, v251")
        A(f"v_lshl_add_u32 {v(PB3)}, v250, 11, v251")
        A(f"v_add_u32 {v(PB3)}, 1024, {v(PB3)}")
        A(f"s_setpc_b64 {s(S_LINK,2)}")
    def c_setup():
        if not opt.get("mfill", 0): gen_masks()
        A(f"s_cmp_lg_u32 {s(S_WV)}, 0")
        A("s_cbranch_scc1 L_c_nomsk")
        A("v_lshlrev_b32 v248, 4, v1")
        A(f"v_add_u32 v248, {MSK}, v248")
        for k in range(10):
            A(f"ds_write_b128 v248, {v(MM0+4*k,4)} offset:{1024*k}")
        A("L_c_nomsk:")
        if not opt.get("mfill", 0): c_consts()
    def c_consts():
        A("v_lshrrev_b32 v248, 3, v1")
        A("v_bfe_u32 v249, v248, 1, 1")
        A("v_lshlrev_b32 v249, 2, v249")
        A("v_and_b32 v250, 7, v1")
        A("v_xor_b32 v249, v249, v250")
        A("v_lshlrev_b32 v249, 4, v249")
        A(f"v_lshl_add_u32 {v(PWO)}, v248, 10, v249")
        A(f"s_lshr_b32 {s(S_T0)}, {s(S_J)}, 2")
        A(f"s_lshl_b32 {s(S_T0)}, {s(S_T0)}, 7")
        A(f"s_lshl_b32 {s(S_T1)}, {s(S_WV)}, 16")
        A(f"s_add_u32 {s(S_WOB)}, {s(S_T0)}, {s(S_T1)}")
        A(f"s_lshl_b32 {s(S_WOL)}, {s(S_WV)}, 13")
        srd(R_WO, S_WO, 512*1024)
        A(f"v_lshrrev_b32 {v(PFB2)}, 1, v1")
        A(f"v_lshlrev_b32 {v(PFB2)}, 10, {v(PFB2)}")
        A("v_and_b32 v248, 1, v1")
        A(f"v_lshl_add_u32 {v(PFB2)}, v248, 3, {v(PFB2)}")
        A(f"s_lshr_b32 {s(S_T0)}, {s(S_J)}, 4")
        A(f"s_add_u32 {s(S_T0)}, {s(S_T0)}, 4")
        A(f"s_lshl_b32 {s(S_T0)}, {s(S_T0)}, 2")
        A(f"s_lshl_b32 {s(S_T1)}, {s(S_XCD)}, 7")
        A(f"s_add_u32 {s(S_T0)}, {s(S_T0)}, {s(S_T1)}")
        A(f"s_add_u32 {s(S_T0)}, {s(S_T0)}, {FLG + F_B2}")
        A(f"v_add_u32 {v(PFB2)}, {s(S_T0)}, {v(PFB2)}")
    def tail_addr():
        A("v_and_b32 v248, 31, v1")
        A("v_lshrrev_b32 v249, 5, v1")
        A(f"s_lshl_b32 {s(S_T0)}, {s(S_WV)}, 1")
        A(f"v_add_u32 v249, {s(S_T0)}, v249")
        A("v_lshrrev_b32 v250, 1, v249")
        A("v_and_b32 v251, 7, v248")
        A("v_xor_b32 v250, v250, v251")
        A("v_lshlrev_b32 v250, 4, v250")
        A("v_and_b32 v251, 1, v249")
        A("v_lshl_add_u32 v250, v251, 3, v250")
        A("v_lshl_add_u32 v250, v248, 8, v250")
        A(f"v_add_u32 {v(PYR)}, {LYT}, v250")
        A(f"s_lshr_b32 {s(S_TB64)}, {s(S_RB)}, 2")
        A(f"s_lshl_b32 {s(S_TB64)}, {s(S_TB64)}, 1")
        A(f"s_and_b32 {s(S_T0)}, {s(S_XCD)}, 1")
        A(f"s_add_u32 {s(S_TB64)}, {s(S_TB64)}, {s(S_T0)}")
        A(f"s_lshl_b32 {s(S_TB64)}, {s(S_TB64)}, 2")
        A(f"s_and_b32 {s(S_T0)}, {s(S_J)}, 3")
        A(f"s_add_u32 {s(S_TB64)}, {s(S_TB64)}, {s(S_T0)}")
        A(f"s_and_b32 {s(S_T2)}, {s(S_WV)}, 1")
        A(f"s_lshl_b32 {s(S_T0)}, {s(S_TB64)}, 1")
        A(f"s_add_u32 {s(S_T2)}, {s(S_T2)}, {s(S_T0)}")
        A(f"v_mov_b32 v248, {s(S_T2)}")
        A(f"s_lshr_b32 {s(S_T0)}, {s(S_WV)}, 1")
        A(f"s_lshl_b32 {s(S_T0)}, {s(S_T0)}, 3")
        A("v_and_b32 v249, 7, v1")
        A(f"v_add_u32 v249, {s(S_T0)}, v249")
        A(f"s_lshl_b32 {s(S_WOB)}, {s(S_T2)}, 5")
        A(f"s_add_u32 {s(S_WOB)}, {s(S_WOB)}, {s(S_T0)}")
        A(f"s_lshl_b32 {s(S_WOB)}, {s(S_WOB)}, 10")
        A(f"s_add_u32 {s(S_WOB)}, {s(S_WOB)}, {OW}")
        A("v_lshrrev_b32 v250, 2, v248")
        A("v_lshrrev_b32 v251, 1, v249")
        A("v_and_b32 v252, 3, v250")
        A("v_and_b32 v253, 7, v251")
        A("v_lshl_add_u32 v252, v253, 2, v252")
        A("v_lshlrev_b32 v252, 3, v252")
        A("v_lshrrev_b32 v253, 2, v250")
        if opt.get("gray", 1):
            A("v_lshrrev_b32 v250, 1, v253")
            A("v_xor_b32 v253, v253, v250")
        A("v_lshl_add_u32 v252, v253, 1, v252")
        A("v_lshrrev_b32 v253, 3, v251")
        A("v_add_u32 v252, v252, v253")
        A("v_and_b32 v253, 3, v248")
        A("v_and_b32 v250, 1, v249")
        A("v_lshl_add_u32 v253, v250, 2, v253")
        if WL:
            A("v_lshl_add_u32 v252, v252, 3, v253")
            A("v_lshlrev_b32 v252, 7, v252")
            A(f"v_add_u32 {v(PFA2)}, {FLG + F_A2W}, v252")
        else:
            A("v_lshlrev_b32 v252, 7, v252")
            A("v_lshl_add_u32 v252, v253, 2, v252")
            A(f"v_add_u32 {v(PFA2)}, {FLG + F_A2}, v252")
        A("v_lshrrev_b32 v248, 3, v1")
        A("v_and_b32 v249, 7, v1")
        A("v_lshrrev_b32 v250, 1, v248")
        A("v_xor_b32 v249, v249, v250")
        A("v_lshlrev_b32 v248, 12, v248")
        A(f"v_lshl_add_u32 {v(PY0)}, v249, 4, v248")
        A("v_xor_b32 v249, 4, v249")
        A(f"v_lshl_add_u32 {v(PY1)}, v249, 4, v248")
        A("v_and_b32 v248, 15, v1")
        A("v_lshrrev_b32 v248, 2, v248")
        A("v_lshrrev_b32 v249, 5, v1")
        A("v_lshl_add_u32 v249, v249, 2, v248")
        A("v_lshlrev_b32 v249, 7, v249")
        A("v_lshrrev_b32 v248, 1, v248")
        A("v_lshl_add_u32 v249, v248, 6, v249")
        A("v_bfe_u32 v248, v1, 4, 1")
        A("v_lshl_add_u32 v249, v248, 5, v249")
        A("v_and_b32 v248, 3, v1")
        A("v_lshl_add_u32 v249, v248, 3, v249")
        A(f"s_lshr_b32 {s(S_T1)}, {s(S_WV)}, 1")
        A(f"s_lshl_b32 {s(S_T2)}, {s(S_T1)}, 14")
        A(f"s_add_u32 {s(S_T0)}, {s(S_T2)}, {LWO}")
        A(f"v_add_u32 {v(PAW)}, {s(S_T0)}, v249")
        A(f"v_xor_b32 {v(PAO)}, 64, {v(PAW)}")
        A("v_and_b32 v248, 31, v1")
        A("v_lshrrev_b32 v249, 5, v1")
        A("v_and_b32 v250, 15, v248")
        A("v_xor_b32 v249, v249, v250")
        A("v_lshlrev_b32 v249, 4, v249")
        A(f"s_and_b32 {s(S_T0)}, {s(S_WV)}, 1")
        A(f"s_lshl_b32 {s(S_T0)}, {s(S_T0)}, 13")
        A(f"s_add_u32 {s(S_T0)}, {s(S_T0)}, {s(S_T2)}")
        A(f"s_add_u32 {s(S_T0)}, {s(S_T0)}, {LP}")
        A("v_lshl_add_u32 v249, v248, 8, v249")
        A(f"v_add_u32 v249, {s(S_T0)}, v249")
        for m in range(4):
            A(f"v_xor_b32 {v(PPW[m])}, {m*32}, v249")
        A("v_lshrrev_b32 v248, 3, v0")
        A("v_and_b32 v249, 7, v0")
        A("v_lshlrev_b32 v250, 1, v249")
        A("v_and_b32 v251, 15, v248")
        A("v_xor_b32 v250, v250, v251")
        A("v_lshlrev_b32 v250, 4, v250")
        A("v_lshl_add_u32 v250, v248, 8, v250")
        A(f"v_add_u32 {v(PPR[0])}, {LP}, v250")
        A(f"v_xor_b32 {v(PPR[1])}, 16, {v(PPR[0])}")
        A(f"s_lshl_b32 {s(S_T0)}, {s(S_TB64)}, 17")
        A(f"s_lshr_b32 {s(S_T1)}, {s(S_J)}, 2")
        A(f"s_lshl_b32 {s(S_T1)}, {s(S_T1)}, 7")
        A(f"s_add_u32 {s(S_T0)}, {s(S_T0)}, {s(S_T1)}")
        A("v_lshlrev_b32 v250, 11, v248")
        A("v_lshl_add_u32 v250, v249, 4, v250")
        A(f"v_add_u32 {v(POUT)}, {s(S_T0)}, v250")
    def call(lab): A(f"s_call_b64 {s(S_LINK,2)}, {lab}")
    def wo_dma(n):
        A(f"s_add_u32 m0, {s(S_WOL)}, {LWO + (n & 7)*1024 + (n >> 3)*4*8192}")
        A(f"s_add_u32 {s(S_T1)}, {s(S_WOB)}, {(n & 7)*8192 + (n >> 3)*4*65536}")
        A(f"buffer_load_dwordx4 {v(PWO)}, {s(R_WO,4)}, {s(S_T1)} offen {NT_WO} lds")

    stamp(0)
    DBG = opt.get("dbg", 0)
    if DBG: A("s_memrealtime s[8:9]")
    A("s_load_dwordx16 s[16:31], s[0:1], 0")
    A("s_load_dwordx8 s[32:39], s[0:1], 64")
    A("s_cmp_ge_u32 s2, 256")
    A("s_cbranch_scc1 L_end")
    A("v_and_b32 v1, 63, v0")
    A("v_lshrrev_b32 v2, 6, v0")
    A(f"s_and_b32 {s(S_XCD)}, s2, 7")
    A(f"s_lshr_b32 {s(S_J)}, s2, 3")
    A(f"v_readfirstlane_b32 {s(S_WV)}, v2")
    GRAY = opt.get("gray", 1)
    A(f"s_lshr_b32 {s(S_T0)}, {s(S_XCD)}, 1")
    if GRAY:
        A(f"s_lshr_b32 {s(S_T1)}, {s(S_T0)}, 1")
        A(f"s_xor_b32 {s(S_T0)}, {s(S_T0)}, {s(S_T1)}")
    A(f"s_lshl_b32 {s(S_T0)}, {s(S_T0)}, 2")
    A(f"s_and_b32 {s(S_T1)}, {s(S_J)}, 3")
    A(f"s_add_u32 {s(S_RB)}, {s(S_T0)}, {s(S_T1)}")
    A(f"s_and_b32 {s(S_T0)}, {s(S_XCD)}, 1")
    A(f"s_lshl_b32 {s(S_T0)}, {s(S_T0)}, 3")
    A(f"s_lshr_b32 {s(S_T1)}, {s(S_J)}, 2")
    A(f"s_add_u32 {s(S_HP)}, {s(S_T0)}, {s(S_T1)}")
    A(f"s_and_b32 {s(S_LI)}, {s(S_WV)}, 3")
    A("v_and_b32 v3, 31, v1")
    A("v_lshrrev_b32 v4, 5, v1")
    A(f"s_cmp_ge_u32 {s(S_WV)}, 4")
    A("s_cbranch_scc1 L_lwave")
    A("v_lshrrev_b32 v5, 3, v1")
    A("v_and_b32 v6, 7, v1")
    A("v_lshlrev_b32 v6, 4, v6")
    A(f"s_lshl_b32 {s(S_T0)}, {s(S_J)}, 6")
    A(f"s_lshl_b32 {s(S_T1)}, {s(S_WV)}, 4")
    A(f"s_add_u32 {s(S_T0)}, {s(S_T0)}, {s(S_T1)}")
    A(f"v_add_u32 v5, {s(S_T0)}, v5")
    A("v_lshlrev_b32 v5, 10, v5")
    A(f"s_lshl_b32 {s(S_T1)}, {s(S_XCD)}, 7")
    A(f"v_add3_u32 v7, v5, v6, {s(S_T1)}")
    A("v_add_u32 v8, 0xffffe000, v7")
    A("v_add_u32 v9, 0x2000, v7")
    A(f"s_mul_i32 {s(S_T4)}, {s(S_WV)}, 5120")
    A(f"s_add_u32 {s(S_T4)}, {s(S_T4)}, {KVS}")
    A(f"s_lshl_b32 {s(S_T0)}, {s(S_XCD)}, 9")
    A("v_lshlrev_b32 v11, 4, v3")
    A(f"v_add_u32 v11, {s(S_T0)}, v11")
    A("s_waitcnt lgkmcnt(0)")
    if opt.get("wsoff", 0):
        A(f"s_add_u32 {s(S_WS)}, {s(S_WS)}, {opt['wsoff'] << 20}")
        A(f"s_addc_u32 {s(S_WS+1)}, {s(S_WS+1)}, 0")
    stamp(1)
    srd(R_BK, S_BK, 2048*1024)
    srd(R_X, S_BV, 2048*1024)
    A(f"s_load_dword {s(S_NONCE)}, {s(S_WS,2)}, {EP}")
    for n, vr in enumerate((8, 7, 9)):
        A(f"s_add_u32 m0, {s(S_T4)}, {n*1024}")
        A(f"buffer_load_dwordx4 {v(vr)}, {s(R_BK,4)}, 0 offen {NT_B} lds")
    for n, vr in enumerate((7, 9)):
        A(f"s_add_u32 m0, {s(S_T4)}, {3072 + n*1024}")
        A(f"buffer_load_dwordx4 {v(vr)}, {s(R_X,4)}, 0 offen {NT_B} lds")
    A(f"global_load_dwordx4 v[36:39], v11, {s(S_SK,2)}")
    NTOUCH = 0
    if opt.get("cpf", 0):
        NCP = opt.get("cpf")
        A(f"s_cmp_ge_u32 {s(S_J)}, 2")
        A("s_cbranch_scc1 L_nocpf")
        A("s_getpc_b64 s[98:99]")
        A("s_and_b32 s98, s98, 0xffffff00")
        A(f"s_mul_i32 {s(S_T0)}, {s(S_LI)}, {NCP*1024}")
        A("v_lshlrev_b32 v40, 4, v1")
        A(f"v_add_u32 v40, {s(S_T0)}, v40")
        for k in range(NCP):
            A(f"global_load_dwordx4 v[200:203], v40, s[98:99] offset:{(k % 4)*1024}")
            if k % 4 == 3: A("v_add_u32 v40, 0x1000, v40")
        A("L_nocpf:")
    if opt.get("touch", 0):
        A("v_and_b32 v40, 7, v1")
        A("v_lshlrev_b32 v40, 21, v40")
        A("v_min_u32 v40, 0xa00000, v40")
        A(f"global_load_dword v200, v40, {s(S_WS,2)} offset:2048")
        A(f"s_lshl_b32 {s(S_T0)}, {s(S_J)}, 16")
        A(f"v_mov_b32 v42, {s(S_T0)}")
        A(f"global_load_dword v201, v42, {s(S_BQ,2)}")
        A(f"s_lshl_b32 {s(S_T0)}, {s(S_J)}, 17")
        A(f"v_mov_b32 v44, {s(S_T0)}")
        A(f"global_load_dword v202, v44, {s(S_OUT,2)}")
        A(f"s_lshl_b32 {s(S_T0)}, {s(S_XCD)}, 19")
        A(f"v_mov_b32 v46, {s(S_T0)}")
        A(f"global_load_dword v203, v46, {s(S_OUT,2)}")
        A("v_mov_b32 v48, 0")
        A(f"global_load_dword v204, v48, {s(S_WO,2)}")
        A(f"global_load_dword v205, v48, {s(S_SSMK,2)}")
        NTOUCH = 6
    XA, XB, WA, WB, WC = 144, 148, 152, 153, 154
    A(f"s_lshl_b32 {s(S_T0)}, {s(S_LI)}, 5")
    A(f"v_add_u32 v110, {s(S_T0)}, v3")
    A("v_lshrrev_b32 v111, 1, v110")
    A("v_and_b32 v111, 7, v111")
    A("v_xor_b32 v111, v111, v4")
    A("v_lshlrev_b32 v111, 4, v111")
    A("v_lshl_add_u32 v111, v110, 7, v111")
    for st in range(4):
        A(f"v_xor_b32 {v(XA+st)}, {st*32}, v111")
        A(f"v_add_u32 {v(XB+st)}, {2*STG}, {v(XA+st)}")
    A("v_and_b32 v110, 15, v1")
    A("v_lshrrev_b32 v110, 2, v110")
    A("v_lshl_add_u32 v110, v4, 3, v110")
    A("v_lshlrev_b32 v110, 6, v110")
    A("v_bfe_u32 v111, v1, 4, 1")
    A("v_lshl_add_u32 v110, v111, 5, v110")
    A("v_and_b32 v111, 3, v1")
    A("v_lshl_add_u32 v110, v111, 3, v110")
    A(f"v_add_u32 {v(WA)}, 16384, v110")
    A(f"v_add_u32 {v(WB)}, {2*STG}, {v(WA)}")
    A(f"v_add_u32 {v(WC)}, {4*STG}, {v(WA)}")
    ACC = 64
    FR = [160, 176, 128]
    def reads(n):
        c, st = n >> 2, n & 3
        stage = STAGE[c]
        xa = (XA if stage < 2 else XB) + st
        wa = WA if stage < 2 else WB if stage < 4 else WC
        so = (stage & 1) * STG
        xo = so if stage < 4 else 2*STG
        f = FR[n % 3]
        L = [f"ds_read_b128 {v(f,4)}, {v(xa)} offset:{xo}"]
        for p in range(3):
            L.append(f"ds_read_b64_tr_b16 {v(f+4+4*p,2)}, {v(wa)} offset:{so + p*4096 + st*1024}")
            L.append(f"ds_read_b64_tr_b16 {v(f+6+4*p,2)}, {v(wa)} offset:{so + p*4096 + st*1024 + 256}")
        return L
    def mfma(n, p):
        f = FR[n % 3]
        acc = v(ACC + 16*p, 16)
        cin = "0" if n == 0 else acc
        if p < 2: return f"{MF} {acc}, {v(f+4+4*p,4)}, {v(f,4)}, {cin}"
        else:     return f"{MF} {acc}, {v(f,4)}, {v(f+4+4*p,4)}, {cin}"
    def epi_addr():
        A("v_lshlrev_b32 v32, 4, v1")
        A(f"s_lshl_b32 {s(S_T0)}, {s(S_HP)}, 7")
        A(f"s_lshl_b32 {s(S_T1)}, {s(S_RB)}, 2")
        A(f"s_add_u32 {s(S_T0)}, {s(S_T0)}, {s(S_T1)}")
        A(f"s_add_u32 {s(S_T0)}, {s(S_T0)}, {s(S_LI)}")
        A(f"s_lshl_b32 {s(S_T0)}, {s(S_T0)}, 10")
        A(f"s_add_u32 {s(S_T1)}, {s(S_T0)}, {KW}")
        A(f"v_add_u32 v37, {s(S_T1)}, v32")
        A("v_add_u32 v38, 0x10000, v37")
        A("v_and_b32 v34, 15, v1")
        A("v_lshlrev_b32 v34, 4, v34")
        A("v_lshl_add_u32 v34, v4, 8, v34")
        A("v_bfe_u32 v35, v1, 4, 1")
        A(f"s_add_u32 {s(S_T1)}, {s(S_T0)}, {VW}")
        A("v_lshlrev_b32 v39, 16, v35")
        A(f"v_add3_u32 v39, v39, v34, {s(S_T1)}")
        A(f"s_lshl_b32 {s(S_T0)}, {s(S_LI)}, 10")
        A(f"v_add_u32 v33, {s(S_T0)}, v32")
        A(f"s_mul_i32 {s(S_T0)}, {s(S_LI)}, {VTS}")
        A(f"v_mov_b32 v36, {VHS}")
        A("v_mul_u32_u24 v36, v36, v35")
        A(f"v_add3_u32 v36, v36, v34, {s(S_T0)}")
    def halo_addr():
        srd(R_WS, S_WS, WS_BYTES)
        A(f"s_sub_u32 {s(S_T2)}, {s(S_RB)}, 1")
        A(f"s_sub_u32 {s(S_T3)}, {s(S_RB)}, 2")
        A(f"s_max_i32 {s(S_T3)}, {s(S_T3)}, 0")
        A(f"s_max_i32 {s(S_T2)}, {s(S_T2)}, 0")
        A("v_and_b32 v158, 1, v1")
        A("v_cmp_eq_u32 vcc, 1, v158")
        A(f"v_mov_b32 v158, {s(S_T2)}")
        A(f"v_mov_b32 v157, {s(S_T3)}")
        A("v_cndmask_b32 v158, v158, v157, vcc")
        A(f"s_and_b32 {s(S_T0)}, {s(S_HP)}, 7")
        A(f"s_lshl_b32 {s(S_T0)}, {s(S_T0)}, 5")
        A(f"s_lshr_b32 {s(S_T1)}, {s(S_HP)}, 3")
        A(f"s_add_u32 {s(S_T0)}, {s(S_T0)}, {s(S_T1)}")
        A("v_and_b32 v157, 3, v158")
        A("v_lshlrev_b32 v157, 3, v157")
        A("v_lshrrev_b32 v158, 2, v158")
        if opt.get("gray", 1):
            A("v_lshrrev_b32 v159, 1, v158")
            A("v_xor_b32 v158, v158, v159")
        A("v_lshl_add_u32 v157, v158, 1, v157")
        A(f"v_add_u32 v157, {s(S_T0)}, v157")
        if WL:
            A("v_lshlrev_b32 v157, 10, v157")
            A(f"s_lshl_b32 {s(S_T0)}, {s(S_LI)}, 7")
            A(f"s_add_u32 {s(S_T0)}, {s(S_T0)}, {FLG + F_A1W}")
        else:
            A("v_lshlrev_b32 v157, 7, v157")
            A(f"s_lshl_b32 {s(S_T0)}, {s(S_LI)}, 2")
            A(f"s_add_u32 {s(S_T0)}, {s(S_T0)}, {FLG + F_A1}")
        A(f"v_add_u32 v157, {s(S_T0)}, v157")
    A("v_lshlrev_b32 v5, 10, v4")
    A("v_lshl_add_u32 v5, v3, 2, v5")
    A(f"v_add_u32 v5, {s(S_T4)}, v5")
    A(f"s_lshl_b32 {s(S_T0)}, {s(S_WV)}, 1")
    A(f"v_add_u32 v6, {s(S_T0)}, v4")
    A("v_sub_u32 v112, 7, v6")
    A("v_and_b32 v113, 7, v3")
    A("v_xor_b32 v112, v112, v113")
    A("v_lshlrev_b32 v112, 4, v112")
    A("v_lshl_add_u32 v112, v3, 8, v112")
    A(f"v_add_u32 v112, {T0}, v112")
    A("v_lshrrev_b32 v114, 3, v1")
    A(f"s_lshl_b32 {s(S_T0)}, {s(S_LI)}, 4")
    A(f"v_add_u32 v114, {s(S_T0)}, v114")
    A("v_and_b32 v115, 7, v1")
    A("v_lshrrev_b32 v116, 1, v114")
    A("v_and_b32 v116, 7, v116")
    A("v_xor_b32 v116, v116, v115")
    A("v_lshlrev_b32 v117, 7, v114")
    A("v_lshl_add_u32 v118, v116, 4, v117")
    A("v_xor_b32 v116, 4, v116")
    A("v_lshl_add_u32 v119, v116, 4, v117")
    A(f"v_add_u32 v118, {T0}, v118")
    A(f"v_add_u32 v119, {T0 + 1024}, v119")
    A(f"s_lshl_b32 {s(S_T0)}, {s(S_XCD)}, 18")
    A(f"s_lshl_b32 {s(S_T1)}, {s(S_J)}, 7")
    A(f"s_sub_u32 {s(S_T0)}, {s(S_T0)}, {s(S_T1)}")
    A(f"s_add_u32 {s(S_T0)}, {s(S_T0)}, {UR + 1984*2}")
    A("v_lshlrev_b32 v120, 12, v114")
    A("v_lshl_add_u32 v120, v115, 4, v120")
    A(f"v_add_u32 v120, {s(S_T0)}, v120")
    A("v_add_u32 v121, 0x8000, v120")
    A(f"s_waitcnt vmcnt({NTOUCH}) lgkmcnt(0)")
    stamp(2)
    for r in range(11):
        A(f"ds_read_b32 {v(16+r)}, v5 offset:{(5+r)*128}")
    for r in range(8):
        A(f"ds_read_b32 {v(28+r)}, v5 offset:{3072 + r*128}")
    A("v_lshlrev_b32 v78, 16, v36"); A("v_lshlrev_b32 v79, 16, v38")
    A("v_and_b32 v80, 0xffff0000, v36"); A("v_and_b32 v81, 0xffff0000, v38")
    A("v_lshlrev_b32 v82, 16, v37"); A("v_lshlrev_b32 v83, 16, v39")
    A("v_and_b32 v84, 0xffff0000, v37"); A("v_and_b32 v85, 0xffff0000, v39")
    A(f"s_add_u32 {s(S_NONCE)}, {s(S_NONCE)}, 1")
    A("s_waitcnt lgkmcnt(8)")
    for r in range(11):
        A(f"v_lshlrev_b32 {v(40+2*r)}, 16, {v(16+r)}")
        A(f"v_and_b32 {v(41+2*r)}, 0xffff0000, {v(16+r)}")
    for tau in range(8):
        A(f"v_pk_mul_f32 {v(86+2*tau,2)}, {v(40+2*(tau+3),2)}, {v(78,2)}")
    for jj in range(1, 4):
        for tau in range(8):
            d = 86 + 2*tau
            A(f"v_pk_fma_f32 {v(d,2)}, {v(40+2*(tau+3-jj),2)}, {v(78+2*jj,2)}, {v(d,2)}")
    A("s_waitcnt lgkmcnt(0)")
    for r in range(8):
        A(f"v_lshlrev_b32 {v(62+2*r)}, 16, {v(28+r)}")
        A(f"v_and_b32 {v(63+2*r)}, 0xffff0000, {v(28+r)}")
    for tau in range(8):
        d = 86 + 2*tau
        A(f"v_pk_mul_f32 {v(d,2)}, {v(d,2)}, {v(62+2*tau,2)}")
    for e in range(4):
        A(f"v_cvt_pk_bf16_f32 {v(104+e)}, {v(86+2*(7-2*e))}, {v(86+2*(6-2*e))}")
        A(f"v_cvt_pk_bf16_f32 {v(108+e)}, {v(87+2*(7-2*e))}, {v(87+2*(6-2*e))}")
    A("ds_write_b128 v112, v[104:107]")
    A("ds_write_b128 v112, v[108:111] offset:128")
    A(f"s_sub_u32 {s(S_T0)}, {s(S_NONCE)}, 1")
    A(f"v_mov_b32 v156, {s(S_T0)}")
    A(f"v_mov_b32 v16, {OK2}")
    A("ds_write_b32 v16, v156")
    A("s_waitcnt lgkmcnt(0)")
    stamp(3)
    A("s_barrier")
    stamp(4)
    A("ds_read_b128 v[24:27], v118")
    A("ds_read_b128 v[28:31], v119")
    for t in reads(0): A(t)
    A("s_waitcnt lgkmcnt(7)")
    A(f"global_store_dwordx4 v120, v[24:27], {s(S_WS,2)} {SCS}")
    A(f"global_store_dwordx4 v121, v[28:31], {s(S_WS,2)} {SCS}")
    for t in reads(1): A(t)
    fill = (record(gen_masks) + record(c_consts)) if opt.get("mfill", 0) else []
    for n in range(32):
        if (n & 3) == 2 and n + 2 < 32:
            A("s_waitcnt lgkmcnt(0)")
            if n == 2: epi_addr()
            if n == 6: halo_addr()
            if n == 10:
                A("s_waitcnt vmcnt(0)")
                publish(F_B1, 16, 17)

            if prof and n <= 14: A(f"s_memtime s[{8+2*(n>>2)}:{9+2*(n>>2)}]")
            A("s_barrier")
        elif n + 1 < 32:
            A("s_waitcnt lgkmcnt(7)")
        else:
            A("s_waitcnt lgkmcnt(0)")
        R = reads(n + 2) if n + 2 < 32 else []
        nf = 0
        if n >= 11 and fill: nf = min(len(fill), 6)
        F = fill[:nf]; fill = fill[nf:]
        A(mfma(n, 0))
        for t in R[0:3]: A(t)
        for t in F[0:2]: A(t)
        A(mfma(n, 1))
        for t in R[3:5]: A(t)
        for t in F[2:4]: A(t)
        A(mfma(n, 2))
        for t in R[5:7]: A(t)
        for t in F[4:]: A(t)
    if prof:
        A("s_waitcnt lgkmcnt(0)")
        for c in range(4): A(f"v_writelane_b32 v255, s{8+2*c}, {22+c}")
    assert not fill
    stamp(5)
    PK = 112
    for i in range(8):
        A(f"v_cvt_pk_bf16_f32 {v(PK+8+i)}, {v(ACC+16+2*i)}, {v(ACC+17+2*i)}")
    A(f"global_store_dwordx4 v37, {v(PK+8,4)}, {s(S_WS,2)} {SCS}")
    A(f"global_store_dwordx4 v38, {v(PK+12,4)}, {s(S_WS,2)} {SCS}")
    for i in range(8):
        A(f"v_cvt_pk_bf16_f32 {v(PK+16+i)}, {v(ACC+32+2*i)}, {v(ACC+33+2*i)}")
    A(f"global_store_dwordx4 v39, {v(PK+16,4)}, {s(S_WS,2)} {SCS}")
    A(f"global_store_dwordx4 v39, {v(PK+20,4)}, {s(S_WS,2)} offset:512 {SCS}")
    A(f"s_mov_b32 {s(S_T0)}, {QSCALE}")
    for r in range(16):
        A(f"v_mul_f32 {v(ACC+r)}, {s(S_T0)}, {v(ACC+r)}")
    for i in range(8):
        A(f"v_cvt_pk_bf16_f32 {v(PK+i)}, {v(ACC+2*i)}, {v(ACC+2*i+1)}")
    A(f"ds_write_b128 v33, {v(PK+8,4)} offset:{LK + 8*1024}")
    A(f"ds_write_b128 v33, {v(PK+12,4)} offset:{LK + KHS + 8*1024}")
    A(f"ds_write_b128 v36, {v(PK+16,4)} offset:{LV + 8*VTS}")
    A(f"ds_write_b128 v36, {v(PK+20,4)} offset:{LV + 8*VTS + 512}")
    A(f"ds_write_b128 v33, {v(PK,4)} offset:{LQ}")
    A(f"ds_write_b128 v33, {v(PK+4,4)} offset:{LQ+4096}")
    A(f"s_cmp_lg_u32 {s(S_LI)}, 0")
    A("s_cbranch_scc1 L_c_nopad")
    A(f"v_mov_b32 v24, {ONES}"); A("v_mov_b32 v25, v24"); A("v_mov_b32 v26, v24"); A("v_mov_b32 v27, v24")
    A(f"v_mul_u32_u24 v28, {VTS}, v1")
    A("v_cmp_gt_u32 vcc, 24, v1")
    A(f"s_and_saveexec_b64 {s(S_EX,2)}, vcc")
    A(f"ds_write_b128 v28, v[24:27] offset:{LV + 1024}")
    A(f"s_mov_b64 exec, {s(S_EX,2)}")
    A("L_c_nopad:")
    A("s_waitcnt vmcnt(0)")
    publish(F_A1, 16, 17)
    stamp(6)
    if not opt.get("lateh", 1): flag_load(157, 158)
    A(f"s_mov_b32 {s(S_T4)}, {s(S_T2)}")
    A(f"s_mov_b32 {s(S_T5)}, {s(S_T3)}")
    c_setup()
    call("L_sub_b")
    A(f"s_mov_b32 {s(S_T2)}, {s(S_T4)}")
    A(f"s_mov_b32 {s(S_T3)}, {s(S_T5)}")
    A(f"s_cmp_eq_u32 {s(S_RB)}, 0")
    A("s_cbranch_scc1 L_c_halo_done")
    if opt.get("lateh", 1):
        spin(157, 158, "L_poll_h")
    else:
        A("s_waitcnt vmcnt(0)")
        check_or_spin(157, 158, "L_poll_h")
    stamp(7)
    A("v_lshlrev_b32 v18, 4, v1")
    A(f"s_lshl_b32 {s(S_T4)}, {s(S_LI)}, 10")
    A(f"s_mul_i32 {s(S_T5)}, {s(S_LI)}, {VTS}")
    def halo(rbreg, toff):
        A(f"s_lshl_b32 {s(S_T0)}, {s(S_HP)}, 7")
        A(f"s_lshl_b32 {s(S_T1)}, {s(rbreg)}, 2")
        A(f"s_add_u32 {s(S_T0)}, {s(S_T0)}, {s(S_T1)}")
        A(f"s_add_u32 {s(S_T0)}, {s(S_T0)}, {s(S_LI)}")
        A(f"s_lshl_b32 {s(S_T0)}, {s(S_T0)}, 10")
        for hd in range(2):
            A(f"s_add_u32 m0, {s(S_T4)}, {LK + hd*KHS + toff*1024}")
            A(f"s_add_u32 {s(S_T1)}, {s(S_T0)}, {KW + hd*65536}")
            A(f"buffer_load_dwordx4 v18, {s(R_WS,4)}, {s(S_T1)} offen sc1 lds")
            A(f"s_add_u32 m0, {s(S_T5)}, {LV + hd*VHS + toff*VTS}")
            A(f"s_add_u32 {s(S_T1)}, {s(S_T0)}, {VW + hd*65536}")
            A(f"buffer_load_dwordx4 v18, {s(R_WS,4)}, {s(S_T1)} offen sc1 lds")
    halo(S_T2, 4)
    A(f"s_cmp_eq_u32 {s(S_RB)}, 1")
    A("s_cbranch_scc1 L_c_halo_done")
    halo(S_T3, 0)
    A("L_c_halo_done:")
    A(f"s_or_b32 {s(S_T0)}, s2, {s(S_WV)}")
    A(f"s_cmp_lg_u32 {s(S_T0)}, 0")
    A("s_cbranch_scc0 L_st_epoch")
    stubs.append("EPOCH")
    A("L_epdone:")
    A("s_waitcnt lgkmcnt(0)")
    A("s_barrier")
    A("s_waitcnt vmcnt(0) lgkmcnt(0)")
    stamp(8)
    A("s_barrier")
    stamp(9)
    A("s_branch L_a2")

    A("L_lwave:")
    if opt.get("lprio", 0): A(f"s_setprio {opt.get('lprio')}")
    A("v_lshrrev_b32 v220, 3, v1")
    A(f"s_lshl_b32 {s(S_T0)}, {s(S_RB)}, 7")
    A(f"s_lshl_b32 {s(S_T1)}, {s(S_LI)}, 5")
    A(f"s_add_u32 {s(S_T0)}, {s(S_T0)}, {s(S_T1)}")
    A(f"v_add_u32 v220, {s(S_T0)}, v220")
    A("v_lshlrev_b32 v220, 10, v220")
    A("v_and_b32 v221, 7, v1")
    A("v_lshrrev_b32 v222, 4, v1")
    A("v_xor_b32 v223, v221, v222")
    A("v_lshl_add_u32 v200, v223, 4, v220")
    A("v_xor_b32 v223, 4, v223")
    A("v_lshl_add_u32 v201, v223, 4, v220")
    A("v_lshrrev_b32 v220, 2, v1")
    A(f"s_lshl_b32 {s(S_T0)}, {s(S_LI)}, 4")
    A(f"v_add_u32 v220, {s(S_T0)}, v220")
    A(f"v_mul_u32_u24 v220, 3072, v220")
    A("v_and_b32 v221, 3, v1")
    A("v_lshlrev_b32 v221, 4, v221")
    A(f"s_lshl_b32 {s(S_T0)}, {s(S_HP)}, 6")
    A(f"v_add3_u32 v202, v220, v221, {s(S_T0)}")
    S_LX, S_LW = S_T4, S_T5
    A(f"s_lshl_b32 {s(S_LX)}, {s(S_LI)}, 12")
    A(f"s_lshl_b32 {s(S_LW)}, {s(S_LI)}, 10")
    A(f"s_lshl_b32 {s(S_CH)}, {s(S_XCD)}, 6")
    A(f"s_lshl_b32 {s(S_T1)}, {s(S_J)}, 1")
    A(f"s_add_u32 {s(S_CH)}, {s(S_CH)}, {s(S_T1)}")
    A(f"s_lshr_b32 {s(S_T1)}, {s(S_LI)}, 1")
    A(f"s_add_u32 {s(S_CH)}, {s(S_CH)}, {s(S_T1)}")
    A(f"s_mul_i32 {s(S_CBASE)}, {s(S_T1)}, {CB}")
    A(f"s_add_u32 {s(S_CBASE)}, {s(S_CBASE)}, {B2R}")
    A(f"s_and_b32 {s(S_T2)}, {s(S_LI)}, 1")
    A(f"s_lshl_b32 {s(S_T1)}, {s(S_CH)}, 12")
    A(f"s_lshl_b32 {s(S_T3)}, {s(S_T2)}, 11")
    A(f"s_add_u32 {s(S_T1)}, {s(S_T1)}, {s(S_T3)}")
    A("v_lshlrev_b32 v203, 4, v1")
    A(f"v_add_u32 v203, {s(S_T1)}, v203")
    A("v_add_u32 v204, 2, v203")
    A("s_waitcnt lgkmcnt(0)")
    if opt.get("wsoff", 0):
        A(f"s_add_u32 {s(S_WS)}, {s(S_WS)}, {opt['wsoff'] << 20}")
        A(f"s_addc_u32 {s(S_WS+1)}, {s(S_WS+1)}, 0")
    stamp(1)
    srd(R_X, S_X, 2048*1024)
    srd(R_W, S_WQKV, 512*3072)
    A(f"s_load_dword {s(S_NONCE)}, {s(S_WS,2)}, {EP}")
    if opt.get("rot", 1):
        A(f"s_and_b32 {s(S_T0)}, {s(S_RB)}, 3")
        A(f"s_lshl_b32 {s(S_T0)}, {s(S_T0)}, 1")
        A(f"s_add_u32 {s(S_ROT)}, {s(S_HP)}, {s(S_T0)}")
        if opt.get("rotmask", 7) != 7: A(f"s_and_b32 {s(S_ROT)}, {s(S_ROT)}, {opt['rotmask']}")
    else:
        A(f"s_mov_b32 {s(S_ROT)}, 0")
    def dma_chunk(c):
        st = STAGE[c] * STG
        A(f"s_add_u32 {s(S_T1)}, {s(S_ROT)}, {c}")
        A(f"s_and_b32 {s(S_T1)}, {s(S_T1)}, 7")
        A(f"s_mul_i32 {s(S_T2)}, {s(S_T1)}, {64*3072}")
        A(f"s_lshl_b32 {s(S_T1)}, {s(S_T1)}, 7")
        for n in range(4):
            A(f"s_add_u32 m0, {s(S_LX)}, {st + n*1024}")
            A(f"s_add_u32 {s(S_T0)}, {s(S_T1)}, {n*8192}")
            A(f"buffer_load_dwordx4 {v(200 + (n & 1))}, {s(R_X,4)}, {s(S_T0)} offen {NT_XW} lds")
        for p in range(3):
            A(f"s_add_u32 m0, {s(S_LW)}, {st + 16384 + p*4096}")
            A(f"s_add_u32 {s(S_T0)}, {s(S_T2)}, {p*1024}")
            A(f"buffer_load_dwordx4 v202, {s(R_W,4)}, {s(S_T0)} offen {NT_XW} lds")
    DIST = opt.get('dist', 3)
    for c in range(DIST): dma_chunk(c)
    def h_small():
        A(f"s_lshl_b32 {s(S_T0)}, {s(S_CH)}, 12")
        A(f"v_mov_b32 v34, {s(S_T0)}")
        A(f"global_load_dword v32, v34, {s(S_SSMK,2)}")
        A(f"s_lshl_b32 {s(S_T0)}, {s(S_CH)}, 1")
        A(f"s_and_b32 {s(S_T0)}, {s(S_T0)}, 0xfffffffc")
        A(f"v_mov_b32 v35, {s(S_T0)}")
        A(f"global_load_dword v33, v35, {s(S_SD,2)}")
    def h_loads():
        srd(R_WO, S_SSMK, 512*4096)
        A(f"s_and_b32 {s(S_T2)}, {s(S_LI)}, 1")
        A(f"s_lshl_b32 {s(S_T2)}, {s(S_T2)}, 11")
        A(f"s_add_u32 {s(S_T2)}, {s(S_T2)}, {s(S_CBASE)}")
        A("v_add_u32 v203, 4, v203")
        for n in range(2):
            A(f"s_add_u32 m0, {s(S_T2)}, {O_OFF + 32 + n*1024}")
            A(f"s_mov_b32 {s(S_T0)}, {n*1024}")
            A(f"buffer_load_dwordx4 v203, {s(R_WO,4)}, {s(S_T0)} offen {NT_B} lds")
            A(f"s_add_u32 m0, {s(S_T2)}, {E_OFF + 32 + n*1024}")
            A(f"buffer_load_dwordx4 v204, {s(R_WO,4)}, {s(S_T0)} offen {NT_B} lds")
    stamp(2)
    AA, AB = 16, 24
    CA = [32, 64]
    CBf = [96, 128]
    CACC = 160
    def build_eo():
        A(f"s_and_b32 {s(S_T2)}, {s(S_LI)}, 1")
        A(f"s_cmp_eq_u32 {s(S_T2)}, 0")
        A("s_cbranch_scc1 L_l_nopad")
        A(f"s_lshr_b32 {s(S_T0)}, {s(S_LI)}, 1")
        A(f"s_lshl_b32 {s(S_T0)}, {s(S_T0)}, 4")
        A(f"v_lshrrev_b32 v33, {s(S_T0)}, v33")
        A("v_lshlrev_b32 v33, 16, v33")
        A("v_lshlrev_b32 v34, 16, v32")
        A("v_add_f32 v34, v33, v34")
        A("v_cvt_pk_bf16_f32 v34, v34, v34")
        A("v_and_b32 v34, 0xffff, v34")
        A("v_and_b32 v35, 0xffff0000, v32")
        A("v_or_b32 v35, v35, v34")
        A("v_lshlrev_b32 v34, 16, v34")
        A("v_mov_b32 v36, 0")
        A("v_lshlrev_b32 v37, 2, v1")
        A(f"v_add_u32 v37, {s(S_CBASE)}, v37")
        A("v_cmp_eq_u32 vcc, 7, v1")
        A("v_cndmask_b32 v34, v36, v34, vcc")
        A("v_cndmask_b32 v35, v36, v35, vcc")
        A("v_cmp_gt_u32 vcc, 8, v1")
        A(f"s_and_saveexec_b64 {s(S_EX,2)}, vcc")
        A(f"ds_write_b32 v37, v34 offset:{E_OFF}")
        A(f"ds_write_b32 v37, v35 offset:{O_OFF}")
        A(f"s_mov_b64 exec, {s(S_EX,2)}")
        A("v_mov_b32 v39, 0")
        A("v_mov_b32 v38, 0")
        A("v_lshlrev_b32 v37, 3, v1")
        A(f"v_add_u32 v37, {s(S_CBASE)}, v37")
        A("v_cmp_gt_u32 vcc, 60, v1")
        A(f"s_and_saveexec_b64 {s(S_EX,2)}, vcc")
        A(f"ds_write_b64 v37, v[38:39] offset:{U_OFF + 4096}")
        A(f"s_mov_b64 exec, {s(S_EX,2)}")
        A("L_l_nopad:")
        A("s_waitcnt lgkmcnt(0)")
    def conv_addr():
        A("v_and_b32 v25, 15, v1")
        A("v_lshrrev_b32 v26, 4, v1")
        A("v_lshrrev_b32 v27, 1, v25")
        A("v_lshl_add_u32 v27, v26, 2, v27")
        A("v_lshlrev_b32 v27, 2, v27")
        A("v_and_b32 v28, 1, v25")
        A(f"v_mul_u32_u24 v28, {O_OFF}, v28")
        A(f"s_and_b32 {s(S_T2)}, {s(S_LI)}, 1")
        A(f"s_lshl_b32 {s(S_T0)}, {s(S_T2)}, 8")
        A(f"s_add_u32 {s(S_T0)}, {s(S_T0)}, {s(S_CBASE)}")
        A(f"v_add3_u32 {v(AA)}, v27, v28, {s(S_T0)}")
        for jj in range(1, 8):
            A(f"v_add_u32 {v(AA+jj)}, {512*jj}, {v(AA)}")
        A("v_lshlrev_b32 v27, 4, v26")
        A("v_lshlrev_b32 v28, 5, v25")
        A("v_sub_u32 v27, v27, v28")
        A(f"s_add_u32 {s(S_T0)}, {s(S_T0)}, {U_OFF + 480}")
        A(f"v_add_u32 {v(AB)}, {s(S_T0)}, v27")
    def ur_dma():
        A(f"s_lshl_b32 {s(S_T0)}, {s(S_CH)}, 12")
        A(f"s_add_u32 {s(S_T0)}, {s(S_T0)}, {UR}")
        A("v_lshlrev_b32 v28, 4, v1")
        for cs in range(2):
            for n in range(4):
                A(f"s_mov_b32 m0, {B2R + cs*CB + U_OFF + n*1024}")
                A(f"s_add_u32 {s(S_T1)}, {s(S_T0)}, {cs*4096 + n*1024}")
                A(f"buffer_load_dwordx4 v28, {s(R_WS,4)}, {s(S_T1)} offen sc1 lds")
    def lbar(c, n):
        if n is not None: A(f"s_waitcnt vmcnt({n})")
        if prof:
            A("s_memtime s[98:99]"); A("s_waitcnt lgkmcnt(0)"); A(f"v_writelane_b32 v255, s98, {22+c}")
        A("s_barrier")
        if prof:
            A("s_memtime s[98:99]"); A("s_waitcnt lgkmcnt(0)"); A(f"v_writelane_b32 v255, s98, {54+c}")
    A("s_waitcnt lgkmcnt(0)")
    A(f"s_lshl_b32 {s(S_T0)}, {s(S_LI)}, 2")
    A(f"s_add_u32 {s(S_T0)}, {s(S_T0)}, {OKW}")
    A(f"v_mov_b32 v29, {s(S_T0)}")
    A(f"v_mov_b32 v26, {s(S_NONCE)}")
    A("ds_write_b32 v29, v26")
    A("s_waitcnt lgkmcnt(0)")
    def b1_flag_sample():
        A("v_and_b32 v30, 31, v1")
        A("v_lshlrev_b32 v30, 10, v30")
        A(f"s_lshl_b32 {s(S_T0)}, {s(S_XCD)}, 7")
        A(f"s_lshr_b32 {s(S_T1)}, {s(S_J)}, 3")
        A(f"s_lshl_b32 {s(S_T1)}, {s(S_T1)}, 2")
        A(f"s_add_u32 {s(S_T0)}, {s(S_T0)}, {s(S_T1)}")
        A(f"s_add_u32 {s(S_T0)}, {s(S_T0)}, {FLG + F_B1}")
        A(f"v_add_u32 v30, {s(S_T0)}, v30")
        A(f"s_cmp_eq_u32 {s(S_LI)}, 0")
        A("s_cbranch_scc1 L_l_w4a")
        A(f"s_lshl_b32 {s(S_T0)}, s2, 7")
        A(f"s_add_u32 {s(S_T0)}, {s(S_T0)}, {FLG + F_B1}")
        A(f"v_mov_b32 v30, {s(S_T0)}")
        A("L_l_w4a:")
        flag_load(30, 31)
    if DIST == 3:
        lbar(0, 14)
        dma_chunk(3)
        A(f"s_add_u32 {s(S_NONCE)}, {s(S_NONCE)}, 1")
        srd(R_WS, S_WS, WS_BYTES)
        lbar(1, 14)
        dma_chunk(4)
        lbar(2, 14)
        dma_chunk(5)
        lbar(3, 14)
        dma_chunk(6)
        lbar(4, 14)
        dma_chunk(7)
        lbar(5, 14)
        h_small()
        b1_flag_sample()
        h_loads()
        lbar(6, 14)
        conv_addr()
    else:
        lbar(0, 7)
        dma_chunk(2)
        A(f"s_add_u32 {s(S_NONCE)}, {s(S_NONCE)}, 1")
        srd(R_WS, S_WS, WS_BYTES)
        lbar(1, 7)
        dma_chunk(3)
        h_loads()
        lbar(2, 12)
        dma_chunk(4)
        lbar(3, 12)
        dma_chunk(5)
        lbar(4, 7)
        dma_chunk(6)
        lbar(5, 7)
        dma_chunk(7)
        b1_flag_sample()
        build_eo()
        lbar(6, 8)
        conv_addr()
    A("s_waitcnt vmcnt(4)")
    A(f"s_mov_b32 {s(S_OK)}, 0")
    A(f"s_cmp_lg_u32 {s(S_LI)}, 0")
    A("s_cbranch_scc1 L_l_late")
    A(f"v_cmp_ne_u32 vcc, {s(S_NONCE)}, v31")
    A("s_cbranch_vccnz L_l_late")
    ur_dma()
    A(f"s_mov_b32 {s(S_OK)}, 1")
    A("L_l_late:")
    build_eo()
    if prof:
        A("s_memtime s[98:99]"); A("s_waitcnt lgkmcnt(0)"); A(f"v_writelane_b32 v255, s98, 29")
    A("s_barrier")
    if opt.get("lprio", 0) != opt.get("cprio", 0): A(f"s_setprio {opt.get('cprio', 0)}")
    stamp(5)
    A(f"v_mov_b32 {v(PFB2)}, 0")
    call("L_sub_b")
    stamp(6)
    A(f"s_cmp_lg_u32 {s(S_LI)}, 0")
    A("s_cbranch_scc1 L_l_have")
    A(f"s_cmp_eq_u32 {s(S_OK)}, 1")
    A("s_cbranch_scc1 L_l_have")
    spin(30, 31, "L_poll_b1")
    ur_dma()
    A("L_l_have:")
    A("s_waitcnt vmcnt(0)")
    A(f"v_mov_b32 v26, {s(S_NONCE)}")
    A("ds_write_b32 v29, v26")
    A(f"v_mov_b32 v25, {OKW}")
    A(f"s_mov_b32 {s(S_SPIN)}, {SPIN*8}")
    A("L_l_ospin:")
    A("ds_read_b128 v[32:35], v25")
    A("s_waitcnt lgkmcnt(0)")
    A(f"v_cmp_ne_u32 vcc, {s(S_NONCE)}, v32")
    A(f"v_cmp_ne_u32 {s(S_CMP,2)}, {s(S_NONCE)}, v33")
    A(f"v_cmp_ne_u32 {s(S_CMP+2,2)}, {s(S_NONCE)}, v34")
    A(f"v_cmp_ne_u32 {s(S_CMP+4,2)}, {s(S_NONCE)}, v35")
    A(f"s_or_b64 vcc, vcc, {s(S_CMP,2)}")
    A(f"s_or_b64 vcc, vcc, {s(S_CMP+2,2)}")
    A(f"s_or_b64 vcc, vcc, {s(S_CMP+4,2)}")
    A("s_cbranch_vccz L_l_go")
    A(f"s_sub_u32 {s(S_SPIN)}, {s(S_SPIN)}, 1")
    A(f"s_cmp_lg_u32 {s(S_SPIN)}, 0")
    A("s_cbranch_scc1 L_l_ospin")
    A("L_l_go:")
    A(f"s_and_b32 {s(S_T2)}, {s(S_LI)}, 1")
    stamp(7)
    def conv_reads(ii):
        st = ii & 1
        L = []
        for k in range(8):
            L.append(f"ds_read_b128 {v(CBf[st]+4*k,4)}, {v(AB)} offset:{512*(7-k) + 64*ii}")
            L.append(f"ds_read2_b32 {v(CA[st]+4*k,2)}, {v(AA+k)} offset0:{16*ii} offset1:{16*ii+1}")
            L.append(f"ds_read2_b32 {v(CA[st]+4*k+2,2)}, {v(AA+k)} offset0:{16*ii+2} offset1:{16*ii+3}")
        return L
    r0 = conv_reads(0)
    first = [r0[1], r0[2]] + [r0[3*k] for k in range(8)] + [x for k in range(1, 8) for x in (r0[3*k+1], r0[3*k+2])]
    for r in first: A(r)
    for ii in range(4):
        nxt = conv_reads(ii + 1) if ii < 3 else []
        st = ii & 1
        k = 0
        for jj in range(8):
            if ii == 0:
                if jj == 0: A("s_waitcnt lgkmcnt(14)")
                elif jj == 1: A("s_waitcnt lgkmcnt(0)")
            elif jj == 0:
                A("s_waitcnt lgkmcnt(0)")
            for cp in range(8 - jj):
                acc = v(CACC + 4*(cp + jj), 4)
                cin = "0" if (ii == 0 and jj == 0) else acc
                A(f"{MF16} {acc}, {v(CA[st]+4*jj,4)}, {v(CBf[st]+4*cp,4)}, {cin}")
                if k < len(nxt) and not (ii == 0 and jj == 0):
                    A(nxt[k]); k += 1
        while k < len(nxt):
            A(nxt[k]); k += 1
    stamp(8)
    if opt.get("cprio", 0): A("s_setprio 0")
    A("s_nop 7")
    A(f"s_and_b32 {s(S_T2)}, {s(S_LI)}, 1")
    A("v_and_b32 v28, 15, v1")
    A("v_lshlrev_b32 v28, 5, v28")
    A("v_bfe_u32 v29, v1, 4, 1")
    A("v_lshl_add_u32 v28, v29, 9, v28")
    A("v_lshrrev_b32 v29, 5, v1")
    A("v_lshl_add_u32 v28, v29, 4, v28")
    A(f"s_lshl_b32 {s(S_T0)}, {s(S_CH)}, 12")
    A(f"s_lshl_b32 {s(S_T1)}, {s(S_T2)}, 11")
    A(f"s_add_u32 {s(S_T0)}, {s(S_T0)}, {s(S_T1)}")
    A(f"s_add_u32 {s(S_T0)}, {s(S_T0)}, {YT}")
    A(f"v_add_u32 v28, {s(S_T0)}, v28")
    A("v_lshlrev_b32 v248, 4, v1")
    A(f"v_add_u32 v248, {MSK}, v248")
    A("v_lshlrev_b32 v25, 4, v1")
    A(f"s_lshl_b32 {s(S_T0)}, {s(S_LI)}, 12")
    A(f"v_add_u32 v26, {s(S_T0)}, v25")
    A(f"s_xor_b32 {s(S_T0)}, {s(S_T0)}, 4096")
    A(f"v_add_u32 v27, {s(S_T0)}, v25")
    A(f"s_cmp_lg_u32 {s(S_T2)}, 0")
    A("s_cbranch_scc1 L_l_x1")
    for k in range(4):
        A(f"ds_write_b128 v26, {v(CACC+16+4*k,4)} offset:{LR + 1024*k}")
    A("s_waitcnt lgkmcnt(0)")
    A("s_barrier")
    for k in range(4):
        A(f"ds_read_b128 {v(32+4*k,4)}, v27 offset:{LR + 1024*k}")
    for k in range(10):
        A(f"ds_read_b128 {v(MM0+4*k,4)}, v248 offset:{1024*k}")
    A("s_waitcnt lgkmcnt(10)")
    for r in range(16):
        A(f"v_add_f32 {v(48+r)}, {v(32+r)}, {v(CACC+r)}")
    A("s_branch L_l_x2")
    A("L_l_x1:")
    A("s_nop 7")
    for k in range(4):
        A(f"ds_write_b128 v26, {v(CACC+4*k,4)} offset:{LR + 1024*k}")
    A("s_waitcnt lgkmcnt(0)")
    A("s_barrier")
    for k in range(4):
        A(f"ds_read_b128 {v(32+4*k,4)}, v27 offset:{LR + 1024*k}")
    for k in range(10):
        A(f"ds_read_b128 {v(MM0+4*k,4)}, v248 offset:{1024*k}")
    A("s_waitcnt lgkmcnt(10)")
    for r in range(16):
        A(f"v_add_f32 {v(48+r)}, {v(32+r)}, {v(CACC+16+r)}")
    A("L_l_x2:")
    for k in range(4):
        A(f"v_cvt_pk_bf16_f32 {v(32+2*k)}, {v(48+4*k)}, {v(49+4*k)}")
        A(f"v_cvt_pk_bf16_f32 {v(33+2*k)}, {v(50+4*k)}, {v(51+4*k)}")
    A("v_permlane16_swap_b32 v32, v34")
    A("v_permlane16_swap_b32 v33, v35")
    A("v_permlane16_swap_b32 v36, v38")
    A("v_permlane16_swap_b32 v37, v39")
    A(f"global_store_dwordx4 v28, v[32:35], {s(S_WS,2)} {SCS}")
    A(f"global_store_dwordx4 v28, v[36:39], {s(S_WS,2)} offset:1024 {SCS}")
    A("s_waitcnt lgkmcnt(0)")
    A("s_barrier")
    stamp(9)
    A("L_a2:")
    if DBG: A("s_memrealtime s[10:11]")
    if opt.get("prio", 0) == 1: A("s_setprio 1")
    if opt.get("prio", 0) == 2:
        A(f"s_cmp_lt_u32 {s(S_WV)}, 4")
        A("s_cbranch_scc1 L_a2_np")
        A("s_setprio 1")
        A("L_a2_np:")
    Q, KF, SA, SB, CN, PP, VF, O = 16, 20, 56, 72, 88, 104, 120, 136
    AK, AV0, AV1, TM, TM2 = PAK, PAV0, PAV1, 155, 156
    TM3 = 169
    VQ3, VF2A, VF2 = 160, PFB2, 165
    A(f"ds_read_b128 {v(Q,4)}, {v(PAQ)} offset:{LQ}")
    order = [8, 0, 7, 6, 5, 4, 3, 2, 1]
    for jj in order:
        A(f"ds_read_b128 {v(KF+4*jj,4)}, {v(AK)} offset:{LK + jj*1024}")
    for r in range(4):
        A(f"global_load_dword {v(VQ3+r)}, {v(PQ3)}, {s(S_BQ,2)} offset:{1024*r} {NT_B}")
    buf = lambda jj: SA if (jj & 1) else SB
    A("s_waitcnt lgkmcnt(7)")
    A(f"{MF} {v(MM8,16)}, {v(KF+32,4)}, {v(Q,4)}, {v(MM8,16)}")
    A(f"{MF} {v(MM0,16)}, {v(KF+0,4)}, {v(Q,4)}, {v(MM0,16)}")
    A("s_waitcnt lgkmcnt(5)")
    A(f"{MF} {v(SA,16)}, {v(KF+28,4)}, {v(Q,4)}, 0")
    A(f"{MF} {v(SB,16)}, {v(KF+24,4)}, {v(Q,4)}, 0")
    A(f"s_cmp_gt_u32 {s(S_J0)}, 0")
    A("s_cbranch_scc1 L_st_nomerge")
    stubs.append(["L_st_nomerge:", "s_nop 15", "s_branch L_a2_nomerge"])
    for r in range(16):
        A(f"v_max_f32 {v(MM8+r)}, {v(MM0+r)}, {v(MM8+r)}")
    A("L_a2_nomerge:")
    A(f"v_max_f32 {v(TM)}, {v(MM8)}, {v(MM8+1)}")
    A(f"v_max_f32 {v(TM3)}, {v(MM8+2)}, {v(MM8+3)}")
    for r in range(4, 16, 2):
        t = TM if (r & 2) == 0 else TM3
        A(f"v_max3_f32 {v(t)}, {v(t)}, {v(MM8+r)}, {v(MM8+r+1)}")
    A("s_waitcnt lgkmcnt(0)")
    for jj in range(7, 0, -1):
        b = buf(jj)
        A(f"s_cmp_gt_u32 {s(S_J0)}, {jj}")
        A("s_cbranch_scc1 L_a2_p1done")
        for r in range(0, 16, 2):
            t = TM if (r & 2) == 0 else TM3
            A(f"v_max3_f32 {v(t)}, {v(t)}, {v(b+r)}, {v(b+r+1)}")
        if jj - 2 >= 1:
            A(f"{MF} {v(b,16)}, {v(KF+4*(jj-2),4)}, {v(Q,4)}, 0")
    A("L_a2_p1done:")
    A(f"v_max_f32 {v(TM)}, {v(TM)}, {v(TM3)}")
    A(f"v_mov_b32 {v(TM2)}, {v(TM)}")
    A(f"v_permlane32_swap_b32 {v(TM)}, {v(TM2)}")
    A(f"v_max_f32 {v(TM)}, {v(TM)}, {v(TM2)}")
    A(f"v_sub_f32 {v(TM2)}, 0, {v(TM)}")
    for r in range(16):
        A(f"v_mov_b32 {v(CN+r)}, {v(TM2)}")
    stamp(10)
    A(f"{MF} {v(SA,16)}, {v(KF+28,4)}, {v(Q,4)}, {v(CN,16)}")
    A(f"{MF} {v(SB,16)}, {v(KF+24,4)}, {v(Q,4)}, {v(CN,16)}")
    def vread(slot, jj, sidx):
        A(f"ds_read_b128 {v(VF+4*slot,4)}, {v(AV0 if sidx == 0 else AV1)} offset:{LV + jj*VTS + sidx*512}")
    vread(0, 8, 0); vread(1, 8, 1); vread(2, 0, 0); vread(3, 0, 1)
    def pub_b2(lab, n):
        A(f"s_waitcnt vmcnt({n})")
        A(f"s_cmp_lt_u32 {s(S_WV)}, 4")
        A(f"s_cbranch_scc1 {lab}")
        publish(F_B2, 157, 158)
        A(f"{lab}:")
    if opt.get("prio", 0) == 1: A("s_setprio 0")
    pub_b2("L_a2_nopub", 4)
    P0, P1 = PP, PP + 8
    for r in range(16):
        A(f"v_add_f32 {v(MM8+r)}, {v(TM2)}, {v(MM8+r)}")
    for r in range(16):
        A(f"v_exp_f32 {v(MM8+r)}, {v(MM8+r)}")
    for i in range(8):
        A(f"v_cvt_pk_bf16_f32 {v(P0+i)}, {v(MM8+2*i)}, {v(MM8+2*i+1)}")
    for i in range(8):
        A(f"v_and_b32 {v(P1+i)}, {v(MMK+i)}, {v(P0+i)}")
    for i in range(8):
        A(f"v_xor_b32 {v(P0+i)}, {v(P1+i)}, {v(P0+i)}")
    A("s_waitcnt lgkmcnt(0)")
    A(f"{MF} {v(O,16)}, {v(VF+0,4)}, {v(P0,4)}, 0")
    A(f"s_cmp_gt_u32 {s(S_J0)}, 0")
    A("s_cbranch_scc1 L_a2_nopv0")
    A(f"{MF} {v(O,16)}, {v(VF+8,4)}, {v(P1,4)}, {v(O,16)}")
    A(f"{MF} {v(O,16)}, {v(VF+12,4)}, {v(P1+4,4)}, {v(O,16)}")
    A("L_a2_nopv0:")
    pb = lambda jj: PP + 8*(jj & 1)
    sl = lambda jj: 2*(jj & 1)
    def pend(jj):
        if jj == 7: return [f"{MF} {v(O,16)}, {v(VF+4,4)}, {v(P0+4,4)}, {v(O,16)}"]
        p = jj + 1
        return [f"{MF} {v(O,16)}, {v(VF+4*sl(p),4)}, {v(pb(p),4)}, {v(O,16)}",
                f"{MF} {v(O,16)}, {v(VF+4*sl(p)+4,4)}, {v(pb(p)+4,4)}, {v(O,16)}"]
    for jj in range(7, 0, -1):
        b = buf(jj)
        A(f"s_cmp_gt_u32 {s(S_J0)}, {jj}")
        A(f"s_cbranch_scc1 L_st_p2_{jj}")
        def stub(jj=jj):
            A(f"L_st_p2_{jj}:")
            A("s_waitcnt lgkmcnt(0)")
            A("s_nop 1")
            for m in pend(jj): A(m)
            if jj >= 4:
                A(f"s_cmp_ge_u32 {s(S_WV)}, 4")
                A(f"s_cbranch_scc1 L_st_nowo{jj}")
                for n in range(4*(7 - jj), 16): wo_dma(n)
                A(f"L_st_nowo{jj}:")
            if jj >= 3:
                A(f"s_cmp_lg_u32 {s(S_WV)}, 0")
                A("s_cbranch_scc1 L_a2_p2done")
                flag_load(VF2A, VF2)
            A("s_branch L_a2_p2done")
        stubs.append(stub)
        pm = pend(jj)
        pass
        for r in range(16):
            A(f"v_exp_f32 {v(b+r)}, {v(b+r)}")
            if r == 1:
                A("s_waitcnt lgkmcnt(0)")
                A(pm[0])
            if r == 7 and len(pm) > 1: A(pm[1])
            if r == 9:
                vread(sl(jj), jj, 0); vread(sl(jj) + 1, jj, 1)
            if jj >= 4 and r == 11:
                A(f"s_cmp_ge_u32 {s(S_WV)}, 4")
                A(f"s_cbranch_scc1 L_a2_nowo{jj}")
                for n in range(4): wo_dma(4*(7 - jj) + n)
                A(f"L_a2_nowo{jj}:")
            if jj == 3 and r == 13:
                A(f"s_cmp_lg_u32 {s(S_WV)}, 0")
                A("s_cbranch_scc1 L_a2_nosample")
                flag_load(VF2A, VF2)
                A("L_a2_nosample:")
        for i in range(8):
            A(f"v_cvt_pk_bf16_f32 {v(pb(jj)+i)}, {v(b+2*i)}, {v(b+2*i+1)}")
        if jj - 2 >= 1:
            A(f"{MF} {v(b,16)}, {v(KF+4*(jj-2),4)}, {v(Q,4)}, {v(CN,16)}")
    A("s_waitcnt lgkmcnt(0)")
    for m in pend(0): A(m)
    A("L_a2_p2done:")
    if opt.get("prio", 0) == 2: A("s_setprio 0")

    A("s_nop 15")
    A(f"v_rcp_f32 {v(TM)}, {v(O+8)}")
    for r in range(8):
        A(f"v_mul_f32 {v(O+r)}, {v(TM)}, {v(O+r)}")
    for i in range(4):
        A(f"v_cvt_pk_bf16_f32 {v(PP+i)}, {v(O+2*i)}, {v(O+2*i+1)}")
    A(f"global_store_dwordx4 {v(PO)}, {v(PP,4)}, {s(S_WS,2)} {SCS}")
    stamp(11)
    tail_addr()
    A("s_waitcnt vmcnt(0)")
    publish(F_A2, 157, 158)
    stamp(12)
    if not opt.get("latep", 1): flag_load(PFA2, 31)
    A(f"s_cmp_lg_u32 {s(S_WV)}, 0")
    A("s_cbranch_scc1 L_nob2poll")
    check_or_spin(VF2A, VF2, "L_poll_b2")
    A(f"s_lshl_b32 {s(S_T0)}, {s(S_XCD)}, 18")
    A(f"s_lshl_b32 {s(S_T1)}, {s(S_J)}, 7")
    A(f"s_add_u32 {s(S_T0)}, {s(S_T0)}, {s(S_T1)}")
    A(f"s_add_u32 {s(S_T0)}, {s(S_T0)}, {YT}")
    for n in range(8):
        A(f"s_mov_b32 m0, {LYT + n*1024}")
        A(f"s_add_u32 {s(S_T1)}, {s(S_T0)}, {n*8*4096}")
        A(f"buffer_load_dwordx4 {v(PY0 + (n & 1))}, {s(R_WS,4)}, {s(S_T1)} offen sc1 lds")
    A("L_nob2poll:")
    A("L_noep:")
    A("s_barrier")
    stamp(13)
    WF = 32
    for hs in range(8):
        for ft in range(2):
            ad = PAW if ft == 0 else PAO
            A(f"ds_read_b64_tr_b16 {v(WF+8*hs+4*ft,2)}, {v(ad)} offset:{hs*2048}")
            A(f"ds_read_b64_tr_b16 {v(WF+8*hs+4*ft+2,2)}, {v(ad)} offset:{hs*2048 + 1024}")
    A(f"v_mov_b32 v20, {OK2}")
    A(f"s_cmp_lg_u32 {s(S_WV)}, 0")
    A("s_cbranch_scc1 L_nosig")
    A("s_waitcnt vmcnt(0)")
    A(f"v_mov_b32 v21, {s(S_NONCE)}")
    A("ds_write_b32 v20, v21")
    A("L_nosig:")
    A(f"s_mov_b32 {s(S_SPIN)}, {SPIN*8}")
    A("L_y_spin:")
    A("ds_read_b32 v21, v20")
    A("s_waitcnt lgkmcnt(0)")
    A(f"v_cmp_ne_u32 vcc, {s(S_NONCE)}, v21")
    A("s_cbranch_vccz L_y_ok")
    A(f"s_sub_u32 {s(S_SPIN)}, {s(S_SPIN)}, 1")
    A(f"s_cmp_lg_u32 {s(S_SPIN)}, 0")
    A("s_cbranch_scc1 L_y_spin")
    A("L_y_ok:")
    A(f"ds_read_b64 v[22:23], {v(PYR)}")
    A(f"ds_read_b64 v[24:25], {v(PYR)} offset:128")
    for r in range(4):
        A(f"v_lshlrev_b32 {v(136+2*r)}, 16, {v(VQ3+r)}")
        A(f"v_and_b32 {v(137+2*r)}, 0xffff0000, {v(VQ3+r)}")
    A("s_waitcnt lgkmcnt(0)")
    A("v_lshlrev_b32 v144, 16, v22"); A("v_lshlrev_b32 v145, 16, v24")
    A("v_and_b32 v146, 0xffff0000, v22"); A("v_and_b32 v147, 0xffff0000, v24")
    A("v_lshlrev_b32 v148, 16, v23"); A("v_lshlrev_b32 v149, 16, v25")
    A("v_and_b32 v150, 0xffff0000, v23"); A("v_and_b32 v151, 0xffff0000, v25")
    for r in range(4):
        A(f"v_pk_mul_f32 {v(144+2*r,2)}, {v(144+2*r,2)}, {v(136+2*r,2)}")
    for r in range(4):
        A(f"v_cvt_pk_bf16_f32 {v(152+r)}, {v(144+2*r)}, {v(145+2*r)}")
    A(f"v_add_u32 v21, 0x1000, {v(PB3)}")
    A(f"global_store_dword {v(PB3)}, v152, {s(S_OUT,2)} {BST}")
    A(f"global_store_dword {v(PB3)}, v153, {s(S_OUT,2)} offset:2048 {BST}")
    A(f"global_store_dword v21, v154, {s(S_OUT,2)} {BST}")
    A(f"global_store_dword v21, v155, {s(S_OUT,2)} offset:2048 {BST}")
    for m in range(4):
        A(f"v_xor_b32 {v(248+m)}, 128, {v(PPW[m])}")
    spin(PFA2, 31, "L_poll_a2")
    stamp(14)
    OF, AC0, AC1 = 96, 128, 144
    for hs in range(8):
        A(f"s_add_u32 {s(S_T2)}, {s(S_WOB)}, {hs*1024}")
        A(f"buffer_load_dwordx4 {v(OF+4*hs,4)}, {v(PL16)}, {s(R_WS,4)}, {s(S_T2)} offen sc1")
    for hs in range(8):
        A(f"s_waitcnt vmcnt({7 - hs})")
        A(f"{MF} {v(AC0,16)}, {v(WF+8*hs,4)}, {v(OF+4*hs,4)}, {'0' if hs == 0 else v(AC0,16)}")
        A(f"{MF} {v(AC1,16)}, {v(WF+8*hs+4,4)}, {v(OF+4*hs,4)}, {'0' if hs == 0 else v(AC1,16)}")
    stamp(15)
    for m in range(4):
        A(f"ds_write_b128 {v(PPW[m])}, {v(AC0+4*m,4)}")
    for m in range(4):
        A(f"ds_write_b128 {v(248+m)}, {v(AC1+4*m,4)}")
    A("s_waitcnt lgkmcnt(0)")
    stamp(16)
    A("s_barrier")
    stamp(17)
    for kq in range(4):
        A(f"ds_read_b128 {v(32+8*kq,4)}, {v(PPR[0])} offset:{kq*16384}")
        A(f"ds_read_b128 {v(36+8*kq,4)}, {v(PPR[1])} offset:{kq*16384}")
    A("s_waitcnt lgkmcnt(4)")
    for r in range(8):
        A(f"v_add_f32 {v(32+r)}, {v(32+r)}, {v(40+r)}")
    A("s_waitcnt lgkmcnt(0)")
    for r in range(8):
        A(f"v_add_f32 {v(48+r)}, {v(48+r)}, {v(56+r)}")
    for r in range(8):
        A(f"v_add_f32 {v(32+r)}, {v(32+r)}, {v(48+r)}")
    for i in range(4):
        A(f"v_cvt_pk_bf16_f32 {v(64+i)}, {v(32+2*i)}, {v(33+2*i)}")
    A(f"global_store_dwordx4 {v(POUT)}, v[64:67], {s(S_OUT,2)} {FST}")
    if prof:
        stamp(18)
        A(f"s_lshl_b32 {s(S_T0)}, s2, 3")
        A(f"s_add_u32 {s(S_T0)}, {s(S_T0)}, {s(S_WV)}")
        A(f"s_lshl_b32 {s(S_T0)}, {s(S_T0)}, 8")
        A(f"s_add_u32 {s(S_T0)}, {s(S_T0)}, {PROF}")
        A("v_lshlrev_b32 v16, 2, v1")
        A(f"v_add_u32 v16, {s(S_T0)}, v16")
        A(f"global_store_dword v16, v255, {s(S_WS,2)}")
    if DBG:
        A("s_memrealtime s[12:13]")
        A("s_waitcnt lgkmcnt(0)")
        A("v_mov_b32 v16, 0")
        A("s_mov_b64 exec, 1")
        A("v_mov_b32 v17, s12"); A(f"global_atomic_umax v16, v17, {s(S_DBG,2)}")
        A("s_not_b32 s8, s8"); A("v_mov_b32 v17, s8"); A(f"global_atomic_umax v16, v17, {s(S_DBG,2)} offset:4")
        A("v_mov_b32 v17, s10"); A(f"global_atomic_umax v16, v17, {s(S_DBG,2)} offset:8")
        A("s_not_b32 s10, s10"); A("v_mov_b32 v17, s10"); A(f"global_atomic_umax v16, v17, {s(S_DBG,2)} offset:12")
        A("s_not_b32 s12, s12"); A("v_mov_b32 v17, s12"); A(f"global_atomic_umax v16, v17, {s(S_DBG,2)} offset:16")
    A("L_end:")
    A("s_endpgm")
    sub_setup()
    for st in stubs:
        if st == "EPOCH":
            A("L_st_epoch:")
            A(f"s_mov_b32 {s(S_SPIN)}, {SPIN}")
            A("v_lshlrev_b32 v20, 7, v1")
            A(f"v_add_u32 v20, {FLG + F_B1}, v20")
            for q in range(1, 4): A(f"v_add_u32 {v(20+q)}, {q*8192}, v20")
            A("L_ep_spin:")
            for q in range(4): A(f"global_load_dword {v(24+q)}, {v(20+q)}, {s(S_WS,2)} {SCP}")
            A("s_waitcnt vmcnt(0)")
            A(f"v_cmp_ne_u32 vcc, {s(S_NONCE)}, v24")
            for q in range(1, 4):
                A(f"v_cmp_ne_u32 {s(S_CMP+2*q,2)}, {s(S_NONCE)}, {v(24+q)}")
            for q in range(1, 4): A(f"s_or_b64 vcc, vcc, {s(S_CMP+2*q,2)}")
            A("s_cbranch_vccz L_ep_ok")
            A(f"s_sub_u32 {s(S_SPIN)}, {s(S_SPIN)}, 1")
            A(f"s_cmp_lg_u32 {s(S_SPIN)}, 0")
            A("s_cbranch_scc1 L_ep_spin")
            A("L_ep_ok:")
            A(f"v_mov_b32 v20, {EP}")
            A(f"v_mov_b32 v21, {s(S_NONCE)}")
            A(f"s_mov_b64 {s(S_EX,2)}, exec")
            A("s_mov_b64 exec, 1")
            A(f"global_store_dword v20, v21, {s(S_WS,2)} {SCS}")
            A(f"s_mov_b64 exec, {s(S_EX,2)}")
            A("s_branch L_epdone")
        elif callable(st):
            st()
        else:
            for line in st: A(line)
    n = a.fix_hazards()
    return a, n

HEAD = f"""; Fused kernel: sliding-window attention block (A) + H3 shift/long-conv block (B), one persistent launch.
; @launch grid=(256,1,1) block=(512,1,1) lds={LDS_BYTES}
.amdgcn_target "amdgcn-amd-amdhsa--gfx950"
.text
.globl {KN}
.p2align 8
.type {KN},@function
{KN}:
"""
TAIL = f""".section .rodata,"a"
.p2align 6
.amdhsa_kernel {KN}
  .amdhsa_next_free_vgpr 256
  .amdhsa_next_free_sgpr 102
  .amdhsa_accum_offset 256
  .amdhsa_group_segment_fixed_size 0
  .amdhsa_kernarg_size 96
  .amdhsa_user_sgpr_count 2
  .amdhsa_user_sgpr_kernarg_segment_ptr 1
  .amdhsa_system_sgpr_workgroup_id_x 1
.end_amdhsa_kernel
"""
if __name__ == "__main__":
    out = sys.argv[1] if len(sys.argv) > 1 else f"cdna_kernels/{NAME}.s"
    opt = {}
    for x in sys.argv[2:]:
        if "=" in x:
            k, val = x.split("="); opt[k] = int(val)
    a, n = build(prof=("prof" in sys.argv), opt=opt)
    open(out, "w").write(HEAD + a.text() + TAIL)
    print("instructions:", a.count(), "hazard pads:", n)
```
